```python
import torch

def _softmax(x, axis=-1):
    return torch.softmax(x, dim=axis)
def _gelu(x):
    return torch.nn.functional.gelu(x, approximate="tanh")
def _silu(x):
    return torch.nn.functional.silu(x)
def _sigmoid(x):
    return torch.sigmoid(x)
def _layernorm(x, axis=-1, eps=1e-5):
    m = x.mean(dim=axis, keepdim=True)
    v = x.var(dim=axis, keepdim=True, unbiased=False)
    return (x - m) / torch.sqrt(v + eps)
def _scatter_add(tgt, idx, src, axis=0):
    return tgt.clone().index_add_(axis, idx, src)
def _segment_sum(src, seg, n):
    out = torch.zeros((n,) + src.shape[1:], dtype=src.dtype)
    return out.index_add_(0, seg, src)
def _pad(x, pw):
    flat = tuple(v for pair in reversed(pw) for v in pair)
    return torch.nn.functional.pad(x, flat)

kernel_name = 'interleave_layers__mha_block__glu_gated_swiglu__prompt'

def setup_inputs():

    _w = (lambda a: (lambda t: t.to(torch.bfloat16) if t.is_floating_point() else t)(torch.as_tensor(a)))
    def _A_setup():
        B, S, D, H = 1, 2048, 576, 32
        return {
            "x": _w((lambda *s: torch.randn(*s, dtype=torch.bfloat16) * 0.05)(B, S, D)),
            "wqkv": _w((lambda *s: torch.randn(*s, dtype=torch.bfloat16) * 0.05)(D, 3 * D)),
            "wo": _w((lambda *s: torch.randn(*s, dtype=torch.bfloat16) * 0.05)(D, D)),
        }
    _A_in = _A_setup()

    def _B_setup():
        B, S, D, F = 1, 2048, 576, 4608
        return {
            "x": _w((lambda *s: torch.randn(*s, dtype=torch.bfloat16) * 0.05)(B, S, D)),
            "w1": _w((lambda *s: torch.randn(*s, dtype=torch.bfloat16) * 0.4)(D, F) * (2.0 / D) ** 0.5),
            "w3": _w((lambda *s: torch.randn(*s, dtype=torch.bfloat16) * 0.4)(D, F) * (2.0 / D) ** 0.5),
            "w2": _w((lambda *s: torch.randn(*s, dtype=torch.bfloat16) * 0.4)(F, D) * (2.0 / F) ** 0.5),
        }
    _B_in = _B_setup()

    return {
        "A_x": _A_in["x"],
        "A_wqkv": _A_in["wqkv"],
        "A_wo": _A_in["wo"],
        "B_x": _B_in["x"],
        "B_w1": _B_in["w1"],
        "B_w3": _B_in["w3"],
        "B_w2": _B_in["w2"],
    }

def reference(A_x, A_wqkv, A_wo, B_x, B_w1, B_w3, B_w2):
    def _A_ref(x, wqkv, wo):
        B, S, D = x.shape
        H = 32
        Dh = D // H
        qkv = (lambda x, *d: x.permute(*d))((x @ wqkv).reshape(B, S, 3, H, Dh), 2, 0, 3, 1, 4)
        q, k, v = qkv[0], qkv[1], qkv[2]
        scores = torch.einsum("bhqd,bhkd->bhqk", q, k) * (Dh ** -0.5)
        p = _softmax(scores, axis=-1)
        o = torch.einsum("bhqk,bhkd->bhqd", p, v)
        return (lambda x, *d: x.permute(*d))(o, 0, 2, 1, 3).reshape(B, S, D) @ wo

    def _B_ref(x, w1, w3, w2):
        gate = torch.einsum("bsd,df->bsf", x, w1)
        up = torch.einsum("bsd,df->bsf", x, w3)
        h = _silu(gate) * up
        out = torch.einsum("bsf,fd->bsd", h, w2)
        return out

    x = A_x
    x = x + _A_ref(_layernorm(x, axis=-1), A_wqkv, A_wo)
    x = x + _B_ref(_layernorm(x, axis=-1), B_w1, B_w3, B_w2)
    x = x + _A_ref(_layernorm(x, axis=-1), A_wqkv, A_wo)
    x = x + _B_ref(_layernorm(x, axis=-1), B_w1, B_w3, B_w2)
    return x
```

```python
import re

TRANS = ("v_exp_", "v_log_", "v_rcp_", "v_rsq_", "v_sqrt_", "v_sin_", "v_cos_")
NO_DST_SALU = ("s_cmp", "s_waitcnt", "s_barrier", "s_nop", "s_branch", "s_cbranch", "s_setprio", "s_sleep",
               "s_endpgm", "s_set_gpr_idx_off", "s_bitcmp", "s_setreg", "s_sethalt")
REG_RE = re.compile(r"^-?\|?(?:abs\()?([vas])(?:\[(\d+):(\d+)\]|(\d+))\)?\|?$")


def regs_of(op):
    op = op.strip()
    if op in ("vcc", "vcc_lo", "vcc_hi"):
        return {"vcc"}
    if op in ("exec", "exec_lo", "exec_hi"):
        return {"exec"}
    if op == "m0":
        return {"m0"}
    m = REG_RE.match(op)
    if not m:
        return set()
    if m.group(4) is not None:
        return {m.group(1) + m.group(4)}
    return {m.group(1) + str(i) for i in range(int(m.group(2)), int(m.group(3)) + 1)}


class Ins:
    def __init__(self, text, idx):
        self.text, self.idx = text, idx
        body = text.split(";")[0].strip()
        parts = body.split(None, 1)
        self.op = parts[0]
        rest = parts[1] if len(parts) > 1 else ""
        ops = [o.strip() for o in rest.split(",")] if rest else []
        self.mods = ""
        if ops:
            last = ops[-1].split(None, 1)
            if len(last) > 1 and not self.op.startswith("s_waitcnt"):
                ops[-1], self.mods = last[0], last[1]
        self.ops = ops
        op = self.op
        R = [regs_of(o) for o in ops]
        u = lambda xs: set().union(*xs) if xs else set()
        self.kind = "other"
        self.w, self.r = set(), set()
        self.passes = 0
        self.srcC = set()
        self.srcAB = set()
        self.store_data = set()
        if op.startswith("v_mfma") or op.startswith("v_smfmac"):
            self.kind = "mfma"
            self.passes = 4 if "16x16" in op else 8
            self.w = R[0]
            if op.startswith("v_smfmac"):
                self.srcC, self.srcAB = R[0], R[1] | R[2] | R[3]
            else:
                self.srcC, self.srcAB = R[3], R[1] | R[2]
            self.r = self.srcC | self.srcAB
        elif op.startswith("v_"):
            self.kind = "valu"
            if op.startswith("v_permlane") and "swap" in op or op.startswith("v_swap"):
                self.w = R[0] | R[1]
                self.r = R[0] | R[1]
            elif op.startswith("v_nop"):
                pass
            elif re.match(r"v_(add|sub|subrev|addc|subb)_co_", op) or op.startswith("v_mad_u64"):
                self.w = R[0] | R[1]
                self.r = u(R[2:])
            else:
                self.w = set(R[0])
                self.r = u(R[1:])
                if op.startswith("v_cmpx"):
                    self.w |= {"exec"}
                if op.startswith(("v_fmac", "v_dot2c", "v_writelane", "v_pk_fmac")) or "row_" in self.mods \
                        or "quad_perm" in self.mods or "UNUSED_PRESERVE" in self.mods:
                    self.r |= R[0]
                if op.startswith("v_cndmask") and len(ops) == 3:
                    self.r |= {"vcc"}
        elif op.startswith("ds_"):
            self.kind = "ds"
            if op.startswith(("ds_read", "ds_bpermute", "ds_permute", "ds_swizzle")):
                self.w = R[0]
                self.r = u(R[1:])
            else:
                self.r = u(R)
        elif op.startswith(("buffer_", "global_")):
            self.kind = "vmem"
            lds = re.search(r"\blds\b", self.mods) is not None or "load_lds" in op
            self.lds = lds
            if op.startswith(("buffer_wbl2", "buffer_inv")):
                pass
            elif "load" in op and not lds:
                self.w = R[0]
                self.r = u(R[1:])
            elif lds:
                self.r = u(R) | {"m0"}
            else:
                self.r = u(R)
                data = R[0] if op.startswith("buffer_") else R[1]
                if op.endswith(("x3", "x4")):
                    self.store_data = data
                if "atomic" in op and "sc0" in self.mods:
                    self.w = data
        elif op.startswith(("s_load", "s_buffer_load", "s_memtime", "s_memrealtime", "s_atomic")):
            self.kind = "smem"
            self.w = R[0]
            self.r = u(R[1:])
        elif op.startswith("s_"):
            self.kind = "salu"
            if op.startswith("s_set_gpr_idx_on"):
                self.w = {"m0"}
                self.r = R[0]
            elif op.startswith(NO_DST_SALU):
                self.r = u(R)
                if "vcc" in op:
                    self.r |= {"vcc"}
                if "exec" in op:
                    self.r |= {"exec"}
            else:
                self.w = set(R[0])
                self.r = u(R[1:])
                if "saveexec" in op:
                    self.w |= {"exec"}
                if op.startswith(("s_addk", "s_mulk", "s_cmov", "s_bitset")):
                    self.r |= R[0]
        self.trans = op.startswith(TRANS)
        self.dot = op.startswith("v_dot")
        self.dpp = "row_" in self.mods or "quad_perm" in self.mods
        self.states = 1
        if op == "s_nop":
            self.states = int(ops[0], 0) + 1


def is_v(r):
    return r[0] in "va" and r != "vcc"


def need_states(p, c):
    n = 0
    pv = {r for r in p.w if is_v(r)}
    ps = p.w - pv
    if p.kind == "valu":
        if c.kind == "mfma" and pv & c.r:
            n = max(n, 3 if p.dot else 2)
        if c.kind == "mfma" and "exec" in p.w:
            n = max(n, 4)
        if c.kind == "valu":
            if p.trans and not c.trans and pv & c.r:
                n = max(n, 1)
            if c.op.startswith(("v_readlane", "v_readfirstlane")) and pv & c.r:
                n = max(n, 1)
            if (c.op.startswith("v_permlane") or c.dpp) and pv & c.r:
                n = max(n, 2)
            if ps & c.r:
                n = max(n, 4 if c.op.startswith(("v_readlane", "v_writelane")) else 2)
            if "exec" in p.w:
                if c.dpp:
                    n = max(n, 5)
                if c.op.startswith(("v_readlane", "v_readfirstlane", "v_writelane", "v_permlane")):
                    n = max(n, 4)
            if ("sdwa" in p.op or "op_sel" in p.mods) and not p.op.startswith("v_pk") and pv & (c.r | c.w):
                n = max(n, 1)
        if p.dot and pv & (c.r | c.w) and c.kind in ("valu", "ds", "vmem"):
            same_c = c.op == p.op and not (pv & (regs_of(c.ops[1]) | regs_of(c.ops[2])))
            if not same_c:
                n = max(n, 3)
        if c.kind == "vmem" and ps & c.r:
            n = max(n, 5)
        if c.kind == "salu" and ps & c.r:
            n = max(n, 1)
    if p.kind == "mfma":
        big = p.passes == 8
        if c.kind == "mfma":
            if p.w & c.srcAB:
                n = max(n, 12 if big else 8)
            if p.w & c.srcC and not (p.w == c.srcC and p.passes == c.passes):
                n = max(n, 10 if big else 6)
            if p.w & c.w and not (p.w & c.srcC) and p.passes > c.passes:
                n = max(n, 10 if big else 6)
        elif c.kind in ("valu", "ds", "vmem"):
            if p.w & (c.r | c.w):
                n = max(n, 12 if big else 8)
            if c.kind == "valu" and p.srcC & c.w:
                n = max(n, 7 if big else 3)
    if p.kind == "vmem" and p.store_data & c.w:
        n = max(n, 2 if c.kind in ("valu", "mfma") else 1)
    if p.kind == "salu" and "m0" in p.w and c.kind == "vmem" and "m0" in c.r:
        n = max(n, 1)
    return n


class Prog:
    def __init__(self, text):
        self.ins, self.labels = [], {}
        for line in text.splitlines():
            s = line.split(";")[0].strip()
            if not s or s.startswith("."):
                continue
            if s.endswith(":"):
                self.labels[s[:-1]] = len(self.ins)
                continue
            self.ins.append(Ins(line.strip(), len(self.ins)))
        n = len(self.ins)
        self.succ = [[] for _ in range(n)]
        self.pred = [[] for _ in range(n)]
        for i, x in enumerate(self.ins):
            if x.op == "s_endpgm":
                continue
            if x.op.startswith(("s_branch", "s_cbranch")):
                t = self.labels[x.ops[0]]
                if t < n:
                    self.succ[i].append(t)
            if x.op != "s_branch" and i + 1 < n:
                self.succ[i].append(i + 1)
        for i, ss in enumerate(self.succ):
            for t in ss:
                self.pred[t].append(i)

    def hazards(self):
        errs = []
        for c in self.ins:
            if c.kind == "other" or c.op in ("s_nop", "s_waitcnt", "s_barrier"):
                continue
            best = {}
            stack = [(p, 0) for p in self.pred[c.idx]]
            while stack:
                i, d = stack.pop()
                if d >= 13 or best.get(i, 99) <= d:
                    continue
                best[i] = d
                p = self.ins[i]
                need = need_states(p, c)
                if need > d:
                    errs.append(f"hazard: need {need} have {d}: [{p.idx}] {p.text}  ->  [{c.idx}] {c.text}")
                stack.extend((q, d + p.states) for q in self.pred[i])
        return errs

    def waits(self, start=0, max_back=2, limit=3_000_000):
        errs, seen, steps = set(), set(), 0
        stack = [(start, (), (), ())]
        while stack:
            i, vm, lg, back = stack.pop()
            vm, lg, back = list(vm), list(lg), dict(back)
            while True:
                steps += 1
                if steps > limit:
                    errs.add("wait walk: step limit reached")
                    return sorted(errs)
                x = self.ins[i]
                if x.op == "s_waitcnt":
                    t = " ".join(x.ops)
                    m = re.search(r"vmcnt\((\d+)\)", t)
                    if m:
                        k = int(m.group(1))
                        vm = vm[len(vm) - k:] if k and len(vm) > k else (vm if k else [])
                    m = re.search(r"lgkmcnt\((\d+)\)", t)
                    if m:
                        k = int(m.group(1))
                        if k == 0:
                            lg = []
                        elif any(self.ins[j].kind == "smem" for j in lg):
                            errs.add(f"counted lgkmcnt with SMEM outstanding at [{i}] {x.text}")
                        elif len(lg) > k:
                            lg = lg[len(lg) - k:]
                else:
                    use = x.r | x.w
                    for j in vm + lg:
                        p = self.ins[j]
                        if p.w & use and not (x.kind == p.kind and x.kind in ("vmem", "ds") and not (p.w & x.r)):
                            errs.add(f"unwaited: [{j}] {p.text}  ->  [{i}] {x.text}")
                    if x.kind == "vmem":
                        vm.append(i)
                        if len(vm) > 63:
                            errs.add(f"more than 63 vmem ops outstanding at [{i}] {x.text}")
                            vm = vm[-63:]
                    elif x.kind in ("ds", "smem"):
                        lg.append(i)
                        if len(lg) > 15 and x.kind == "ds":
                            errs.add(f"more than 15 lgkm ops outstanding at [{i}] {x.text}")
                            lg = lg[-15:]
                nxt = []
                for t in self.succ[i]:
                    if t <= i:
                        if back.get(i, 0) < max_back:
                            b2 = dict(back)
                            b2[i] = b2.get(i, 0) + 1
                            nxt.append((t, b2))
                    else:
                        nxt.append((t, back))
                if not nxt:
                    break
                if len(nxt) > 1:
                    fresh = []
                    for t, b in nxt:
                        key = (t, tuple(vm), tuple(lg))
                        if key not in seen:
                            seen.add(key)
                            fresh.append((t, b))
                    nxt = fresh
                    if not nxt:
                        break
                    for t, b in nxt[1:]:
                        stack.append((t, tuple(vm), tuple(lg), tuple(b.items())))
                i, back = nxt[0]
        return sorted(errs)

    def max_regs(self):
        mx = {"v": -1, "a": -1, "s": -1}
        for x in self.ins:
            for r in x.r | x.w:
                if r[0] in mx and r[1:].isdigit():
                    mx[r[0]] = max(mx[r[0]], int(r[1:]))
        return mx


class B:
    def __init__(self):
        self.lines = []

    def __call__(self, text):
        for ln in text.strip("\n").splitlines():
            s = ln.strip()
            if s:
                self.lines.append(s if s.endswith(":") or s.startswith(".") else "  " + s)

    def text(self):
        return "\n".join(self.lines) + "\n"


def v(a, n=1):
    return f"v{a}" if n == 1 else f"v[{a}:{a + n - 1}]"


def a(i, n=1):
    return f"a{i}" if n == 1 else f"a[{i}:{i + n - 1}]"


def s(i, n=1):
    return f"s{i}" if n == 1 else f"s[{i}:{i + n - 1}]"


def cost(text):
    return sum(2 if ln.strip().startswith(TRANS) else 1 for ln in text.strip().splitlines())


def weave(mains, streams, cap=2):
    n = len(mains)
    gaps = [[] for _ in range(n)]
    used = [0] * n
    for st in streams:
        for e in st:
            if len(e) == 3:
                gaps[e[0]].append(e[1])
                used[e[0]] += cost(e[1])
    for st in streams:
        g = 0
        for e in st:
            if len(e) == 3:
                g = max(g, e[0])
                continue
            g = max(g, e[0])
            c = cost(e[1])
            while g < n - 1 and used[g] + c > cap and not (c > cap and used[g] == 0):
                g += 1
            gaps[g].append(e[1])
            used[g] += c
    out = []
    for m, gp in zip(mains, gaps):
        out.append(m)
        out.extend(gp)
    over = sum(max(0, x - cap) for x in used)
    return "\n".join(out), over


class Op:
    def __init__(self, text, deps=(), earliest=0, deadline=None):
        self.text, self.deps, self.earliest, self.deadline = text, list(deps), earliest, deadline
        self.cost = cost(text)
        self.gap = None


def chain(texts, earliest=0, dist=0, after=None):
    out, prev = [], after
    for t in texts:
        t, d = t if isinstance(t, tuple) else (t, dist)
        o = Op(t, [(prev, d)] if prev else [], earliest)
        out.append(o)
        prev = o
    return out


def sched(mains, pinned, ops, cap=2):
    n = len(mains)
    gaps = [[] for _ in range(n)]
    used = [0] * n
    for g, t in pinned:
        gaps[g].append(t)
        used[g] += cost(t)
    todo = list(ops)
    for g in range(n):
        while todo:
            free = cap - used[g]
            ready = [o for o in todo if o.earliest <= g and all(d.gap is not None and d.gap + k <= g for d, k in o.deps)]
            if g == n - 1:
                ready = [o for o in todo if all(d.gap is not None for d, k in o.deps)]
                fit = ready
            else:
                fit = [o for o in ready if o.cost <= free or (o.cost > cap and used[g] == 0)]
            if not fit:
                break
            wide = [o for o in fit if o.cost >= cap]
            o = (wide or fit)[0]
            o.gap = g
            gaps[g].append(o.text)
            used[g] += o.cost
            todo.remove(o)
    assert not todo
    for o in ops:
        assert o.deadline is None or o.gap <= o.deadline, f"deadline missed: {o.text} at gap {o.gap}"
    out = []
    for m, gp in zip(mains, gaps):
        out.append(m)
        out.extend(gp)
    return "\n".join(out), sum(max(0, x - cap) for x in used), max((o.gap for o in ops), default=0)
```

```python
import math, struct, sys
from asmlib import B, Prog, v, a, s, weave, Op, chain, sched

SZX = 2048 * 576 * 2
XN, XR, X1, OB, QB, KV = 0, SZX, 2 * SZX, 3 * SZX, 4 * SZX, 5 * SZX
WQ = 7 * SZX
WQH = 126 * 1024
WO = WQ + 16 * WQH
WF = WO + 36 * 18 * 1024
WFS = 27 * 36 * 1024
PART = WF + 16 * WFS
WS_END = PART + 16 * SZX
OOB = 0x40000000
ARG = dict(x=0, wqkv=8, wo=16, w1=32, w3=40, w2=48, out=56, dbg=64, ws=72)


def fbits(x):
    return "0x%08x" % struct.unpack("<I", struct.pack("<f", x))[0]


def magic(d, n):
    for sh in range(1, 24):
        m = (1 << sh) // d + 1
        if all((x * m) >> sh == x // d for x in range(n)) and m * n < 1 << 32:
            return m, sh
    raise ValueError


def sdiv(b, dst, src, d, n):
    m, sh = magic(d, n)
    b(f"s_mul_i32 s{dst}, s{src}, {m}\ns_lshr_b32 s{dst}, s{dst}, {sh}")


def srd(b, d, base, off, size, extra=None):
    if off:
        b(f"s_add_u32 s{d}, s{base}, {off}\ns_addc_u32 s{d+1}, s{base+1}, 0")
    else:
        b(f"s_mov_b32 s{d}, s{base}\ns_mov_b32 s{d+1}, s{base+1}")
    if extra is not None:
        b(f"s_add_u32 s{d}, s{d}, s{extra}\ns_addc_u32 s{d+1}, s{d+1}, 0")
    b(f"s_mov_b32 s{d+2}, {size}\ns_mov_b32 s{d+3}, 0x20000")


def head(b, name, nwg, loads):
    b(f"s_cmp_ge_u32 s2, {nwg}\ns_cbranch_scc1 {name}_end")
    for reg, arg in loads:
        b(f"s_load_dwordx2 s[{reg}:{reg+1}], s[0:1], {ARG[arg]}")


def mf16(d, x, y, c):
    return f"v_mfma_f32_16x16x32_bf16 {d}, {x}, {y}, {c}"


def transpose8(b, src, dst, slo, shi):
    for j in range(4):
        b(f"v_perm_b32 v{dst+j}, v{src+2*j+1}, v{src+2*j}, s{slo}")
    for j in range(4):
        b(f"v_perm_b32 v{dst+4+j}, v{src+2*j+1}, v{src+2*j}, s{shi}")


def gen_row(name, mode):
    b = B()
    loads = [(4, "ws")]
    if mode == "first":
        loads += [(6, "x"), (8, "wqkv")]
    if mode == "last":
        loads += [(6, "out")]
    head(b, name, 256, loads)
    b("""
    v_lshrrev_b32 v1, 3, v0
    v_and_b32 v2, 7, v0
    v_lshlrev_b32 v3, 8, v1
    v_lshl_add_u32 v3, v2, 4, v3
    v_mul_u32_u24 v4, 1152, v2
    v_lshl_add_u32 v4, v1, 4, v4
    v_lshrrev_b32 v5, 6, v0
    s_lshr_b32 s10, s2, 1
    s_mul_i32 s10, s10, 18432
    s_and_b32 s11, s2, 1
    s_lshl_b32 s11, s11, 7
    s_add_u32 s10, s10, s11
    s_mul_i32 s11, s2, 9216
    v_readfirstlane_b32 s33, v5
    s_mov_b32 s30, 0x3f80
    s_mov_b32 s31, 0x3f800000
    s_waitcnt lgkmcnt(0)
    """)
    srd(b, 12, 4, 0, 3 * SZX)
    D0 = 24
    if mode == "first":
        srd(b, 16, 6, 0, SZX)
        b(f"buffer_load_dwordx4 {v(D0,4)}, v4, s[16:19], s11 offen")
        srd(b, 20, 8, 0, 576 * 1728 * 2)
        srd(b, 24, 4, WQ, 16 * WQH)
        b(f"""
        s_lshl_b32 s34, s2, 2
        s_add_u32 s34, s34, s33
        s_cmp_ge_u32 s33, 4
        s_cselect_b32 s34, 1008, s34
        s_cmp_ge_u32 s34, 1008
        s_cbranch_scc1 {name}_noprep
        """)
        sdiv(b, 35, 34, 63, 1024)
        b("""
        s_mul_i32 s36, s35, 63
        s_sub_u32 s36, s34, s36
        v_and_b32 v6, 15, v0
        v_bfe_u32 v7, v0, 4, 2
        v_and_b32 v8, 7, v6
        v_lshrrev_b32 v9, 3, v6
        v_mul_u32_u24 v10, 27648, v7
        v_lshlrev_b32 v11, 8, v7
        s_mul_i32 s38, s35, 72
        """)
        b(f"s_mul_i32 s39, s35, {WQH}\ns_cmp_ge_u32 s36, 54\ns_cbranch_scc1 {name}_tail")
        sdiv(b, 37, 36, 3, 64)
        b(f"""
        s_mul_i32 s40, s37, 3
        s_sub_u32 s40, s36, s40
        s_mul_i32 s41, s37, 110592
        s_add_u32 s38, s38, s41
        s_mul_i32 s41, s40, 1152
        s_add_u32 s38, s38, s41
        s_mul_i32 s41, s37, 7168
        s_add_u32 s39, s39, s41
        s_lshl_b32 s41, s40, 11
        s_add_u32 s39, s39, s41
        v_mad_u32_u24 v10, v9, 36, v10
        v_lshl_add_u32 v10, v8, 2, v10
        s_cmp_eq_u32 s40, 2
        s_cbranch_scc1 {name}_vsec
        v_bfe_u32 v12, v6, 1, 1
        v_lshl_add_u32 v11, v12, 10, v11
        v_lshrrev_b32 v12, 2, v6
        v_lshl_add_u32 v11, v12, 6, v11
        v_and_b32 v12, 1, v6
        v_lshl_add_u32 v11, v12, 5, v11
        s_branch {name}_go
{name}_vsec:
        v_lshl_add_u32 v11, v9, 10, v11
        v_lshl_add_u32 v11, v8, 5, v11
        s_branch {name}_go
{name}_tail:
        s_sub_u32 s37, s36, 54
        s_mul_i32 s41, s37, 221184
        s_add_u32 s38, s38, s41
        s_add_u32 s38, s38, 32
        s_mul_i32 s41, s37, 14336
        s_add_u32 s39, s39, s41
        s_add_u32 s39, s39, 6144
        v_mul_u32_u24 v12, 110592, v9
        v_add_u32 v10, v10, v12
        v_lshrrev_b32 v12, 1, v8
        v_mul_u32_u24 v12, 1152, v12
        v_add_u32 v10, v10, v12
        v_and_b32 v12, 1, v8
        v_mad_u32_u24 v10, v12, 36, v10
        v_mov_b32 v12, {OOB}
        v_cmp_gt_u32 vcc, 6, v8
        v_mul_u32_u24 v13, 7168, v9
        v_add_u32 v11, v11, v13
        v_cndmask_b32 v10, v12, v10, vcc
        v_lshl_add_u32 v11, v8, 5, v11
{name}_go:
        s_mov_b32 s42, 0x05040100
        s_mov_b32 s43, 0x07060302
        """)
        for j in range(8):
            b(f"buffer_load_dword v{32+j}, v10, s[20:23], s38 offen\ns_add_u32 s38, s38, 3456")
        b("s_waitcnt vmcnt(0)")
        transpose8(b, 32, 40, 42, 43)
        b(f"""
        buffer_store_dwordx4 v[40:43], v11, s[24:27], s39 offen
        buffer_store_dwordx4 v[44:47], v11, s[24:27], s39 offen offset:16
        s_waitcnt vmcnt(2)
        s_branch {name}_sum
{name}_noprep:
        s_waitcnt vmcnt(0)
{name}_sum:
        """)
        nsrc = 1
    else:
        srd(b, 20, 4, PART, 16 * SZX)
        b(f"s_add_u32 s34, s10, {X1}\nbuffer_load_dwordx4 {v(D0,4)}, v3, s[12:15], s34 offen\ns_mov_b32 s34, s10")
        for i in range(16):
            b(f"buffer_load_dwordx4 {v(D0+4+4*i,4)}, v3, s[20:23], s34 offen")
            if i < 15:
                b(f"s_add_u32 s34, s34, {SZX}")
        if mode == "last":
            srd(b, 16, 6, 0, SZX)
        nsrc = 17
    A0 = 8
    for i in range(nsrc):
        if nsrc > 1:
            b(f"s_waitcnt vmcnt({nsrc-1-i})")
        for j in range(4):
            for h in range(2):
                c = "0" if i == 0 else v(A0 + 2 * j + h)
                b(f"v_dot2_f32_bf16 v{A0+2*j+h}, v{D0+4*i+j}, s{30+h}, {c}")
    b("s_nop 2")
    for j in range(4):
        b(f"v_cvt_pk_bf16_f32 v{16+j}, v{A0+2*j}, v{A0+2*j+1}")
    if mode == "last":
        b("buffer_store_dwordx4 v[16:19], v4, s[16:19], s11 offen")
    else:
        b(f"s_add_u32 s34, s10, {XR}\nbuffer_store_dwordx4 v[16:19], v3, s[12:15], s34 offen")
        b(f"v_add_f32 v6, v{A0}, v{A0+1}\nv_mul_f32 v7, v{A0}, v{A0}")
        for j in range(1, 8):
            if j > 1:
                b(f"v_add_f32 v6, v6, v{A0+j}")
            b(f"v_fmac_f32 v7, v{A0+j}, v{A0+j}")
        b(f"""
        v_bfe_u32 v1, v0, 5, 1
        v_lshlrev_b32 v2, 3, v2
        v_permlane32_swap_b32 v6, v7
        v_lshl_add_u32 v1, v1, 2, v2
        v_add_f32 v6, v6, v7
        v_mov_b32 v7, v6
        v_lshl_add_u32 v1, v5, 6, v1
        s_nop 0
        v_permlane16_swap_b32 v6, v7
        s_nop 0
        v_add_f32 v6, v6, v7
        s_nop 1
        v_add_f32 v6, v6, v6 row_ror:8 row_mask:0xf bank_mask:0xf
        ds_write_b32 v1, v6
        s_waitcnt lgkmcnt(0)
        s_barrier
        """)
        for w in range(9):
            b(f"ds_read_b64 {v(24+2*w,2)}, v2 offset:{64*w}")
        b("s_waitcnt lgkmcnt(0)")
        for w in range(1, 9):
            b(f"v_add_f32 v24, v24, v{24+2*w}\nv_add_f32 v25, v25, v{25+2*w}")
        b(f"""
        v_mul_f32 v24, {fbits(1/576)}, v24
        v_mul_f32 v25, {fbits(1/576)}, v25
        v_fma_f32 v25, -v24, v24, v25
        v_max_f32 v25, 0, v25
        v_add_f32 v25, {fbits(1e-5)}, v25
        v_rsq_f32 v25, v25
        """)
        for j in range(8):
            b(f"v_sub_f32 v{A0+j}, v{A0+j}, v24")
        for j in range(8):
            b(f"v_mul_f32 v{A0+j}, v{A0+j}, v25")
        for j in range(4):
            b(f"v_cvt_pk_bf16_f32 v{20+j}, v{A0+2*j}, v{A0+2*j+1}")
        b("buffer_store_dwordx4 v[20:23], v3, s[12:15], s10 offen")
    b(f"{name}_end:\ns_endpgm")
    return dict(name=name, text=b.text(), grid=256, block=576, lds=1024)


def prep_body(b, name, sid):
    D0, T0, O0 = 16, 88, 104
    b(f"""
    s_load_dwordx2 s[4:5], s[0:1], {ARG['ws']}
    s_mov_b32 s42, 0x05040100
    s_mov_b32 s43, 0x07060302
    s_cmp_ge_u32 s{sid}, 576
    s_cbranch_scc1 {name}_p2
    s_bfe_u32 s35, s{sid}, 0x10002
    s_lshl_b32 s36, s35, 3
    s_add_u32 s36, s0, s36
    s_addc_u32 s37, s1, 0
    s_load_dwordx2 s[6:7], s[36:37], {ARG['w1']}
    s_lshr_b32 s36, s{sid}, 3
    s_lshl_b32 s36, s36, 2
    s_and_b32 s37, s{sid}, 3
    s_add_u32 s36, s36, s37
    """)
    sdiv(b, 37, 36, 18, 288)
    b(f"""
    s_mul_i32 s39, s37, {WFS - 18 * 36864}
    s_mul_i32 s40, s36, 36864
    s_add_u32 s39, s39, s40
    s_lshl_b32 s40, s35, 10
    s_add_u32 s39, s39, s40
    s_lshl_b32 s38, s36, 5
    v_and_b32 v6, 7, v0
    v_bfe_u32 v7, v0, 3, 3
    v_mul_u32_u24 v10, 73728, v7
    v_lshl_add_u32 v10, v6, 2, v10
    v_lshrrev_b32 v8, 2, v7
    v_and_b32 v9, 3, v7
    v_lshlrev_b32 v11, 11, v8
    v_lshl_add_u32 v11, v9, 8, v11
    v_lshl_add_u32 v11, v6, 5, v11
    s_mov_b32 s30, 0x3f80
    s_mov_b32 s31, 0x3f800000
    v_mov_b32 v12, 0
    v_mov_b32 v13, 0
    s_waitcnt lgkmcnt(0)
    """)
    srd(b, 20, 6, 0, 576 * 4608 * 2)
    srd(b, 24, 4, WF, 16 * WFS)

    def sums(p):
        for j in range(8):
            b(f"v_dot2_f32_bf16 v12, v{D0+8*p+j}, s30, v12\nv_dot2_f32_bf16 v13, v{D0+8*p+j}, s31, v13")

    for p in range(9):
        for j in range(8):
            b(f"buffer_load_dword v{D0+8*p+j}, v10, s[20:23], s38 offen")
            b(f"s_add_u32 s38, s38, {9216 if j < 7 else 57 * 9216}")
        if p >= 6:
            b("s_waitcnt vmcnt(48)")
            sums(p - 6)
    for p in range(3, 9):
        b(f"s_waitcnt vmcnt({8*(8-p)})")
        sums(p)
    b("s_nop 2")
    for r in (12, 13):
        b(f"""
        v_mov_b32 v14, v{r}
        s_nop 1
        v_permlane32_swap_b32 v{r}, v14
        s_nop 0
        v_add_f32 v{r}, v{r}, v14
        v_mov_b32 v14, v{r}
        s_nop 1
        v_permlane16_swap_b32 v{r}, v14
        s_nop 0
        v_add_f32 v{r}, v{r}, v14
        s_nop 1
        v_add_f32 v{r}, v{r}, v{r} row_ror:8 row_mask:0xf bank_mask:0xf
        v_mul_f32 v{r}, {fbits(-1/576)}, v{r}
        """)
    for p in range(9):
        o = O0 + 8 * (p % 2)
        for h in range(2):
            for j in range(8):
                b(f"v_dot2_f32_bf16 v{T0+8*h+j}, v{D0+8*p+j}, s{30+h}, v{12+h}")
        for h in range(2):
            for j in range(4):
                b(f"v_cvt_pk_bf16_f32 v{o+4*h+j}, v{T0+8*h+2*j}, v{T0+8*h+2*j+1}")
        b(f"""
        buffer_store_dwordx4 {v(o,4)}, v11, s[24:27], s39 offen
        buffer_store_dwordx4 {v(o+4,4)}, v11, s[24:27], s39 offen offset:16
        s_add_u32 s39, s39, 4096
        """)
    b(f"""
    s_branch {name}_pend
{name}_p2:
    s_cmp_ge_u32 s{sid}, 900
    s_cbranch_scc1 {name}_pend
    v_and_b32 v6, 15, v0
    v_bfe_u32 v7, v0, 4, 2
    v_lshlrev_b32 v11, 8, v7
    v_lshrrev_b32 v12, 2, v6
    v_lshl_add_u32 v11, v12, 6, v11
    v_and_b32 v12, 1, v6
    v_lshl_add_u32 v11, v12, 5, v11
    v_bfe_u32 v12, v6, 1, 1
    v_lshlrev_b32 v10, 2, v6
    s_cmp_ge_u32 s{sid}, 864
    s_cbranch_scc1 {name}_p3
    s_load_dwordx2 s[6:7], s[0:1], {ARG['w2']}
    s_sub_u32 s35, s{sid}, 576
    """)
    sdiv(b, 36, 35, 18, 288)
    b(f"""
    s_mul_i32 s37, s36, 18
    s_sub_u32 s37, s35, s37
    s_mul_i32 s38, s36, {288 * 1152}
    s_lshl_b32 s40, s37, 6
    s_add_u32 s38, s38, s40
    s_mul_i32 s39, s36, {WFS}
    s_lshr_b32 s40, s37, 1
    s_add_u32 s40, s40, 18
    s_mul_i32 s40, s40, 36864
    s_add_u32 s39, s39, s40
    s_and_b32 s40, s37, 1
    s_lshl_b32 s40, s40, 11
    s_add_u32 s39, s39, s40
    v_mul_u32_u24 v13, 4608, v7
    v_add_u32 v10, v10, v13
    v_lshl_add_u32 v11, v12, 10, v11
    s_waitcnt lgkmcnt(0)
    """)
    srd(b, 20, 6, 0, 4608 * 576 * 2)
    srd(b, 24, 4, WF, 16 * WFS)

    def plain(rowoff, voff, src_step, dst_step, tag):
        def emit_out(p):
            o = O0 + 8 * (p % 2)
            transpose8(b, D0 + 8 * p, o, 42, 43)
            b(f"""
            buffer_store_dwordx4 {v(o,4)}, v11, s[24:27], s39 offen
            buffer_store_dwordx4 {v(o+4,4)}, v11, s[24:27], s39 offen offset:16
            s_add_u32 s39, s39, {dst_step}
            """)
        for p in range(7):
            for j in range(8):
                b(f"s_add_u32 s40, s38, {rowoff(p, j)}\nbuffer_load_dword v{D0+8*p+j}, {voff(p)}, s[20:23], s40 offen")
        b("s_waitcnt vmcnt(40)")
        for p in range(7, 9):
            for j in range(8):
                b(f"s_add_u32 s40, s38, {rowoff(p, j)}\nbuffer_load_dword v{D0+8*p+j}, {voff(p)}, s[20:23], s40 offen")
        for p in range(9):
            if p >= 2:
                b(f"s_waitcnt vmcnt({8*(8-p) + 2*p})")
            emit_out(p)

    plain(lambda p, j: (32 * p + 16 * (j // 4) + j % 4) * 1152, lambda p: "v10", 0, 4096, "w2")
    b(f"""
    s_branch {name}_pend
{name}_p3:
    s_load_dwordx2 s[6:7], s[0:1], {ARG['wo']}
    s_sub_u32 s35, s{sid}, 864
    s_lshr_b32 s36, s35, 1
    s_and_b32 s37, s35, 1
    s_lshl_b32 s38, s36, 6
    s_mul_i32 s39, s36, 36864
    s_mul_i32 s40, s37, 9216
    s_add_u32 s39, s39, s40
    v_mul_u32_u24 v13, 18432, v12
    v_add_u32 v11, v11, v13
    v_mul_u32_u24 v14, {72 * 1152}, v7
    v_add_u32 v14, v14, v10
    v_lshrrev_b32 v13, 1, v7
    v_mul_u32_u24 v13, {18 * 1152}, v13
    v_add_u32 v10, v10, v13
    v_and_b32 v13, 1, v7
    v_mul_u32_u24 v13, 4608, v13
    v_add_u32 v10, v10, v13
    s_waitcnt lgkmcnt(0)
    """)
    srd(b, 20, 6, 0, 576 * 576 * 2)
    srd(b, 24, 4, WO, 36 * 18 * 1024)
    b(f"s_cmp_eq_u32 s37, 1\ns_cbranch_scc1 {name}_p4")
    main = lambda ks, j: (36 * ks + 8 * (j // 4) + j % 4) * 1152
    tail = lambda ks, j: (288 * (ks - 16) + 16 + 18 * (j // 2) + j % 2) * 1152
    plain(main, lambda p: "v10", 0, 1024, "wo0")
    b(f"s_branch {name}_pend\n{name}_p4:")
    plain(lambda p, j: main(9 + p, j) if p < 7 else tail(9 + p, j), lambda p: "v10" if p < 7 else "v14", 0, 1024, "wo1")
    b(f"{name}_pend:")


def gen_prep(name):
    b = B()
    head(b, name, 256, [])
    b("v_lshrrev_b32 v5, 6, v0\ns_lshl_b32 s34, s2, 2\nv_readfirstlane_b32 s33, v5\ns_nop 0\ns_add_u32 s34, s34, s33")
    prep_body(b, name, 34)
    b(f"{name}_end:\ns_endpgm")
    return dict(name=name, text=b.text(), grid=256, block=256, lds=0)


def gen_qkv(name):
    b = B()
    head(b, name, 256, [(4, "ws")])
    ACC, XB, TMP = 16, 80, 224
    b(f"""
    v_lshrrev_b32 v5, 6, v0
    v_lshlrev_b32 v1, 4, v0
    v_and_b32 v2, 63, v0
    v_readfirstlane_b32 s33, v5
    v_lshlrev_b32 v2, 4, v2
    s_and_b32 s34, s2, 7
    s_lshr_b32 s35, s2, 3
    s_and_b32 s36, s34, 3
    s_lshl_b32 s36, s36, 2
    s_and_b32 s37, s35, 3
    s_add_u32 s36, s36, s37
    s_lshr_b32 s37, s34, 2
    s_lshl_b32 s37, s37, 3
    s_lshr_b32 s35, s35, 2
    s_add_u32 s37, s37, s35
    s_lshl_b32 s37, s37, 2
    s_add_u32 s37, s37, s33
    s_mul_i32 s38, s36, {WQH}
    s_mul_i32 s39, s37, 36864
    s_add_u32 s40, s39, 18432
    s_lshl_b32 m0, s33, 10
    s_waitcnt lgkmcnt(0)
    """)
    srd(b, 12, 4, XN, SZX)
    srd(b, 16, 4, WQ, 16 * WQH)
    srd(b, 20, 4, QB, 3 * SZX)
    xb = lambda ks, rt: XB + (ks * 2 + rt) * 4
    seq, done = [], 0
    stage_end = []
    for st in range(9):
        want = -(-14 * (st + 1) // 4)
        for i in range(done, want):
            seq.append("buffer_load_dwordx4 v1, s[16:19], s38 offen lds\ns_add_u32 s38, s38, 4096\ns_add_u32 m0, m0, 4096")
        done = want
        for ks in (2 * st, 2 * st + 1):
            for rt in range(2):
                t = f"buffer_load_dwordx4 {v(xb(ks, rt),4)}, v2, s[12:15], s{39+rt} offen"
                if ks % 4:
                    t += f" offset:{1024 * (ks % 4)}"
                if ks % 4 == 3 and rt == 1:
                    t += "\ns_add_u32 s39, s39, 4096\ns_add_u32 s40, s40, 4096"
                seq.append(t)
        stage_end.append(len(seq))
    first = stage_end[7]
    for t in seq[:first]:
        b(t)
        if "m0" in t:
            b("s_nop 0")
    b(f"""
    v_and_b32 v3, 15, v0
    v_bfe_u32 v4, v0, 4, 2
    v_lshrrev_b32 v5, 1, v4
    v_and_b32 v6, 1, v4
    v_mul_u32_u24 v7, {64*1152}, v5
    v_lshl_add_u32 v7, v6, 9, v7
    v_lshl_add_u32 v7, v3, 4, v7
    v_lshrrev_b32 v12, 2, v3
    v_and_b32 v13, 3, v3
    v_lshl_add_u32 v12, v12, 3, v13
    v_mul_u32_u24 v8, {64*2304}, v5
    v_lshl_add_u32 v8, v6, 9, v8
    v_lshl_add_u32 v8, v12, 4, v8
    v_mul_u32_u24 v9, 288, v4
    v_bfe_u32 v13, v3, 1, 1
    v_mul_u32_u24 v10, {64*2304}, v13
    v_add_u32 v10, v10, v9
    v_and_b32 v13, 1, v3
    v_lshl_add_u32 v10, v13, 4, v10
    v_lshl_add_u32 v9, v3, 4, v9
    v_lshrrev_b32 v13, 2, v3
    v_mov_b32 v14, {OOB}
    v_cmp_eq_u32 vcc, 2, v13
    s_lshl_b32 s41, s36, 7
    s_add_u32 s41, s41, s37
    v_cndmask_b32 v10, v14, v10, vcc
    s_mul_i32 s42, s41, 1152
    s_mul_i32 s43, s41, 2304
    s_add_u32 s43, s43, {SZX}
    s_add_u32 s44, s43, {64*2304}
    s_add_u32 s45, s42, 1024
    s_add_u32 s46, s43, 2176
    v_lshl_add_u32 v11, v3, 2, s45
    v_lshl_add_u32 v12, v12, 2, s46
    v_cmp_eq_u32 vcc, 1, v4
    v_cmp_eq_u32 s[48:49], 0, v4
    v_mov_b32 v15, {fbits(math.log2(math.e) / math.sqrt(18))}
    v_cndmask_b32 v14, v14, v12, vcc
    v_cndmask_b32 v11, v14, v11, s[48:49]
    v_cndmask_b32 v5, 1.0, v15, s[48:49]
    v_mov_b32 v12, 16
    v_mov_b32 v13, {64*2304}
    v_mov_b32 v14, {64*1152}
    v_cndmask_b32 v12, v12, 64, s[48:49]
    v_cndmask_b32 v13, v13, v14, s[48:49]
    v_add_u32 v12, v11, v12
    v_add_u32 v14, v12, v13
    v_add_u32 v13, v11, v13
    """)
    acc = lambda f, rt: ACC + (f * 2 + rt) * 4
    ring = lambda ks, f: (ks % 2) * 28 + f * 4
    issued = first

    def stage_wait(st):
        return f"s_waitcnt vmcnt({issued - stage_end[st]})\ns_barrier"

    def reads(ks):
        out = []
        for f in range(7):
            off = (ks * 7 + f) * 1024
            reg = "v2" if off < 65536 else "v6"
            out.append(f"ds_read_b128 {a(ring(ks, f),4)}, {reg} offset:{off % 65536}")
        return out

    b("v_add_u32 v6, 0x10000, v2")
    b(stage_wait(0))
    for t in reads(0):
        b(t)
    for t in seq[first:]:
        b(t)
        if "m0" in t:
            b("s_nop 0")
    issued = len(seq)
    for ks in range(18):
        mains = []
        for f in range(8):
            for rt in range(2):
                w = a(ring(ks, min(f, 6)), 4)
                x = v(xb(ks, rt), 4)
                c = "0" if ks == 0 else v(acc(f, rt), 4)
                swapped = f in (4, 5, 7)
                mains.append(mf16(v(acc(f, rt), 4), x if swapped else w, w if swapped else x, c))
        fill = []
        if ks < 17:
            if ks % 2 == 1:
                fill.append((0, stage_wait((ks + 1) // 2), True))
            fill += [(1 + i, t) for i, t in enumerate(reads(ks + 1))]
        b("s_waitcnt lgkmcnt(0)")
        b(weave(mains, [fill])[0])
    T = TMP
    for rt in range(2):
        for i in range(4):
            b(f"v_mul_f32 v{acc(0,rt)+i}, v15, v{acc(0,rt)+i}")
        for i in range(4):
            b(f"v_mul_f32 v{acc(1,rt)+i}, v15, v{acc(1,rt)+i}")

    def pack(dst, p, q):
        b(f"""
        v_cvt_pk_bf16_f32 v{dst}, v{p}, v{p+1}
        v_cvt_pk_bf16_f32 v{dst+1}, v{p+2}, v{p+3}
        v_cvt_pk_bf16_f32 v{dst+2}, v{q}, v{q+1}
        v_cvt_pk_bf16_f32 v{dst+3}, v{q+2}, v{q+3}
        """)

    for rt in range(2):
        pack(T, acc(2, rt), acc(3, rt))
        b(f"buffer_store_dwordx4 {v(T,4)}, v8, s[20:23], s43 offen offset:{64*rt}")
        T += 4
    for hd in range(2):
        pack(T, acc(4 + hd, 0), acc(4 + hd, 1))
        b(f"buffer_store_dwordx4 {v(T,4)}, v9, s[20:23], s{43+hd} offen offset:1024")
        T += 4
    pack(T, acc(7, 0), acc(7, 1))
    b(f"buffer_store_dwordx4 {v(T,4)}, v10, s[20:23], s43 offen offset:{1024+256}")
    T += 4
    for rt in range(2):
        pack(T, acc(0, rt), acc(1, rt))
        b(f"buffer_store_dwordx4 {v(T,4)}, v7, s[20:23], s42 offen offset:{256*rt}")
        T += 4
    for rt in range(2):
        for i in range(4):
            b(f"v_mul_f32 v{acc(6,rt)+i}, v5, v{acc(6,rt)+i}")
    pack(T, acc(6, 0), acc(6, 1))
    b(f"""
    buffer_store_dword v{T}, v11, s[20:23], 0 offen
    buffer_store_dword v{T+1}, v13, s[20:23], 0 offen
    buffer_store_dword v{T+2}, v12, s[20:23], 0 offen
    buffer_store_dword v{T+3}, v14, s[20:23], 0 offen
{name}_end:
    s_endpgm
    """)
    return dict(name=name, text=b.text(), grid=256, block=256, lds=128 * 1024)


def gen_attn(name):
    b = B()
    head(b, name, 256, [(4, "ws")])
    QM, QT, KM, KT, VF, S, O = 16, 24, 28, 36, 40, 56, 120
    MX, IDX, AK, AV, AT = 10, 12, 13, 14, 15
    qm = lambda t: v(QM + 4 * t, 4)
    qt = lambda t: v(QT + 2 * t, 2)
    km = lambda k: v(KM + 4 * (k % 2), 4)
    kt = lambda k: v(KT + 2 * (k % 2), 2)
    vf = lambda k, g: v(VF + 8 * (k % 2) + 4 * g, 4)
    sb = lambda n: S + 16 * (n % 4)
    ob = lambda t: O + 16 * t
    b(f"""
    v_lshrrev_b32 v5, 6, v0
    v_and_b32 v1, 63, v0
    v_and_b32 v2, 31, v0
    v_readfirstlane_b32 s33, v5
    v_bfe_u32 v3, v0, 5, 1
    v_lshlrev_b32 v4, 4, v1
    s_and_b32 s34, s2, 7
    s_lshl_b32 s34, s34, 2
    s_lshr_b32 s35, s2, 6
    s_add_u32 s34, s34, s35
    s_bfe_u32 s35, s2, 0x30003
    s_and_b32 s36, s33, 3
    s_lshr_b32 s37, s33, 2
    s_lshl_b32 s38, s35, 3
    s_lshl_b32 s39, s36, 1
    s_add_u32 s38, s38, s39
    s_add_u32 s39, s38, s37
    s_xor_b32 s40, s39, 1
    s_lshl_b32 s41, s34, 6
    s_add_u32 s42, s41, s39
    s_add_u32 s43, s41, s40
    s_mul_i32 s42, s42, 1152
    s_mul_i32 s43, s43, 1152
    s_mul_i32 s44, s37, 73728
    s_lshl_b32 s45, s36, 10
    s_add_u32 s45, s45, s44
    s_mul_i32 s46, s34, 147456
    s_add_u32 s46, s46, s45
    s_mov_b32 m0, s45
    v_lshlrev_b32 v6, 2, v2
    v_mov_b32 v7, {OOB}
    v_cmp_eq_u32 s[50:51], 0, v3
    s_mov_b32 s30, 0x3ffff
    s_mov_b32 s31, 0x3ffff
    v_cndmask_b32 v7, v7, v6, s[50:51]
    s_waitcnt lgkmcnt(0)
    """)
    srd(b, 12, 4, QB, SZX)
    srd(b, 16, 4, KV, 2 * SZX)
    srd(b, 20, 4, OB, SZX)
    for t in range(2):
        b(f"buffer_load_dwordx4 {qm(t)}, v4, s[12:15], s{42+t} offen")
        b(f"buffer_load_dword v{QT+2*t}, v7, s[12:15], s{42+t} offen offset:1024")
    for i in range(18):
        b("buffer_load_dwordx4 v4, s[16:19], s46 offen lds")
        if i < 17:
            b("s_add_u32 m0, m0, 4096\ns_add_u32 s46, s46, 4096")
    b(f"""
    v_mov_b32 v{IDX}, 0xdddddddd
    v_mov_b32 v{KT+1}, 0x3f803f80
    v_mov_b32 v{KT+3}, 0x3f803f80
    v_and_b32 v8, 27, v2
    v_cmp_eq_u32 vcc, 18, v8
    v_mul_u32_u24 v8, 288, v3
    v_lshl_add_u32 v8, v2, 4, v8
    v_cndmask_b32 v{VF}, 0, v{KT+1}, vcc
    """)
    for i in range(1, 16):
        b(f"v_mov_b32 v{VF+i}, v{VF}")
    b(f"""
    s_mov_b32 s47, 1
    s_mov_b32 s48, 0
    s_waitcnt vmcnt(14)
    s_barrier
{name}_max:
    v_add_u32 v{AK}, s44, v4
    v_add_u32 v{AT}, s44, v6
    v_mov_b32 v{QT+1}, 0
    v_mov_b32 v{QT+3}, 0
    v_mov_b32 v{MX}, 0xff800000
    v_mov_b32 v{MX+1}, 0xff800000
{name}_maxloop:
    ds_read_b128 {km(0)}, v{AK}
    ds_read_b32 v{KT}, v{AT} offset:2176
    v_add_u32 v{AK}, 2304, v{AK}
    v_add_u32 v{AT}, 2304, v{AT}
    s_waitcnt lgkmcnt(0)
    """)
    m8 = lambda d, k, t: f"v_mfma_f32_32x32x8_bf16 {v(d,16)}, {kt(k)}, {qt(t)}, 0"
    m16 = lambda d, k, t: f"v_mfma_f32_32x32x16_bf16 {v(d,16)}, {km(k)}, {qm(t)}, {v(d,16)}"
    smf = lambda t, k, g, p: f"v_smfmac_f32_32x32x32_bf16 {v(ob(t),16)}, {vf(k,g)}, {v(p+8*g,8)}, v{IDX}"
    for t in range(2):
        b(m8(sb(t), 0, t))
        b(m16(sb(t), 0, t))
    b("s_nop 9")
    for t in range(2):
        for i in range(8):
            b(f"v_max3_f32 v{MX+t}, v{sb(t)+2*i}, v{sb(t)+2*i+1}, v{MX+t}")
    b(f"""
    s_sub_u32 s47, s47, 1
    s_cmp_lg_u32 s47, 0
    s_cbranch_scc1 {name}_maxloop
    v_add_u32 v{AK}, s44, v4
    v_add_u32 v{AT}, s44, v6
    v_add_u32 v{AV}, s44, v8
    ds_read_b128 {km(0)}, v{AK}
    ds_read_b32 v{KT}, v{AT} offset:2176
    ds_read_b128 {km(1)}, v{AK} offset:2304
    ds_read_b32 v{KT+2}, v{AT} offset:{2176+2304}
    s_mov_b64 exec, s[30:31]
    ds_read_b128 {vf(0,0)}, v{AV} offset:1024
    ds_read_b128 {vf(0,1)}, v{AV} offset:1600
    s_mov_b64 exec, -1
    s_mov_b32 s49, 0x07060302
    """)
    x0 = sb(2)
    for t in range(2):
        b(f"""
        v_mov_b32 v{x0}, v{MX+t}
        s_nop 1
        v_permlane32_swap_b32 v{MX+t}, v{x0}
        s_nop 0
        v_max_f32 v{MX+t}, v{MX+t}, v{x0}
        v_sub_f32 v{x0}, 0, v{MX+t}
        v_and_b32 v{x0+1}, 0xffff0000, v{x0}
        v_sub_f32 v{x0+2}, v{x0}, v{x0+1}
        v_and_b32 v{x0+3}, 0xffff0000, v{x0+2}
        v_sub_f32 v{x0+2}, v{x0+2}, v{x0+3}
        v_perm_b32 v{x0+1}, v{x0+3}, v{x0+1}, s49
        v_lshrrev_b32 v{x0+2}, 16, v{x0+2}
        v_cndmask_b32 v{QT+2*t+1}, v{x0+2}, v{x0+1}, s[50:51]
        """)
    for i in range(32):
        b(f"v_mov_b32 v{O+i}, 0")
    for i in range(16):
        b(f"v_mov_b32 v{sb(3)+i}, 0")
    b("s_waitcnt lgkmcnt(0)")
    for t in range(2):
        b(m8(sb(t), 0, t))
        b(m16(sb(t), 0, t))
    b(f"s_mov_b32 s47, 8\ns_nop 9\n.p2align 3\n{name}_loop:")
    for n in range(8):
        k, t = n // 2, n % 2
        pk, pt = (n - 1) // 2, (n - 1) % 2
        e = [f"v_exp_f32 v{sb(n)+i}, v{sb(n)+i}" for i in range(16)]
        if t == 0:
            b("s_waitcnt lgkmcnt(2)")
        b(m8(sb(n + 2), k + 1, t))
        if t == 0:
            b(f"ds_read_b128 {km(k)}, v{AK} offset:{(k+2)*2304}\nds_read_b32 v{KT+2*(k%2)}, v{AT} offset:{(k+2)*2304+2176}")
        else:
            b(f"""
            s_mov_b64 exec, s[30:31]
            ds_read_b128 {vf(k+1,0)}, v{AV} offset:{(k+1)*2304+1024}
            ds_read_b128 {vf(k+1,1)}, v{AV} offset:{(k+1)*2304+1600}
            s_mov_b64 exec, -1
            """)
        b("\n".join(e[0:4]))
        b(m16(sb(n + 2), k + 1, t))
        b("\n".join(e[4:8]))
        if t == 1:
            b("s_waitcnt lgkmcnt(4)")
        b(smf(pt, pk, 0, sb(n - 1)))
        b("\n".join(e[8:12]))
        b(smf(pt, pk, 1, sb(n - 1)))
        b("\n".join(e[12:16]))
    b(f"""
    v_add_u32 v{AK}, 9216, v{AK}
    v_add_u32 v{AT}, 9216, v{AT}
    v_add_u32 v{AV}, 9216, v{AV}
    s_cmp_lg_u32 s48, 0
    s_cbranch_scc1 {name}_nobar
    s_mov_b32 s48, 1
    s_waitcnt vmcnt(0)
    s_barrier
{name}_nobar:
    s_sub_u32 s47, s47, 1
    s_cmp_lg_u32 s47, 0
    s_cbranch_scc1 {name}_loop
    """)
    b(smf(1, 1, 0, sb(3)))
    b(smf(1, 1, 1, sb(3)))
    b(f"""
    v_mov_b32 v{sb(2)}, 0x53800000
    s_waitcnt lgkmcnt(0)
    s_nop 9
    v_cmp_nlt_f32 vcc, v{ob(0)+10}, v{sb(2)}
    v_cmp_nlt_f32 s[52:53], v{ob(1)+10}, v{sb(2)}
    s_nop 0
    s_or_b64 vcc, vcc, s[52:53]
    s_cbranch_vccz {name}_merge
    s_cmp_eq_u32 s48, 2
    s_cbranch_scc1 {name}_merge
    s_mov_b32 s48, 2
    s_mov_b32 s47, 32
    s_branch {name}_max
{name}_merge:
    v_mov_b32 v{ob(1)+11}, v{MX+1}
    s_mul_i32 s45, s33, 3072
    s_xor_b32 s46, s33, 4
    s_mul_i32 s46, s46, 3072
    v_add_u32 v{AK}, s45, v4
    v_add_u32 v{AV}, s46, v4
    s_barrier
    """)
    for i in range(3):
        b(f"ds_write_b128 v{AK}, {v(ob(1)+4*i,4)} offset:{1024*i}")
    P = sb(0)
    b(f"""
    v_lshrrev_b32 v5, 4, v2
    v_mul_u32_u24 v5, 18432, v5
    v_and_b32 v6, 15, v2
    v_lshl_add_u32 v5, v6, 4, v5
    v_mov_b32 v7, {OOB}
    v_lshl_add_u32 v6, v3, 8, v5
    v_cndmask_b32 v7, v7, v5, s[50:51]
    s_mul_i32 s42, s39, 36864
    s_lshl_b32 s43, s34, 9
    s_add_u32 s43, s43, s42
    s_lshr_b32 s44, s34, 2
    s_lshl_b32 s44, s44, 8
    s_add_u32 s42, s42, s44
    s_and_b32 s44, s34, 3
    s_lshl_b32 s44, s44, 2
    s_add_u32 s42, s42, s44
    s_add_u32 s42, s42, 16384
    s_waitcnt lgkmcnt(0)
    s_barrier
    """)
    for i in range(3):
        b(f"ds_read_b128 {v(P+4*i,4)}, v{AV} offset:{1024*i}")
    o0 = ob(0)
    b(f"""
    s_waitcnt lgkmcnt(0)
    v_max_f32 v8, v{MX}, v{P+11}
    v_sub_f32 v9, v{MX}, v8
    v_sub_f32 v8, v{P+11}, v8
    v_exp_f32 v9, v9
    v_exp_f32 v8, v8
    v_mul_f32 v{MX}, v9, v{o0+10}
    v_fmac_f32 v{MX}, v8, v{P+10}
    v_rcp_f32 v{MX}, v{MX}
    s_nop 0
    v_mul_f32 v9, v9, v{MX}
    v_mul_f32 v8, v8, v{MX}
    """)
    for i in range(10):
        b(f"v_mul_f32 v{o0+i}, v9, v{o0+i}")
    for i in range(10):
        b(f"v_fmac_f32 v{o0+i}, v8, v{P+i}")
    for i in range(5):
        b(f"v_cvt_pk_bf16_f32 v{QM+i}, v{o0+2*i}, v{o0+2*i+1}")
    b(f"""
    buffer_store_dwordx4 {v(QM,4)}, v6, s[20:23], s43 offen
    buffer_store_dword v{QM+4}, v7, s[20:23], s42 offen
{name}_end:
    s_endpgm
    """)
    return dict(name=name, text=b.text(), grid=256, block=512, lds=147456 + 3 * 2304)


def gen_oproj(name):
    b = B()
    head(b, name, 256, [(4, "ws")])
    ACC, RES, OF = 16, 40, 56
    b(f"""
    v_lshrrev_b32 v5, 6, v0
    v_lshlrev_b32 v1, 4, v0
    v_and_b32 v2, 63, v0
    v_readfirstlane_b32 s33, v5
    v_lshlrev_b32 v2, 4, v2
    s_and_b32 s34, s2, 7
    s_lshl_b32 s34, s34, 3
    s_lshr_b32 s35, s2, 5
    s_add_u32 s34, s34, s35
    s_bfe_u32 s35, s2, 0x20003
    s_mul_i32 s35, s35, 9
    s_mul_i32 s36, s33, 3
    s_add_u32 s35, s35, s36
    s_mul_i32 s36, s34, 36864
    s_mov_b32 s37, s36
    s_lshl_b32 m0, s33, 10
    """)
    for i in range(3):
        b(f"""
        s_add_u32 s38, s35, {i}
        s_mul_i32 s{40+i}, s38, 18432
        s_lshr_b32 s39, s38, 1
        s_lshl_b32 s39, s39, 10
        s_and_b32 s38, s38, 1
        s_lshl_b32 s38, s38, 3
        s_add_u32 s38, s38, s39
        s_add_u32 s{44+2*i}, s38, s36
        s_add_u32 s{45+2*i}, s{44+2*i}, 18432
        """)
    b("s_waitcnt lgkmcnt(0)")
    srd(b, 12, 4, OB, SZX)
    srd(b, 16, 4, WO, 36 * 18 * 1024)
    srd(b, 20, 4, XR, SZX)
    srd(b, 24, 4, X1, SZX)
    for i in range(12):
        b("buffer_load_dwordx4 v1, s[12:15], s37 offen lds")
        if i < 11:
            b("s_add_u32 m0, m0, 3072\ns_add_u32 s37, s37, 3072")
    for i in range(6):
        b(f"buffer_load_dwordx2 {v(RES+2*i,2)}, v2, s[20:23], s{44+i} offen")
    wf = lambda ks, i: a((ks * 3 + i) * 4, 4)

    def wload(ks):
        for i in range(3):
            off = f" offset:{1024*(ks%4)}" if ks % 4 else ""
            b(f"buffer_load_dwordx4 {wf(ks,i)}, v2, s[16:19], s{40+i} offen{off}")
        if ks % 4 == 3:
            for i in range(3):
                b(f"s_add_u32 s{40+i}, s{40+i}, 4096")

    for ks in range(14):
        wload(ks)
    b("s_waitcnt vmcnt(42)\ns_barrier")
    for ks in range(14, 18):
        wload(ks)
    of = lambda ks, rt: v(OF + (ks % 3) * 8 + rt * 4, 4)
    rd = lambda ks: [f"ds_read_b128 {of(ks,rt)}, v2 offset:{(rt*18+ks)*1024}" for rt in range(2)]
    for ks in range(2):
        b("\n".join(rd(ks)))
    for i in range(6):
        for j in range(2):
            b(f"v_lshlrev_b32 v{ACC+4*i+2*j}, 16, v{RES+2*i+j}\nv_and_b32 v{ACC+4*i+2*j+1}, 0xffff0000, v{RES+2*i+j}")
    for ks in range(18):
        if ks + 2 < 18:
            b("\n".join(rd(ks + 2)))
        b(f"s_waitcnt vmcnt({3*(17-ks)}) lgkmcnt({min(4, 2*(17-ks))})")
        for i in range(3):
            for rt in range(2):
                d = v(ACC + (2 * i + rt) * 4, 4)
                b(mf16(d, wf(ks, i), of(ks, rt), d))
    b("s_nop 2")
    for i in range(6):
        if i == 4:
            b("s_nop 1")
        b(f"""
        v_cvt_pk_bf16_f32 v{RES+2*i}, v{ACC+4*i}, v{ACC+4*i+1}
        v_cvt_pk_bf16_f32 v{RES+2*i+1}, v{ACC+4*i+2}, v{ACC+4*i+3}
        buffer_store_dwordx2 {v(RES+2*i,2)}, v2, s[24:27], s{44+i} offen
        """)
    b(f"{name}_end:\ns_endpgm")
    return dict(name=name, text=b.text(), grid=256, block=192, lds=36864)


def gen_ffn(name, store_flags=" sc1"):
    b = B()
    head(b, name, 256, [(4, "ws")])
    CH = 36864
    LA, LB, DV, SV, C1, C2 = 2, 3, 4, 7, 10, 12
    ACC1, TMP, H0, ACC2, PK, ST, ONE = 16, 48, 80, 152, 216, 152, 168
    RING, NR, PD = 144, 12, 8
    xb = lambda ks, rt: a((ks * 2 + rt) * 4, 4)
    ring = lambda i: a(RING + 4 * (i % NR), 4)
    b(f"""
    v_lshrrev_b32 v5, 6, v0
    v_and_b32 v1, 63, v0
    v_lshlrev_b32 v1, 4, v1
    v_readfirstlane_b32 s33, v5
    s_and_b32 s34, s2, 7
    s_lshr_b32 s35, s2, 3
    s_and_b32 s36, s34, 3
    s_lshl_b32 s36, s36, 2
    s_and_b32 s37, s35, 3
    s_add_u32 s36, s36, s37
    s_lshr_b32 s37, s34, 2
    s_lshl_b32 s37, s37, 3
    s_lshr_b32 s35, s35, 2
    s_add_u32 s37, s37, s35
    s_lshl_b32 s37, s37, 2
    s_add_u32 s37, s37, s33
    s_mul_i32 s38, s36, {WFS}
    s_mul_i32 s39, s37, 36864
    s_add_u32 s40, s39, 18432
    s_mul_i32 s41, s36, {SZX}
    s_mul_i32 s42, s33, 9216
    v_add_u32 v{DV}, s42, v1
    v_add_u32 v{SV}, s39, v1
    v_add_u32 v{SV+1}, s40, v1
    v_add_u32 v{DV+1}, 4096, v{DV}
    v_add_u32 v{DV+2}, 8192, v{DV}
    s_mov_b32 s43, 0
    s_waitcnt lgkmcnt(0)
    """)
    srd(b, 12, 4, X1, SZX)
    srd(b, 16, 4, WF, WFS, extra=38)
    srd(b, 20, 4, PART, SZX, extra=41)

    def dma(slot):
        out = []
        for i in range(9):
            ld = f"buffer_load_dwordx4 v{DV+i//4}, s[16:19], s43 offen" + (f" offset:{1024*(i%4)}" if i % 4 else "") + " lds"
            if i % 4 == 0:
                out.append(f"s_add_u32 m0, s{slot}, {4096*(i//4)}")
            out.append(ld)
        out.append(f"s_add_u32 s43, s43, {CH}")
        return out

    def emit_dma(slot):
        for t in dma(slot):
            b(t)
            if "m0," in t:
                b("s_nop 0")

    b("s_mov_b32 s44, s42")
    emit_dma(44)
    for ks in range(18):
        for rt in range(2):
            off = f" offset:{1024*(ks%4)}" if ks % 4 else ""
            b(f"buffer_load_dwordx4 {xb(ks,rt)}, v1, s[12:15], s{39+rt} offen{off}")
        if ks % 4 == 3:
            b("s_add_u32 s39, s39, 4096\ns_add_u32 s40, s40, 4096")
    for c in (1, 2):
        b(f"s_add_u32 s44, s42, {c*CH}")
        emit_dma(44)
    for i in range(4):
        b(f"v_mov_b32 v{ONE+i}, 0x3f803f80")
    b(f"""
    v_mov_b32 v{LA}, v1
    v_add_u32 v{LB}, {CH}, v1
    s_waitcnt vmcnt(54)
    s_barrier
    """)
    rdf = lambda gi, i, base: f"ds_read_b128 {ring(gi)}, v{base} offset:{1024*i}"
    acc1 = lambda st, gu, rt: ACC1 + 16 * st + (gu * 2 + rt) * 4
    for i in range(PD):
        b(rdf(i, i, LA))
    for ks in range(18):
        left = min(PD, 36 - 2 * ks) - 2
        b(f"s_waitcnt vmcnt({18 + 2*(17-ks)}) lgkmcnt({left})")
        for gu in range(2):
            for rt in range(2):
                d = v(acc1(0, gu, rt), 4)
                b(mf16(d, ring(2 * ks + gu), xb(ks, rt), "0" if ks == 0 else d))
            if 2 * ks + gu + PD < 36:
                b(rdf(2 * ks + gu + PD, 2 * ks + gu + PD, LA))
        for rt in range(2):
            d = v(ST + 4 * rt, 4)
            b(mf16(d, v(ONE, 4), xb(ks, rt), "0" if ks == 0 else d))
            d = v(ST + 8 + 4 * rt, 4)
            b(mf16(d, xb(ks, rt), xb(ks, rt), "0" if ks == 0 else d))
    b(f"s_add_u32 s44, s42, {3*CH}")
    b("s_waitcnt vmcnt(9)\ns_barrier")
    for i in range(PD):
        b(rdf(i, i, LB))
    emit_dma(44)
    b(f"""
    v_and_b32 v{TMP}, 3, v0
    v_and_b32 v{TMP+1}, 15, v0
    v_cmp_eq_u32 s[50:51], 1, v{TMP}
    v_cmp_eq_u32 s[52:53], 2, v{TMP}
    v_cmp_eq_u32 s[54:55], 3, v{TMP}
    v_lshrrev_b32 v{TMP+2}, 2, v{TMP+1}
    v_lshl_add_u32 v{TMP+1}, v{TMP+2}, 4, v{TMP+1}
    v_lshlrev_b32 v{TMP+1}, 2, v{TMP+1}
    """)
    for rt in range(2):
        g = ST + 8 + 4 * rt
        b(f"""
        v_cndmask_b32 v{g}, v{g}, v{g+1}, s[50:51]
        v_cndmask_b32 v{g}, v{g}, v{g+2}, s[52:53]
        v_cndmask_b32 v{g}, v{g}, v{g+3}, s[54:55]
        ds_bpermute_b32 v{C2+rt}, v{TMP+1}, v{g}
        """)
    b("s_waitcnt lgkmcnt(0)")
    for rt in range(2):
        b(f"""
        v_mul_f32 v{TMP}, {fbits(1/576)}, v{ST+4*rt}
        v_mul_f32 v{C2+rt}, {fbits(1/576)}, v{C2+rt}
        v_fma_f32 v{C2+rt}, -v{TMP}, v{TMP}, v{C2+rt}
        v_max_f32 v{C2+rt}, 0, v{C2+rt}
        v_add_f32 v{C2+rt}, {fbits(1e-5)}, v{C2+rt}
        v_rsq_f32 v{C1+rt}, v{C2+rt}
        s_nop 0
        v_mul_f32 v{C1+rt}, {fbits(-math.log2(math.e))}, v{C1+rt}
        """)
    b(f"""
    s_mov_b32 s45, {2*CH}
    s_mov_b32 s44, s42
    s_mov_b32 s46, 0
    s_waitcnt vmcnt(9)
    s_barrier
    """)

    def swiglu(st, half, indexed, after, deadline=None):
        ops, last = [], []
        for k in range(8):
            rt, i = divmod(k, 4)
            g, u = acc1(st, 0, rt) + i, acc1(st, 1, rt) + i
            t, p = TMP + k, TMP + 8 + k
            c = chain([f"v_mul_f32 v{t}, v{C1+rt}, v{g}", f"v_exp_f32 v{t}, v{t}",
                       f"v_fma_f32 v{t}, v{t}, v{C2+rt}, v{C2+rt}", f"v_rcp_f32 v{t}, v{t}"], earliest=3, dist=1)
            m = Op(f"v_mul_f32 v{p}, v{g}, v{u}", earliest=4)
            f = Op(f"v_mul_f32 v{p}, v{p}, v{t}", [(c[-1], 1), (m, 0)])
            ops += c + [m, f]
            last.append(f)
        base = H0 + (0 if indexed else 64)
        cv = [f"v_cvt_pk_bf16_f32 v{base+4*rt+2*half+j}, v{TMP+8+4*rt+2*j}, v{TMP+8+4*rt+2*j+1}" for rt in range(2) for j in range(2)]
        if indexed:
            ops.append(Op("\n".join(["s_set_gpr_idx_on s46, gpr_idx(DST)"] + cv + ["s_set_gpr_idx_off"]),
                          [(f, 0) for f in last] + [(after, 0)]))
            if half:
                ops.append(Op("s_add_u32 s46, s46, 8", [(ops[-1], 0)]))
        else:
            ops += [Op(t, [(last[2*k], 0), (last[2*k+1], 0)], deadline=deadline) for k, t in enumerate(cv)]
        return ops

    def chunk(mains, cur, nxt, extra, vmwait):
        pinned = []
        for i in range(36):
            j = i + PD
            pinned.append((2 * i, rdf(j, j % 36, cur if j < 36 else nxt)))
            if i % 4 == 3:
                pinned.append((2 * i + 1, f"s_waitcnt lgkmcnt({PD-4})"))
        dm = chain(dma(44), dist=1)
        pinned.append((0, f"v_add_u32 v{nxt}, s45, v1"))
        slot = chain([f"s_add_u32 s44, s44, {CH}",
                      f"s_cmp_eq_u32 s45, {CH}\ns_cselect_b32 s44, s42, s44", f"s_add_u32 s45, s45, {CH}",
                      f"s_cmp_eq_u32 s45, {4*CH}\ns_cselect_b32 s45, 0, s45"], after=dm[-1])
        txt, over, lastgap = sched(mains, pinned, dm + extra(dm[-1]) + slot)
        b(txt)
        b(f"s_waitcnt vmcnt({vmwait})\ns_barrier")
        return over, lastgap

    def p1_mains(st):
        m = []
        for ks in range(18):
            for gu in range(2):
                for rt in range(2):
                    d = v(acc1(st, gu, rt), 4)
                    m.append(mf16(d, ring(2 * ks + gu), xb(ks, rt), "0" if ks == 0 else d))
        return m

    acc2 = lambda st, tl, rt: ACC2 + 32 * st + (tl * 2 + rt) * 4

    def p2_mains(st):
        m = []
        for u in range(9):
            for tl in range(4):
                for rt in range(2):
                    d = v(acc2(st, tl, rt), 4)
                    m.append(mf16(d, ring(4 * u + tl), v(H0 + (u * 2 + rt) * 4, 4), "0" if u == 0 else d))
        return m

    def p2_out(st):
        out = []
        for pr in range(2):
            for rt in range(2):
                o = PK + (pr * 2 + rt) * 4
                p, q = acc2(st, 2 * pr, rt), acc2(st, 2 * pr + 1, rt)
                out += [f"v_cvt_pk_bf16_f32 v{o}, v{p}, v{p+1}", f"v_cvt_pk_bf16_f32 v{o+1}, v{p+2}, v{p+3}",
                        f"v_cvt_pk_bf16_f32 v{o+2}, v{q}, v{q+1}", f"v_cvt_pk_bf16_f32 v{o+3}, v{q+2}, v{q+3}",
                        f"buffer_store_dwordx4 {v(o,4)}, v{SV+rt}, s[20:23], s47 offen" + (" offset:1024" if pr else "") + store_flags]
        out.append("s_add_u32 s47, s47, 2048")
        return out

    over = []
    b(f"s_waitcnt lgkmcnt({PD-4})\n.p2align 3\n{name}_p1:")
    over.append(chunk(p1_mains(1), LB, LA, lambda d: swiglu(0, 0, True, d), 9))
    b(f"s_cmp_eq_u32 s46, 64\ns_cbranch_scc1 {name}_p2")
    over.append(chunk(p1_mains(0), LA, LB, lambda d: swiglu(1, 1, True, d), 9))
    b(f"s_branch {name}_p1\n{name}_p2:\ns_mov_b32 s47, 0")
    over.append(chunk(p2_mains(0), LA, LB, lambda d: swiglu(1, 1, False, d, 61), 9))
    b(f".p2align 3\n{name}_p3:")
    over.append(chunk(p2_mains(1), LB, LA, lambda d: chain(p2_out(0), after=d), 13))
    over.append(chunk(p2_mains(0), LA, LB, lambda d: chain(p2_out(1), after=d), 13))
    b(f"s_cmp_lt_u32 s47, {8*2048}\ns_cbranch_scc1 {name}_p3\ns_nop 4")
    b("\n".join(p2_out(0)))
    b(f"{name}_end:\ns_endpgm")
    print("ffn slot overflow per chunk:", over, file=sys.stderr)
    return dict(name=name, text=b.text(), grid=256, block=256, lds=4 * CH)


HEADER = """; Two transformer layers (LayerNorm + 32-head attention, LayerNorm + SwiGLU), S=2048 D=576 F=4608, bf16.
"""


def assemble(kernels, order):
    byname = {k["name"]: k for k in kernels}
    out = HEADER
    for n in order:
        k = byname[n]
        out += f"; @launch kernel={n} grid=({k['grid']},1,1) block=({k['block']},1,1) lds={k['lds']}\n"
    out += '.amdgcn_target "amdgcn-amd-amdhsa--gfx950"\n.text\n'
    desc = '.section .rodata,"a"\n'
    bad = 0
    for k in kernels:
        if k["name"] not in order:
            continue
        p = Prog(k["text"])
        errs = p.hazards() + p.waits()
        for e in errs[:30]:
            print(k["name"], e, file=sys.stderr)
        bad += len(errs)
        mx = p.max_regs()
        acc = max(4, (mx["v"] + 4) // 4 * 4)
        nfv = acc + mx["a"] + 1 if mx["a"] >= 0 else mx["v"] + 1
        print(f"{k['name']}: {len(p.ins)} instr, vgpr {mx['v']+1}, agpr {mx['a']+1}, sgpr {mx['s']+1}", file=sys.stderr)
        out += f".globl {k['name']}\n.p2align 8\n.type {k['name']},@function\n{k['name']}:\n{k['text']}"
        desc += f""".p2align 6
.amdhsa_kernel {k['name']}
  .amdhsa_next_free_vgpr {nfv}
  .amdhsa_next_free_sgpr {mx['s']+1}
  .amdhsa_accum_offset {acc}
  .amdhsa_group_segment_fixed_size 0
  .amdhsa_kernarg_size 80
  .amdhsa_user_sgpr_count 2
  .amdhsa_user_sgpr_kernarg_segment_ptr 1
  .amdhsa_system_sgpr_workgroup_id_x 1
.end_amdhsa_kernel
"""
    if bad:
        raise SystemExit(f"{bad} static check failures")
    return out + desc


def build_all():
    ks = [gen_row("first_kernel", "first"), gen_prep("prep_kernel"), gen_qkv("qkv_kernel"), gen_attn("attn_kernel"),
          gen_oproj("oproj_kernel"), gen_ffn("ffn_kernel"), gen_row("mid_kernel", "mid"), gen_row("last_kernel", "last")]
    layer = ["qkv_kernel", "attn_kernel", "oproj_kernel", "ffn_kernel"]
    order = ["first_kernel", "prep_kernel"] + layer + ["mid_kernel"] + layer + ["last_kernel"]
    return assemble(ks, order)


if __name__ == "__main__":
    path = sys.argv[1] if len(sys.argv) > 1 else "interleave_layers__mha_block__glu_gated_swiglu__prompt.s"
    open(path, "w").write(build_all())
```

```python
import re

TRANS = ("v_exp_", "v_log_", "v_rcp_", "v_rsq_", "v_sqrt_", "v_sin_", "v_cos_")
NO_DST_SALU = ("s_cmp", "s_waitcnt", "s_barrier", "s_nop", "s_branch", "s_cbranch", "s_setprio", "s_sleep",
               "s_endpgm", "s_set_gpr_idx_off", "s_bitcmp", "s_setreg", "s_sethalt")
REG_RE = re.compile(r"^-?\|?(?:abs\()?([vas])(?:\[(\d+):(\d+)\]|(\d+))\)?\|?$")


def regs_of(op):
    op = op.strip()
    if op in ("vcc", "vcc_lo", "vcc_hi"):
        return {"vcc"}
    if op in ("exec", "exec_lo", "exec_hi"):
        return {"exec"}
    if op == "m0":
        return {"m0"}
    m = REG_RE.match(op)
    if not m:
        return set()
    if m.group(4) is not None:
        return {m.group(1) + m.group(4)}
    return {m.group(1) + str(i) for i in range(int(m.group(2)), int(m.group(3)) + 1)}


class Ins:
    def __init__(self, text, idx):
        self.text, self.idx = text, idx
        body = text.split(";")[0].strip()
        parts = body.split(None, 1)
        self.op = parts[0]
        rest = parts[1] if len(parts) > 1 else ""
        ops = [o.strip() for o in rest.split(",")] if rest else []
        self.mods = ""
        if ops:
            last = ops[-1].split(None, 1)
            if len(last) > 1 and not self.op.startswith("s_waitcnt"):
                ops[-1], self.mods = last[0], last[1]
        self.ops = ops
        op = self.op
        R = [regs_of(o) for o in ops]
        u = lambda xs: set().union(*xs) if xs else set()
        self.kind = "other"
        self.w, self.r = set(), set()
        self.passes = 0
        self.srcC = set()
        self.srcAB = set()
        self.store_data = set()
        if op.startswith("v_mfma") or op.startswith("v_smfmac"):
            self.kind = "mfma"
            self.passes = 4 if "16x16" in op else 8
            self.w = R[0]
            if op.startswith("v_smfmac"):
                self.srcC, self.srcAB = R[0], R[1] | R[2] | R[3]
            else:
                self.srcC, self.srcAB = R[3], R[1] | R[2]
            self.r = self.srcC | self.srcAB
        elif op.startswith("v_"):
            self.kind = "valu"
            if op.startswith("v_permlane") and "swap" in op or op.startswith("v_swap"):
                self.w = R[0] | R[1]
                self.r = R[0] | R[1]
            elif op.startswith("v_nop"):
                pass
            elif re.match(r"v_(add|sub|subrev|addc|subb)_co_", op) or op.startswith("v_mad_u64"):
                self.w = R[0] | R[1]
                self.r = u(R[2:])
            else:
                self.w = set(R[0])
                self.r = u(R[1:])
                if op.startswith("v_cmpx"):
                    self.w |= {"exec"}
                if op.startswith(("v_fmac", "v_dot2c", "v_writelane", "v_pk_fmac")) or "row_" in self.mods \
                        or "quad_perm" in self.mods or "UNUSED_PRESERVE" in self.mods:
                    self.r |= R[0]
                if op.startswith("v_cndmask") and len(ops) == 3:
                    self.r |= {"vcc"}
        elif op.startswith("ds_"):
            self.kind = "ds"
            if op.startswith(("ds_read", "ds_bpermute", "ds_permute", "ds_swizzle")):
                self.w = R[0]
                self.r = u(R[1:])
            else:
                self.r = u(R)
        elif op.startswith(("buffer_", "global_")):
            self.kind = "vmem"
            lds = re.search(r"\blds\b", self.mods) is not None or "load_lds" in op
            self.lds = lds
            if op.startswith(("buffer_wbl2", "buffer_inv")):
                pass
            elif "load" in op and not lds:
                self.w = R[0]
                self.r = u(R[1:])
            elif lds:
                self.r = u(R) | {"m0"}
            else:
                self.r = u(R)
                data = R[0] if op.startswith("buffer_") else R[1]
                if op.endswith(("x3", "x4")):
                    self.store_data = data
                if "atomic" in op and "sc0" in self.mods:
                    self.w = data
        elif op.startswith(("s_load", "s_buffer_load", "s_memtime", "s_memrealtime", "s_atomic")):
            self.kind = "smem"
            self.w = R[0]
            self.r = u(R[1:])
        elif op.startswith("s_"):
            self.kind = "salu"
            if op.startswith("s_set_gpr_idx_on"):
                self.w = {"m0"}
                self.r = R[0]
            elif op.startswith(NO_DST_SALU):
                self.r = u(R)
                if "vcc" in op:
                    self.r |= {"vcc"}
                if "exec" in op:
                    self.r |= {"exec"}
            else:
                self.w = set(R[0])
                self.r = u(R[1:])
                if "saveexec" in op:
                    self.w |= {"exec"}
                if op.startswith(("s_addk", "s_mulk", "s_cmov", "s_bitset")):
                    self.r |= R[0]
        self.trans = op.startswith(TRANS)
        self.dot = op.startswith("v_dot")
        self.dpp = "row_" in self.mods or "quad_perm" in self.mods
        self.states = 1
        if op == "s_nop":
            self.states = int(ops[0], 0) + 1


def is_v(r):
    return r[0] in "va" and r != "vcc"


def need_states(p, c):
    n = 0
    pv = {r for r in p.w if is_v(r)}
    ps = p.w - pv
    if p.kind == "valu":
        if c.kind == "mfma" and pv & c.r:
            n = max(n, 3 if p.dot else 2)
        if c.kind == "mfma" and "exec" in p.w:
            n = max(n, 4)
        if c.kind == "valu":
            if p.trans and not c.trans and pv & c.r:
                n = max(n, 1)
            if c.op.startswith(("v_readlane", "v_readfirstlane")) and pv & c.r:
                n = max(n, 1)
            if (c.op.startswith("v_permlane") or c.dpp) and pv & c.r:
                n = max(n, 2)
            if ps & c.r:
                n = max(n, 4 if c.op.startswith(("v_readlane", "v_writelane")) else 2)
            if "exec" in p.w:
                if c.dpp:
                    n = max(n, 5)
                if c.op.startswith(("v_readlane", "v_readfirstlane", "v_writelane", "v_permlane")):
                    n = max(n, 4)
            if ("sdwa" in p.op or "op_sel" in p.mods) and not p.op.startswith("v_pk") and pv & (c.r | c.w):
                n = max(n, 1)
        if p.dot and pv & (c.r | c.w) and c.kind in ("valu", "ds", "vmem"):
            same_c = c.op == p.op and not (pv & (regs_of(c.ops[1]) | regs_of(c.ops[2])))
            if not same_c:
                n = max(n, 3)
        if c.kind == "vmem" and ps & c.r:
            n = max(n, 5)
        if c.kind == "salu" and ps & c.r:
            n = max(n, 1)
    if p.kind == "mfma":
        big = p.passes == 8
        if c.kind == "mfma":
            if p.w & c.srcAB:
                n = max(n, 12 if big else 8)
            if p.w & c.srcC and not (p.w == c.srcC and p.passes == c.passes):
                n = max(n, 10 if big else 6)
            if p.w & c.w and not (p.w & c.srcC) and p.passes > c.passes:
                n = max(n, 10 if big else 6)
        elif c.kind in ("valu", "ds", "vmem"):
            if p.w & (c.r | c.w):
                n = max(n, 12 if big else 8)
            if c.kind == "valu" and p.srcC & c.w:
                n = max(n, 7 if big else 3)
    if p.kind == "vmem" and p.store_data & c.w:
        n = max(n, 2 if c.kind in ("valu", "mfma") else 1)
    if p.kind == "salu" and "m0" in p.w and c.kind == "vmem" and "m0" in c.r:
        n = max(n, 1)
    return n


class Prog:
    def __init__(self, text):
        self.ins, self.labels = [], {}
        for line in text.splitlines():
            s = line.split(";")[0].strip()
            if not s or s.startswith("."):
                continue
            if s.endswith(":"):
                self.labels[s[:-1]] = len(self.ins)
                continue
            self.ins.append(Ins(line.strip(), len(self.ins)))
        n = len(self.ins)
        self.succ = [[] for _ in range(n)]
        self.pred = [[] for _ in range(n)]
        for i, x in enumerate(self.ins):
            if x.op == "s_endpgm":
                continue
            if x.op.startswith(("s_branch", "s_cbranch")):
                t = self.labels[x.ops[0]]
                if t < n:
                    self.succ[i].append(t)
            if x.op != "s_branch" and i + 1 < n:
                self.succ[i].append(i + 1)
        for i, ss in enumerate(self.succ):
            for t in ss:
                self.pred[t].append(i)

    def hazards(self):
        errs = []
        for c in self.ins:
            if c.kind == "other" or c.op in ("s_nop", "s_waitcnt", "s_barrier"):
                continue
            best = {}
            stack = [(p, 0) for p in self.pred[c.idx]]
            while stack:
                i, d = stack.pop()
                if d >= 13 or best.get(i, 99) <= d:
                    continue
                best[i] = d
                p = self.ins[i]
                need = need_states(p, c)
                if need > d:
                    errs.append(f"hazard: need {need} have {d}: [{p.idx}] {p.text}  ->  [{c.idx}] {c.text}")
                stack.extend((q, d + p.states) for q in self.pred[i])
        return errs

    def waits(self, start=0, max_back=2, limit=3_000_000):
        errs, seen, steps = set(), set(), 0
        stack = [(start, (), (), ())]
        while stack:
            i, vm, lg, back = stack.pop()
            vm, lg, back = list(vm), list(lg), dict(back)
            while True:
                steps += 1
                if steps > limit:
                    errs.add("wait walk: step limit reached")
                    return sorted(errs)
                x = self.ins[i]
                if x.op == "s_waitcnt":
                    t = " ".join(x.ops)
                    m = re.search(r"vmcnt\((\d+)\)", t)
                    if m:
                        k = int(m.group(1))
                        vm = vm[len(vm) - k:] if k and len(vm) > k else (vm if k else [])
                    m = re.search(r"lgkmcnt\((\d+)\)", t)
                    if m:
                        k = int(m.group(1))
                        if k == 0:
                            lg = []
                        elif any(self.ins[j].kind == "smem" for j in lg):
                            errs.add(f"counted lgkmcnt with SMEM outstanding at [{i}] {x.text}")
                        elif len(lg) > k:
                            lg = lg[len(lg) - k:]
                else:
                    use = x.r | x.w
                    for j in vm + lg:
                        p = self.ins[j]
                        if p.w & use and not (x.kind == p.kind and x.kind in ("vmem", "ds") and not (p.w & x.r)):
                            errs.add(f"unwaited: [{j}] {p.text}  ->  [{i}] {x.text}")
                    if x.kind == "vmem":
                        vm.append(i)
                        if len(vm) > 63:
                            errs.add(f"more than 63 vmem ops outstanding at [{i}] {x.text}")
                            vm = vm[-63:]
                    elif x.kind in ("ds", "smem"):
                        lg.append(i)
                        if len(lg) > 15 and x.kind == "ds":
                            errs.add(f"more than 15 lgkm ops outstanding at [{i}] {x.text}")
                            lg = lg[-15:]
                nxt = []
                for t in self.succ[i]:
                    if t <= i:
                        if back.get(i, 0) < max_back:
                            b2 = dict(back)
                            b2[i] = b2.get(i, 0) + 1
                            nxt.append((t, b2))
                    else:
                        nxt.append((t, back))
                if not nxt:
                    break
                if len(nxt) > 1:
                    fresh = []
                    for t, b in nxt:
                        key = (t, tuple(vm), tuple(lg))
                        if key not in seen:
                            seen.add(key)
                            fresh.append((t, b))
                    nxt = fresh
                    if not nxt:
                        break
                    for t, b in nxt[1:]:
                        stack.append((t, tuple(vm), tuple(lg), tuple(b.items())))
                i, back = nxt[0]
        return sorted(errs)

    def max_regs(self):
        mx = {"v": -1, "a": -1, "s": -1}
        for x in self.ins:
            for r in x.r | x.w:
                if r[0] in mx and r[1:].isdigit():
                    mx[r[0]] = max(mx[r[0]], int(r[1:]))
        return mx


class B:
    def __init__(self):
        self.lines = []

    def __call__(self, text):
        for ln in text.strip("\n").splitlines():
            s = ln.strip()
            if s:
                self.lines.append(s if s.endswith(":") or s.startswith(".") else "  " + s)

    def text(self):
        return "\n".join(self.lines) + "\n"


def v(a, n=1):
    return f"v{a}" if n == 1 else f"v[{a}:{a + n - 1}]"


def a(i, n=1):
    return f"a{i}" if n == 1 else f"a[{i}:{i + n - 1}]"


def s(i, n=1):
    return f"s{i}" if n == 1 else f"s[{i}:{i + n - 1}]"


def cost(text):
    return sum(2 if ln.strip().startswith(TRANS) else 1 for ln in text.strip().splitlines())


def weave(mains, streams, cap=2):
    n = len(mains)
    gaps = [[] for _ in range(n)]
    used = [0] * n
    for st in streams:
        for e in st:
            if len(e) == 3:
                gaps[e[0]].append(e[1])
                used[e[0]] += cost(e[1])
    for st in streams:
        g = 0
        for e in st:
            if len(e) == 3:
                g = max(g, e[0])
                continue
            g = max(g, e[0])
            c = cost(e[1])
            while g < n - 1 and used[g] + c > cap and not (c > cap and used[g] == 0):
                g += 1
            gaps[g].append(e[1])
            used[g] += c
    out = []
    for m, gp in zip(mains, gaps):
        out.append(m)
        out.extend(gp)
    over = sum(max(0, x - cap) for x in used)
    return "\n".join(out), over


class Op:
    def __init__(self, text, deps=(), earliest=0, deadline=None):
        self.text, self.deps, self.earliest, self.deadline = text, list(deps), earliest, deadline
        self.cost = cost(text)
        self.gap = None


def chain(texts, earliest=0, dist=0, after=None):
    out, prev = [], after
    for t in texts:
        t, d = t if isinstance(t, tuple) else (t, dist)
        o = Op(t, [(prev, d)] if prev else [], earliest)
        out.append(o)
        prev = o
    return out


def sched(mains, pinned, ops, cap=2):
    n = len(mains)
    gaps = [[] for _ in range(n)]
    used = [0] * n
    for g, t in pinned:
        gaps[g].append(t)
        used[g] += cost(t)
    todo = list(ops)
    for g in range(n):
        while todo:
            free = cap - used[g]
            ready = [o for o in todo if o.earliest <= g and all(d.gap is not None and d.gap + k <= g for d, k in o.deps)]
            if g == n - 1:
                ready = [o for o in todo if all(d.gap is not None for d, k in o.deps)]
                fit = ready
            else:
                fit = [o for o in ready if o.cost <= free or (o.cost > cap and used[g] == 0)]
            if not fit:
                break
            wide = [o for o in fit if o.cost >= cap]
            o = (wide or fit)[0]
            o.gap = g
            gaps[g].append(o.text)
            used[g] += o.cost
            todo.remove(o)
    assert not todo
    for o in ops:
        assert o.deadline is None or o.gap <= o.deadline, f"deadline missed: {o.text} at gap {o.gap}"
    out = []
    for m, gp in zip(mains, gaps):
        out.append(m)
        out.extend(gp)
    return "\n".join(out), sum(max(0, x - cap) for x in used), max((o.gap for o in ops), default=0)


def resolve_waits(text, max_back=2):
    lines = text.splitlines()
    pat = re.compile(r"vmcnt\(@([\w,]+)\)")
    if not any(pat.search(x) for x in lines):
        return text
    prog = Prog(pat.sub("vmcnt(63)", text))
    src = [k for k, ln in enumerate(lines)
           if (lambda t: t and not t.startswith(".") and not t.endswith(":"))(ln.split(";")[0].strip())]
    want = {i: set(pat.search(lines[k]).group(1).split(",")) for i, k in enumerate(src) if pat.search(lines[k])}
    tags = {i: set(re.findall(r";#(\w+)", lines[k])) for i, k in enumerate(src)}
    best = {i: 63 for i in want}
    seen = set()
    stack = [(0, (), ())]
    while stack:
        i, vm, back = stack.pop()
        vm, back = list(vm), dict(back)
        while True:
            x = prog.ins[i]
            if i in want:
                for n, j in enumerate(reversed(vm)):
                    if tags[j] & want[i]:
                        best[i] = min(best[i], n)
                        vm = vm[len(vm) - n:] if n else []
                        break
            elif x.op == "s_waitcnt":
                m = re.search(r"vmcnt\((\d+)\)", " ".join(x.ops))
                if m:
                    k = int(m.group(1))
                    vm = vm[len(vm) - k:] if k and len(vm) > k else (vm if k else [])
            elif x.kind == "vmem":
                vm = (vm + [i])[-63:]
            nxt = []
            for t in prog.succ[i]:
                if t <= i:
                    if back.get(i, 0) < max_back:
                        b2 = dict(back)
                        b2[i] = b2.get(i, 0) + 1
                        nxt.append((t, b2))
                else:
                    nxt.append((t, back))
            if len(nxt) > 1:
                fresh = []
                for t, b in nxt:
                    key = (t, tuple(vm))
                    if key not in seen:
                        seen.add(key)
                        fresh.append((t, b))
                nxt = fresh
            if not nxt:
                break
            for t, b in nxt[1:]:
                stack.append((t, tuple(vm), tuple(b.items())))
            i, back = nxt[0]
    for i, n in best.items():
        lines[src[i]] = pat.sub(f"vmcnt({n})", lines[src[i]]) + " ; " + ",".join(sorted(want[i]))
    return "\n".join(re.sub(r"\s*;#\w+", "", ln) for ln in lines) + "\n"
```

```python
import math, struct, sys
from asmlib import B, Prog, v, a, s, weave, Op, chain, sched

SZX = 2048 * 576 * 2
XN, XR, X1, OB, QB, KV = 0, SZX, 2 * SZX, 3 * SZX, 4 * SZX, 5 * SZX
WQ = 7 * SZX
WQH = 126 * 1024
WO = WQ + 16 * WQH
WF = WO + 36 * 18 * 1024
WFS = 27 * 36 * 1024
PART = WF + 16 * WFS
WS_END = PART + 16 * SZX
OOB = 0x40000000
ARG = dict(x=0, wqkv=8, wo=16, w1=32, w3=40, w2=48, out=56, dbg=64, ws=72)


def fbits(x):
    return "0x%08x" % struct.unpack("<I", struct.pack("<f", x))[0]


def magic(d, n):
    for sh in range(1, 24):
        m = (1 << sh) // d + 1
        if all((x * m) >> sh == x // d for x in range(n)) and m * n < 1 << 32:
            return m, sh
    raise ValueError


def sdiv(b, dst, src, d, n):
    m, sh = magic(d, n)
    b(f"s_mul_i32 s{dst}, s{src}, {m}\ns_lshr_b32 s{dst}, s{dst}, {sh}")


def srd(b, d, base, off, size, extra=None):
    if off:
        b(f"s_add_u32 s{d}, s{base}, {off}\ns_addc_u32 s{d+1}, s{base+1}, 0")
    else:
        b(f"s_mov_b32 s{d}, s{base}\ns_mov_b32 s{d+1}, s{base+1}")
    if extra is not None:
        b(f"s_add_u32 s{d}, s{d}, s{extra}\ns_addc_u32 s{d+1}, s{d+1}, 0")
    b(f"s_mov_b32 s{d+2}, {size}\ns_mov_b32 s{d+3}, 0x20000")


DIAG = False
STAMPS = 200 << 20


def stamp(b, i):
    if DIAG:
        b(f"s_memtime s[{64+2*i}:{65+2*i}]\ns_waitcnt lgkmcnt(0)")


def stamp_flush(b):
    if not DIAG:
        return
    b(f"""
    s_waitcnt vmcnt(0)
    s_memtime s[86:87]
    s_memrealtime s[90:91]
    s_load_dwordx2 s[92:93], s[0:1], {ARG['ws']}
    s_load_dwordx2 s[94:95], s[0:1], {ARG['dbg']}
    s_waitcnt lgkmcnt(0)
    s_bfe_u32 s94, s94, 0x50009
    s_lshl_b32 s94, s94, 8
    s_add_u32 s94, s94, s2
    s_lshl_b32 s94, s94, 4
    s_add_u32 s94, s94, s33
    s_lshl_b32 s94, s94, 6
    s_add_u32 s96, s92, {STAMPS}
    s_addc_u32 s97, s93, 0
    s_mov_b32 s98, {32 << 20}
    s_mov_b32 s99, 0x20000
    v_mov_b32 v0, 0
    """)
    for q in range(4):
        for j in range(4):
            b(f"v_mov_b32 v{4+j}, s{min(64+2*(4*q+j), 90)}")
        b(f"buffer_store_dwordx4 v[4:7], v0, s[96:99], s94 offen offset:{16*q}\ns_nop 1")


def head(b, name, nwg, loads):
    b(f"s_cmp_ge_u32 s2, {nwg}\ns_cbranch_scc1 {name}_end")
    if DIAG:
        for i in range(1, 11):
            b(f"s_mov_b32 s{64+2*i}, 0")
        b("s_memrealtime s[88:89]")
        stamp(b, 0)
    for reg, arg in loads:
        b(f"s_load_dwordx2 s[{reg}:{reg+1}], s[0:1], {ARG[arg]}")


def mf16(d, x, y, c):
    return f"v_mfma_f32_16x16x32_bf16 {d}, {x}, {y}, {c}"


def transpose8(b, src, dst, slo, shi):
    for j in range(4):
        b(f"v_perm_b32 v{dst+j}, v{src+2*j+1}, v{src+2*j}, s{slo}")
    for j in range(4):
        b(f"v_perm_b32 v{dst+4+j}, v{src+2*j+1}, v{src+2*j}, s{shi}")


def gen_row(name, mode):
    b = B()
    loads = [(4, "ws")]
    if mode == "first":
        loads += [(6, "x"), (8, "wqkv")]
    if mode == "last":
        loads += [(6, "out")]
    head(b, name, 256, loads)
    b("""
    v_lshrrev_b32 v1, 3, v0
    v_and_b32 v2, 7, v0
    v_lshlrev_b32 v3, 8, v1
    v_lshl_add_u32 v3, v2, 4, v3
    v_mul_u32_u24 v4, 1152, v2
    v_lshl_add_u32 v4, v1, 4, v4
    v_lshrrev_b32 v5, 6, v0
    s_lshr_b32 s10, s2, 1
    s_mul_i32 s10, s10, 18432
    s_and_b32 s11, s2, 1
    s_lshl_b32 s11, s11, 7
    s_add_u32 s10, s10, s11
    s_mul_i32 s11, s2, 9216
    v_readfirstlane_b32 s33, v5
    s_mov_b32 s30, 0x3f80
    s_mov_b32 s31, 0x3f800000
    s_waitcnt lgkmcnt(0)
    """)
    srd(b, 12, 4, 0, 3 * SZX)
    D0 = 24
    if mode == "first":
        srd(b, 16, 6, 0, SZX)
        b(f"buffer_load_dwordx4 {v(D0,4)}, v4, s[16:19], s11 offen")
        srd(b, 20, 8, 0, 576 * 1728 * 2)
        srd(b, 24, 4, WQ, 16 * WQH)
        b(f"""
        s_lshl_b32 s34, s2, 2
        s_add_u32 s34, s34, s33
        s_cmp_ge_u32 s33, 4
        s_cselect_b32 s34, 1008, s34
        s_cmp_ge_u32 s34, 1008
        s_cbranch_scc1 {name}_noprep
        """)
        sdiv(b, 35, 34, 63, 1024)
        b("""
        s_mul_i32 s36, s35, 63
        s_sub_u32 s36, s34, s36
        v_and_b32 v6, 15, v0
        v_bfe_u32 v7, v0, 4, 2
        v_and_b32 v8, 7, v6
        v_lshrrev_b32 v9, 3, v6
        v_mul_u32_u24 v10, 27648, v7
        v_lshlrev_b32 v11, 8, v7
        s_mul_i32 s38, s35, 72
        """)
        b(f"s_mul_i32 s39, s35, {WQH}\ns_cmp_ge_u32 s36, 54\ns_cbranch_scc1 {name}_tail")
        sdiv(b, 37, 36, 3, 64)
        b(f"""
        s_mul_i32 s40, s37, 3
        s_sub_u32 s40, s36, s40
        s_mul_i32 s41, s37, 110592
        s_add_u32 s38, s38, s41
        s_mul_i32 s41, s40, 1152
        s_add_u32 s38, s38, s41
        s_mul_i32 s41, s37, 7168
        s_add_u32 s39, s39, s41
        s_lshl_b32 s41, s40, 11
        s_add_u32 s39, s39, s41
        v_mad_u32_u24 v10, v9, 36, v10
        v_lshl_add_u32 v10, v8, 2, v10
        s_cmp_eq_u32 s40, 2
        s_cbranch_scc1 {name}_vsec
        v_bfe_u32 v12, v6, 1, 1
        v_lshl_add_u32 v11, v12, 10, v11
        v_lshrrev_b32 v12, 2, v6
        v_lshl_add_u32 v11, v12, 6, v11
        v_and_b32 v12, 1, v6
        v_lshl_add_u32 v11, v12, 5, v11
        s_branch {name}_go
{name}_vsec:
        v_lshl_add_u32 v11, v9, 10, v11
        v_lshl_add_u32 v11, v8, 5, v11
        s_branch {name}_go
{name}_tail:
        s_sub_u32 s37, s36, 54
        s_mul_i32 s41, s37, 221184
        s_add_u32 s38, s38, s41
        s_add_u32 s38, s38, 32
        s_mul_i32 s41, s37, 14336
        s_add_u32 s39, s39, s41
        s_add_u32 s39, s39, 6144
        v_mul_u32_u24 v12, 110592, v9
        v_add_u32 v10, v10, v12
        v_lshrrev_b32 v12, 1, v8
        v_mul_u32_u24 v12, 1152, v12
        v_add_u32 v10, v10, v12
        v_and_b32 v12, 1, v8
        v_mad_u32_u24 v10, v12, 36, v10
        v_mov_b32 v12, {OOB}
        v_cmp_gt_u32 vcc, 6, v8
        v_mul_u32_u24 v13, 7168, v9
        v_add_u32 v11, v11, v13
        v_cndmask_b32 v10, v12, v10, vcc
        v_lshl_add_u32 v11, v8, 5, v11
{name}_go:
        s_mov_b32 s42, 0x05040100
        s_mov_b32 s43, 0x07060302
        """)
        for j in range(8):
            b(f"buffer_load_dword v{32+j}, v10, s[20:23], s38 offen\ns_add_u32 s38, s38, 3456")
        b("s_waitcnt vmcnt(0)")
        transpose8(b, 32, 40, 42, 43)
        b(f"""
        buffer_store_dwordx4 v[40:43], v11, s[24:27], s39 offen
        buffer_store_dwordx4 v[44:47], v11, s[24:27], s39 offen offset:16
        s_waitcnt vmcnt(2)
        s_branch {name}_sum
{name}_noprep:
        s_waitcnt vmcnt(0)
{name}_sum:
        """)
        nsrc = 1
    else:
        srd(b, 20, 4, PART, 16 * SZX)
        b(f"s_add_u32 s34, s10, {X1}\nbuffer_load_dwordx4 {v(D0,4)}, v3, s[12:15], s34 offen\ns_mov_b32 s34, s10")
        for i in range(16):
            b(f"buffer_load_dwordx4 {v(D0+4+4*i,4)}, v3, s[20:23], s34 offen")
            if i < 15:
                b(f"s_add_u32 s34, s34, {SZX}")
        if mode == "last":
            srd(b, 16, 6, 0, SZX)
        nsrc = 17
    A0 = 8
    stamp(b, 1)
    for i in range(nsrc):
        if nsrc > 1:
            b(f"s_waitcnt vmcnt({nsrc-1-i})")
        for j in range(4):
            for h in range(2):
                c = "0" if i == 0 else v(A0 + 2 * j + h)
                b(f"v_dot2_f32_bf16 v{A0+2*j+h}, v{D0+4*i+j}, s{30+h}, {c}")
    stamp(b, 2)
    b("s_nop 2")
    for j in range(4):
        b(f"v_cvt_pk_bf16_f32 v{16+j}, v{A0+2*j}, v{A0+2*j+1}")
    if mode == "last":
        b("buffer_store_dwordx4 v[16:19], v4, s[16:19], s11 offen")
    else:
        b(f"s_add_u32 s34, s10, {XR}\nbuffer_store_dwordx4 v[16:19], v3, s[12:15], s34 offen")
        b(f"v_add_f32 v6, v{A0}, v{A0+1}\nv_mul_f32 v7, v{A0}, v{A0}")
        for j in range(1, 8):
            if j > 1:
                b(f"v_add_f32 v6, v6, v{A0+j}")
            b(f"v_fmac_f32 v7, v{A0+j}, v{A0+j}")
        b(f"""
        v_bfe_u32 v1, v0, 5, 1
        v_lshlrev_b32 v2, 3, v2
        v_permlane32_swap_b32 v6, v7
        v_lshl_add_u32 v1, v1, 2, v2
        v_add_f32 v6, v6, v7
        v_mov_b32 v7, v6
        v_lshl_add_u32 v1, v5, 6, v1
        s_nop 0
        v_permlane16_swap_b32 v6, v7
        s_nop 0
        v_add_f32 v6, v6, v7
        s_nop 1
        v_add_f32 v6, v6, v6 row_ror:8 row_mask:0xf bank_mask:0xf
        ds_write_b32 v1, v6
        s_waitcnt lgkmcnt(0)
        s_barrier
        """)
        for w in range(9):
            b(f"ds_read_b64 {v(24+2*w,2)}, v2 offset:{64*w}")
        b("s_waitcnt lgkmcnt(0)")
        for w in range(1, 9):
            b(f"v_add_f32 v24, v24, v{24+2*w}\nv_add_f32 v25, v25, v{25+2*w}")
        b(f"""
        v_mul_f32 v24, {fbits(1/576)}, v24
        v_mul_f32 v25, {fbits(1/576)}, v25
        v_fma_f32 v25, -v24, v24, v25
        v_max_f32 v25, 0, v25
        v_add_f32 v25, {fbits(1e-5)}, v25
        v_rsq_f32 v25, v25
        """)
        for j in range(8):
            b(f"v_sub_f32 v{A0+j}, v{A0+j}, v24")
        for j in range(8):
            b(f"v_mul_f32 v{A0+j}, v{A0+j}, v25")
        for j in range(4):
            b(f"v_cvt_pk_bf16_f32 v{20+j}, v{A0+2*j}, v{A0+2*j+1}")
        b("buffer_store_dwordx4 v[20:23], v3, s[12:15], s10 offen")
    stamp_flush(b)
    b(f"{name}_end:\ns_endpgm")
    return dict(name=name, text=b.text(), grid=256, block=576, lds=1024)


def prep_body(b, name, sid):
    D0, T0, O0 = 16, 88, 104
    b(f"""
    s_load_dwordx2 s[4:5], s[0:1], {ARG['ws']}
    s_mov_b32 s42, 0x05040100
    s_mov_b32 s43, 0x07060302
    s_cmp_ge_u32 s{sid}, 576
    s_cbranch_scc1 {name}_p2
    s_bfe_u32 s35, s{sid}, 0x10002
    s_lshl_b32 s36, s35, 3
    s_add_u32 s36, s0, s36
    s_addc_u32 s37, s1, 0
    s_load_dwordx2 s[6:7], s[36:37], {ARG['w1']}
    s_lshr_b32 s36, s{sid}, 3
    s_lshl_b32 s36, s36, 2
    s_and_b32 s37, s{sid}, 3
    s_add_u32 s36, s36, s37
    """)
    sdiv(b, 37, 36, 18, 288)
    b(f"""
    s_mul_i32 s39, s37, {WFS - 18 * 36864}
    s_mul_i32 s40, s36, 36864
    s_add_u32 s39, s39, s40
    s_lshl_b32 s40, s35, 10
    s_add_u32 s39, s39, s40
    s_lshl_b32 s38, s36, 5
    v_and_b32 v6, 7, v0
    v_bfe_u32 v7, v0, 3, 3
    v_mul_u32_u24 v10, 73728, v7
    v_lshl_add_u32 v10, v6, 2, v10
    v_lshrrev_b32 v8, 2, v7
    v_and_b32 v9, 3, v7
    v_lshlrev_b32 v11, 11, v8
    v_lshl_add_u32 v11, v9, 8, v11
    v_lshl_add_u32 v11, v6, 5, v11
    s_mov_b32 s30, 0x3f80
    s_mov_b32 s31, 0x3f800000
    v_mov_b32 v12, 0
    v_mov_b32 v13, 0
    s_waitcnt lgkmcnt(0)
    """)
    srd(b, 20, 6, 0, 576 * 4608 * 2)
    srd(b, 24, 4, WF, 16 * WFS)

    def sums(p):
        for j in range(8):
            b(f"v_dot2_f32_bf16 v12, v{D0+8*p+j}, s30, v12\nv_dot2_f32_bf16 v13, v{D0+8*p+j}, s31, v13")

    for p in range(9):
        for j in range(8):
            b(f"buffer_load_dword v{D0+8*p+j}, v10, s[20:23], s38 offen")
            b(f"s_add_u32 s38, s38, {9216 if j < 7 else 57 * 9216}")
        if p >= 6:
            b("s_waitcnt vmcnt(48)")
            sums(p - 6)
    for p in range(3, 9):
        b(f"s_waitcnt vmcnt({8*(8-p)})")
        sums(p)
    b("s_nop 2")
    for r in (12, 13):
        b(f"""
        v_mov_b32 v14, v{r}
        s_nop 1
        v_permlane32_swap_b32 v{r}, v14
        s_nop 0
        v_add_f32 v{r}, v{r}, v14
        v_mov_b32 v14, v{r}
        s_nop 1
        v_permlane16_swap_b32 v{r}, v14
        s_nop 0
        v_add_f32 v{r}, v{r}, v14
        s_nop 1
        v_add_f32 v{r}, v{r}, v{r} row_ror:8 row_mask:0xf bank_mask:0xf
        v_mul_f32 v{r}, {fbits(-1/576)}, v{r}
        """)
    for p in range(9):
        o = O0 + 8 * (p % 2)
        for h in range(2):
            for j in range(8):
                b(f"v_dot2_f32_bf16 v{T0+8*h+j}, v{D0+8*p+j}, s{30+h}, v{12+h}")
        for h in range(2):
            for j in range(4):
                b(f"v_cvt_pk_bf16_f32 v{o+4*h+j}, v{T0+8*h+2*j}, v{T0+8*h+2*j+1}")
        b(f"""
        buffer_store_dwordx4 {v(o,4)}, v11, s[24:27], s39 offen
        buffer_store_dwordx4 {v(o+4,4)}, v11, s[24:27], s39 offen offset:16
        s_add_u32 s39, s39, 4096
        """)
    b(f"""
    s_branch {name}_pend
{name}_p2:
    s_cmp_ge_u32 s{sid}, 900
    s_cbranch_scc1 {name}_pend
    v_and_b32 v6, 15, v0
    v_bfe_u32 v7, v0, 4, 2
    v_lshlrev_b32 v11, 8, v7
    v_lshrrev_b32 v12, 2, v6
    v_lshl_add_u32 v11, v12, 6, v11
    v_and_b32 v12, 1, v6
    v_lshl_add_u32 v11, v12, 5, v11
    v_bfe_u32 v12, v6, 1, 1
    v_lshlrev_b32 v10, 2, v6
    s_cmp_ge_u32 s{sid}, 864
    s_cbranch_scc1 {name}_p3
    s_load_dwordx2 s[6:7], s[0:1], {ARG['w2']}
    s_sub_u32 s35, s{sid}, 576
    """)
    sdiv(b, 36, 35, 18, 288)
    b(f"""
    s_mul_i32 s37, s36, 18
    s_sub_u32 s37, s35, s37
    s_mul_i32 s38, s36, {288 * 1152}
    s_lshl_b32 s40, s37, 6
    s_add_u32 s38, s38, s40
    s_mul_i32 s39, s36, {WFS}
    s_lshr_b32 s40, s37, 1
    s_add_u32 s40, s40, 18
    s_mul_i32 s40, s40, 36864
    s_add_u32 s39, s39, s40
    s_and_b32 s40, s37, 1
    s_lshl_b32 s40, s40, 11
    s_add_u32 s39, s39, s40
    v_mul_u32_u24 v13, 4608, v7
    v_add_u32 v10, v10, v13
    v_lshl_add_u32 v11, v12, 10, v11
    s_waitcnt lgkmcnt(0)
    """)
    srd(b, 20, 6, 0, 4608 * 576 * 2)
    srd(b, 24, 4, WF, 16 * WFS)

    def plain(rowoff, voff, src_step, dst_step, tag):
        def emit_out(p):
            o = O0 + 8 * (p % 2)
            transpose8(b, D0 + 8 * p, o, 42, 43)
            b(f"""
            buffer_store_dwordx4 {v(o,4)}, v11, s[24:27], s39 offen
            buffer_store_dwordx4 {v(o+4,4)}, v11, s[24:27], s39 offen offset:16
            s_add_u32 s39, s39, {dst_step}
            """)
        for p in range(7):
            for j in range(8):
                b(f"s_add_u32 s40, s38, {rowoff(p, j)}\nbuffer_load_dword v{D0+8*p+j}, {voff(p)}, s[20:23], s40 offen")
        b("s_waitcnt vmcnt(40)")
        for p in range(7, 9):
            for j in range(8):
                b(f"s_add_u32 s40, s38, {rowoff(p, j)}\nbuffer_load_dword v{D0+8*p+j}, {voff(p)}, s[20:23], s40 offen")
        for p in range(9):
            if p >= 2:
                b(f"s_waitcnt vmcnt({8*(8-p) + 2*p})")
            emit_out(p)

    plain(lambda p, j: (32 * p + 16 * (j // 4) + j % 4) * 1152, lambda p: "v10", 0, 4096, "w2")
    b(f"""
    s_branch {name}_pend
{name}_p3:
    s_load_dwordx2 s[6:7], s[0:1], {ARG['wo']}
    s_sub_u32 s35, s{sid}, 864
    s_lshr_b32 s36, s35, 1
    s_and_b32 s37, s35, 1
    s_lshl_b32 s38, s36, 6
    s_mul_i32 s39, s36, 36864
    s_mul_i32 s40, s37, 9216
    s_add_u32 s39, s39, s40
    v_mul_u32_u24 v13, 18432, v12
    v_add_u32 v11, v11, v13
    v_mul_u32_u24 v14, {72 * 1152}, v7
    v_add_u32 v14, v14, v10
    v_lshrrev_b32 v13, 1, v7
    v_mul_u32_u24 v13, {18 * 1152}, v13
    v_add_u32 v10, v10, v13
    v_and_b32 v13, 1, v7
    v_mul_u32_u24 v13, 4608, v13
    v_add_u32 v10, v10, v13
    s_waitcnt lgkmcnt(0)
    """)
    srd(b, 20, 6, 0, 576 * 576 * 2)
    srd(b, 24, 4, WO, 36 * 18 * 1024)
    b(f"s_cmp_eq_u32 s37, 1\ns_cbranch_scc1 {name}_p4")
    main = lambda ks, j: (36 * ks + 8 * (j // 4) + j % 4) * 1152
    tail = lambda ks, j: (288 * (ks - 16) + 16 + 18 * (j // 2) + j % 2) * 1152
    plain(main, lambda p: "v10", 0, 1024, "wo0")
    b(f"s_branch {name}_pend\n{name}_p4:")
    plain(lambda p, j: main(9 + p, j) if p < 7 else tail(9 + p, j), lambda p: "v10" if p < 7 else "v14", 0, 1024, "wo1")
    b(f"{name}_pend:")


def gen_prep(name):
    b = B()
    head(b, name, 256, [])
    b("v_lshrrev_b32 v5, 6, v0\ns_lshl_b32 s34, s2, 2\nv_readfirstlane_b32 s33, v5\ns_nop 0\ns_add_u32 s34, s34, s33")
    prep_body(b, name, 34)
    stamp_flush(b)
    b(f"{name}_end:\ns_endpgm")
    return dict(name=name, text=b.text(), grid=256, block=256, lds=0)


def gen_qkv(name):
    b = B()
    head(b, name, 256, [(4, "ws")])
    ACC, XB, TMP = 16, 80, 224
    b(f"""
    v_lshrrev_b32 v5, 6, v0
    v_lshlrev_b32 v1, 4, v0
    v_and_b32 v2, 63, v0
    v_readfirstlane_b32 s33, v5
    v_lshlrev_b32 v2, 4, v2
    s_and_b32 s34, s2, 7
    s_lshr_b32 s35, s2, 3
    s_and_b32 s36, s34, 3
    s_lshl_b32 s36, s36, 2
    s_and_b32 s37, s35, 3
    s_add_u32 s36, s36, s37
    s_lshr_b32 s37, s34, 2
    s_lshl_b32 s37, s37, 3
    s_lshr_b32 s35, s35, 2
    s_add_u32 s37, s37, s35
    s_lshl_b32 s37, s37, 2
    s_add_u32 s37, s37, s33
    s_mul_i32 s38, s36, {WQH}
    s_mul_i32 s39, s37, 36864
    s_add_u32 s40, s39, 18432
    s_lshl_b32 m0, s33, 10
    s_waitcnt lgkmcnt(0)
    """)
    srd(b, 12, 4, XN, SZX)
    srd(b, 16, 4, WQ, 16 * WQH)
    srd(b, 20, 4, QB, 3 * SZX)
    xb = lambda ks, rt: XB + (ks * 2 + rt) * 4
    seq, done = [], 0
    stage_end = []
    for st in range(9):
        want = -(-14 * (st + 1) // 4)
        for i in range(done, want):
            seq.append("buffer_load_dwordx4 v1, s[16:19], s38 offen lds\ns_add_u32 s38, s38, 4096\ns_add_u32 m0, m0, 4096")
        done = want
        for ks in (2 * st, 2 * st + 1):
            for rt in range(2):
                t = f"buffer_load_dwordx4 {v(xb(ks, rt),4)}, v2, s[12:15], s{39+rt} offen"
                if ks % 4:
                    t += f" offset:{1024 * (ks % 4)}"
                if ks % 4 == 3 and rt == 1:
                    t += "\ns_add_u32 s39, s39, 4096\ns_add_u32 s40, s40, 4096"
                seq.append(t)
        stage_end.append(len(seq))
    first = stage_end[7]
    for t in seq[:first]:
        b(t)
        if "m0" in t:
            b("s_nop 0")
    b(f"""
    v_and_b32 v3, 15, v0
    v_bfe_u32 v4, v0, 4, 2
    v_lshrrev_b32 v5, 1, v4
    v_and_b32 v6, 1, v4
    v_mul_u32_u24 v7, {64*1152}, v5
    v_lshl_add_u32 v7, v6, 9, v7
    v_lshl_add_u32 v7, v3, 4, v7
    v_lshrrev_b32 v12, 2, v3
    v_and_b32 v13, 3, v3
    v_lshl_add_u32 v12, v12, 3, v13
    v_mul_u32_u24 v8, {64*2304}, v5
    v_lshl_add_u32 v8, v6, 9, v8
    v_lshl_add_u32 v8, v12, 4, v8
    v_mul_u32_u24 v9, 288, v4
    v_bfe_u32 v13, v3, 1, 1
    v_mul_u32_u24 v10, {64*2304}, v13
    v_add_u32 v10, v10, v9
    v_and_b32 v13, 1, v3
    v_lshl_add_u32 v10, v13, 4, v10
    v_lshl_add_u32 v9, v3, 4, v9
    v_lshrrev_b32 v13, 2, v3
    v_mov_b32 v14, {OOB}
    v_cmp_eq_u32 vcc, 2, v13
    s_lshl_b32 s41, s36, 7
    s_add_u32 s41, s41, s37
    v_cndmask_b32 v10, v14, v10, vcc
    s_mul_i32 s42, s41, 1152
    s_mul_i32 s43, s41, 2304
    s_add_u32 s43, s43, {SZX}
    s_add_u32 s44, s43, {64*2304}
    s_add_u32 s45, s42, 1024
    s_add_u32 s46, s43, 2176
    v_lshl_add_u32 v11, v3, 2, s45
    v_lshl_add_u32 v12, v12, 2, s46
    v_cmp_eq_u32 vcc, 1, v4
    v_cmp_eq_u32 s[48:49], 0, v4
    v_mov_b32 v15, {fbits(math.log2(math.e) / math.sqrt(18))}
    v_cndmask_b32 v14, v14, v12, vcc
    v_cndmask_b32 v11, v14, v11, s[48:49]
    v_cndmask_b32 v5, 1.0, v15, s[48:49]
    v_mov_b32 v12, 16
    v_mov_b32 v13, {64*2304}
    v_mov_b32 v14, {64*1152}
    v_cndmask_b32 v12, v12, 64, s[48:49]
    v_cndmask_b32 v13, v13, v14, s[48:49]
    v_add_u32 v12, v11, v12
    v_add_u32 v14, v12, v13
    v_add_u32 v13, v11, v13
    """)
    acc = lambda f, rt: ACC + (f * 2 + rt) * 4
    ring = lambda ks, f: (ks % 2) * 28 + f * 4
    issued = first

    def stage_wait(st):
        return f"s_waitcnt vmcnt({issued - stage_end[st]})\ns_barrier"

    def reads(ks):
        out = []
        for f in range(7):
            off = (ks * 7 + f) * 1024
            reg = "v2" if off < 65536 else "v6"
            out.append(f"ds_read_b128 {a(ring(ks, f),4)}, {reg} offset:{off % 65536}")
        return out

    b("v_add_u32 v6, 0x10000, v2")
    stamp(b, 1)
    b(stage_wait(0))
    stamp(b, 2)
    for t in reads(0):
        b(t)
    for t in seq[first:]:
        b(t)
        if "m0" in t:
            b("s_nop 0")
    issued = len(seq)
    for ks in range(18):
        mains = []
        for f in range(8):
            for rt in range(2):
                w = a(ring(ks, min(f, 6)), 4)
                x = v(xb(ks, rt), 4)
                c = "0" if ks == 0 else v(acc(f, rt), 4)
                swapped = f in (4, 5, 7)
                mains.append(mf16(v(acc(f, rt), 4), x if swapped else w, w if swapped else x, c))
        fill = []
        if ks < 17:
            if ks % 2 == 1:
                fill.append((0, stage_wait((ks + 1) // 2), True))
            fill += [(1 + i, t) for i, t in enumerate(reads(ks + 1))]
        b("s_waitcnt lgkmcnt(0)")
        if ks == 8:
            stamp(b, 3)
        b(weave(mains, [fill])[0])
    stamp(b, 4)
    T = TMP
    for rt in range(2):
        for i in range(4):
            b(f"v_mul_f32 v{acc(0,rt)+i}, v15, v{acc(0,rt)+i}")
        for i in range(4):
            b(f"v_mul_f32 v{acc(1,rt)+i}, v15, v{acc(1,rt)+i}")

    def pack(dst, p, q):
        b(f"""
        v_cvt_pk_bf16_f32 v{dst}, v{p}, v{p+1}
        v_cvt_pk_bf16_f32 v{dst+1}, v{p+2}, v{p+3}
        v_cvt_pk_bf16_f32 v{dst+2}, v{q}, v{q+1}
        v_cvt_pk_bf16_f32 v{dst+3}, v{q+2}, v{q+3}
        """)

    for rt in range(2):
        pack(T, acc(2, rt), acc(3, rt))
        b(f"buffer_store_dwordx4 {v(T,4)}, v8, s[20:23], s43 offen offset:{64*rt}")
        T += 4
    for hd in range(2):
        pack(T, acc(4 + hd, 0), acc(4 + hd, 1))
        b(f"buffer_store_dwordx4 {v(T,4)}, v9, s[20:23], s{43+hd} offen offset:1024")
        T += 4
    pack(T, acc(7, 0), acc(7, 1))
    b(f"buffer_store_dwordx4 {v(T,4)}, v10, s[20:23], s43 offen offset:{1024+256}")
    T += 4
    for rt in range(2):
        pack(T, acc(0, rt), acc(1, rt))
        b(f"buffer_store_dwordx4 {v(T,4)}, v7, s[20:23], s42 offen offset:{256*rt}")
        T += 4
    for rt in range(2):
        for i in range(4):
            b(f"v_mul_f32 v{acc(6,rt)+i}, v5, v{acc(6,rt)+i}")
    pack(T, acc(6, 0), acc(6, 1))
    b(f"""
    buffer_store_dword v{T}, v11, s[20:23], 0 offen
    buffer_store_dword v{T+1}, v13, s[20:23], 0 offen
    buffer_store_dword v{T+2}, v12, s[20:23], 0 offen
    buffer_store_dword v{T+3}, v14, s[20:23], 0 offen
    """)
    stamp(b, 5)
    stamp_flush(b)
    b(f"{name}_end:\ns_endpgm")
    return dict(name=name, text=b.text(), grid=256, block=256, lds=128 * 1024)


def gen_attn(name):
    b = B()
    head(b, name, 256, [(4, "ws")])
    QM, QT, KM, KT, VF, S, O = 16, 24, 28, 36, 40, 56, 120
    MX, IDX, AK, AV, AT = 10, 12, 13, 14, 15
    qm = lambda t: v(QM + 4 * t, 4)
    qt = lambda t: v(QT + 2 * t, 2)
    km = lambda k: v(KM + 4 * (k % 2), 4)
    kt = lambda k: v(KT + 2 * (k % 2), 2)
    vf = lambda k, g: v(VF + 8 * (k % 2) + 4 * g, 4)
    sb = lambda n: S + 16 * (n % 4)
    ob = lambda t: O + 16 * t
    b(f"""
    v_lshrrev_b32 v5, 6, v0
    v_and_b32 v1, 63, v0
    v_and_b32 v2, 31, v0
    v_readfirstlane_b32 s33, v5
    v_bfe_u32 v3, v0, 5, 1
    v_lshlrev_b32 v4, 4, v1
    s_and_b32 s34, s2, 7
    s_lshl_b32 s34, s34, 2
    s_lshr_b32 s35, s2, 6
    s_add_u32 s34, s34, s35
    s_bfe_u32 s35, s2, 0x30003
    s_and_b32 s36, s33, 3
    s_lshr_b32 s37, s33, 2
    s_lshl_b32 s38, s35, 3
    s_lshl_b32 s39, s36, 1
    s_add_u32 s38, s38, s39
    s_add_u32 s39, s38, s37
    s_xor_b32 s40, s39, 1
    s_lshl_b32 s41, s34, 6
    s_add_u32 s42, s41, s39
    s_add_u32 s43, s41, s40
    s_mul_i32 s42, s42, 1152
    s_mul_i32 s43, s43, 1152
    s_mul_i32 s44, s37, 73728
    s_lshl_b32 s45, s36, 10
    s_add_u32 s45, s45, s44
    s_mul_i32 s46, s34, 147456
    s_add_u32 s46, s46, s45
    s_mov_b32 m0, s45
    v_lshlrev_b32 v6, 2, v2
    v_mov_b32 v7, {OOB}
    v_cmp_eq_u32 s[50:51], 0, v3
    s_mov_b32 s30, 0x3ffff
    s_mov_b32 s31, 0x3ffff
    v_cndmask_b32 v7, v7, v6, s[50:51]
    s_waitcnt lgkmcnt(0)
    """)
    srd(b, 12, 4, QB, SZX)
    srd(b, 16, 4, KV, 2 * SZX)
    srd(b, 20, 4, OB, SZX)
    for t in range(2):
        b(f"buffer_load_dwordx4 {qm(t)}, v4, s[12:15], s{42+t} offen")
        b(f"buffer_load_dword v{QT+2*t}, v7, s[12:15], s{42+t} offen offset:1024")
    for i in range(18):
        b("buffer_load_dwordx4 v4, s[16:19], s46 offen lds")
        if i < 17:
            b("s_add_u32 m0, m0, 4096\ns_add_u32 s46, s46, 4096")
    b(f"""
    v_mov_b32 v{IDX}, 0xdddddddd
    v_mov_b32 v{KT+1}, 0x3f803f80
    v_mov_b32 v{KT+3}, 0x3f803f80
    v_and_b32 v8, 27, v2
    v_cmp_eq_u32 vcc, 18, v8
    v_mul_u32_u24 v8, 288, v3
    v_lshl_add_u32 v8, v2, 4, v8
    v_cndmask_b32 v{VF}, 0, v{KT+1}, vcc
    """)
    for i in range(1, 16):
        b(f"v_mov_b32 v{VF+i}, v{VF}")
    b(f"""
    s_mov_b32 s47, 1
    s_mov_b32 s48, 0
    """)
    stamp(b, 1)
    b("s_waitcnt vmcnt(14)\ns_barrier")
    stamp(b, 2)
    b(f"""
{name}_max:
    v_add_u32 v{AK}, s44, v4
    v_add_u32 v{AT}, s44, v6
    v_mov_b32 v{QT+1}, 0
    v_mov_b32 v{QT+3}, 0
    v_mov_b32 v{MX}, 0xff800000
    v_mov_b32 v{MX+1}, 0xff800000
{name}_maxloop:
    ds_read_b128 {km(0)}, v{AK}
    ds_read_b32 v{KT}, v{AT} offset:2176
    v_add_u32 v{AK}, 2304, v{AK}
    v_add_u32 v{AT}, 2304, v{AT}
    s_waitcnt lgkmcnt(0)
    """)
    m8 = lambda d, k, t: f"v_mfma_f32_32x32x8_bf16 {v(d,16)}, {kt(k)}, {qt(t)}, 0"
    m16 = lambda d, k, t: f"v_mfma_f32_32x32x16_bf16 {v(d,16)}, {km(k)}, {qm(t)}, {v(d,16)}"
    smf = lambda t, k, g, p: f"v_smfmac_f32_32x32x32_bf16 {v(ob(t),16)}, {vf(k,g)}, {v(p+8*g,8)}, v{IDX}"
    for t in range(2):
        b(m8(sb(t), 0, t))
        b(m16(sb(t), 0, t))
    b("s_nop 9")
    for t in range(2):
        for i in range(8):
            b(f"v_max3_f32 v{MX+t}, v{sb(t)+2*i}, v{sb(t)+2*i+1}, v{MX+t}")
    b(f"""
    s_sub_u32 s47, s47, 1
    s_cmp_lg_u32 s47, 0
    s_cbranch_scc1 {name}_maxloop
    v_add_u32 v{AK}, s44, v4
    v_add_u32 v{AT}, s44, v6
    v_add_u32 v{AV}, s44, v8
    ds_read_b128 {km(0)}, v{AK}
    ds_read_b32 v{KT}, v{AT} offset:2176
    ds_read_b128 {km(1)}, v{AK} offset:2304
    ds_read_b32 v{KT+2}, v{AT} offset:{2176+2304}
    s_mov_b64 exec, s[30:31]
    ds_read_b128 {vf(0,0)}, v{AV} offset:1024
    ds_read_b128 {vf(0,1)}, v{AV} offset:1600
    s_mov_b64 exec, -1
    s_mov_b32 s49, 0x07060302
    """)
    x0 = sb(2)
    for t in range(2):
        b(f"""
        v_mov_b32 v{x0}, v{MX+t}
        s_nop 1
        v_permlane32_swap_b32 v{MX+t}, v{x0}
        s_nop 0
        v_max_f32 v{MX+t}, v{MX+t}, v{x0}
        v_sub_f32 v{x0}, 0, v{MX+t}
        v_and_b32 v{x0+1}, 0xffff0000, v{x0}
        v_sub_f32 v{x0+2}, v{x0}, v{x0+1}
        v_and_b32 v{x0+3}, 0xffff0000, v{x0+2}
        v_sub_f32 v{x0+2}, v{x0+2}, v{x0+3}
        v_perm_b32 v{x0+1}, v{x0+3}, v{x0+1}, s49
        v_lshrrev_b32 v{x0+2}, 16, v{x0+2}
        v_cndmask_b32 v{QT+2*t+1}, v{x0+2}, v{x0+1}, s[50:51]
        """)
    for i in range(32):
        b(f"v_mov_b32 v{O+i}, 0")
    for i in range(16):
        b(f"v_mov_b32 v{sb(3)+i}, 0")
    b("s_waitcnt lgkmcnt(0)")
    for t in range(2):
        b(m8(sb(t), 0, t))
        b(m16(sb(t), 0, t))
    stamp(b, 3)
    b(f"s_mov_b32 s47, 8\ns_nop 9\n.p2align 3\n{name}_loop:")
    for n in range(8):
        k, t = n // 2, n % 2
        pk, pt = (n - 1) // 2, (n - 1) % 2
        e = [f"v_exp_f32 v{sb(n)+i}, v{sb(n)+i}" for i in range(16)]
        if t == 0:
            b("s_waitcnt lgkmcnt(2)")
        b(m8(sb(n + 2), k + 1, t))
        if t == 0:
            b(f"ds_read_b128 {km(k)}, v{AK} offset:{(k+2)*2304}\nds_read_b32 v{KT+2*(k%2)}, v{AT} offset:{(k+2)*2304+2176}")
        else:
            b(f"""
            s_mov_b64 exec, s[30:31]
            ds_read_b128 {vf(k+1,0)}, v{AV} offset:{(k+1)*2304+1024}
            ds_read_b128 {vf(k+1,1)}, v{AV} offset:{(k+1)*2304+1600}
            s_mov_b64 exec, -1
            """)
        b("\n".join(e[0:4]))
        b(m16(sb(n + 2), k + 1, t))
        b("\n".join(e[4:8]))
        if t == 1:
            b("s_waitcnt lgkmcnt(4)")
        b(smf(pt, pk, 0, sb(n - 1)))
        b("\n".join(e[8:12]))
        b(smf(pt, pk, 1, sb(n - 1)))
        b("\n".join(e[12:16]))
    b(f"""
    v_add_u32 v{AK}, 9216, v{AK}
    v_add_u32 v{AT}, 9216, v{AT}
    v_add_u32 v{AV}, 9216, v{AV}
    s_cmp_lg_u32 s48, 0
    s_cbranch_scc1 {name}_nobar
    s_mov_b32 s48, 1
    s_waitcnt vmcnt(0)
    s_barrier
{name}_nobar:
    s_sub_u32 s47, s47, 1
    s_cmp_lg_u32 s47, 0
    s_cbranch_scc1 {name}_loop
    """)
    stamp(b, 4)
    b(smf(1, 1, 0, sb(3)))
    b(smf(1, 1, 1, sb(3)))
    b(f"""
    v_mov_b32 v{sb(2)}, 0x53800000
    s_waitcnt lgkmcnt(0)
    s_nop 9
    v_cmp_nlt_f32 vcc, v{ob(0)+10}, v{sb(2)}
    v_cmp_nlt_f32 s[52:53], v{ob(1)+10}, v{sb(2)}
    s_nop 0
    s_or_b64 vcc, vcc, s[52:53]
    s_cbranch_vccz {name}_merge
    s_cmp_eq_u32 s48, 2
    s_cbranch_scc1 {name}_merge
    s_mov_b32 s48, 2
    s_mov_b32 s47, 32
    s_branch {name}_max
{name}_merge:
    v_mov_b32 v{ob(1)+11}, v{MX+1}
    s_mul_i32 s45, s33, 3072
    s_xor_b32 s46, s33, 4
    s_mul_i32 s46, s46, 3072
    v_add_u32 v{AK}, s45, v4
    v_add_u32 v{AV}, s46, v4
    s_barrier
    """)
    stamp(b, 5)
    for i in range(3):
        b(f"ds_write_b128 v{AK}, {v(ob(1)+4*i,4)} offset:{1024*i}")
    P = sb(0)
    b(f"""
    v_lshrrev_b32 v5, 4, v2
    v_mul_u32_u24 v5, 18432, v5
    v_and_b32 v6, 15, v2
    v_lshl_add_u32 v5, v6, 4, v5
    v_mov_b32 v7, {OOB}
    v_lshl_add_u32 v6, v3, 8, v5
    v_cndmask_b32 v7, v7, v5, s[50:51]
    s_mul_i32 s42, s39, 36864
    s_lshl_b32 s43, s34, 9
    s_add_u32 s43, s43, s42
    s_lshr_b32 s44, s34, 2
    s_lshl_b32 s44, s44, 8
    s_add_u32 s42, s42, s44
    s_and_b32 s44, s34, 3
    s_lshl_b32 s44, s44, 2
    s_add_u32 s42, s42, s44
    s_add_u32 s42, s42, 16384
    s_waitcnt lgkmcnt(0)
    s_barrier
    """)
    for i in range(3):
        b(f"ds_read_b128 {v(P+4*i,4)}, v{AV} offset:{1024*i}")
    o0 = ob(0)
    b(f"""
    s_waitcnt lgkmcnt(0)
    v_max_f32 v8, v{MX}, v{P+11}
    v_sub_f32 v9, v{MX}, v8
    v_sub_f32 v8, v{P+11}, v8
    v_exp_f32 v9, v9
    v_exp_f32 v8, v8
    v_mul_f32 v{MX}, v9, v{o0+10}
    v_fmac_f32 v{MX}, v8, v{P+10}
    v_rcp_f32 v{MX}, v{MX}
    s_nop 0
    v_mul_f32 v9, v9, v{MX}
    v_mul_f32 v8, v8, v{MX}
    """)
    for i in range(10):
        b(f"v_mul_f32 v{o0+i}, v9, v{o0+i}")
    for i in range(10):
        b(f"v_fmac_f32 v{o0+i}, v8, v{P+i}")
    for i in range(5):
        b(f"v_cvt_pk_bf16_f32 v{QM+i}, v{o0+2*i}, v{o0+2*i+1}")
    b(f"""
    buffer_store_dwordx4 {v(QM,4)}, v6, s[20:23], s43 offen
    buffer_store_dword v{QM+4}, v7, s[20:23], s42 offen
    """)
    stamp(b, 6)
    stamp_flush(b)
    b(f"{name}_end:\ns_endpgm")
    return dict(name=name, text=b.text(), grid=256, block=512, lds=147456 + 3 * 2304)


def gen_oproj(name):
    b = B()
    head(b, name, 256, [(4, "ws")])
    ACC, RES, OF = 16, 40, 56
    b(f"""
    v_lshrrev_b32 v5, 6, v0
    v_lshlrev_b32 v1, 4, v0
    v_and_b32 v2, 63, v0
    v_readfirstlane_b32 s33, v5
    v_lshlrev_b32 v2, 4, v2
    s_and_b32 s34, s2, 7
    s_lshl_b32 s34, s34, 3
    s_lshr_b32 s35, s2, 5
    s_add_u32 s34, s34, s35
    s_bfe_u32 s35, s2, 0x20003
    s_mul_i32 s35, s35, 9
    s_mul_i32 s36, s33, 3
    s_add_u32 s35, s35, s36
    s_mul_i32 s36, s34, 36864
    s_mov_b32 s37, s36
    s_lshl_b32 m0, s33, 10
    """)
    for i in range(3):
        b(f"""
        s_add_u32 s38, s35, {i}
        s_mul_i32 s{40+i}, s38, 18432
        s_lshr_b32 s39, s38, 1
        s_lshl_b32 s39, s39, 10
        s_and_b32 s38, s38, 1
        s_lshl_b32 s38, s38, 3
        s_add_u32 s38, s38, s39
        s_add_u32 s{44+2*i}, s38, s36
        s_add_u32 s{45+2*i}, s{44+2*i}, 18432
        """)
    b("s_waitcnt lgkmcnt(0)")
    srd(b, 12, 4, OB, SZX)
    srd(b, 16, 4, WO, 36 * 18 * 1024)
    srd(b, 20, 4, XR, SZX)
    srd(b, 24, 4, X1, SZX)
    for i in range(12):
        b("buffer_load_dwordx4 v1, s[12:15], s37 offen lds")
        if i < 11:
            b("s_add_u32 m0, m0, 3072\ns_add_u32 s37, s37, 3072")
    for i in range(6):
        b(f"buffer_load_dwordx2 {v(RES+2*i,2)}, v2, s[20:23], s{44+i} offen")
    wf = lambda ks, i: a((ks * 3 + i) * 4, 4)

    def wload(ks):
        for i in range(3):
            off = f" offset:{1024*(ks%4)}" if ks % 4 else ""
            b(f"buffer_load_dwordx4 {wf(ks,i)}, v2, s[16:19], s{40+i} offen{off}")
        if ks % 4 == 3:
            for i in range(3):
                b(f"s_add_u32 s{40+i}, s{40+i}, 4096")

    for ks in range(14):
        wload(ks)
    stamp(b, 1)
    b("s_waitcnt vmcnt(42)\ns_barrier")
    stamp(b, 2)
    for ks in range(14, 18):
        wload(ks)
    of = lambda ks, rt: v(OF + (ks % 3) * 8 + rt * 4, 4)
    rd = lambda ks: [f"ds_read_b128 {of(ks,rt)}, v2 offset:{(rt*18+ks)*1024}" for rt in range(2)]
    for ks in range(2):
        b("\n".join(rd(ks)))
    for i in range(6):
        for j in range(2):
            b(f"v_lshlrev_b32 v{ACC+4*i+2*j}, 16, v{RES+2*i+j}\nv_and_b32 v{ACC+4*i+2*j+1}, 0xffff0000, v{RES+2*i+j}")
    for ks in range(18):
        if ks + 2 < 18:
            b("\n".join(rd(ks + 2)))
        b(f"s_waitcnt vmcnt({3*(17-ks)}) lgkmcnt({min(4, 2*(17-ks))})")
        for i in range(3):
            for rt in range(2):
                d = v(ACC + (2 * i + rt) * 4, 4)
                b(mf16(d, wf(ks, i), of(ks, rt), d))
    stamp(b, 3)
    b("s_nop 2")
    for i in range(6):
        if i == 4:
            b("s_nop 1")
        b(f"""
        v_cvt_pk_bf16_f32 v{RES+2*i}, v{ACC+4*i}, v{ACC+4*i+1}
        v_cvt_pk_bf16_f32 v{RES+2*i+1}, v{ACC+4*i+2}, v{ACC+4*i+3}
        buffer_store_dwordx2 {v(RES+2*i,2)}, v2, s[24:27], s{44+i} offen
        """)
    stamp_flush(b)
    b(f"{name}_end:\ns_endpgm")
    return dict(name=name, text=b.text(), grid=256, block=192, lds=36864)


OPT = {}


def gen_ffn(name):
    store_flags = OPT.get("st", " sc1")
    SP = int(OPT.get("sp", 1))
    SSP = int(OPT.get("ssp", 0))
    b = B()
    head(b, name, 256, [(4, "ws")])
    CH = 36864
    LA, LB, DV, SV, C1, C2 = 2, 3, 4, 7, 10, 12
    ACC1, TMP, H0, ACC2, PK, ST, ONE = 16, 48, 80, 152, 216, 152, 168
    RING, NR, PD = 144, 12, 8
    xb = lambda ks, rt: a((ks * 2 + rt) * 4, 4)
    ring = lambda i: a(RING + 4 * (i % NR), 4)
    b(f"""
    v_lshrrev_b32 v5, 6, v0
    v_and_b32 v1, 63, v0
    v_lshlrev_b32 v1, 4, v1
    v_readfirstlane_b32 s33, v5
    s_and_b32 s34, s2, 7
    s_lshr_b32 s35, s2, 3
    s_and_b32 s36, s34, 3
    s_lshl_b32 s36, s36, 2
    s_and_b32 s37, s35, 3
    s_add_u32 s36, s36, s37
    s_lshr_b32 s37, s34, 2
    s_lshl_b32 s37, s37, 3
    s_lshr_b32 s35, s35, 2
    s_add_u32 s37, s37, s35
    s_lshl_b32 s37, s37, 2
    s_add_u32 s37, s37, s33
    s_mul_i32 s38, s36, {WFS}
    s_mul_i32 s39, s37, 36864
    s_add_u32 s40, s39, 18432
    s_mul_i32 s41, s36, {SZX}
    s_mul_i32 s42, s33, 9216
    v_add_u32 v{DV}, s42, v1
    v_add_u32 v{SV}, s39, v1
    v_add_u32 v{SV+1}, s40, v1
    v_add_u32 v{DV+1}, 4096, v{DV}
    v_add_u32 v{DV+2}, 8192, v{DV}
    s_mov_b32 s43, 0
    s_waitcnt lgkmcnt(0)
    """)
    srd(b, 12, 4, X1, SZX)
    srd(b, 16, 4, WF, WFS, extra=38)
    srd(b, 20, 4, PART, SZX, extra=41)

    def dma(slot):
        out = []
        for i in range(9):
            ld = f"buffer_load_dwordx4 v{DV+i//4}, s[16:19], s43 offen" + (f" offset:{1024*(i%4)}" if i % 4 else "") + " lds"
            if i % 4 == 0:
                out.append(f"s_add_u32 m0, s{slot}, {4096*(i//4)}")
            out.append(ld)
        out.append(f"s_add_u32 s43, s43, {CH}")
        return out

    def emit_dma(slot):
        for t in dma(slot):
            b(t)
            if "m0," in t:
                b("s_nop 0")

    b("s_mov_b32 s44, s42")
    emit_dma(44)
    for ks in range(18):
        for rt in range(2):
            off = f" offset:{1024*(ks%4)}" if ks % 4 else ""
            b(f"buffer_load_dwordx4 {xb(ks,rt)}, v1, s[12:15], s{39+rt} offen{off}")
        if ks % 4 == 3:
            b("s_add_u32 s39, s39, 4096\ns_add_u32 s40, s40, 4096")
    for c in (1, 2):
        b(f"s_add_u32 s44, s42, {c*CH}")
        emit_dma(44)
    for i in range(4):
        b(f"v_mov_b32 v{ONE+i}, 0x3f803f80")
    b(f"""
    v_mov_b32 v{LA}, v1
    v_add_u32 v{LB}, {CH}, v1
    """)
    stamp(b, 1)
    b("s_waitcnt vmcnt(54)\ns_barrier")
    stamp(b, 2)
    rdf = lambda gi, i, base: f"ds_read_b128 {ring(gi)}, v{base} offset:{1024*i}"
    acc1 = lambda st, gu, rt: ACC1 + 16 * st + (gu * 2 + rt) * 4
    for i in range(PD):
        b(rdf(i, i, LA))
    for ks in range(18):
        left = min(PD, 36 - 2 * ks) - 2
        b(f"s_waitcnt vmcnt({18 + 2*(17-ks)}) lgkmcnt({left})")
        for gu in range(2):
            for rt in range(2):
                d = v(acc1(0, gu, rt), 4)
                b(mf16(d, ring(2 * ks + gu), xb(ks, rt), "0" if ks == 0 else d))
            if 2 * ks + gu + PD < 36:
                b(rdf(2 * ks + gu + PD, 2 * ks + gu + PD, LA))
        for rt in range(2):
            d = v(ST + 4 * rt, 4)
            b(mf16(d, v(ONE, 4), xb(ks, rt), "0" if ks == 0 else d))
            d = v(ST + 8 + 4 * rt, 4)
            b(mf16(d, xb(ks, rt), xb(ks, rt), "0" if ks == 0 else d))
    stamp(b, 3)
    b(f"s_add_u32 s44, s42, {3*CH}")
    b("s_waitcnt vmcnt(9)\ns_barrier")
    for i in range(PD):
        b(rdf(i, i, LB))
    emit_dma(44)
    b(f"""
    v_and_b32 v{TMP}, 3, v0
    v_and_b32 v{TMP+1}, 15, v0
    v_cmp_eq_u32 s[50:51], 1, v{TMP}
    v_cmp_eq_u32 s[52:53], 2, v{TMP}
    v_cmp_eq_u32 s[54:55], 3, v{TMP}
    v_lshrrev_b32 v{TMP+2}, 2, v{TMP+1}
    v_lshl_add_u32 v{TMP+1}, v{TMP+2}, 4, v{TMP+1}
    v_lshlrev_b32 v{TMP+1}, 2, v{TMP+1}
    """)
    for rt in range(2):
        g = ST + 8 + 4 * rt
        b(f"""
        v_cndmask_b32 v{g}, v{g}, v{g+1}, s[50:51]
        v_cndmask_b32 v{g}, v{g}, v{g+2}, s[52:53]
        v_cndmask_b32 v{g}, v{g}, v{g+3}, s[54:55]
        ds_bpermute_b32 v{C2+rt}, v{TMP+1}, v{g}
        """)
    b("s_waitcnt lgkmcnt(0)")
    for rt in range(2):
        b(f"""
        v_mul_f32 v{TMP}, {fbits(1/576)}, v{ST+4*rt}
        v_mul_f32 v{C2+rt}, {fbits(1/576)}, v{C2+rt}
        v_fma_f32 v{C2+rt}, -v{TMP}, v{TMP}, v{C2+rt}
        v_max_f32 v{C2+rt}, 0, v{C2+rt}
        v_add_f32 v{C2+rt}, {fbits(1e-5)}, v{C2+rt}
        v_rsq_f32 v{C1+rt}, v{C2+rt}
        s_nop 0
        v_mul_f32 v{C1+rt}, {fbits(-math.log2(math.e))}, v{C1+rt}
        """)
    b(f"""
    s_mov_b32 s45, {2*CH}
    s_mov_b32 s44, s42
    s_mov_b32 s46, 0
    s_waitcnt vmcnt(9)
    s_barrier
    """)

    def swiglu(st, half, indexed, after, deadline=None):
        ops, last = [], []
        for k in range(8):
            rt, i = divmod(k, 4)
            g, u = acc1(st, 0, rt) + i, acc1(st, 1, rt) + i
            t, p = TMP + k, TMP + 8 + k
            c = chain([f"v_mul_f32 v{t}, v{C1+rt}, v{g}", f"v_exp_f32 v{t}, v{t}",
                       f"v_fma_f32 v{t}, v{t}, v{C2+rt}, v{C2+rt}", f"v_rcp_f32 v{t}, v{t}"], earliest=3, dist=1)
            m = Op(f"v_mul_f32 v{p}, v{g}, v{u}", earliest=4)
            f = Op(f"v_mul_f32 v{p}, v{p}, v{t}", [(c[-1], 1), (m, 0)])
            ops += c + [m, f]
            last.append(f)
        base = H0 + (0 if indexed else 64)
        cv = [f"v_cvt_pk_bf16_f32 v{base+4*rt+2*half+j}, v{TMP+8+4*rt+2*j}, v{TMP+8+4*rt+2*j+1}" for rt in range(2) for j in range(2)]
        if indexed:
            ops.append(Op("\n".join(["s_set_gpr_idx_on s46, gpr_idx(DST)"] + cv + ["s_set_gpr_idx_off"]),
                          [(f, 0) for f in last] + [(after, 0)]))
            if half:
                ops.append(Op("s_add_u32 s46, s46, 8", [(ops[-1], 0)]))
        else:
            ops += [Op(t, [(last[2*k], 0), (last[2*k+1], 0)], deadline=deadline) for k, t in enumerate(cv)]
        return ops

    def chunk(mains, cur, nxt, extra, vmwait):
        pinned = []
        for i in range(36):
            j = i + PD
            pinned.append((2 * i, rdf(j, j % 36, cur if j < 36 else nxt)))
            if i % 4 == 3:
                pinned.append((2 * i + 1, f"s_waitcnt lgkmcnt({PD-4})"))
        seq, prev = [], ""
        for t in dma(44):
            d = 1 if "m0," in prev or "s43, s43" in t else (max(1, SP - 1) if "m0," in t else SP)
            seq.append((t, d))
            prev = t
        dm = chain(seq)
        pinned.append((0, f"v_add_u32 v{nxt}, s45, v1"))
        slot = chain([f"s_add_u32 s44, s44, {CH}",
                      f"s_cmp_eq_u32 s45, {CH}\ns_cselect_b32 s44, s42, s44", f"s_add_u32 s45, s45, {CH}",
                      f"s_cmp_eq_u32 s45, {4*CH}\ns_cselect_b32 s45, 0, s45"], after=dm[-1])
        txt, over, lastgap = sched(mains, pinned, dm + extra(dm[-1]) + slot)
        ab = OPT.get("ab", "")
        keep = []
        for ln in txt.splitlines():
            if "d" in ab and ln.endswith(" lds"):
                continue
            if "v" in ab and ln.startswith(("v_mul", "v_exp", "v_rcp", "v_fma", "v_cvt", "s_set_gpr")):
                continue
            if "i" in ab and ln.startswith(("v_cvt", "s_set_gpr")):
                continue
            if "s" in ab and "store" in ln:
                continue
            if "r" in ab and ln.startswith(("ds_read", "s_waitcnt")):
                continue
            keep.append(ln)
        b("\n".join(keep))
        if "w" not in ab:
            b(f"s_waitcnt vmcnt({vmwait})")
        if "b" not in ab:
            b("s_barrier")
        return over, lastgap

    def p1_mains(st):
        m = []
        for ks in range(18):
            for gu in range(2):
                for rt in range(2):
                    d = v(acc1(st, gu, rt), 4)
                    m.append(mf16(d, ring(2 * ks + gu), xb(ks, rt), "0" if ks == 0 else d))
        return m

    acc2 = lambda st, tl, rt: ACC2 + 32 * st + (tl * 2 + rt) * 4

    def p2_mains(st):
        m = []
        for u in range(9):
            for tl in range(4):
                for rt in range(2):
                    d = v(acc2(st, tl, rt), 4)
                    m.append(mf16(d, ring(4 * u + tl), v(H0 + (u * 2 + rt) * 4, 4), "0" if u == 0 else d))
        return m

    def p2_out(st):
        out = []
        for pr in range(2):
            for rt in range(2):
                o = PK + (pr * 2 + rt) * 4
                p, q = acc2(st, 2 * pr, rt), acc2(st, 2 * pr + 1, rt)
                out += [f"v_cvt_pk_bf16_f32 v{o}, v{p}, v{p+1}", f"v_cvt_pk_bf16_f32 v{o+1}, v{p+2}, v{p+3}",
                        f"v_cvt_pk_bf16_f32 v{o+2}, v{q}, v{q+1}", f"v_cvt_pk_bf16_f32 v{o+3}, v{q+2}, v{q+3}",
                        f"buffer_store_dwordx4 {v(o,4)}, v{SV+rt}, s[20:23], s47 offen" + (" offset:1024" if pr else "") + store_flags]
        out.append("s_add_u32 s47, s47, 2048")
        return out

    def outs(st, d):
        if not SSP:
            return chain(p2_out(st), after=d)
        return chain([(t, SSP if "store" in t else 0) for t in p2_out(st)], earliest=5)

    over = []
    stamp(b, 4)
    b(f"s_waitcnt lgkmcnt({PD-4})\n.p2align 3\n{name}_p1:")
    over.append(chunk(p1_mains(1), LB, LA, lambda d: swiglu(0, 0, True, d), 9))
    b(f"s_cmp_eq_u32 s46, 64\ns_cbranch_scc1 {name}_p2")
    over.append(chunk(p1_mains(0), LA, LB, lambda d: swiglu(1, 1, True, d), 9))
    b(f"s_branch {name}_p1\n{name}_p2:\ns_mov_b32 s47, 0")
    stamp(b, 5)
    over.append(chunk(p2_mains(0), LA, LB, lambda d: swiglu(1, 1, False, d, 61), 9))
    b(f".p2align 3\n{name}_p3:")
    over.append(chunk(p2_mains(1), LB, LA, lambda d: outs(0, d), int(OPT.get('w1', 13))))
    over.append(chunk(p2_mains(0), LA, LB, lambda d: outs(1, d), int(OPT.get('w2', 13))))
    b(f"s_cmp_lt_u32 s47, {8*2048}\ns_cbranch_scc1 {name}_p3\ns_nop 4")
    stamp(b, 6)
    b("\n".join(p2_out(0)))
    stamp(b, 7)
    stamp_flush(b)
    b(f"{name}_end:\ns_endpgm")
    print("ffn slot overflow per chunk:", over, file=sys.stderr)
    return dict(name=name, text=b.text(), grid=256, block=256, lds=4 * CH)


HEADER = """; Two transformer layers (LayerNorm + 32-head attention, LayerNorm + SwiGLU), S=2048 D=576 F=4608, bf16.
"""


def assemble(kernels, order):
    byname = {k["name"]: k for k in kernels}
    out = HEADER
    for n in order:
        k = byname[n]
        out += f"; @launch kernel={n} grid=({k['grid']},1,1) block=({k['block']},1,1) lds={k['lds']}\n"
    out += '.amdgcn_target "amdgcn-amd-amdhsa--gfx950"\n.text\n'
    desc = '.section .rodata,"a"\n'
    bad = 0
    for k in kernels:
        if k["name"] not in order:
            continue
        p = Prog(k["text"])
        errs = p.hazards() + p.waits()
        for e in errs[:30]:
            print(k["name"], e, file=sys.stderr)
        bad += len(errs)
        mx = p.max_regs()
        acc = max(4, (mx["v"] + 4) // 4 * 4)
        nfv = acc + mx["a"] + 1 if mx["a"] >= 0 else mx["v"] + 1
        print(f"{k['name']}: {len(p.ins)} instr, vgpr {mx['v']+1}, agpr {mx['a']+1}, sgpr {mx['s']+1}", file=sys.stderr)
        out += f".globl {k['name']}\n.p2align 8\n.type {k['name']},@function\n{k['name']}:\n{k['text']}"
        desc += f""".p2align 6
.amdhsa_kernel {k['name']}
  .amdhsa_next_free_vgpr {nfv}
  .amdhsa_next_free_sgpr {mx['s']+1}
  .amdhsa_accum_offset {acc}
  .amdhsa_group_segment_fixed_size 0
  .amdhsa_kernarg_size 80
  .amdhsa_user_sgpr_count 2
  .amdhsa_user_sgpr_kernarg_segment_ptr 1
  .amdhsa_system_sgpr_workgroup_id_x 1
.end_amdhsa_kernel
"""
    if bad and not OPT.get('ab'):
        raise SystemExit(f"{bad} static check failures")
    return out + desc


def build_all():
    ks = [gen_row("first_kernel", "first"), gen_prep("prep_kernel"), gen_qkv("qkv_kernel"), gen_attn("attn_kernel"),
          gen_oproj("oproj_kernel"), gen_ffn("ffn_kernel"), gen_row("mid_kernel", "mid"), gen_row("last_kernel", "last")]
    layer = ["qkv_kernel", "attn_kernel", "oproj_kernel", "ffn_kernel"]
    order = ["first_kernel", "prep_kernel"] + layer + ["mid_kernel"] + layer + ["last_kernel"]
    return assemble(ks, order)


if __name__ == "__main__":
    for x in [x for x in sys.argv if "=" in x]:
        k, val = x.split("=")
        OPT[k] = val.replace("_", " ")
        sys.argv.remove(x)
    if "--diag" in sys.argv:
        DIAG = True
        sys.argv.remove("--diag")
    path = sys.argv[1] if len(sys.argv) > 1 else "interleave_layers__mha_block__glu_gated_swiglu__prompt.s"
    open(path, "w").write(build_all())
```

```python
import math, struct, sys
from asmlib import B, Prog, v, a, s, weave, Op, chain, sched, resolve_waits
from gen import fbits, sdiv, srd, mf16, transpose8, ARG, HEADER

SZX = 2048 * 576 * 2
REC = 2432
KVH = 64 * REC
XN, XR, OB, X1, PART, HB, KV = 0, SZX, 2 * SZX, 3 * SZX, 4 * SZX, 8 * SZX, 16 * SZX
LST = KV + 32 * KVH
WQ = 2 * LST
WQH = 126 * 1024
WO = WQ + 16 * WQH
WF = WO + 36 * 18 * 1024
CH = 36864
WFS = 27 * CH
CNT = WF + 16 * WFS
WS_END = CNT + 65536
C_KV, C_O, C_P, C_X1, C_XN, C_H = 0, 16 * 128, 32 * 128, 64 * 128, 128 * 128, 192 * 128
OOB = 0x40000000
QX = 131072
STAMPS = 200 << 20
OPT = {}
DIAG = False
SI, SJ, SL, SC, STW, STJ, SW = 24, 25, 26, 27, 28, 29, 33


def stamp(b, i):
    if DIAG:
        b(f"s_memtime s[62:63]\ns_waitcnt lgkmcnt(0)\ns_mov_b32 s{64+i}, s62")


def stamp_real(b, i):
    if DIAG:
        b(f"s_memrealtime s[62:63]\ns_waitcnt lgkmcnt(0)\ns_mov_b32 s{64+i}, s62")


def stamp_flush(b, slot):
    if not DIAG:
        return
    b(f"""
    s_lshl_b32 s62, {slot}, 8
    s_add_u32 s62, s62, s2
    s_lshl_b32 s62, s62, 4
    s_add_u32 s62, s62, s{SW}
    s_lshl_b32 s62, s62, 7
    s_add_u32 s96, s4, {STAMPS}
    s_addc_u32 s97, s5, 0
    s_mov_b32 s98, {32 << 20}
    s_mov_b32 s99, 0x20000
    v_mov_b32 v8, 0
    """)
    for q in range(8):
        for j in range(4):
            b(f"v_mov_b32 v{4+j}, s{64+4*q+j}")
        b(f"buffer_store_dwordx4 v[4:7], v8, s[96:99], s62 offen offset:{16*q}\ns_nop 1")


def head(b, name, nwg, loads):
    b(f"s_cmp_ge_u32 s2, {nwg}\ns_cbranch_scc1 {name}_end")
    if DIAG:
        for i in range(32):
            b(f"s_mov_b32 s{64+i}, 0")
        stamp_real(b, 30)
        stamp(b, 0)
    for reg, arg in loads:
        b(f"s_load_dwordx2 s[{reg}:{reg+1}], s[0:1], {ARG[arg]}")


def finish(b, name, slot):
    if DIAG:
        b("s_waitcnt vmcnt(0)")
        stamp(b, 29)
        stamp_real(b, 31)
        stamp_flush(b, slot)
    b(f"{name}_end:\ns_endpgm")


def window(b, d, off, size):
    b(f"s_add_u32 s{d}, s4, s{off}\ns_addc_u32 s{d+1}, s5, 0\ns_mov_b32 s{d+2}, {size}\ns_mov_b32 s{d+3}, 0x20000")


def ln_tail(b, A0, n, mean, rstd, dst):
    for j in range(n):
        b(f"v_sub_f32 v{A0+j}, v{A0+j}, v{mean}")
    for j in range(n):
        b(f"v_mul_f32 v{A0+j}, v{A0+j}, v{rstd}")
    for j in range(n // 2):
        b(f"v_cvt_pk_bf16_f32 v{dst+j}, v{A0+2*j}, v{A0+2*j+1}")


def ln_stats(b, sm, sq):
    b(f"""
    v_mul_f32 v{sm}, {fbits(1/576)}, v{sm}
    v_mul_f32 v{sq}, {fbits(1/576)}, v{sq}
    v_fma_f32 v{sq}, -v{sm}, v{sm}, v{sq}
    v_max_f32 v{sq}, 0, v{sq}
    v_add_f32 v{sq}, {fbits(1e-5)}, v{sq}
    """)


def row_reduce(b, sm, sq):
    b(f"""
    s_nop 1
    v_permlane32_swap_b32 v{sm}, v{sq}
    s_nop 0
    v_add_f32 v{sm}, v{sm}, v{sq}
    v_mov_b32 v{sq}, v{sm}
    s_nop 1
    v_permlane16_swap_b32 v{sm}, v{sq}
    s_nop 0
    v_add_f32 v{sm}, v{sm}, v{sq}
    s_nop 1
    v_add_f32 v{sm}, v{sm}, v{sm} row_ror:8 row_mask:0xf bank_mask:0xf
    """)


def gen_first(name):
    b = B()
    head(b, name, 256, [(4, "ws"), (6, "x"), (8, "wqkv")])
    b("""
    v_lshrrev_b32 v1, 3, v0
    v_and_b32 v2, 7, v0
    v_lshlrev_b32 v3, 8, v1
    v_lshl_add_u32 v3, v2, 4, v3
    v_mul_u32_u24 v4, 1152, v2
    v_lshl_add_u32 v4, v1, 4, v4
    v_lshrrev_b32 v5, 6, v0
    s_lshr_b32 s10, s2, 1
    s_mul_i32 s10, s10, 18432
    s_and_b32 s11, s2, 1
    s_lshl_b32 s11, s11, 7
    s_add_u32 s10, s10, s11
    s_mul_i32 s11, s2, 9216
    v_readfirstlane_b32 s33, v5
    s_mov_b32 s30, 0x3f80
    s_mov_b32 s31, 0x3f800000
    s_waitcnt lgkmcnt(0)
    """)
    srd(b, 12, 4, 0, WS_END)
    D0, A0 = 24, 8
    srd(b, 16, 6, 0, SZX)
    b(f"buffer_load_dwordx4 {v(D0,4)}, v4, s[16:19], s11 offen")
    srd(b, 20, 8, 0, 576 * 1728 * 2)
    b(f"""
    s_cmp_lg_u32 s33, 8
    s_cbranch_scc1 {name}_nozero
    v_and_b32 v6, 63, v0
    v_lshlrev_b32 v6, 2, v6
    v_mov_b32 v7, 0
    s_lshl_b32 s34, s2, 8
    s_add_u32 s34, s34, {CNT}
    buffer_store_dword v7, v6, s[12:15], s34 offen
{name}_nozero:
    s_lshl_b32 s34, s2, 2
    s_add_u32 s34, s34, s33
    s_cmp_ge_u32 s33, 4
    s_cselect_b32 s34, 1008, s34
    s_cmp_ge_u32 s34, 1008
    s_cbranch_scc1 {name}_sum
    """)
    sdiv(b, 35, 34, 63, 1024)
    b(f"""
    s_mul_i32 s36, s35, 63
    s_sub_u32 s36, s34, s36
    v_and_b32 v6, 15, v0
    v_bfe_u32 v7, v0, 4, 2
    v_and_b32 v8, 7, v6
    v_lshrrev_b32 v9, 3, v6
    v_mul_u32_u24 v10, 27648, v7
    v_lshlrev_b32 v11, 8, v7
    s_mul_i32 s38, s35, 72
    s_mul_i32 s39, s35, {WQH}
    s_add_u32 s39, s39, {WQ}
    s_cmp_ge_u32 s36, 54
    s_cbranch_scc1 {name}_tail
    """)
    sdiv(b, 37, 36, 3, 64)
    b(f"""
    s_mul_i32 s40, s37, 3
    s_sub_u32 s40, s36, s40
    s_mul_i32 s41, s37, 110592
    s_add_u32 s38, s38, s41
    s_mul_i32 s41, s40, 1152
    s_add_u32 s38, s38, s41
    s_mul_i32 s41, s37, 7168
    s_add_u32 s39, s39, s41
    s_lshl_b32 s41, s40, 11
    s_add_u32 s39, s39, s41
    v_mad_u32_u24 v10, v9, 36, v10
    v_lshl_add_u32 v10, v8, 2, v10
    s_cmp_eq_u32 s40, 2
    s_cbranch_scc1 {name}_vsec
    v_bfe_u32 v12, v6, 1, 1
    v_lshl_add_u32 v11, v12, 10, v11
    v_lshrrev_b32 v12, 2, v6
    v_lshl_add_u32 v11, v12, 6, v11
    v_and_b32 v12, 1, v6
    v_lshl_add_u32 v11, v12, 5, v11
    s_branch {name}_go
{name}_vsec:
    v_lshl_add_u32 v11, v9, 10, v11
    v_lshl_add_u32 v11, v8, 5, v11
    s_branch {name}_go
{name}_tail:
    s_sub_u32 s37, s36, 54
    s_mul_i32 s41, s37, 221184
    s_add_u32 s38, s38, s41
    s_add_u32 s38, s38, 32
    s_mul_i32 s41, s37, 14336
    s_add_u32 s39, s39, s41
    s_add_u32 s39, s39, 6144
    v_mul_u32_u24 v12, 110592, v9
    v_add_u32 v10, v10, v12
    v_lshrrev_b32 v12, 1, v8
    v_mul_u32_u24 v12, 1152, v12
    v_add_u32 v10, v10, v12
    v_and_b32 v12, 1, v8
    v_mad_u32_u24 v10, v12, 36, v10
    v_mov_b32 v12, {OOB}
    v_cmp_gt_u32 vcc, 6, v8
    v_mul_u32_u24 v13, 7168, v9
    v_add_u32 v11, v11, v13
    v_cndmask_b32 v10, v12, v10, vcc
    v_lshl_add_u32 v11, v8, 5, v11
{name}_go:
    s_mov_b32 s42, 0x05040100
    s_mov_b32 s43, 0x07060302
    """)
    for j in range(8):
        b(f"buffer_load_dword v{32+j}, v10, s[20:23], s38 offen\ns_add_u32 s38, s38, 3456")
    b("s_waitcnt vmcnt(0)")
    transpose8(b, 32, 40, 42, 43)
    b(f"""
    buffer_store_dwordx4 v[40:43], v11, s[12:15], s39 offen
    buffer_store_dwordx4 v[44:47], v11, s[12:15], s39 offen offset:16
    s_branch {name}_sum2
{name}_sum:
    s_waitcnt vmcnt(0)
{name}_sum2:
    s_add_u32 s34, s10, {XR}
    buffer_store_dwordx4 {v(D0,4)}, v3, s[12:15], s34 offen
    """)
    for j in range(4):
        b(f"v_lshlrev_b32 v{A0+2*j}, 16, v{D0+j}\nv_and_b32 v{A0+2*j+1}, 0xffff0000, v{D0+j}")
    b(f"v_add_f32 v6, v{A0}, v{A0+1}\nv_mul_f32 v7, v{A0}, v{A0}")
    for j in range(1, 8):
        if j > 1:
            b(f"v_add_f32 v6, v6, v{A0+j}")
        b(f"v_fmac_f32 v7, v{A0+j}, v{A0+j}")
    b("v_bfe_u32 v1, v0, 5, 1\nv_lshlrev_b32 v2, 3, v2\nv_lshl_add_u32 v1, v1, 2, v2\nv_lshl_add_u32 v1, v5, 6, v1")
    row_reduce(b, 6, 7)
    b("ds_write_b32 v1, v6\ns_waitcnt lgkmcnt(0)\ns_barrier")
    for w in range(9):
        b(f"ds_read_b64 {v(28+2*w,2)}, v2 offset:{64*w}")
    b("s_waitcnt lgkmcnt(0)")
    for w in range(1, 9):
        b(f"v_add_f32 v28, v28, v{28+2*w}\nv_add_f32 v29, v29, v{29+2*w}")
    ln_stats(b, 28, 29)
    b("v_rsq_f32 v29, v29")
    ln_tail(b, A0, 8, 28, 29, 20)
    b("buffer_store_dwordx4 v[20:23], v3, s[12:15], s10 offen")
    finish(b, name, "0")
    return dict(name=name, text=b.text(), grid=256, block=576, lds=1024)


def gen_prep(name):
    b = B()
    head(b, name, 256, [(4, "ws")])
    sid = 34
    D0, T0, O0 = 16, 88, 104
    b(f"""
    v_lshrrev_b32 v5, 6, v0
    s_lshl_b32 s34, s2, 2
    v_readfirstlane_b32 s33, v5
    s_mov_b32 s42, 0x05040100
    s_add_u32 s34, s34, s33
    s_mov_b32 s43, 0x07060302
    s_cmp_ge_u32 s{sid}, 576
    s_cbranch_scc1 {name}_p2
    s_bfe_u32 s35, s{sid}, 0x10002
    s_lshl_b32 s36, s35, 3
    s_add_u32 s36, s0, s36
    s_addc_u32 s37, s1, 0
    s_load_dwordx2 s[6:7], s[36:37], {ARG['w1']}
    s_lshr_b32 s36, s{sid}, 3
    s_lshl_b32 s36, s36, 2
    s_and_b32 s37, s{sid}, 3
    s_add_u32 s36, s36, s37
    """)
    sdiv(b, 37, 36, 18, 288)
    b(f"""
    s_mul_i32 s39, s37, {WFS - 18 * CH}
    s_mul_i32 s40, s36, {CH}
    s_add_u32 s39, s39, s40
    s_lshl_b32 s40, s35, 10
    s_add_u32 s39, s39, s40
    s_lshl_b32 s38, s36, 5
    v_and_b32 v6, 7, v0
    v_bfe_u32 v7, v0, 3, 3
    v_mul_u32_u24 v10, 73728, v7
    v_lshl_add_u32 v10, v6, 2, v10
    v_lshrrev_b32 v8, 2, v7
    v_and_b32 v9, 3, v7
    v_lshlrev_b32 v11, 11, v8
    v_lshl_add_u32 v11, v9, 8, v11
    v_lshl_add_u32 v11, v6, 5, v11
    s_mov_b32 s30, 0x3f80
    s_mov_b32 s31, 0x3f800000
    v_mov_b32 v12, 0
    v_mov_b32 v13, 0
    s_waitcnt lgkmcnt(0)
    """)
    srd(b, 20, 6, 0, 576 * 4608 * 2)
    srd(b, 24, 4, WF, 16 * WFS)

    def sums(p):
        for j in range(8):
            b(f"v_dot2_f32_bf16 v12, v{D0+8*p+j}, s30, v12\nv_dot2_f32_bf16 v13, v{D0+8*p+j}, s31, v13")

    for p in range(9):
        for j in range(8):
            b(f"buffer_load_dword v{D0+8*p+j}, v10, s[20:23], s38 offen")
            b(f"s_add_u32 s38, s38, {9216 if j < 7 else 57 * 9216}")
        if p >= 6:
            b("s_waitcnt vmcnt(48)")
            sums(p - 6)
    for p in range(3, 9):
        b(f"s_waitcnt vmcnt({8*(8-p)})")
        sums(p)
    b("s_nop 2")
    for r in (12, 13):
        b(f"v_mov_b32 v14, v{r}")
        row_reduce(b, r, 14)
        b(f"v_mul_f32 v{r}, {fbits(-1/576)}, v{r}")
    for p in range(9):
        o = O0 + 8 * (p % 2)
        for h in range(2):
            for j in range(8):
                b(f"v_dot2_f32_bf16 v{T0+8*h+j}, v{D0+8*p+j}, s{30+h}, v{12+h}")
        for h in range(2):
            for j in range(4):
                b(f"v_cvt_pk_bf16_f32 v{o+4*h+j}, v{T0+8*h+2*j}, v{T0+8*h+2*j+1}")
        b(f"""
        buffer_store_dwordx4 {v(o,4)}, v11, s[24:27], s39 offen
        buffer_store_dwordx4 {v(o+4,4)}, v11, s[24:27], s39 offen offset:16
        s_add_u32 s39, s39, 4096
        """)
    b(f"""
    s_branch {name}_pend
{name}_p2:
    s_cmp_ge_u32 s{sid}, 900
    s_cbranch_scc1 {name}_pend
    v_and_b32 v6, 15, v0
    v_bfe_u32 v7, v0, 4, 2
    v_lshlrev_b32 v11, 8, v7
    v_and_b32 v12, 7, v6
    v_lshl_add_u32 v11, v12, 5, v11
    v_lshrrev_b32 v12, 3, v6
    v_lshlrev_b32 v10, 2, v6
    s_cmp_ge_u32 s{sid}, 864
    s_cbranch_scc1 {name}_p3
    s_load_dwordx2 s[6:7], s[0:1], {ARG['w2']}
    s_sub_u32 s35, s{sid}, 576
    """)
    sdiv(b, 36, 35, 18, 288)
    b(f"""
    s_mul_i32 s37, s36, 18
    s_sub_u32 s37, s35, s37
    s_mul_i32 s38, s36, {288 * 1152}
    s_lshl_b32 s40, s37, 6
    s_add_u32 s38, s38, s40
    s_and_b32 s39, s36, 12
    s_mul_i32 s39, s39, {WFS}
    s_and_b32 s40, s36, 3
    s_mul_i32 s40, s40, 9216
    s_add_u32 s39, s39, s40
    s_add_u32 s39, s39, {18 * CH}
    s_lshl_b32 s37, s37, 1
    v_add_u32 v12, s37, v12
    v_mul_u32_u24 v13, 57, v12
    v_lshrrev_b32 v13, 9, v13
    v_lshl_add_u32 v11, v12, 10, v11
    v_mul_u32_u24 v13, {WFS - 9216}, v13
    v_add_u32 v11, v11, v13
    v_mul_u32_u24 v13, 4608, v7
    v_add_u32 v10, v10, v13
    s_waitcnt lgkmcnt(0)
    """)
    assert all((t * 57) >> 9 == t // 9 for t in range(36))
    srd(b, 20, 6, 0, 4608 * 576 * 2)
    srd(b, 24, 4, WF, 16 * WFS)

    def plain(rowoff, voff, dst_step):
        def loads(p):
            for j in range(8):
                b(f"s_add_u32 s40, s38, {rowoff(p, j)}\nbuffer_load_dword v{D0+8*p+j}, {voff(p)}, s[20:23], s40 offen")
        for p in range(7):
            loads(p)
        b("s_waitcnt vmcnt(40)")
        loads(7)
        loads(8)
        for p in range(9):
            if p >= 2:
                b(f"s_waitcnt vmcnt({8*(8-p) + 2*p})")
            o = O0 + 8 * (p % 2)
            transpose8(b, D0 + 8 * p, o, 42, 43)
            b(f"""
            buffer_store_dwordx4 {v(o,4)}, v11, s[24:27], s39 offen
            buffer_store_dwordx4 {v(o+4,4)}, v11, s[24:27], s39 offen offset:16
            s_add_u32 s39, s39, {dst_step}
            """)

    plain(lambda p, j: (32 * p + 16 * (j // 4) + j % 4) * 1152, lambda p: "v10", CH)
    b(f"""
    s_branch {name}_pend
{name}_p3:
    s_load_dwordx2 s[6:7], s[0:1], {ARG['wo']}
    s_sub_u32 s35, s{sid}, 864
    s_lshr_b32 s36, s35, 1
    s_and_b32 s37, s35, 1
    s_lshl_b32 s38, s36, 6
    s_mul_i32 s39, s36, 36864
    s_mul_i32 s40, s37, 9216
    s_add_u32 s39, s39, s40
    v_mul_u32_u24 v13, 18432, v12
    v_add_u32 v11, v11, v13
    v_mul_u32_u24 v14, {72 * 1152}, v7
    v_add_u32 v14, v14, v10
    v_lshrrev_b32 v13, 1, v7
    v_mul_u32_u24 v13, {18 * 1152}, v13
    v_add_u32 v10, v10, v13
    v_and_b32 v13, 1, v7
    v_mul_u32_u24 v13, 4608, v13
    v_add_u32 v10, v10, v13
    s_waitcnt lgkmcnt(0)
    """)
    srd(b, 20, 6, 0, 576 * 576 * 2)
    srd(b, 24, 4, WO, 36 * 18 * 1024)
    b(f"s_cmp_eq_u32 s37, 1\ns_cbranch_scc1 {name}_p4")
    main = lambda ks, j: (36 * ks + 8 * (j // 4) + j % 4) * 1152
    tail = lambda ks, j: (288 * (ks - 16) + 16 + 18 * (j // 2) + j % 2) * 1152
    plain(main, lambda p: "v10", 1024)
    b(f"s_branch {name}_pend\n{name}_p4:")
    plain(lambda p, j: main(9 + p, j) if p < 7 else tail(9 + p, j), lambda p: "v10" if p < 7 else "v14", 1024)
    b(f"{name}_pend:\ns_waitcnt lgkmcnt(0)")
    finish(b, name, "1")
    return dict(name=name, text=b.text(), grid=256, block=256, lds=0)


def signal(b, tag, base, idx):
    b(f"""
    s_lshl_b32 s60, s{idx}, 7
    s_add_u32 s60, s60, s{SC}
    s_add_u32 s60, s60, {base}
    s_waitcnt vmcnt(0) lgkmcnt(0)
    s_barrier
    s_cmp_lg_u32 s{SW}, 3
    s_cbranch_scc1 {tag}_sig
    s_mov_b64 exec, 1
    buffer_atomic_add v3, v2, s[12:15], s60 offen sc1
    s_mov_b64 exec, -1
{tag}_sig:
    """)


def poll(b, tag, base, idx, target, one_wave):
    b(f"""
    s_lshl_b32 s60, s{idx}, 7
    s_add_u32 s60, s60, s{SC}
    s_add_u32 s60, s60, {base}
    s_mov_b32 s61, 0x40000
    """)
    if one_wave:
        b(f"s_cmp_lg_u32 s{SW}, 3\ns_cbranch_scc1 {tag}_ok")
    b(f"""
{tag}_poll:
    buffer_load_dword v4, v2, s[12:15], s60 offen sc1
    s_sub_u32 s61, s61, 1
    s_waitcnt vmcnt(0)
    v_cmp_gt_u32 vcc, {target}, v4
    s_cbranch_scc1 {tag}_ok
    s_cbranch_vccnz {tag}_poll
{tag}_ok:
    """)
    if one_wave:
        b("s_barrier")


def dma_run(b, n, srdn, soff, flags=""):
    for i in range(n):
        off = f" offset:{1024*(i%4)}" if i % 4 else ""
        b(f"buffer_load_dwordx4 v1, s[{srdn}:{srdn+3}], s{soff} offen{off}{flags} lds")
        if i % 4 == 3 and i < n - 1:
            b(f"s_add_u32 m0, m0, 4096\ns_add_u32 s{soff}, s{soff}, 4096")


def pack4(b, dst, p, q):
    b(f"""
    v_cvt_pk_bf16_f32 v{dst}, v{p}, v{p+1}
    v_cvt_pk_bf16_f32 v{dst+1}, v{p+2}, v{p+3}
    v_cvt_pk_bf16_f32 v{dst+2}, v{q}, v{q+1}
    v_cvt_pk_bf16_f32 v{dst+3}, v{q+2}, v{q+3}
    """)


def unit_offset(b, dst, t0, t1):
    b(f"""
    v_bfe_u32 v{t0}, v0, 4, 1
    v_bfe_u32 v{t1}, v0, 5, 1
    v_mul_u32_u24 v{dst}, 18432, v{t0}
    v_lshl_add_u32 v{dst}, v{t1}, 8, v{dst}
    v_and_b32 v{t0}, 15, v0
    v_lshl_add_u32 v{dst}, v{t0}, 4, v{dst}
    """)


def phase_q(b):
    ACC, XQ, TMP = 16, 80, 128
    b(f"""
    s_lshl_b32 m0, s{SW}, 15
    s_mul_i32 s34, s{SJ}, {WQH}
    s_add_u32 s34, s34, m0
    s_add_u32 s34, s34, {WQ}
    """)
    dma_run(b, 32, 12, 34)
    b(f"s_mul_i32 s34, s{STW}, 36864\ns_add_u32 s34, s34, s{SL}\ns_add_u32 s35, s34, 18432")
    window(b, 16, 34, 18432)
    window(b, 20, 35, 18432)
    for i in range(64):
        b(f"v_mov_b32 v{ACC+i}, 0")
    b(f"s_cmp_eq_u32 s{SL}, 0\ns_cbranch_scc1 q_ok")
    poll(b, "q", C_XN - 32768, STW, 4, False)
    stamp(b, 1)
    xq = lambda p, rt: v(XQ + ((p % 6) * 2 + rt) * 4, 4)

    def xload(slot, rt, so, k):
        off = f" offset:{1024*k}" if k else ""
        return f"buffer_load_dwordx4 {xq(slot, rt)}, v1, s[{16+4*rt}:{19+4*rt}], {so} offen{off} sc1 ;#x{slot%6}"

    b("s_mov_b32 s36, 4096")
    for p in range(5):
        for rt in range(2):
            b(xload(p, rt, "0" if p < 4 else "s36", p % 4))
    acc = lambda f, rt: ACC + (f * 2 + rt) * 4
    ring = lambda ks, f: a((ks % 2) * 28 + f * 4, 4)
    reads = lambda p: [f"ds_read_b128 {ring(p, f)}, v5 offset:{(p*7+f)*1024}" for f in range(7)]
    b(f"""
    v_mov_b32 v5, v1
    s_mov_b32 s36, 5120
    s_mov_b32 s37, 9216
    s_waitcnt vmcnt(10)
    s_barrier
    """)
    b("\n".join(reads(0)))
    stamp(b, 2)
    b(".p2align 3\nq_loop:")
    for p in range(6):
        mains = []
        for f in range(8):
            for rt in range(2):
                w, x, d = ring(p, min(f, 6)), xq(p, rt), v(acc(f, rt), 4)
                mains.append(mf16(d, x, w, d) if f in (4, 5, 7) else mf16(d, w, x, d))
        pinned = [(1 + i, t) for i, t in enumerate(reads(p + 1))]
        pinned += [(0 + 8 * rt, xload(p + 5, rt, "s36" if p < 4 else "s37", p % 4)) for rt in range(2)]
        if p == 5:
            pinned += [(10, "v_add_u32 v5, 43008, v5"), (11, "s_add_u32 s36, s36, 6144"), (12, "s_add_u32 s37, s37, 6144"),
                       (13, f"s_cmp_lt_u32 s36, {5120 + 3 * 6144}")]
        b(f"s_waitcnt vmcnt(@x{p}) lgkmcnt(0)")
        b(sched(mains, pinned, [])[0])
    b("s_cbranch_scc1 q_loop")
    stamp(b, 3)
    b(f"""
    v_and_b32 v12, 15, v0
    v_bfe_u32 v4, v0, 4, 2
    v_lshrrev_b32 v13, 1, v4
    v_and_b32 v14, 1, v4
    v_mul_u32_u24 v6, 4608, v13
    v_lshl_add_u32 v6, v14, 9, v6
    v_lshl_add_u32 v6, v12, 4, v6
    v_mul_u32_u24 v7, 9216, v14
    v_lshl_add_u32 v7, v12, 2, v7
    s_mul_i32 s38, s{SW}, 1152
    s_add_u32 s38, s38, {QX}
    v_add_u32 v6, s38, v6
    v_add_u32 v7, s38, v7
    v_mul_u32_u24 v8, {KVH}, v13
    v_lshl_add_u32 v8, v14, 9, v8
    v_lshrrev_b32 v13, 2, v12
    v_and_b32 v15, 3, v12
    v_lshl_add_u32 v15, v13, 3, v15
    v_lshl_add_u32 v8, v15, 4, v8
    v_lshlrev_b32 v11, 2, v15
    v_mov_b32 v15, {OOB}
    v_cmp_eq_u32 vcc, 1, v4
    v_cmp_eq_u32 s[48:49], 0, v4
    v_cmp_eq_u32 s[50:51], 2, v13
    v_cmp_eq_u32 s[52:53], 3, v13
    v_cndmask_b32 v11, v15, v11, vcc
    v_mul_u32_u24 v9, 288, v4
    v_and_b32 v14, 1, v12
    v_lshl_add_u32 v10, v14, 4, v9
    v_cndmask_b32 v10, v15, v10, s[50:51]
    v_mov_b32 v14, 1024
    v_lshl_add_u32 v9, v12, 4, v9
    v_cndmask_b32 v10, v10, v14, s[52:53]
    v_bfe_u32 v14, v12, 1, 1
    v_mul_u32_u24 v14, {KVH}, v14
    v_add_u32 v10, v10, v14
    v_mov_b32 v15, {fbits(math.log2(math.e) / math.sqrt(18))}
    v_mov_b32 v14, 0x3f803f80
    v_cndmask_b32 v5, 1.0, v15, s[48:49]
    s_mul_i32 s43, s{SJ}, {2*KVH}
    s_mul_i32 s44, s{STW}, {REC}
    s_add_u32 s43, s43, s44
    s_add_u32 s43, s43, s{SL}
    s_add_u32 s43, s43, {KV}
    s_add_u32 s44, s43, {KVH}
    """)
    T = TMP
    for rt in range(2):
        pack4(b, T, acc(2, rt), acc(3, rt))
        b(f"buffer_store_dwordx4 {v(T,4)}, v8, s[12:15], s43 offen offset:{64*rt} sc1")
        b(f"ds_write_b128 v6, {v(T,4)} offset:{9216+256*rt}")
        T += 4
    for hd in range(2):
        pack4(b, T, acc(4 + hd, 0), acc(4 + hd, 1))
        b(f"buffer_store_dwordx4 {v(T,4)}, v9, s[12:15], s{43+hd} offen offset:1024 sc1")
        T += 4
    pack4(b, T, acc(7, 0), acc(7, 1))
    for i in range(4):
        b(f"v_cndmask_b32 v{T+i}, v{T+i}, v14, s[52:53]")
    b(f"buffer_store_dwordx4 {v(T,4)}, v10, s[12:15], s43 offen offset:1280 sc1")
    T += 4
    for rt in range(2):
        for i in range(4):
            b(f"v_mul_f32 v{acc(6,rt)+i}, v5, v{acc(6,rt)+i}")
    pack4(b, T, acc(6, 0), acc(6, 1))
    for rt in range(2):
        for hd in range(2):
            b(f"buffer_store_dword v{T+2*rt+hd}, v11, s[12:15], s{43+hd} offen offset:{2176+16*rt} sc1")
    b("s_mov_b64 exec, 0xffffffff")
    for rt in range(2):
        for hd in range(2):
            b(f"ds_write_b32 v7, v{T+2*rt+hd} offset:{1024+4608*hd+64*rt}")
    b("s_mov_b64 exec, -1")
    T += 4
    for rt in range(2):
        for f in range(2):
            for i in range(4):
                b(f"v_mul_f32 v{acc(f,rt)+i}, v15, v{acc(f,rt)+i}")
        pack4(b, T, acc(0, rt), acc(1, rt))
        b(f"ds_write_b128 v6, {v(T,4)} offset:{256*rt}")
        T += 4
    stamp(b, 4)
    signal(b, "q", C_KV, SJ)
    stamp(b, 5)


def phase_a(b):
    QM, QT, KM, KT, VF, S, O, MX, IDX = 16, 32, 40, 56, 64, 96, 160, 224, 228
    AV, AT = 229, 231
    qm = lambda t: v(QM + 4 * t, 4)
    qt = lambda t: v(QT + 2 * t, 2)
    km = lambda k: v(KM + 4 * (k % 4), 4)
    kt = lambda k: v(KT + 2 * (k % 4), 2)
    vf = lambda k, g: v(VF + 8 * (k % 4) + 4 * g, 4)
    sb = lambda n: S + 16 * (n % 4)
    ob = lambda t: O + 16 * t
    m8 = lambda d, k, t: f"v_mfma_f32_32x32x8_bf16 {v(d,16)}, {kt(k)}, {qt(t)}, 0"
    m16 = lambda d, k, t: f"v_mfma_f32_32x32x16_bf16 {v(d,16)}, {km(k)}, {qm(t)}, {v(d,16)}"
    smf = lambda t, k, g, p: f"v_smfmac_f32_32x32x32_bf16 {v(ob(t),16)}, {vf(k,g)}, {v(p+8*g,8)}, v{IDX}"

    def rec_loads(k):
        tg = f" ;#r{k%4}"
        return [f"buffer_load_dwordx4 {km(k)}, v1, s[16:19], s46 offen sc1{tg} ;#k{k%4}",
                f"buffer_load_dword v{KT+2*(k%4)}, v{AT}, s[16:19], s46 offen offset:2176 sc1{tg} ;#k{k%4}",
                f"buffer_load_dwordx4 {vf(k,0)}, v{AV}, s[16:19], s46 offen sc1{tg}",
                f"buffer_load_dwordx4 {vf(k,1)}, v{AV+1}, s[16:19], s46 offen sc1{tg}"]

    b(f"""
    s_lshr_b32 s37, s{SW}, 1
    s_lshl_b32 s34, s{SJ}, 1
    s_add_u32 s34, s34, s37
    s_and_b32 s35, s{SW}, 1
    s_lshl_b32 s36, s35, 1
    s_mul_i32 s38, s37, 4608
    s_add_u32 s38, s38, {QX}
    s_mul_i32 s39, s36, 1152
    s_add_u32 s40, s38, s39
    s_sub_u32 s41, s38, s39
    v_and_b32 v6, 31, v0
    v_bfe_u32 v7, v0, 5, 1
    v_lshlrev_b32 v{AT}, 2, v6
    v_add_u32 v8, s40, v1
    v_add_u32 v9, s41, v1
    v_add_u32 v10, s40, v{AT}
    v_add_u32 v11, s41, v{AT}
    v_cmp_eq_u32 s[50:51], 0, v7
    """)
    for t in range(4):
        b(f"ds_read_b128 {qm(t)}, v{8 + t // 2} offset:{1152*t}")
        b(f"ds_read_b32 v{QT+2*t}, v{10 + t // 2} offset:{1152*t+1024}")
    b(f"ds_read_b128 {km(0)}, v8 offset:9216\nds_read_b32 v{KT}, v10 offset:{9216+1024}")
    b(f"""
    s_cmp_eq_u32 s{SW}, 3
    s_cbranch_scc1 a_nowo
    s_and_b32 s38, s{SJ}, 3
    s_mul_i32 s38, s38, 3
    s_add_u32 s38, s38, s{SW}
    s_mul_i32 s38, s38, {3*18432}
    s_add_u32 s38, s38, {WO}
    """)
    for n in range(54):
        off = f" offset:{1024*(n%4)}" if n % 4 else ""
        b(f"buffer_load_dwordx4 {a(4*n,4)}, v1, s[12:15], s38 offen{off}")
        if n % 4 == 3:
            b("s_add_u32 s38, s38, 4096")
    b(f"""
a_nowo:
    s_mul_i32 s38, s34, {KVH}
    s_mul_i32 s39, s35, {32*REC}
    s_add_u32 s38, s38, s39
    s_add_u32 s38, s38, s{SL}
    s_add_u32 s38, s38, {KV}
    """)
    window(b, 16, 38, 32 * REC)
    b(f"""
    v_mul_u32_u24 v8, 288, v7
    v_lshl_add_u32 v8, v6, 4, v8
    v_add_u32 v9, 1600, v8
    v_add_u32 v8, 1024, v8
    v_mov_b32 v10, {OOB}
    v_mov_b32 v11, 2304
    v_and_b32 v12, 27, v6
    v_cmp_eq_u32 vcc, 18, v12
    v_cmp_gt_u32 s[52:53], 18, v6
    v_mov_b32 v{IDX}, 0xdddddddd
    v_cndmask_b32 v10, v10, v11, vcc
    v_cndmask_b32 v{AV}, v10, v8, s[52:53]
    v_cndmask_b32 v{AV+1}, v10, v9, s[52:53]
    s_mov_b32 s49, 0x07060302
    s_mov_b32 s47, 1
    s_mov_b32 s48, 0
    """)
    for k in range(4):
        b(f"v_mov_b32 v{KT+2*k+1}, 0x3f803f80")
    for i in range(8):
        b(f"v_mov_b32 v{VF+24+i}, 0")
    b("s_waitcnt lgkmcnt(0)")
    for t in range(4):
        b(f"v_cndmask_b32 v{QT+2*t}, 0, v{QT+2*t}, s[50:51]")
    b("a_max:")
    for t in range(4):
        b(f"v_mov_b32 v{QT+2*t+1}, 0\nv_mov_b32 v{MX+t}, 0xff800000")
    b("s_mov_b32 s46, 0\ns_cmp_eq_u32 s48, 0\ns_cbranch_scc1 a_maxbody\na_maxloop:")
    b("\n".join(rec_loads(0)[:2]))
    b(f"s_add_u32 s46, s46, {REC}\ns_waitcnt vmcnt(0)\na_maxbody:")
    for t in range(4):
        b(m8(sb(t), 0, t))
        b(m16(sb(t), 0, t))
    b("s_nop 5")
    for t in range(4):
        for i in range(8):
            b(f"v_max3_f32 v{MX+t}, v{sb(t)+2*i}, v{sb(t)+2*i+1}, v{MX+t}")
    b("s_sub_u32 s47, s47, 1\ns_cmp_lg_u32 s47, 0\ns_cbranch_scc1 a_maxloop")
    x0 = sb(2)
    for t in range(4):
        b(f"""
        v_mov_b32 v{x0}, v{MX+t}
        s_nop 1
        v_permlane32_swap_b32 v{MX+t}, v{x0}
        s_nop 0
        v_max_f32 v{MX+t}, v{MX+t}, v{x0}
        v_sub_f32 v{x0}, 0, v{MX+t}
        v_and_b32 v{x0+1}, 0xffff0000, v{x0}
        v_sub_f32 v{x0+2}, v{x0}, v{x0+1}
        v_and_b32 v{x0+3}, 0xffff0000, v{x0+2}
        v_sub_f32 v{x0+2}, v{x0+2}, v{x0+3}
        v_perm_b32 v{x0+1}, v{x0+3}, v{x0+1}, s49
        v_lshrrev_b32 v{x0+2}, 16, v{x0+2}
        v_cndmask_b32 v{QT+2*t+1}, v{x0+2}, v{x0+1}, s[50:51]
        """)
    for i in range(64):
        b(f"v_mov_b32 v{O+i}, 0")
    for i in range(16):
        b(f"v_mov_b32 v{sb(3)+i}, 0")
    b("s_cmp_lg_u32 s48, 0\ns_cbranch_scc1 a_go")
    stamp(b, 6)
    poll(b, "a", C_KV, SJ, 16, True)
    stamp(b, 7)
    b("a_go:\ns_waitcnt vmcnt(40)\ns_mov_b32 s46, 0")
    for k in range(3):
        b("\n".join(rec_loads(k)))
        b(f"s_add_u32 s46, s46, {REC}")
    b("s_waitcnt vmcnt(@k0)")
    for t in range(2):
        b(m8(sb(t), 0, t))
        b(m16(sb(t), 0, t))
    b("s_mov_b32 s47, 8\ns_waitcnt vmcnt(@r0)\ns_nop 8")
    stamp(b, 8)
    b(".p2align 3\na_loop:")
    for n in range(16):
        k, t = divmod(n, 4)
        e = [f"v_exp_f32 v{sb(n)+i}, v{sb(n)+i}" for i in range(16)]
        qk, qtile = (n + 2) // 4, (n + 2) % 4
        pk, pt = (n - 1) // 4, (n - 1) % 4
        if t == 2:
            b(f"s_waitcnt vmcnt(@r{(k+1)%4})")
        b(m8(sb(n + 2), qk, qtile))
        b(rec_loads(k + 3)[t])
        b("\n".join(e[0:4]))
        b(m16(sb(n + 2), qk, qtile))
        if t == 3:
            b(f"s_add_u32 s46, s46, {REC}")
        b("\n".join(e[4:8]))
        b(smf(pt, pk, 0, sb(n - 1)))
        if n == 15:
            b("s_sub_u32 s47, s47, 1")
        b("\n".join(e[8:12]))
        b(smf(pt, pk, 1, sb(n - 1)))
        if n == 15:
            b("s_cmp_lg_u32 s47, 0")
        b("\n".join(e[12:16]))
    b("s_cbranch_scc1 a_loop")
    stamp(b, 9)
    b(smf(3, 3, 0, sb(3)))
    b(smf(3, 3, 1, sb(3)))
    b(f"""
    v_max3_f32 v8, v{ob(0)+10}, v{ob(1)+10}, 0
    v_mov_b32 v9, 0x53800000
    v_cmp_u_f32 s[52:53], v{ob(0)+10}, v{ob(1)+10}
    s_mul_i32 s45, s{SW}, 6144
    s_xor_b32 s46, s{SW}, 1
    s_mul_i32 s46, s46, 6144
    v_add_u32 v10, s45, v1
    v_add_u32 v11, s46, v1
    s_waitcnt vmcnt(0)
    s_nop 2
    v_max3_f32 v8, v{ob(2)+10}, v{ob(3)+10}, v8
    v_cmp_u_f32 s[54:55], v{ob(2)+10}, v{ob(3)+10}
    v_cmp_nlt_f32 vcc, v8, v9
    s_or_b64 s[52:53], s[52:53], s[54:55]
    s_or_b64 vcc, vcc, s[52:53]
    s_cbranch_vccz a_merge
    s_cmp_lg_u32 s48, 0
    s_cbranch_scc1 a_merge
    s_mov_b32 s48, 1
    s_mov_b32 s47, 32
    s_branch a_max
a_merge:
    v_mov_b32 v{ob(2)+11}, v{MX+2}
    v_mov_b32 v{ob(3)+11}, v{MX+3}
    """)
    for t in range(2):
        for i in range(3):
            b(f"ds_write_b128 v10, {v(ob(2+t)+4*i,4)} offset:{3072*t+1024*i}")
    b(f"""
    v_lshrrev_b32 v5, 4, v6
    v_mul_u32_u24 v5, 18432, v5
    v_and_b32 v8, 15, v6
    v_lshl_add_u32 v5, v8, 4, v5
    v_mov_b32 v8, {OOB}
    v_lshl_add_u32 v6, v7, 8, v5
    v_cndmask_b32 v7, v8, v5, s[50:51]
    s_lshl_b32 s42, s{SI}, 2
    s_add_u32 s42, s42, s36
    s_mul_i32 s42, s42, 36864
    s_add_u32 s42, s42, s{SL}
    s_add_u32 s42, s42, {OB}
    s_lshl_b32 s43, s34, 9
    s_add_u32 s43, s43, s42
    s_lshr_b32 s44, s34, 2
    s_lshl_b32 s44, s44, 8
    s_add_u32 s42, s42, s44
    s_and_b32 s44, s34, 3
    s_lshl_b32 s44, s44, 2
    s_add_u32 s42, s42, s44
    s_add_u32 s42, s42, 16384
    s_waitcnt lgkmcnt(0)
    s_barrier
    """)
    for t in range(2):
        for i in range(3):
            b(f"ds_read_b128 {v(sb(t)+4*i,4)}, v11 offset:{3072*t+1024*i}")
    for t in range(2):
        P, o0, pk = sb(t), ob(t), QM + 8 * t
        b(f"""
        s_waitcnt lgkmcnt({3 - 3*t})
        v_max_f32 v8, v{MX+t}, v{P+11}
        v_sub_f32 v9, v{MX+t}, v8
        v_sub_f32 v8, v{P+11}, v8
        v_exp_f32 v9, v9
        v_exp_f32 v8, v8
        v_mul_f32 v10, v9, v{o0+10}
        v_fmac_f32 v10, v8, v{P+10}
        v_rcp_f32 v10, v10
        s_nop 0
        v_mul_f32 v9, v9, v10
        v_mul_f32 v8, v8, v10
        """)
        for i in range(10):
            b(f"v_mul_f32 v{o0+i}, v9, v{o0+i}")
        for i in range(10):
            b(f"v_fmac_f32 v{o0+i}, v8, v{P+i}")
        for i in range(5):
            b(f"v_cvt_pk_bf16_f32 v{pk+i}, v{o0+2*i}, v{o0+2*i+1}")
        b(f"""
        buffer_store_dwordx4 {v(pk,4)}, v6, s[12:15], s43 offen sc1
        buffer_store_dword v{pk+4}, v7, s[12:15], s42 offen sc1
        """)
        if t == 0:
            b("s_add_u32 s42, s42, 36864\ns_add_u32 s43, s43, 36864")
    stamp(b, 10)
    signal(b, "a", C_O, SI)
    stamp(b, 11)


def phase_o(b):
    ACC, RES, OF = 16, 40, 56
    unit_offset(b, 5, 6, 7)
    b(f"""
    s_and_b32 s34, s{SJ}, 3
    s_mul_i32 s34, s34, 3
    s_add_u32 s34, s34, s{SW}
    s_mul_i32 s34, s34, 1536
    s_mul_i32 s35, s{STJ}, 36864
    s_add_u32 s35, s35, s{SL}
    s_add_u32 s34, s34, s35
    s_add_u32 s36, s34, {XR}
    s_cmp_eq_u32 s{SW}, 3
    s_cselect_b32 s36, {OOB}, s36
    """)
    for n in range(3):
        b(f"buffer_load_dwordx4 {v(RES+4*n,4)}, v5, s[12:15], s36 offen offset:{512*n} sc1 ;#res")
    b(f"""
    s_mul_i32 s38, s{SJ}, {WFS}
    s_add_u32 s38, s38, {WF}
    s_mul_i32 s43, s{SW}, {27*1024}
    s_mov_b32 m0, s43
    """)
    window(b, 16, 38, WFS)
    dma_run(b, 27, 16, 43)
    b("s_waitcnt vmcnt(@res)")
    for n in range(3):
        r = RES + 4 * n
        b(f"v_permlane16_swap_b32 v{r}, v{r+2}\nv_permlane16_swap_b32 v{r+1}, v{r+3}")
    for n in range(3):
        for k in range(4):
            d = ACC + 8 * n + 2 * k
            b(f"v_lshlrev_b32 v{d}, 16, v{RES+4*n+k}\nv_and_b32 v{d+1}, 0xffff0000, v{RES+4*n+k}")
    b(f"""
    s_mul_i32 s42, s{SW}, 9216
    s_add_u32 s37, s35, s42
    s_add_u32 s37, s37, {OB}
    s_add_u32 m0, s42, {3*CH}
    v_add_u32 v6, {3*CH}, v1
    s_add_u32 s36, s34, {X1}
    """)
    stamp(b, 12)
    poll(b, "o", C_O, SI, 16, True)
    stamp(b, 13)
    dma_run(b, 9, 12, 37, " sc1")
    b(f"s_waitcnt vmcnt(0)\ns_barrier")
    stamp(b, 14)
    b(f"s_cmp_eq_u32 s{SW}, 3\ns_cbranch_scc1 o_done")
    of = lambda ks, rt: v(OF + (ks % 3) * 8 + rt * 4, 4)
    rd = lambda ks: [f"ds_read_b128 {of(ks,rt)}, v6 offset:{(rt*18+ks)*1024}" for rt in range(2)]
    for ks in range(2):
        b("\n".join(rd(ks)))
    for ks in range(18):
        mains = [mf16(v(ACC + 8 * n + 4 * rt, 4), a((n * 18 + ks) * 4, 4), of(ks, rt), v(ACC + 8 * n + 4 * rt, 4))
                 for n in range(3) for rt in range(2)]
        b(f"s_waitcnt lgkmcnt({2 if ks < 17 else 0})")
        b(sched(mains, list(enumerate(rd(ks + 2))) if ks + 2 < 18 else [], [])[0])
    b("s_nop 3")
    for n in range(3):
        pack4(b, RES + 4 * n, ACC + 8 * n, ACC + 8 * n + 4)
    for n in range(3):
        r = RES + 4 * n
        b(f"v_permlane16_swap_b32 v{r}, v{r+2}\nv_permlane16_swap_b32 v{r+1}, v{r+3}")
        b(f"buffer_store_dwordx4 {v(r,4)}, v5, s[12:15], s36 offen offset:{512*n} sc1")
    b("o_done:")
    stamp(b, 15)
    signal(b, "o", C_X1, STJ)
    stamp(b, 16)


def phase_f(b):
    SP = int(OPT.get("sp", 6))
    LA, LB, DV, C1, C2, VP, VFL = 5, 6, 7, 10, 12, 14, 15
    ACC1, TMP, STG, FL, VH, ACC2, ST, ONE = 16, 48, 64, 72, 80, 84, 84, 100
    RING, NR, PD, HR = 144, 12, 8, 192
    xb = lambda ks, rt: a((ks * 2 + rt) * 4, 4)
    ring = lambda i: a(RING + 4 * (i % NR), 4)
    hr = lambda c, m, rt: a(HR + ((c % 2) * 8 + m * 2 + rt) * 4, 4)
    b(f"""
    s_add_u32 m0, s42, {3*CH}
    s_add_u32 s43, s42, {3*CH}
    v_add_u32 v{DV}, s42, v1
    """)
    dma_run(b, 9, 16, 43)
    b(f"""
    s_mul_i32 s39, s{STW}, 36864
    s_add_u32 s39, s39, s{SL}
    s_add_u32 s39, s39, {X1}
    s_add_u32 s40, s39, 18432
    v_add_u32 v{DV+1}, 4096, v{DV}
    v_add_u32 v{DV+2}, 8192, v{DV}
    v_mov_b32 v{LA}, v1
    v_add_u32 v{LB}, {CH}, v1
    s_mul_i32 s46, s{STW}, {16*18432}
    s_add_u32 s46, s46, s{SL}
    s_add_u32 s46, s46, {HB}
    s_and_b32 s34, s{SJ}, 12
    s_mul_i32 s34, s34, 18432
    s_add_u32 s34, s34, s46
    v_add_u32 v{VH}, s34, v1
    s_mul_i32 s34, s{SJ}, 18432
    s_add_u32 s46, s46, s34
    v_add_u32 v{VH+1}, 18432, v{VH}
    v_add_u32 v{VH+2}, 36864, v{VH}
    v_add_u32 v{VH+3}, 55296, v{VH}
    s_lshl_b32 s41, s{STJ}, 7
    s_add_u32 s41, s41, s{SC}
    s_add_u32 s41, s41, {C_H}
    s_and_b32 s34, s{SJ}, 3
    s_lshl_b32 s34, s34, 2
    v_mov_b32 v{VFL}, s34
    v_mov_b32 v{VP}, {OOB}
    v_cmp_eq_u32 vcc, 0, v0
    s_mov_b32 s43, {4*CH}
    s_mov_b32 s45, {2*CH}
    v_cndmask_b32 v{VFL}, v{VP}, v{VFL}, vcc
    v_mov_b32 v{VP}, 0
    s_mov_b32 s44, s42
    s_mov_b32 s47, 8
    """)
    for i in range(4):
        b(f"v_mov_b32 v{ONE+i}, 0x3f803f80")
    rdf = lambda gi, i, base: f"ds_read_b128 {ring(gi)}, v{base} offset:{1024*i}"
    acc1 = lambda st, gu, rt: ACC1 + 16 * st + (gu * 2 + rt) * 4
    for i in range(PD):
        b(rdf(i, i, LA))
    stamp(b, 17)
    poll(b, "f", C_X1, STW, 4, False)
    stamp(b, 18)

    def xload(ks, rt):
        off = f" offset:{1024*(ks%4)}" if ks % 4 else ""
        t = f"buffer_load_dwordx4 {xb(ks,rt)}, v1, s[12:15], s{39+rt} offen{off} sc1 ;#x{ks}"
        if ks % 4 == 3:
            t += f"\ns_add_u32 s{39+rt}, s{39+rt}, 4096"
        return t

    XA = int(OPT.get("xa", 6))
    for ks in range(XA):
        for rt in range(2):
            b(xload(ks, rt))
    for ks in range(18):
        mains = []
        for gu in range(2):
            for rt in range(2):
                d = v(acc1(0, gu, rt), 4)
                mains.append(mf16(d, ring(2 * ks + gu), xb(ks, rt), "0" if ks == 0 else d))
        for rt in range(2):
            d = v(ST + 4 * rt, 4)
            mains.append(mf16(d, v(ONE, 4), xb(ks, rt), "0" if ks == 0 else d))
            d = v(ST + 8 + 4 * rt, 4)
            mains.append(mf16(d, xb(ks, rt), xb(ks, rt), "0" if ks == 0 else d))
        pinned = []
        for gu in range(2):
            j = 2 * ks + gu + PD
            pinned.append((1 + 2 * gu, rdf(j, j % 36, LA if j < 36 else LB)))
        if ks + XA < 18:
            pinned += [(4 * rt, xload(ks + XA, rt)) for rt in range(2)]
        b(f"s_waitcnt vmcnt(@x{ks}) lgkmcnt({PD-2})")
        b(sched(mains, pinned, [])[0])
    b(f"""
    v_and_b32 v{TMP}, 3, v0
    v_and_b32 v{TMP+1}, 15, v0
    v_cmp_eq_u32 s[50:51], 1, v{TMP}
    v_cmp_eq_u32 s[52:53], 2, v{TMP}
    v_cmp_eq_u32 s[54:55], 3, v{TMP}
    v_lshrrev_b32 v{TMP+2}, 2, v{TMP+1}
    v_lshl_add_u32 v{TMP+1}, v{TMP+2}, 4, v{TMP+1}
    v_lshlrev_b32 v{TMP+1}, 2, v{TMP+1}
    """)
    for rt in range(2):
        g = ST + 8 + 4 * rt
        b(f"""
        v_cndmask_b32 v{g}, v{g}, v{g+1}, s[50:51]
        v_cndmask_b32 v{g}, v{g}, v{g+2}, s[52:53]
        v_cndmask_b32 v{g}, v{g}, v{g+3}, s[54:55]
        ds_bpermute_b32 v{C2+rt}, v{TMP+1}, v{g}
        """)
    b("s_waitcnt lgkmcnt(0)")
    for rt in range(2):
        ln_stats(b, ST + 4 * rt, C2 + rt)
        b(f"v_rsq_f32 v{C1+rt}, v{C2+rt}\ns_nop 0\nv_mul_f32 v{C1+rt}, {fbits(-math.log2(math.e))}, v{C1+rt}")
    b("s_barrier")
    stamp(b, 19)

    def dma(par):
        out, prev = [], ""
        for i in range(9):
            if i % 4 == 0:
                out.append((f"s_add_u32 m0, s44, {4096*(i//4)}", max(1, SP - 1) if i else 0))
            ld = f"buffer_load_dwordx4 v{DV+i//4}, s[16:19], s43 offen" + (f" offset:{1024*(i%4)}" if i % 4 else "") + f" lds ;#d{par}"
            out.append((ld, 1 if i % 4 == 0 else SP))
        out.append((f"s_add_u32 s43, s43, {CH}", 0))
        return chain(out, earliest=1)

    def swiglu(st, half):
        ops, last = [], []
        for k in range(8):
            rt, i = divmod(k, 4)
            g, u = acc1(st, 0, rt) + i, acc1(st, 1, rt) + i
            t, p = TMP + k, TMP + 8 + k
            c = chain([f"v_mul_f32 v{t}, v{C1+rt}, v{g}", f"v_exp_f32 v{t}, v{t}",
                       f"v_fma_f32 v{t}, v{t}, v{C2+rt}, v{C2+rt}", f"v_rcp_f32 v{t}, v{t}"], earliest=3, dist=1)
            m = Op(f"v_mul_f32 v{p}, v{g}, v{u}", earliest=4)
            f = Op(f"v_mul_f32 v{p}, v{p}, v{t}", [(c[-1], 1), (m, 0)])
            ops += c + [m, f]
            last.append(f)
            if k % 2:
                cv = Op(f"v_cvt_pk_bf16_f32 v{STG+4*rt+2*half+i//2}, v{p-1}, v{p}", [(last[-2], 0), (f, 0)])
                ops.append(cv)
                if half and i == 3:
                    st_ = Op(f"buffer_store_dwordx4 {v(STG+4*rt,4)}, v1, s[12:15], s46 offen" + (" offset:1024" if rt else "") + " sc1",
                             [(cv, 0), (prevcv, 0)])
                    ops.append(st_)
                    if rt:
                        ops.append(Op("s_add_u32 s46, s46, 2048", [(st_, 0), (prevst, 0)]))
                    prevst = st_
                prevcv = cv
        return ops

    progress = lambda: chain([f"v_add_u32 v{VP}, 1, v{VP}", f"buffer_store_dword v{VP}, v{VFL}, s[12:15], s41 offen sc1"])
    fl = lambda par: FL + 4 * par
    flag_load = lambda par, g: [Op(f"buffer_load_dwordx4 {v(fl(par),4)}, v2, s[12:15], s41 offen sc1 ;#f{par}", earliest=g)]
    slow = []

    def check(par, tag):
        f = fl(par)
        slow.append(f"""
{tag}_spin:
        s_mov_b32 s61, 0x40000
{tag}_again:
        buffer_load_dwordx4 {v(f,4)}, v2, s[12:15], s41 offen sc1
        s_sub_u32 s61, s61, 1
        s_waitcnt vmcnt(0)
        v_min_u32 v{f}, v{f}, v{f+1}
        v_min3_u32 v{f}, v{f}, v{f+2}, v{f+3}
        v_cmp_gt_u32 vcc, s49, v{f}
        s_cbranch_scc1 {tag}_back
        s_cbranch_vccnz {tag}_again
        s_branch {tag}_back
        """)
        return chain([f"s_waitcnt vmcnt(@f{par})", f"v_min_u32 v{f}, v{f}, v{f+1}", f"v_min3_u32 v{f}, v{f}, v{f+2}, v{f+3}",
                      f"v_cmp_gt_u32 vcc, s49, v{f}", (f"s_cbranch_vccnz {tag}_spin\n{tag}_back:", 1)])

    def hload(c, m, rt, so):
        return f"buffer_load_dwordx4 {hr(c,m,rt)}, v{VH+m}, s[12:15], {so} offen" + (" offset:1024" if rt else "") + f" sc1 ;#h{c%2}{m}"

    def chunk(mains, par, extra, pins=(), tail=()):
        cur, nxt = (LA, LB) if par == 0 else (LB, LA)
        pinned = [(0, f"v_add_u32 v{nxt}, s45, v1")] + list(pins)
        for i in range(36):
            j = i + PD
            pinned.append((2 * i, rdf(j, j % 36, cur if j < 36 else nxt)))
            if i % 4 == 3:
                pinned.append((2 * i + 1, f"s_waitcnt lgkmcnt({PD-4})" if i < 35 else f"s_waitcnt vmcnt(@d{1-par}) lgkmcnt({PD-4})"))
        dm = dma(par)
        slot = chain([f"s_add_u32 s44, s44, {CH}", f"s_cmp_eq_u32 s45, {CH}\ns_cselect_b32 s44, s42, s44",
                      f"s_add_u32 s45, s45, {CH}", f"s_cmp_eq_u32 s45, {4*CH}\ns_cselect_b32 s45, 0, s45"] + list(tail), after=dm[-1])
        txt, over, lastgap = sched(mains, pinned, dm + extra + slot)
        b(txt)
        b("s_barrier")
        return over, lastgap

    def p1_mains(st):
        return [mf16(v(acc1(st, gu, rt), 4), ring(2 * ks + gu), xb(ks, rt), "0" if ks == 0 else v(acc1(st, gu, rt), 4))
                for ks in range(18) for gu in range(2) for rt in range(2)]

    acc2 = lambda tl, rt: ACC2 + (tl * 2 + rt) * 4

    def p2_mains(c, first=False):
        return [mf16(v(acc2(tl, rt), 4), ring(9 * m + tl), hr(c, m, rt), "0" if first and m == 0 else v(acc2(tl, rt), 4))
                for m in range(4) for tl in range(9) for rt in range(2)]

    def p2_stream(c, gate):
        ops = chain([(hload(c + 1, 3, 0, "s48"), 0), (hload(c + 1, 3, 1, "s48"), 8)], earliest=2)
        prev = ops[-1]
        for m in range(3):
            for rt in range(2):
                o = Op(hload(c + 2, m, rt, "s47"), [(prev, 1)] + ([(gate, 0)] if gate else []), earliest=18 * (m + 1) + 2 + 8 * rt)
                ops.append(o)
                prev = o
        ops += chain(["s_mov_b32 s48, s47", "s_add_u32 s47, s47, 2048",
                      f"s_cmp_ge_u32 s47, {9*2048}\ns_cselect_b32 s47, {OOB}, s47"], after=prev)
        return ops

    hwaits = lambda c: [(18 * m - 1, f"s_waitcnt vmcnt(@h{c%2}{m})") for m in range(1, 4)] + [(70, f"s_waitcnt vmcnt(@h{(c+1)%2}0)")]
    over = []
    b(f"s_waitcnt lgkmcnt({PD-4})\n.p2align 3\nf_p1:")
    over.append(chunk(p1_mains(1), 1, progress() + flag_load(1, 40) + swiglu(0, 0)))
    over.append(chunk(p1_mains(0), 0, swiglu(1, 1), tail=["s_sub_u32 s47, s47, 1"]))
    b("s_cmp_lg_u32 s47, 0\ns_cbranch_scc1 f_p1\ns_mov_b32 s49, 5\ns_mov_b32 s48, 2048")
    stamp(b, 20)
    ck = check(1, "f17")
    first = chain([(hload(c, m, rt, "0" if c == 18 else "s48"), 4) for c in (18, 19) for m in range(4) for rt in range(2)][:14], after=ck[-1])
    fld = flag_load(1, 40)
    fld[0].deps.append((ck[-1], 0))
    over.append(chunk(p1_mains(1), 1, progress() + ck + first + fld + swiglu(0, 0), pins=[(70, "s_waitcnt vmcnt(@h00)")],
                      tail=["s_mov_b32 s47, 4096"]))
    stamp(b, 21)
    over.append(chunk(p2_mains(18, True), 0, p2_stream(18, None) + flag_load(0, 40) + swiglu(1, 1), pins=hwaits(18),
                      tail=["s_mov_b32 s49, 6", "s_mov_b32 s50, 4"]))
    stamp(b, 22)
    b(".p2align 3\nf_p3:")
    for c in (19, 20):
        ck = check(c % 2, f"f{c}")
        fld = flag_load(c % 2, 40)
        fld[0].deps.append((ck[-1], 0))
        bump = chain(["s_add_u32 s49, s49, 1", "s_min_u32 s49, s49, 11"], after=ck[-1])
        over.append(chunk(p2_mains(c), c % 2, (progress() if c % 2 else []) + ck + bump + p2_stream(c, ck[-1]) + fld, pins=hwaits(c),
                          tail=[] if c % 2 else ["s_sub_u32 s50, s50, 1"]))
    b("s_cmp_lg_u32 s50, 0\ns_cbranch_scc1 f_p3")
    stamp(b, 23)
    unit_offset(b, 5, 6, 7)
    b(f"""
    s_lshr_b32 s34, s{SJ}, 2
    s_mul_i32 s34, s34, {SZX}
    s_mul_i32 s35, s{STW}, 36864
    s_add_u32 s34, s34, s35
    s_and_b32 s35, s{SJ}, 3
    s_mul_i32 s35, s35, 4608
    s_add_u32 s34, s34, s35
    s_add_u32 s34, s34, s{SL}
    s_add_u32 s34, s34, {PART}
    s_add_u32 s35, s34, 4096
    """)
    for tl in range(10):
        if tl < 9:
            pack4(b, ACC1 + 4 * tl, acc2(tl, 0), acc2(tl, 1))
        else:
            b("s_nop 1")
        if tl:
            r = ACC1 + 4 * (tl - 1)
            b(f"v_permlane16_swap_b32 v{r}, v{r+2}\nv_permlane16_swap_b32 v{r+1}, v{r+3}")
            b(f"buffer_store_dwordx4 {v(r,4)}, v5, s[12:15], s{34+(tl-1)//8} offen offset:{512*((tl-1)%8)} sc1")
    stamp(b, 24)
    signal(b, "f", C_P, SI)
    stamp(b, 25)
    print("ffn (overflow, last gap):", over, file=sys.stderr)
    return "\n".join(slow)


def phase_r(b, name):
    D0, A0, PK = 16, 80, 104
    b(f"""
    v_and_b32 v5, 7, v0
    v_lshrrev_b32 v6, 3, v0
    v_lshlrev_b32 v7, 8, v6
    v_lshl_add_u32 v7, v5, 4, v7
    v_mul_u32_u24 v10, 1152, v5
    v_lshl_add_u32 v10, v6, 4, v10
    v_mov_b32 v12, {OOB}
    v_cmp_gt_u32 vcc, 64, v0
    v_add_u32 v8, 8192, v7
    v_add_u32 v9, 16384, v7
    v_cndmask_b32 v11, v12, v10, vcc
    v_cndmask_b32 v9, v12, v9, vcc
    s_lshl_b32 s34, s{SI}, 4
    s_add_u32 s34, s34, s{SJ}
    s_lshr_b32 s35, s34, 1
    s_mul_i32 s35, s35, 18432
    s_and_b32 s36, s34, 1
    s_lshl_b32 s36, s36, 7
    s_add_u32 s35, s35, s36
    s_add_u32 s35, s35, s{SL}
    s_add_u32 s36, s35, {X1}
    """)
    d = lambda src, rnd: D0 + (src * 3 + rnd) * 4
    for rnd in range(3):
        b(f"buffer_load_dwordx4 {v(d(0,rnd),4)}, v{7+rnd}, s[12:15], s36 offen sc1 ;#p0")
    poll(b, "r", C_P, SI, 16, True)
    stamp(b, 26)
    for src in range(1, 5):
        b(f"s_add_u32 s36, s36, {SZX}")
        for rnd in range(3):
            b(f"buffer_load_dwordx4 {v(d(src,rnd),4)}, v{7+rnd}, s[12:15], s36 offen sc1 ;#p{src}")
    for src in range(5):
        b(f"s_waitcnt vmcnt(@p{src})")
        for rnd in range(3):
            for j in range(4):
                for h in range(2):
                    r = A0 + 8 * rnd + 2 * j + h
                    b(f"v_dot2_f32_bf16 v{r}, v{d(src,rnd)+j}, s{30+h}, {'0' if src == 0 else 'v%d' % r}")
    stamp(b, 27)
    for j in range(12):
        b(f"v_cvt_pk_bf16_f32 v{PK+j}, v{A0+2*j}, v{A0+2*j+1}")
    b(f"s_cmp_lg_u32 s{SL}, 0\ns_cbranch_scc1 r_last\ns_add_u32 s36, s35, {LST+XR}")
    for rnd in range(3):
        b(f"buffer_store_dwordx4 {v(PK+4*rnd,4)}, v{7+rnd}, s[12:15], s36 offen sc1")
    b(f"v_add_f32 v12, v{A0}, v{A0+1}\nv_mul_f32 v13, v{A0}, v{A0}")
    for j in range(1, 24):
        if j > 1:
            b(f"v_add_f32 v12, v12, v{A0+j}")
        b(f"v_fmac_f32 v13, v{A0+j}, v{A0+j}")
    b(f"""
    v_bfe_u32 v14, v0, 5, 1
    v_lshlrev_b32 v5, 3, v5
    v_add_u32 v5, {4*CH}, v5
    v_lshl_add_u32 v14, v14, 2, v5
    v_and_b32 v15, 0xc0, v0
    v_add_u32 v14, v14, v15
    """)
    row_reduce(b, 12, 13)
    b("ds_write_b32 v14, v12\ns_waitcnt lgkmcnt(0)\ns_barrier")
    for w in range(4):
        b(f"ds_read_b64 {v(D0+2*w,2)}, v5 offset:{64*w}")
    b("s_waitcnt lgkmcnt(0)")
    for w in range(1, 4):
        b(f"v_add_f32 v{D0}, v{D0}, v{D0+2*w}\nv_add_f32 v{D0+1}, v{D0+1}, v{D0+2*w+1}")
    ln_stats(b, D0, D0 + 1)
    b(f"v_rsq_f32 v{D0+1}, v{D0+1}\ns_add_u32 s36, s35, {LST+XN}")
    ln_tail(b, A0, 24, D0, D0 + 1, PK + 12)
    for rnd in range(3):
        b(f"buffer_store_dwordx4 {v(PK+12+4*rnd,4)}, v{7+rnd}, s[12:15], s36 offen sc1")
    stamp(b, 28)
    signal(b, "r", C_XN, STJ)
    if DIAG:
        stamp(b, 29)
        stamp_real(b, 31)
        stamp_flush(b, "2")
        stamp_real(b, 30)
        stamp(b, 0)
    b(f"""
    s_mov_b32 s{SL}, {LST}
    s_add_u32 s{SC}, s{SC}, 32768
    s_branch layer
r_last:
    s_mul_i32 s36, s34, 9216
    """)
    srd(b, 16, 6, 0, SZX)
    b(f"""
    buffer_store_dwordx4 {v(PK,4)}, v10, s[16:19], s36 offen
    buffer_store_dwordx4 {v(PK+4,4)}, v10, s[16:19], s36 offen offset:512
    buffer_store_dwordx4 {v(PK+8,4)}, v11, s[16:19], s36 offen offset:1024
    """)


def gen_main(name):
    b = B()
    head(b, name, 256, [(4, "ws"), (6, "out")])
    b(f"""
    v_lshrrev_b32 v5, 6, v0
    v_and_b32 v1, 63, v0
    v_lshlrev_b32 v1, 4, v1
    v_readfirstlane_b32 s{SW}, v5
    v_mov_b32 v2, 0
    v_mov_b32 v3, 1
    s_and_b32 s34, s2, 3
    s_lshl_b32 s34, s34, 2
    s_bfe_u32 s35, s2, 0x20003
    s_add_u32 s{SJ}, s34, s35
    s_bfe_u32 s34, s2, 0x10002
    s_lshl_b32 s34, s34, 3
    s_lshr_b32 s35, s2, 5
    s_add_u32 s{SI}, s34, s35
    s_lshl_b32 s34, s{SI}, 2
    s_add_u32 s{STW}, s34, s{SW}
    s_lshr_b32 s35, s{SJ}, 2
    s_add_u32 s{STJ}, s34, s35
    s_mov_b32 s{SL}, 0
    s_mov_b32 s{SC}, {CNT}
    s_mov_b32 s30, 0x3f80
    s_mov_b32 s31, 0x3f800000
    s_waitcnt lgkmcnt(0)
    """)
    srd(b, 12, 4, 0, WS_END)
    b("layer:")
    phase_q(b)
    phase_a(b)
    phase_o(b)
    slow = phase_f(b)
    phase_r(b, name)
    finish(b, name, "3")
    b(slow)
    return dict(name=name, text=resolve_waits(b.text()), grid=256, block=256, lds=163840)


def build_all():
    import gen
    gen.OPT.clear()
    ks = [gen_first("first_kernel"), gen_prep("prep_kernel"), gen_main("main_kernel")]
    return gen.assemble(ks, [k["name"] for k in ks])


if __name__ == "__main__":
    for x in [x for x in sys.argv if "=" in x]:
        k, val = x.split("=")
        OPT[k] = val.replace("_", " ")
        sys.argv.remove(x)
    if "--diag" in sys.argv:
        DIAG = True
        sys.argv.remove("--diag")
    open(sys.argv[1], "w").write(build_all())
```

```python
import math, re, struct, sys
from asmlib import B, Prog, v, a, s, weave, Op, chain, sched, resolve_waits
from gen import fbits, sdiv, srd, mf16, transpose8, ARG, HEADER

SZX = 2048 * 576 * 2
REC = 2432
KVJ = 128 * REC
X2, OB, X1, PART, HB, KV = 0, SZX, 2 * SZX, 3 * SZX, 7 * SZX, 15 * SZX
LST = KV + 16 * KVJ
WQ = 2 * LST
WQH = 126 * 1024
WO = WQ + 16 * WQH
WF = WO + 36 * 18 * 1024
CH = 36864
WFS = 27 * CH
CNT = WF + 16 * WFS
WS_END = CNT + 131072
CL = 49152
C_KV, C_O, C_X1, C_X2, C_H, C_P = 0, 16 * 128, 64 * 128, 128 * 128, 192 * 128, 256 * 128
RES = 232
OOB = 0x40000000
QX = 131072
STAMPS = 200 << 20
OPT = {}
DIAG = False
SI, SJ, SL, SC, STW, STJ, SW = 24, 25, 26, 27, 28, 29, 33


def stamp(b, i):
    if DIAG:
        b(f"s_memtime s[62:63]\ns_waitcnt lgkmcnt(0)\ns_mov_b32 s{64+i}, s62")


def stamp_real(b, i):
    if DIAG:
        b(f"s_memrealtime s[62:63]\ns_waitcnt lgkmcnt(0)\ns_mov_b32 s{64+i}, s62")


def stamp_flush(b, slot):
    if not DIAG:
        return
    b(f"""
    s_lshl_b32 s62, {slot}, 8
    s_add_u32 s62, s62, s2
    s_lshl_b32 s62, s62, 4
    s_add_u32 s62, s62, s{SW}
    s_lshl_b32 s62, s62, 7
    s_add_u32 s96, s4, {STAMPS}
    s_addc_u32 s97, s5, 0
    s_mov_b32 s98, {32 << 20}
    s_mov_b32 s99, 0x20000
    v_mov_b32 v8, 0
    """)
    for q in range(8):
        for j in range(4):
            b(f"v_mov_b32 v{4+j}, s{64+4*q+j}")
        b(f"buffer_store_dwordx4 v[4:7], v8, s[96:99], s62 offen offset:{16*q}\ns_nop 1")


def head(b, name, nwg, loads):
    b(f"s_cmp_ge_u32 s2, {nwg}\ns_cbranch_scc1 {name}_end")
    if DIAG:
        for i in range(32):
            b(f"s_mov_b32 s{64+i}, 0")
        stamp_real(b, 30)
        stamp(b, 0)
    for reg, arg in loads:
        b(f"s_load_dwordx2 s[{reg}:{reg+1}], s[0:1], {ARG[arg]}")


def finish(b, name, slot):
    if DIAG:
        b("s_waitcnt vmcnt(0)")
        stamp(b, 29)
        stamp_real(b, 31)
        stamp_flush(b, slot)
    b(f"{name}_end:\ns_endpgm")


def window(b, d, off, size):
    b(f"s_add_u32 s{d}, s4, s{off}\ns_addc_u32 s{d+1}, s5, 0\ns_mov_b32 s{d+2}, {size}\ns_mov_b32 s{d+3}, 0x20000")


def ln_tail(b, A0, n, mean, rstd, dst):
    for j in range(n):
        b(f"v_sub_f32 v{A0+j}, v{A0+j}, v{mean}")
    for j in range(n):
        b(f"v_mul_f32 v{A0+j}, v{A0+j}, v{rstd}")
    for j in range(n // 2):
        b(f"v_cvt_pk_bf16_f32 v{dst+j}, v{A0+2*j}, v{A0+2*j+1}")


def ln_stats(b, sm, sq):
    b(f"""
    v_mul_f32 v{sm}, {fbits(1/576)}, v{sm}
    v_mul_f32 v{sq}, {fbits(1/576)}, v{sq}
    v_fma_f32 v{sq}, -v{sm}, v{sm}, v{sq}
    v_max_f32 v{sq}, 0, v{sq}
    v_add_f32 v{sq}, {fbits(1e-5)}, v{sq}
    """)


def row_reduce(b, sm, sq):
    b(f"""
    s_nop 1
    v_permlane32_swap_b32 v{sm}, v{sq}
    s_nop 0
    v_add_f32 v{sm}, v{sm}, v{sq}
    v_mov_b32 v{sq}, v{sm}
    s_nop 1
    v_permlane16_swap_b32 v{sm}, v{sq}
    s_nop 0
    v_add_f32 v{sm}, v{sm}, v{sq}
    s_nop 1
    v_add_f32 v{sm}, v{sm}, v{sm} row_ror:8 row_mask:0xf bank_mask:0xf
    """)


def gen_prep(name):
    b = B()
    SF = OPT.get("pst", " sc1")
    head(b, name, 256, [(4, "ws"), (8, "x")])
    SIDE, TAB = 73728, 73728 + 9216
    FR, TF, SM, TM, MN = 16, 48, 56, 76, 92
    b(f"""
    v_lshrrev_b32 v5, 6, v0
    v_and_b32 v1, 63, v0
    s_mov_b32 s46, 64
    v_readfirstlane_b32 s33, v5
    s_mov_b32 s47, 32
    s_mov_b32 s48, 32
    s_mov_b32 s49, 8
    s_mov_b32 s56, 0
    s_mov_b32 s57, 0
    s_lshl_b32 s34, s33, 1
    s_add_u32 s35, s34, 1
    s_cmp_ge_u32 s2, 144
    s_cbranch_scc1 {name}_b
    s_and_b32 s36, s2, 1
    s_lshl_b32 s37, s36, 3
    s_add_u32 s10, s0, s37
    s_addc_u32 s11, s1, 0
    s_load_dwordx2 s[6:7], s[10:11], {ARG['w1']}
    s_lshr_b32 s37, s2, 1
    s_lshl_b32 s38, s37, 7
    s_mov_b32 s39, 9216
    s_mov_b32 s22, {576*4608*2}
    s_mov_b32 s56, 1
    s_lshl_b32 s54, s34, 11
    s_lshl_b32 s55, s35, 11
    s_lshl_b32 s36, s36, 10
    s_add_u32 s36, s36, {WF}
    """)
    for t in range(4):
        b(f"s_lshl_b32 s58, s37, 2\ns_add_u32 s58, s58, {t}")
        sdiv(b, 59, 58, 18, 288)
        b(f"s_mul_i32 s59, s59, {WFS-18*CH}\ns_mul_i32 s58, s58, {CH}\ns_add_u32 s58, s58, s59\ns_add_u32 s{50+t}, s58, s36")
    b(f"""
    s_branch {name}_nat
{name}_b:
    s_cmp_ge_u32 s2, 216
    s_cbranch_scc1 {name}_c
    s_load_dwordx2 s[6:7], s[0:1], {ARG['w2']}
    s_sub_u32 s36, s2, 144
    """)
    sdiv(b, 37, 36, 9, 72)
    b(f"""
    s_mul_i32 s58, s37, 9
    s_sub_u32 s36, s36, s58
    s_mul_i32 s38, s37, {576*1152}
    s_lshl_b32 s58, s36, 7
    s_add_u32 s38, s38, s58
    s_mul_i32 s58, s33, {64*1152}
    s_add_u32 s38, s38, s58
    s_mov_b32 s22, {4608*576*2}
    s_mov_b32 s40, {32*1152}
    s_mov_b32 s41, {8*1152}
    s_mov_b32 s42, {4*1152}
    s_mov_b32 s43, {16*1152}
    s_mov_b32 s44, {2*1152}
    s_mov_b32 s45, 1152
    """)
    for t in range(4):
        b(f"s_lshl_b32 s58, s36, 2\ns_add_u32 s58, s58, {t}")
        sdiv(b, 59, 58, 9, 36)
        b(f"s_mul_i32 s59, s59, {WFS-9216}\ns_lshl_b32 s58, s58, 10\ns_add_u32 s{50+t}, s58, s59")
    for k in range(2):
        b(f"""
        s_lshl_b32 s58, s37, 1
        s_cmp_ge_u32 s{34+k}, 9
        s_addc_u32 s58, s58, 0
        s_and_b32 s59, s58, 12
        s_mul_i32 s59, s59, {WFS}
        s_and_b32 s60, s58, 3
        s_mul_i32 s60, s60, 9216
        s_add_u32 s59, s59, s60
        s_and_b32 s58, s58, 1
        s_mul_i32 s58, s58, 9
        s_sub_u32 s58, s{34+k}, s58
        s_mul_i32 s58, s58, {CH}
        s_add_u32 s58, s58, s59
        s_add_u32 s{54+k}, s58, {WF+18*CH}
        """)
    b(f"""
    s_branch {name}_go
{name}_c:
    s_cmp_ge_u32 s2, 225
    s_cbranch_scc1 {name}_d
    s_load_dwordx2 s[6:7], s[0:1], {ARG['wo']}
    s_sub_u32 s36, s2, 216
    s_lshl_b32 s38, s36, 7
    s_mov_b32 s22, {576*576*2}
    s_mul_i32 s50, s36, {4*18432}
    s_add_u32 s50, s50, {WO}
    s_add_u32 s51, s50, 18432
    s_add_u32 s52, s50, {2*18432}
    s_add_u32 s53, s50, {3*18432}
    s_lshl_b32 s54, s34, 10
    s_lshl_b32 s55, s35, 10
    s_mul_i32 s58, s33, {72*1152}
    s_mov_b32 s40, {36*1152}
    s_mov_b32 s41, {18*1152}
    s_mov_b32 s42, {4*1152}
    s_mov_b32 s43, {8*1152}
    s_mov_b32 s44, {2*1152}
    s_mov_b32 s45, 1152
    s_cmp_lg_u32 s33, 8
    s_cbranch_scc1 {name}_c2
    s_mov_b32 s58, {16*1152}
    s_mov_b32 s40, {288*1152}
    s_mov_b32 s41, {144*1152}
    s_mov_b32 s42, {72*1152}
    s_mov_b32 s43, {36*1152}
    s_mov_b32 s44, {18*1152}
{name}_c2:
    s_add_u32 s38, s38, s58
    s_branch {name}_go
{name}_d:
    s_load_dwordx2 s[6:7], s[0:1], {ARG['wqkv']}
    s_mov_b32 s39, 3456
    s_mov_b32 s22, {576*1728*2}
    s_mov_b32 s56, 1
    s_mov_b32 s47, 36
    s_mul_i32 s54, s34, 7168
    s_mul_i32 s55, s35, 7168
    s_cmp_ge_u32 s2, 241
    s_cbranch_scc1 {name}_v
    s_sub_u32 s36, s2, 225
    s_mul_i32 s38, s36, 72
    s_mov_b32 s46, 1152
    s_mov_b32 s48, 8
    s_mov_b32 s49, 16
    s_mov_b32 s57, 1
    s_mul_i32 s50, s36, {WQH}
    s_add_u32 s50, s50, {WQ}
    s_add_u32 s51, s50, 1024
    s_add_u32 s52, s50, 2048
    s_add_u32 s53, s50, 3072
    s_branch {name}_nat
{name}_v:
    s_sub_u32 s36, s2, 241
    s_mul_i32 s38, s36, 144
    s_add_u32 s38, s38, 2304
    s_mov_b32 s46, 72
    s_mov_b32 s57, 2
    s_mul_i32 s50, s36, {2*WQH}
    s_add_u32 s50, s50, {WQ+4096}
    s_add_u32 s51, s50, 1024
    s_add_u32 s52, s50, {WQH}
    s_add_u32 s53, s50, {WQH+1024}
{name}_nat:
    s_lshl_b32 s58, s39, 6
    s_mul_i32 s58, s58, s33
    s_add_u32 s38, s38, s58
    s_lshl_b32 s40, s39, 5
    s_lshl_b32 s41, s39, 4
    s_lshl_b32 s42, s39, 3
    s_lshl_b32 s43, s39, 2
    s_lshl_b32 s44, s39, 1
    s_mov_b32 s45, s39
{name}_go:
    v_bfe_u32 v6, v0, 5, 1
    v_mul_lo_u32 v10, v6, s43
    v_bfe_u32 v6, v0, 4, 1
    v_mul_lo_u32 v7, v6, s44
    v_bfe_u32 v6, v0, 3, 1
    v_mul_lo_u32 v8, v6, s45
    v_add3_u32 v10, v10, v7, v8
    v_bfe_u32 v6, v0, 2, 1
    v_mul_lo_u32 v7, v6, s46
    v_bfe_u32 v6, v0, 1, 1
    v_mul_lo_u32 v8, v6, s47
    v_add3_u32 v10, v10, v7, v8
    v_and_b32 v6, 1, v0
    v_lshl_add_u32 v10, v6, 4, v10
    v_lshrrev_b32 v2, 3, v0
    v_and_b32 v3, 7, v0
    v_mul_u32_u24 v4, 1152, v3
    v_lshl_add_u32 v4, v2, 4, v4
    v_lshlrev_b32 v2, 8, v2
    v_lshl_add_u32 v2, v3, 4, v2
    s_mul_i32 s11, s2, 9216
    s_lshl_b32 m0, s33, 13
    s_waitcnt lgkmcnt(0)
    s_mov_b32 s20, s6
    s_mov_b32 s21, s7
    s_mov_b32 s23, 0x20000
    """)
    srd(b, 16, 8, 0, SZX)
    b("buffer_load_dwordx4 v[12:15], v4, s[16:19], s11 offen ;#x")
    b(f"s_cmp_ge_u32 s2, 249\ns_cbranch_scc1 {name}_nodma")
    if OPT.get("lite"):
        b(f"s_cmp_lt_u32 s2, 216\ns_cbranch_scc1 {name}_nodma")
    for p in range(8):
        terms = [r for bit, r in ((4, 40), (2, 41), (1, 42)) if p & bit]
        b("s_mov_b32 s58, s38")
        for r in terms:
            b(f"s_add_u32 s58, s58, s{r}")
        b(f"buffer_load_dwordx4 v10, s[20:23], s58 offen lds ;#w\ns_add_u32 m0, m0, 1024")
    b(f"""
    s_cmp_eq_u32 s57, 0
    s_cbranch_scc1 {name}_nodma
    v_lshrrev_b32 v6, 2, v1
    v_mul_u32_u24 v11, 3456, v6
    v_bfe_u32 v6, v0, 1, 1
    v_mul_lo_u32 v7, v6, s46
    v_and_b32 v6, 1, v0
    v_mul_u32_u24 v6, 36, v6
    v_add3_u32 v11, v11, v7, v6
    s_lshl_b32 s58, s33, 10
    s_add_u32 m0, s58, {SIDE}
    s_add_u32 s58, s38, 32
    """)
    for p in range(4):
        b(f"buffer_load_dword v11, s[20:23], s58 offen lds\ns_add_u32 m0, m0, 256\ns_add_u32 s58, s58, {16*3456}")
    b(f"{name}_nodma:")
    stamp(b, 1)
    srd(b, 12, 4, 0, WS_END)
    b(f"""
    s_lshr_b32 s10, s2, 1
    s_mul_i32 s10, s10, 18432
    s_and_b32 s11, s2, 1
    s_lshl_b32 s11, s11, 7
    s_add_u32 s10, s10, s11
    s_add_u32 s10, s10, {LST+X2}
    v_lshlrev_b32 v6, 2, v0
    v_mov_b32 v7, {OOB}
    v_cmp_gt_u32 vcc, 128, v0
    v_mov_b32 v8, 0
    s_lshl_b32 s11, s2, 9
    v_cndmask_b32 v6, v7, v6, vcc
    s_add_u32 s11, s11, {CNT}
    buffer_store_dword v8, v6, s[12:15], s11 offen
    v_bfe_u32 v6, v0, 4, 2
    v_bfe_u32 v7, v0, 2, 2
    v_lshl_add_u32 v6, v6, 3, v7
    v_and_b32 v7, 3, v0
    v_mul_lo_u32 v8, v7, s49
    v_lshl_add_u32 v8, v6, 7, v8
    s_lshl_b32 s58, s33, 13
    v_add_u32 v8, s58, v8
    v_add_u32 v9, s48, v8
    v_and_b32 v7, 1, v0
    v_lshlrev_b32 v7, 3, v7
    v_lshl_add_u32 v11, v6, 4, v7
    s_lshl_b32 s58, s33, 10
    s_add_u32 s58, s58, {SIDE}
    v_add_u32 v11, s58, v11
    v_lshlrev_b32 v1, 4, v1
    s_mov_b32 s30, 0x3f80
    s_mov_b32 s31, 0x3f800000
    s_waitcnt vmcnt(@x)
    buffer_store_dwordx4 v[12:15], v2, s[12:15], s10 offen{SF}
    s_cmp_ge_u32 s2, 249
    s_cbranch_scc1 {name}_pend
    s_waitcnt vmcnt(2)
    """)
    if OPT.get("lite"):
        b(f"s_cmp_lt_u32 s2, 216\ns_cbranch_scc1 {name}_pend")
    stamp(b, 2)
    fr = lambda t, k: (FR + (t * 2 + k) * 4) if t < 4 else TF + 4 * k
    for t in range(4):
        for k in range(2):
            for h in range(2):
                b(f"ds_read_b64_tr_b16 {v(fr(t,k)+2*h,2)}, v{8+t%2} offset:{k*4096+h*512+(t//2)*64}")
        if t == 2:
            b("s_waitcnt lgkmcnt(4)")
    for k in range(2):
        for h in range(2):
            b(f"ds_read_b64_tr_b16 {v(fr(4,k)+2*h,2)}, v11 offset:{k*512+h*64}")
    for i in range(4):
        b(f"v_mov_b32 v{12+i}, 0x3f803f80")
    b(f"s_waitcnt lgkmcnt(0)\ns_cmp_eq_u32 s56, 0\ns_cbranch_scc1 {name}_store")
    for k in range(2):
        for t in range(5):
            b(mf16(v(SM + 4 * t, 4), "v[12:15]", v(fr(t, k), 4), "0" if k == 0 else v(SM + 4 * t, 4)))
    b(f"""
    v_and_b32 v6, 15, v0
    v_lshlrev_b32 v6, 5, v6
    v_add_u32 v6, {TAB}, v6
    s_lshl_b32 s58, s33, 9
    v_add_u32 v7, s58, v6
    s_nop 3
    """)
    for t in range(5):
        b(f"ds_write_b32 v7, v{SM+4*t} offset:{4*t}")
    b("s_waitcnt lgkmcnt(0)\ns_barrier")
    R0 = 100
    for w in range(9):
        b(f"ds_read_b128 {v(R0+4*w,4)}, v6 offset:{512*w}")
    b("s_waitcnt lgkmcnt(0)")
    for w in range(9):
        b(f"ds_read_b32 v{TM+w}, v6 offset:{512*w+16}")
    for w in range(1, 9):
        for t in range(4):
            b(f"v_add_f32 v{R0+t}, v{R0+t}, v{R0+4*w+t}")
    b("s_waitcnt lgkmcnt(0)")
    for w in range(1, 9):
        b(f"v_add_f32 v{TM}, v{TM}, v{TM+w}")
    for t in range(5):
        b(f"v_mul_f32 v{MN+t}, {fbits(-1/576)}, v{R0+t if t < 4 else TM}")
    for t in range(5):
        for k in range(2):
            for j in range(4):
                for h in range(2):
                    b(f"v_dot2_f32_bf16 v{TM+8*k+2*j+h}, v{fr(t,k)+j}, s{30+h}, v{MN+t}")
        for k in range(2):
            for j in range(4):
                b(f"v_cvt_pk_bf16_f32 v{fr(t,k)+j}, v{TM+8*k+2*j}, v{TM+8*k+2*j+1}")
    b(f"{name}_store:")
    stamp(b, 3)
    for t in range(4):
        for k in range(2):
            b(f"s_add_u32 s58, s{50+t}, s{54+k}\nbuffer_store_dwordx4 {v(fr(t,k),4)}, v1, s[12:15], s58 offen{SF}")
    b(f"""
    s_cmp_eq_u32 s57, 0
    s_cbranch_scc1 {name}_pend
    v_bfe_u32 v6, v0, 2, 2
    v_mov_b32 v7, {OOB}
    s_cmp_eq_u32 s57, 2
    s_cbranch_scc1 {name}_vt
    v_cmp_eq_u32 vcc, 3, v6
    v_cmp_eq_u32 s[60:61], 2, v6
    s_add_u32 s50, s50, 6144
    """)
    for i in range(8):
        b(f"v_cndmask_b32 v{TF+i}, v{TF+i}, v12, vcc")
    b(f"""
    v_cndmask_b32 v1, v1, v7, s[60:61]
    s_branch {name}_tst
{name}_vt:
    v_mul_u32_u24 v8, {WQH-64}, v6
    v_cmp_gt_u32 vcc, 2, v6
    v_add_u32 v1, v1, v8
    s_add_u32 s50, s50, {2048+128}
    v_cndmask_b32 v1, v7, v1, vcc
{name}_tst:
    """)
    for k in range(2):
        b(f"s_add_u32 s58, s50, s{54+k}\nbuffer_store_dwordx4 {v(TF+4*k,4)}, v1, s[12:15], s58 offen{SF}")
    b(f"{name}_pend:")
    stamp(b, 4)
    finish(b, name, "1")
    return dict(name=name, text=resolve_waits(b.text()), grid=256, block=576, lds=TAB + 4608)


def signal(b, tag, base, idx):
    b(f"""
    s_lshl_b32 s60, s{idx}, 7
    s_add_u32 s60, s60, s{SC}
    s_add_u32 s60, s60, {base}
    s_waitcnt vmcnt(0) lgkmcnt(0)
    s_barrier
    s_cmp_lg_u32 s{SW}, 3
    s_cbranch_scc1 {tag}_sig
    s_mov_b64 exec, 1
    buffer_atomic_add v3, v2, s[12:15], s60 offen sc1
    s_mov_b64 exec, -1
{tag}_sig:
    """)


def poll(b, tag, base, idx, target, one_wave):
    b(f"""
    s_lshl_b32 s60, s{idx}, 7
    s_add_u32 s60, s60, s{SC}
    s_add_u32 s60, s60, {base}
    s_mov_b32 s61, 0x40000
    """)
    if one_wave:
        b(f"s_cmp_lg_u32 s{SW}, 3\ns_cbranch_scc1 {tag}_ok")
    b(f"""
{tag}_poll:
    buffer_load_dword v4, v2, s[12:15], s60 offen sc1
    s_sub_u32 s61, s61, 1
    s_waitcnt vmcnt(0)
    v_cmp_gt_u32 vcc, {target}, v4
    s_cbranch_scc1 {tag}_ok
    s_cbranch_vccnz {tag}_poll
{tag}_ok:
    """)
    if one_wave:
        b("s_barrier")


def dma_run(b, n, srdn, soff, flags=""):
    for i in range(n):
        off = f" offset:{1024*(i%4)}" if i % 4 else ""
        b(f"buffer_load_dwordx4 v1, s[{srdn}:{srdn+3}], s{soff} offen{off}{flags} lds")
        if i % 4 == 3 and i < n - 1:
            b(f"s_add_u32 m0, m0, 4096\ns_add_u32 s{soff}, s{soff}, 4096")


def pack4(b, dst, p, q):
    b(f"""
    v_cvt_pk_bf16_f32 v{dst}, v{p}, v{p+1}
    v_cvt_pk_bf16_f32 v{dst+1}, v{p+2}, v{p+3}
    v_cvt_pk_bf16_f32 v{dst+2}, v{q}, v{q+1}
    v_cvt_pk_bf16_f32 v{dst+3}, v{q+2}, v{q+3}
    """)


def unit_offset(b, dst, t0, t1):
    b(f"""
    v_bfe_u32 v{t0}, v0, 4, 1
    v_bfe_u32 v{t1}, v0, 5, 1
    v_mul_u32_u24 v{dst}, 18432, v{t0}
    v_lshl_add_u32 v{dst}, v{t1}, 8, v{dst}
    v_and_b32 v{t0}, 15, v0
    v_lshl_add_u32 v{dst}, v{t0}, 4, v{dst}
    """)


def wq_dma(b):
    b(f"""
    s_lshl_b32 m0, s{SW}, 15
    s_mul_i32 s37, s{SJ}, {WQH}
    s_add_u32 s37, s37, m0
    s_add_u32 s37, s37, {WQ}
    """)
    dma_run(b, 32, 12, 37)


def phase_q(b):
    ACC, XQ, TMP, RV, RB = 16, 80, 128, 168, 184
    IMG = QX + 9216
    b(f"""
    s_mul_i32 s34, s{STW}, 36864
    s_add_u32 s34, s34, {LST+X2}
    s_sub_u32 s34, s34, s{SL}
    s_add_u32 s16, s4, s34
    s_addc_u32 s17, s5, 0
    s_mov_b32 s18, 18432
    s_mov_b32 s19, 0x20000
    s_add_u32 s20, s16, 18432
    s_addc_u32 s21, s17, 0
    s_mov_b32 s22, 18432
    s_mov_b32 s23, 0x20000
    """)
    for i in range(8, 80):
        b(f"v_mov_b32 v{i}, 0")
    b(f"s_cmp_eq_u32 s{SL}, 0\ns_cbranch_scc1 q_ok")
    poll(b, "q", C_X2 - CL, STW, 4, False)
    stamp(b, 1)
    xq = lambda p, rt: XQ + ((p % 6) * 2 + rt) * 4
    xload = lambda p, rt: f"buffer_load_dwordx4 {v(xq(p, rt),4)}, v1, s[{16+4*rt}:{19+4*rt}], s36 offen sc1 ;#x{p%6}"
    b("s_mov_b32 s36, 0")
    for p in range(5):
        b(xload(p, 0) + "\n" + xload(p, 1) + "\ns_add_u32 s36, s36, 1024")
    acc = lambda f, rt: ACC + (f * 2 + rt) * 4
    ring = lambda ks, f: a((ks % 2) * 28 + f * 4, 4)
    reads = lambda p: [f"ds_read_b128 {ring(p, f)}, v5 offset:{(p*7+f)*1024}" for f in range(7)]
    b("v_mov_b32 v5, v1\ns_mov_b32 s37, 3\ns_waitcnt vmcnt(10)\ns_barrier")
    b("\n".join(reads(0)))
    stamp(b, 2)
    b(".p2align 3\nq_loop:")
    for p in range(6):
        mains = []
        for f in range(8):
            for rt in range(2):
                w, x, d = ring(p, min(f, 6)), v(xq(p, rt), 4), v(acc(f, rt), 4)
                mains.append(mf16(d, x, w, d) if f in (4, 5, 7) else mf16(d, w, x, d))
        pinned = [(1 + i, t) for i, t in enumerate(reads(p + 1))]
        pinned += [(0, xload(p + 5, 0)), (8, xload(p + 5, 1)), (9, "s_add_u32 s36, s36, 1024")]
        if p == 5:
            pinned += [(10, "v_add_u32 v5, 43008, v5"), (11, "s_sub_u32 s37, s37, 1"), (12, "s_cmp_lg_u32 s37, 0")]
        mains = [mf16(v(8 + 4 * rt, 4), v(xq(p, rt), 4), v(xq(p, rt), 4), v(8 + 4 * rt, 4)) for rt in range(2)] + mains
        first = mains[:2]
        b(f"s_waitcnt vmcnt(@x{p})\n{first[0]}\n{first[1]}\ns_waitcnt lgkmcnt(0)")
        b(sched(mains[2:], pinned, [])[0])
    b("s_cbranch_scc1 q_loop")
    stamp(b, 3)
    b(f"""
    v_and_b32 v4, 3, v0
    v_cmp_eq_u32 s[50:51], 1, v4
    v_cmp_eq_u32 s[52:53], 2, v4
    v_cmp_eq_u32 s[54:55], 3, v4
    v_and_b32 v5, 15, v0
    v_lshrrev_b32 v7, 2, v5
    v_lshl_add_u32 v7, v7, 4, v5
    v_lshlrev_b32 v7, 2, v7
    v_lshlrev_b32 v6, 2, v5
    s_waitcnt lgkmcnt(0)
    """)
    for rt in range(2):
        gq = 8 + 4 * rt
        b(f"""
        ds_bpermute_b32 v{RV+rt}, v6, v{acc(6,rt)} offset:192
        v_cndmask_b32 v{gq}, v{gq}, v{gq+1}, s[50:51]
        v_cndmask_b32 v{gq}, v{gq}, v{gq+2}, s[52:53]
        v_cndmask_b32 v{gq}, v{gq}, v{gq+3}, s[54:55]
        ds_bpermute_b32 v{RV+2+rt}, v7, v{gq}
        """)
    b(f"""
    v_mov_b32 v12, v5
    v_bfe_u32 v4, v0, 4, 2
    v_lshrrev_b32 v13, 1, v4
    v_and_b32 v14, 1, v4
    v_lshlrev_b32 v15, 4, v4
    s_mul_i32 s38, s{SW}, 1152
    s_add_u32 s38, s38, {QX}
    s_mul_i32 s39, s{SW}, {2*REC}
    s_add_u32 s39, s39, {IMG}
    v_mul_u32_u24 v6, 4608, v13
    v_lshl_add_u32 v6, v14, 9, v6
    v_lshl_add_u32 v6, v12, 4, v6
    v_add_u32 v6, s38, v6
    s_waitcnt lgkmcnt(0)
    """)
    for rt in range(2):
        ln_stats(b, RV + rt, RV + 2 + rt)
        b(f"v_rsq_f32 v{8+rt}, v{RV+2+rt}")
    b("s_nop 0")
    for rt in range(2):
        for i in range(4):
            b(f"ds_bpermute_b32 v{RV+4*rt+i}, v15, v{8+rt} offset:{4*i}")
    TA = RV + 8
    b(f"""
    v_mul_u32_u24 v7, {REC}, v13
    v_lshl_add_u32 v7, v14, 9, v7
    v_lshrrev_b32 v13, 2, v12
    v_and_b32 v15, 3, v12
    v_lshl_add_u32 v15, v13, 3, v15
    v_lshl_add_u32 v7, v15, 4, v7
    v_add_u32 v7, s39, v7
    v_cmp_eq_u32 s[48:49], 0, v4
    v_cmp_eq_u32 s[52:53], 3, v13
    s_add_u32 s40, s38, 1024
    s_add_u32 s41, s39, 2176
    v_lshl_add_u32 v{TA}, v12, 2, s40
    v_lshl_add_u32 v15, v15, 2, s41
    v_cndmask_b32 v{TA}, v15, v{TA}, s[48:49]
    v_mov_b32 v13, {REC}
    v_mov_b32 v14, 4608
    v_mov_b32 v15, 16
    v_cndmask_b32 v13, v13, v14, s[48:49]
    v_cndmask_b32 v15, v15, 64, s[48:49]
    v_add_u32 v{TA+1}, v{TA}, v13
    v_add_u32 v{TA+2}, v{TA}, v15
    v_add_u32 v{TA+3}, v{TA+1}, v15
    v_mul_u32_u24 v10, 288, v4
    v_and_b32 v14, 1, v12
    v_lshl_add_u32 v11, v14, 4, v10
    v_mov_b32 v14, 1024
    v_lshl_add_u32 v10, v12, 4, v10
    v_cndmask_b32 v11, v11, v14, s[52:53]
    v_bfe_u32 v14, v12, 1, 1
    v_mul_u32_u24 v14, {REC}, v14
    v_add3_u32 v11, v11, v14, s39
    v_add_u32 v10, s39, v10
    v_mul_f32 v12, {fbits(math.log2(math.e) / math.sqrt(18))}, v8
    v_mul_f32 v13, {fbits(math.log2(math.e) / math.sqrt(18))}, v9
    v_mov_b32 v5, 0x3f803f80
    v_cndmask_b32 v14, v8, v12, s[48:49]
    v_cndmask_b32 v15, v9, v13, s[48:49]
    """)

    def scale(f, rt, by):
        for i in range(4):
            b(f"v_mul_f32 v{acc(f,rt)+i}, v{by(i)}, v{acc(f,rt)+i}")

    T = TMP
    for rt in range(2):
        scale(2, rt, lambda i: 8 + rt)
        scale(3, rt, lambda i: 8 + rt)
        pack4(b, T, acc(2, rt), acc(3, rt))
        b(f"ds_write_b128 v7, {v(T,4)} offset:{64*rt}")
        T += 4
    for rt in range(2):
        scale(6, rt, lambda i: 14 + rt)
    pack4(b, T, acc(6, 0), acc(6, 1))
    b("s_mov_b64 exec, 0xffffffff")
    for k in range(4):
        b(f"ds_write_b32 v{TA+k}, v{T+k}")
    b("s_mov_b64 exec, -1\ns_waitcnt lgkmcnt(6)")
    T += 4
    for f in (4, 5, 7):
        for rt in range(2):
            scale(f, rt, lambda i: RV + 4 * rt + i)
        pack4(b, T, acc(f, 0), acc(f, 1))
        if f < 7:
            b(f"ds_write_b128 v10, {v(T,4)} offset:{1024+REC*(f-4)}")
        else:
            for i in range(4):
                b(f"v_cndmask_b32 v{T+i}, v{T+i}, v5, s[52:53]")
            b(f"s_mov_b32 exec_lo, 0xff00ff00\ns_mov_b32 exec_hi, 0xff00ff00\nds_write_b128 v11, {v(T,4)} offset:1280\ns_mov_b64 exec, -1")
        T += 4
    b(f"""
    v_add_u32 v7, s39, v1
    v_add_u32 v10, 4096, v1
    v_mov_b32 v11, {OOB}
    v_cmp_gt_u32 vcc, 768, v1
    s_mul_i32 s43, s{SJ}, {KVJ}
    s_mul_i32 s44, s{STW}, {2*REC}
    v_cndmask_b32 v10, v11, v10, vcc
    s_add_u32 s43, s43, s44
    s_add_u32 s43, s43, s{SL}
    s_add_u32 s43, s43, {KV}
    s_waitcnt lgkmcnt(0)
    """)
    for n in range(5):
        b(f"ds_read_b128 {v(RB+4*n,4)}, v7 offset:{1024*n}")
    scale(0, 0, lambda i: 12)
    scale(1, 0, lambda i: 12)
    for n in range(5):
        b(f"s_waitcnt lgkmcnt({4-n})")
        b(f"buffer_store_dwordx4 {v(RB+4*n,4)}, " + (f"v1, s[12:15], s43 offen offset:{1024*n}" if n < 4 else "v10, s[12:15], s43 offen") + " sc1")
    scale(0, 1, lambda i: 13)
    scale(1, 1, lambda i: 13)
    for rt in range(2):
        pack4(b, T, acc(0, rt), acc(1, rt))
        b(f"ds_write_b128 v6, {v(T,4)} offset:{256*rt}")
        T += 4
    stamp(b, 4)
    signal(b, "q", C_KV, SJ)
    stamp(b, 5)


def wo_loads(lo, hi):
    out = []
    for n in range(lo, hi):
        off = f" offset:{1024*((n-lo)%4)}" if (n - lo) % 4 else ""
        t = f"buffer_load_dwordx4 {a(4*n,4)}, v1, s[12:15], s38 offen{off}"
        if (n - lo) % 4 == 3:
            t += "\ns_add_u32 s38, s38, 4096"
        out.append(t)
    return out


def wo_base(b, first):
    b(f"""
    s_and_b32 s38, s{SJ}, 3
    s_mul_i32 s38, s38, 3
    s_add_u32 s38, s38, s{SW}
    s_mul_i32 s38, s38, {3*18432}
    s_add_u32 s38, s38, {WO + 1024*first}
    s_cmp_eq_u32 s{SW}, 3
    s_cselect_b32 s38, {OOB}, s38
    """)


def phase_a(b):
    QM, QT, KM, KT, VF, S, O, MX, IDX = 16, 32, 40, 56, 64, 96, 160, 224, 228
    AV, AT = 229, 231
    WO1, WO2 = int(OPT.get('wo1', 16)), int(OPT.get('wo2', 28))
    qm = lambda t: v(QM + 4 * t, 4)
    qt = lambda t: v(QT + 2 * t, 2)
    km = lambda k: v(KM + 4 * (k % 4), 4)
    kt = lambda k: v(KT + 2 * (k % 4), 2)
    vf = lambda k, g: v(VF + 8 * (k % 4) + 4 * g, 4)
    sb = lambda n: S + 16 * (n % 4)
    ob = lambda t: O + 16 * t
    m8 = lambda d, k, t: f"v_mfma_f32_32x32x8_bf16 {v(d,16)}, {kt(k)}, {qt(t)}, 0"
    m16 = lambda d, k, t: f"v_mfma_f32_32x32x16_bf16 {v(d,16)}, {km(k)}, {qm(t)}, {v(d,16)}"
    smf = lambda t, k, g, p: f"v_smfmac_f32_32x32x32_bf16 {v(ob(t),16)}, {vf(k,g)}, {v(p+8*g,8)}, v{IDX}"

    def rec_loads(k):
        tg = f" ;#r{k%4}"
        return [f"buffer_load_dwordx4 {km(k)}, v1, s[16:19], s46 offen sc1{tg} ;#k{k%4}",
                f"buffer_load_dword v{KT+2*(k%4)}, v{AT}, s[16:19], s46 offen offset:2176 sc1{tg} ;#k{k%4}",
                f"buffer_load_dwordx4 {vf(k,0)}, v{AV}, s[16:19], s46 offen sc1{tg}",
                f"buffer_load_dwordx4 {vf(k,1)}, v{AV+1}, s[16:19], s46 offen sc1{tg}"]

    b(f"""
    s_lshr_b32 s37, s{SW}, 1
    s_lshl_b32 s34, s{SJ}, 1
    s_add_u32 s34, s34, s37
    s_and_b32 s35, s{SW}, 1
    s_lshl_b32 s36, s35, 1
    s_mul_i32 s38, s37, 4608
    s_add_u32 s38, s38, {QX}
    s_mul_i32 s39, s36, 1152
    s_add_u32 s40, s38, s39
    s_sub_u32 s41, s38, s39
    v_and_b32 v6, 31, v0
    v_bfe_u32 v7, v0, 5, 1
    v_lshlrev_b32 v{AT}, 2, v6
    v_add_u32 v8, s40, v1
    v_add_u32 v9, s41, v1
    v_add_u32 v10, s40, v{AT}
    v_add_u32 v11, s41, v{AT}
    v_cmp_eq_u32 s[50:51], 0, v7
    """)
    for t in range(4):
        b(f"ds_read_b128 {qm(t)}, v{8 + t // 2} offset:{1152*t}")
        b(f"ds_read_b32 v{QT+2*t}, v{10 + t // 2} offset:{1152*t+1024}")
    b(f"""
    s_mul_i32 s38, s{SW}, {2*REC}
    s_mul_i32 s39, s37, {REC}
    s_add_u32 s38, s38, s39
    s_add_u32 s38, s38, {QX+9216}
    v_add_u32 v8, s38, v1
    v_add_u32 v10, s38, v{AT}
    ds_read_b128 {km(0)}, v8
    ds_read_b32 v{KT}, v10 offset:2176
    """)
    b(f"""
    s_mul_i32 s38, s{SJ}, {KVJ}
    s_add_u32 s38, s38, s39
    s_mul_i32 s39, s35, {64*REC}
    s_add_u32 s38, s38, s39
    s_add_u32 s38, s38, s{SL}
    s_add_u32 s38, s38, {KV}
    """)
    window(b, 16, 38, 63 * REC)
    b(f"""
    v_mul_u32_u24 v8, 288, v7
    v_lshl_add_u32 v8, v6, 4, v8
    v_add_u32 v9, 1600, v8
    v_add_u32 v8, 1024, v8
    v_mov_b32 v10, {OOB}
    v_mov_b32 v11, 2304
    v_and_b32 v12, 27, v6
    v_cmp_eq_u32 vcc, 18, v12
    v_cmp_gt_u32 s[52:53], 18, v6
    v_mov_b32 v{IDX}, 0xdddddddd
    v_cndmask_b32 v10, v10, v11, vcc
    v_cndmask_b32 v{AV}, v10, v8, s[52:53]
    v_cndmask_b32 v{AV+1}, v10, v9, s[52:53]
    s_mov_b32 s49, 0x07060302
    s_mov_b32 s47, 1
    s_mov_b32 s48, 0
    """)
    for k in range(4):
        b(f"v_mov_b32 v{KT+2*k+1}, 0x3f803f80")
    for i in range(8):
        b(f"v_mov_b32 v{VF+24+i}, 0")
    wo_base(b, 0)
    b("\n".join(wo_loads(0, WO1)))
    b("s_waitcnt lgkmcnt(0)")
    for t in range(4):
        b(f"v_cndmask_b32 v{QT+2*t}, 0, v{QT+2*t}, s[50:51]")
    b("a_max:")
    for t in range(4):
        b(f"v_mov_b32 v{QT+2*t+1}, 0\nv_mov_b32 v{MX+t}, 0xff800000")
    b("s_mov_b32 s46, 0\ns_cmp_eq_u32 s48, 0\ns_cbranch_scc1 a_maxbody\na_maxloop:")
    b("\n".join(rec_loads(0)[:2]))
    b(f"s_add_u32 s46, s46, {2*REC}\ns_waitcnt vmcnt(0)\na_maxbody:")
    for t in range(4):
        b(m8(sb(t), 0, t))
        b(m16(sb(t), 0, t))
    b("s_nop 5")
    for t in range(4):
        for i in range(8):
            b(f"v_max3_f32 v{MX+t}, v{sb(t)+2*i}, v{sb(t)+2*i+1}, v{MX+t}")
    b("s_sub_u32 s47, s47, 1\ns_cmp_lg_u32 s47, 0\ns_cbranch_scc1 a_maxloop")
    x0 = sb(2)
    pb = B()
    for t in range(4):
        pb(f"""
        v_mov_b32 v{x0}, v{MX+t}
        v_mov_b32 v{sb(3)+4*t}, 0
        v_mov_b32 v{sb(3)+4*t+1}, 0
        v_permlane32_swap_b32 v{MX+t}, v{x0}
        v_mov_b32 v{sb(3)+4*t+2}, 0
        v_max_f32 v{MX+t}, v{MX+t}, v{x0}
        v_sub_f32 v{x0}, 0, v{MX+t}
        v_and_b32 v{x0+1}, 0xffff0000, v{x0}
        v_sub_f32 v{x0+2}, v{x0}, v{x0+1}
        v_and_b32 v{x0+3}, 0xffff0000, v{x0+2}
        v_sub_f32 v{x0+2}, v{x0+2}, v{x0+3}
        v_perm_b32 v{x0+1}, v{x0+3}, v{x0+1}, s49
        v_lshrrev_b32 v{x0+2}, 16, v{x0+2}
        v_cndmask_b32 v{QT+2*t+1}, v{x0+2}, v{x0+1}, s[50:51]
        v_mov_b32 v{sb(3)+4*t+3}, 0
        """)
    for i in range(64):
        pb(f"v_mov_b32 v{O+i}, 0")
    b(pb.text())
    b("s_cmp_lg_u32 s48, 0\ns_cbranch_scc1 a_go")
    stamp(b, 6)
    poll(b, "a", C_KV, SJ, 16, True)
    stamp(b, 7)
    b("a_go:\ns_mov_b32 s46, 0")
    for k in range(3):
        b("\n".join(rec_loads(k)))
        b(f"s_add_u32 s46, s46, {2*REC}")
    wo_base(b, WO1)
    b("\n".join(wo_loads(WO1, WO2)))
    b("s_waitcnt vmcnt(@k0)")
    for t in range(2):
        b(m8(sb(t), 0, t))
        b(m16(sb(t), 0, t))
    b("s_mov_b32 s47, 8\ns_waitcnt vmcnt(@r0)\ns_nop 8")
    stamp(b, 8)
    b(".p2align 3\na_loop:")
    for n in range(16):
        k, t = divmod(n, 4)
        e = [f"v_exp_f32 v{sb(n)+i}, v{sb(n)+i}" for i in range(16)]
        qk, qtile = (n + 2) // 4, (n + 2) % 4
        pk, pt = (n - 1) // 4, (n - 1) % 4
        if t == 2:
            b(f"s_waitcnt vmcnt(@r{(k+1)%4})")
        b(m8(sb(n + 2), qk, qtile))
        b(rec_loads(k + 3)[t])
        b("\n".join(e[0:4]))
        b(m16(sb(n + 2), qk, qtile))
        if t == 3:
            b(f"s_add_u32 s46, s46, {2*REC}")
        b("\n".join(e[4:8]))
        b(smf(pt, pk, 0, sb(n - 1)))
        if n == 15:
            b("s_sub_u32 s47, s47, 1")
        b("\n".join(e[8:12]))
        b(smf(pt, pk, 1, sb(n - 1)))
        if n == 15:
            b("s_cmp_lg_u32 s47, 0")
        b("\n".join(e[12:16]))
    b("s_cbranch_scc1 a_loop")
    stamp(b, 9)
    b(smf(3, 3, 0, sb(3)))
    b(smf(3, 3, 1, sb(3)))
    b(f"""
    v_max3_f32 v8, v{ob(0)+10}, v{ob(1)+10}, 0
    v_mov_b32 v9, 0x53800000
    v_cmp_u_f32 s[52:53], v{ob(0)+10}, v{ob(1)+10}
    s_mul_i32 s45, s{SW}, 6144
    s_xor_b32 s46, s{SW}, 1
    s_mul_i32 s46, s46, 6144
    v_add_u32 v10, s45, v1
    v_add_u32 v11, s46, v1
    s_waitcnt vmcnt(0)
    s_nop 2
    v_max3_f32 v8, v{ob(2)+10}, v{ob(3)+10}, v8
    v_cmp_u_f32 s[54:55], v{ob(2)+10}, v{ob(3)+10}
    v_cmp_nlt_f32 vcc, v8, v9
    s_or_b64 s[52:53], s[52:53], s[54:55]
    s_or_b64 vcc, vcc, s[52:53]
    s_cbranch_vccz a_merge
    s_cmp_lg_u32 s48, 0
    s_cbranch_scc1 a_merge
    s_mov_b32 s48, 1
    s_mov_b32 s47, 32
    s_branch a_max
a_merge:
    v_mov_b32 v{ob(2)+11}, v{MX+2}
    v_mov_b32 v{ob(3)+11}, v{MX+3}
    """)
    for t in range(2):
        for i in range(3):
            b(f"ds_write_b128 v10, {v(ob(2+t)+4*i,4)} offset:{3072*t+1024*i}")
    b(f"""
    v_lshrrev_b32 v5, 4, v6
    v_lshlrev_b32 v5, 14, v5
    v_and_b32 v8, 15, v6
    v_lshl_add_u32 v5, v8, 4, v5
    v_and_b32 v8, 35, v0
    v_cmp_eq_u32 vcc, 0, v8
    v_mov_b32 v8, {OOB}
    v_lshl_add_u32 v6, v7, 8, v5
    v_cndmask_b32 v7, v8, v{AT}, vcc
    s_lshl_b32 s42, s{SI}, 2
    s_add_u32 s42, s42, s36
    s_mul_i32 s42, s42, 36864
    s_add_u32 s42, s42, s{SL}
    s_add_u32 s42, s42, {OB}
    s_lshl_b32 s43, s34, 9
    s_add_u32 s43, s43, s42
    s_lshl_b32 s44, s34, 7
    s_add_u32 s42, s42, s44
    s_add_u32 s42, s42, 32768
    s_waitcnt lgkmcnt(0)
    s_barrier
    """)
    for t in range(2):
        for i in range(3):
            b(f"ds_read_b128 {v(sb(t)+4*i,4)}, v11 offset:{3072*t+1024*i}")
    for t in range(2):
        P, o0, pk = sb(t), ob(t), QM + 8 * t
        b(f"""
        s_waitcnt lgkmcnt({3 - 3*t})
        v_max_f32 v8, v{MX+t}, v{P+11}
        v_sub_f32 v9, v{MX+t}, v8
        v_sub_f32 v8, v{P+11}, v8
        v_exp_f32 v9, v9
        v_exp_f32 v8, v8
        v_mul_f32 v10, v9, v{o0+10}
        v_fmac_f32 v10, v8, v{P+10}
        v_rcp_f32 v10, v10
        s_nop 0
        v_mul_f32 v9, v9, v10
        v_mul_f32 v8, v8, v10
        """)
        for i in range(10):
            b(f"v_mul_f32 v{o0+i}, v9, v{o0+i}")
        for i in range(10):
            b(f"v_fmac_f32 v{o0+i}, v8, v{P+i}")
        for i in (4, 0, 1, 2, 3):
            b(f"v_cvt_pk_bf16_f32 v{pk+i}, v{o0+2*i}, v{o0+2*i+1}")
        b(f"buffer_store_dwordx4 {v(pk,4)}, v6, s[12:15], s43 offen sc1")
        for i in range(1, 4):
            b(f"v_mov_b32 v{pk+4+i}, v{pk+4} quad_perm:[{i}:{i}:{i}:{i}] row_mask:0xf bank_mask:0xf")
        b(f"buffer_store_dwordx4 {v(pk+4,4)}, v7, s[12:15], s42 offen sc1")
        if t == 0:
            b("s_add_u32 s42, s42, 36864\ns_add_u32 s43, s43, 36864")
    stamp(b, 10)
    signal(b, "a", C_O, SI)
    stamp(b, 11)


def res_swap(b):
    for n in range(3):
        for k in range(4):
            b(f"v_permlane16_swap_b32 v{RES+8*n+k}, v{RES+8*n+4+k}")


def res_pack(b, dst):
    for n in range(3):
        pack4(b, dst + 4 * n, RES + 8 * n, RES + 8 * n + 4)


def tile_base(b, dst, tmp):
    b(f"""
    s_and_b32 s{dst}, s{SJ}, 3
    s_mul_i32 s{dst}, s{dst}, 3
    s_add_u32 s{dst}, s{dst}, s{SW}
    s_mul_i32 s{dst}, s{dst}, 1536
    s_mul_i32 s{tmp}, s{STJ}, 36864
    s_add_u32 s{dst}, s{dst}, s{tmp}
    """)


def phase_o(b):
    PK, OF = 16, 56
    WO2, NC = int(OPT.get('wo2', 28)), int(OPT.get('nc', 1))
    wo_base(b, WO2)
    b("\n".join(wo_loads(WO2, 54)))
    b(f"""
    s_mul_i32 s38, s{SJ}, {WFS}
    s_add_u32 s38, s38, {WF}
    s_mul_i32 s43, s{SW}, {9*NC*1024}
    s_mov_b32 m0, s43
    """)
    window(b, 16, 38, WFS)
    dma_run(b, 9 * NC, 16, 43)
    unit_offset(b, 5, 6, 7)
    res_swap(b)
    tile_base(b, 34, 35)
    b(f"""
    s_mul_i32 s42, s{SW}, 9216
    s_add_u32 s37, s35, s42
    s_add_u32 s37, s37, s{SL}
    s_add_u32 s37, s37, {OB}
    s_add_u32 m0, s42, {3*CH}
    v_add_u32 v6, {3*CH}, v1
    s_add_u32 s36, s34, s{SL}
    s_add_u32 s36, s36, {X1}
    v_bfe_u32 v7, v0, 4, 2
    v_and_b32 v8, 15, v0
    v_lshlrev_b32 v7, 9, v7
    v_lshl_add_u32 v7, v8, 2, v7
    v_add_u32 v7, {3*CH+32768}, v7
    v_add_u32 v8, 2048, v7
    """)
    stamp(b, 12)
    poll(b, "o", C_O, SI, 16, True)
    stamp(b, 13)
    b("s_waitcnt vmcnt(40)")
    dma_run(b, 9, 12, 37, " sc1")
    b(f"s_waitcnt vmcnt(0)\ns_barrier")
    stamp(b, 14)
    b(f"s_cmp_eq_u32 s{SW}, 3\ns_cbranch_scc1 o_done")
    of = lambda ks, rt: OF + (ks % 3) * 8 + rt * 4

    def rd(ks):
        if ks < 16:
            return [f"ds_read_b128 {v(of(ks,rt),4)}, v6 offset:{rt*16384+ks*1024}" for rt in range(2)]
        return [f"ds_read2_b32 {v(of(ks,rt)+2*k,2)}, v{7+ks-16} offset0:{16*rt+64*k} offset1:{16*rt+64*k+32}"
                for rt in range(2) for k in range(2)]

    for ks in range(2):
        b("\n".join(rd(ks)))
    for ks in range(18):
        mains = [mf16(v(RES + 8 * n + 4 * rt, 4), a((n * 18 + ks) * 4, 4), v(of(ks, rt), 4), v(RES + 8 * n + 4 * rt, 4))
                 for n in range(3) for rt in range(2)]
        b(f"s_waitcnt lgkmcnt({len(rd(ks + 1)) if ks < 17 else 0})")
        b(sched(mains, list(enumerate(rd(ks + 2))) if ks + 2 < 18 else [], [])[0])
    b("s_nop 3")
    res_swap(b)
    for n in range(3):
        pack4(b, PK + 4 * n, RES + 8 * n, RES + 8 * n + 4)
        b(f"buffer_store_dwordx4 {v(PK+4*n,4)}, v5, s[12:15], s36 offen offset:{512*n} sc1")
    b("o_done:")
    stamp(b, 15)
    signal(b, "o", C_X1, STJ)
    stamp(b, 16)


def phase_f(b):
    SP, NC = int(OPT.get("sp", 6)), int(OPT.get('nc', 1))
    LA, LB, DV, C1, C2, VP, VFL = 5, 6, 7, 10, 12, 14, 15
    ACC1, TMP, STG, FL, VH, ACC2, ST, ONE = 16, 48, 64, 72, 80, 84, 84, 100
    RING, NR, PD, HR = 144, 12, 8, 192
    xb = lambda ks, rt: a((ks * 2 + rt) * 4, 4)
    ring = lambda i: a(RING + 4 * (i % NR), 4)
    hr = lambda c, m, rt: a(HR + ((c % 2) * 8 + m * 2 + rt) * 4, 4)
    b(f"""
    s_mul_i32 s43, s{SW}, {9*(4-NC)*1024}
    s_add_u32 s43, s43, {NC*CH}
    s_mov_b32 m0, s43
    v_add_u32 v{DV}, s42, v1
    """)
    dma_run(b, 9 * (4 - NC), 16, 43)
    b(f"""
    s_mul_i32 s39, s{STW}, 36864
    s_add_u32 s39, s39, s{SL}
    s_add_u32 s39, s39, {X1}
    s_add_u32 s40, s39, 18432
    v_add_u32 v{DV+1}, 4096, v{DV}
    v_add_u32 v{DV+2}, 8192, v{DV}
    v_mov_b32 v{LA}, v1
    v_add_u32 v{LB}, {CH}, v1
    s_mul_i32 s46, s{STW}, {16*18432}
    s_add_u32 s46, s46, s{SL}
    s_add_u32 s46, s46, {HB}
    s_and_b32 s34, s{SJ}, 12
    s_mul_i32 s34, s34, 18432
    s_add_u32 s34, s34, s46
    v_add_u32 v{VH}, s34, v1
    s_mul_i32 s34, s{SJ}, 18432
    s_add_u32 s46, s46, s34
    v_add_u32 v{VH+1}, 18432, v{VH}
    v_add_u32 v{VH+2}, 36864, v{VH}
    v_add_u32 v{VH+3}, 55296, v{VH}
    s_lshl_b32 s41, s{STJ}, 7
    s_add_u32 s41, s41, s{SC}
    s_add_u32 s41, s41, {C_H}
    s_and_b32 s34, s{SJ}, 3
    s_lshl_b32 s34, s34, 2
    v_mov_b32 v{VFL}, s34
    v_mov_b32 v{VP}, {OOB}
    v_cmp_eq_u32 vcc, 0, v0
    s_mov_b32 s43, {4*CH}
    s_mov_b32 s45, {2*CH}
    v_cndmask_b32 v{VFL}, v{VP}, v{VFL}, vcc
    v_mov_b32 v{VP}, 0
    s_mov_b32 s44, s42
    s_mov_b32 s47, 8
    """)
    for i in range(4):
        b(f"v_mov_b32 v{ONE+i}, 0x3f803f80")
    rdf = lambda gi, i, base: f"ds_read_b128 {ring(gi)}, v{base} offset:{1024*i}"
    acc1 = lambda st, gu, rt: ACC1 + 16 * st + (gu * 2 + rt) * 4
    for i in range(PD):
        b(rdf(i, i, LA))
    stamp(b, 17)
    poll(b, "f", C_X1, STW, 4, False)
    stamp(b, 18)

    def xload(ks, rt):
        off = f" offset:{1024*(ks%4)}" if ks % 4 else ""
        t = f"buffer_load_dwordx4 {xb(ks,rt)}, v1, s[12:15], s{39+rt} offen{off} sc1 ;#x{ks}"
        if ks % 4 == 3:
            t += f"\ns_add_u32 s{39+rt}, s{39+rt}, 4096"
        return t

    XA = int(OPT.get("xa", 10))
    for ks in range(XA):
        for rt in range(2):
            b(xload(ks, rt))
    for ks in range(18):
        mains = []
        for gu in range(2):
            for rt in range(2):
                d = v(acc1(0, gu, rt), 4)
                mains.append(mf16(d, ring(2 * ks + gu), xb(ks, rt), "0" if ks == 0 else d))
        for rt in range(2):
            d = v(ST + 4 * rt, 4)
            mains.append(mf16(d, v(ONE, 4), xb(ks, rt), "0" if ks == 0 else d))
            d = v(ST + 8 + 4 * rt, 4)
            mains.append(mf16(d, xb(ks, rt), xb(ks, rt), "0" if ks == 0 else d))
        pinned = []
        for gu in range(2):
            j = 2 * ks + gu + PD
            pinned.append((1 + 2 * gu, rdf(j, j % 36, LA if j < 36 else LB)))
        if ks + XA < 18:
            pinned += [(4 * rt, xload(ks + XA, rt)) for rt in range(2)]
        b(f"s_waitcnt vmcnt(@x{ks}) lgkmcnt({PD-2})")
        if ks == 12 and NC < 2:
            b("s_barrier")
        b(sched(mains, pinned, [])[0])
    b(f"""
    v_and_b32 v{TMP}, 3, v0
    v_and_b32 v{TMP+1}, 15, v0
    v_cmp_eq_u32 s[50:51], 1, v{TMP}
    v_cmp_eq_u32 s[52:53], 2, v{TMP}
    v_cmp_eq_u32 s[54:55], 3, v{TMP}
    v_lshrrev_b32 v{TMP+2}, 2, v{TMP+1}
    v_lshl_add_u32 v{TMP+1}, v{TMP+2}, 4, v{TMP+1}
    v_lshlrev_b32 v{TMP+1}, 2, v{TMP+1}
    """)
    for rt in range(2):
        g = ST + 8 + 4 * rt
        b(f"""
        v_cndmask_b32 v{g}, v{g}, v{g+1}, s[50:51]
        v_cndmask_b32 v{g}, v{g}, v{g+2}, s[52:53]
        v_cndmask_b32 v{g}, v{g}, v{g+3}, s[54:55]
        ds_bpermute_b32 v{C2+rt}, v{TMP+1}, v{g}
        """)
    b("s_waitcnt lgkmcnt(0)")
    for rt in range(2):
        ln_stats(b, ST + 4 * rt, C2 + rt)
        b(f"v_rsq_f32 v{C1+rt}, v{C2+rt}\ns_nop 0\nv_mul_f32 v{C1+rt}, {fbits(-math.log2(math.e))}, v{C1+rt}")
    b("s_barrier")
    stamp(b, 19)

    def dma(par):
        out, prev = [], ""
        for i in range(9):
            if i % 4 == 0:
                out.append((f"s_add_u32 m0, s44, {4096*(i//4)}", max(1, SP - 1) if i else 0))
            ld = f"buffer_load_dwordx4 v{DV+i//4}, s[16:19], s43 offen" + (f" offset:{1024*(i%4)}" if i % 4 else "") + f" lds ;#d{par}"
            out.append((ld, 1 if i % 4 == 0 else SP))
        out.append((f"s_add_u32 s43, s43, {CH}", 0))
        return chain(out, earliest=1)

    def swiglu(st, half):
        ops, last = [], []
        for k in range(8):
            rt, i = divmod(k, 4)
            g, u = acc1(st, 0, rt) + i, acc1(st, 1, rt) + i
            t, p = TMP + k, TMP + 8 + k
            c = chain([f"v_mul_f32 v{t}, v{C1+rt}, v{g}", f"v_exp_f32 v{t}, v{t}",
                       f"v_fma_f32 v{t}, v{t}, v{C2+rt}, v{C2+rt}", f"v_rcp_f32 v{t}, v{t}"], earliest=3, dist=1)
            m = Op(f"v_mul_f32 v{p}, v{g}, v{u}", earliest=4)
            f = Op(f"v_mul_f32 v{p}, v{p}, v{t}", [(c[-1], 1), (m, 0)])
            ops += c + [m, f]
            last.append(f)
            if k % 2:
                cv = Op(f"v_cvt_pk_bf16_f32 v{STG+4*rt+2*half+i//2}, v{p-1}, v{p}", [(last[-2], 0), (f, 0)])
                ops.append(cv)
                if half and i == 3:
                    st_ = Op(f"buffer_store_dwordx4 {v(STG+4*rt,4)}, v1, s[12:15], s46 offen" + (" offset:1024" if rt else "") + " sc1",
                             [(cv, 0), (prevcv, 0)])
                    ops.append(st_)
                    if rt:
                        ops.append(Op("s_add_u32 s46, s46, 2048", [(st_, 0), (prevst, 0)]))
                    prevst = st_
                prevcv = cv
        return ops

    progress = lambda: chain([f"v_add_u32 v{VP}, 1, v{VP}", f"buffer_store_dword v{VP}, v{VFL}, s[12:15], s41 offen sc1"])
    fl = lambda par: FL + 4 * par
    flag_load = lambda par, g: [Op(f"buffer_load_dwordx4 {v(fl(par),4)}, v2, s[12:15], s41 offen sc1 ;#f{par}", earliest=g)]
    slow = []

    def check(par, tag):
        f = fl(par)
        slow.append(f"""
{tag}_spin:
        s_mov_b32 s61, 0x40000
{tag}_again:
        buffer_load_dwordx4 {v(f,4)}, v2, s[12:15], s41 offen sc1
        s_sub_u32 s61, s61, 1
        s_waitcnt vmcnt(0)
        v_min_u32 v{f}, v{f}, v{f+1}
        v_min3_u32 v{f}, v{f}, v{f+2}, v{f+3}
        v_cmp_gt_u32 vcc, s49, v{f}
        s_cbranch_scc1 {tag}_back
        s_cbranch_vccnz {tag}_again
        s_branch {tag}_back
        """)
        return chain([f"s_waitcnt vmcnt(@f{par})", f"v_min_u32 v{f}, v{f}, v{f+1}", f"v_min3_u32 v{f}, v{f}, v{f+2}, v{f+3}",
                      f"v_cmp_gt_u32 vcc, s49, v{f}", (f"s_cbranch_vccnz {tag}_spin\n{tag}_back:", 1)])

    def hload(c, m, rt, so):
        return f"buffer_load_dwordx4 {hr(c,m,rt)}, v{VH+m}, s[12:15], {so} offen" + (" offset:1024" if rt else "") + f" sc1 ;#h{c%2}{m}"

    def chunk(mains, par, extra, pins=(), tail=(), refill=True, order=None, nxt_order=None, last=False):
        cur, nxt = (LA, LB) if par == 0 else (LB, LA)
        order = order or list(range(36))
        nxt_order = nxt_order or list(range(36))
        pinned = ([] if last else [(0, f"v_add_u32 v{nxt}, s45, v1")]) + list(pins)
        for i in range(36):
            j = i + PD
            if j < 36 or not last:
                pinned.append((2 * i, rdf(j, order[j] if j < 36 else nxt_order[j - 36], cur if j < 36 else nxt)))
            if i % 4 == 3 and not (last and i == 35):
                n = PD - 4 if not last else max(0, min(PD - 4, 36 - (i + 5)))
                pinned.append((2 * i + 1, f"s_waitcnt vmcnt(@d{1-par}) lgkmcnt({n})" if i == 35 and refill else f"s_waitcnt lgkmcnt({n})"))
        dm, slot = [], []
        if refill:
            dm = dma(par)
            slot = chain([f"s_add_u32 s44, s44, {CH}", f"s_cmp_eq_u32 s45, {CH}\ns_cselect_b32 s44, s42, s44",
                          f"s_add_u32 s45, s45, {CH}", f"s_cmp_eq_u32 s45, {4*CH}\ns_cselect_b32 s45, 0, s45"] + list(tail), after=dm[-1])
        txt, over, lastgap = sched(mains, pinned, dm + extra + slot)
        b(txt)
        if refill:
            b("s_barrier")
        return over, lastgap

    def p1_mains(st):
        return [mf16(v(acc1(st, gu, rt), 4), ring(2 * ks + gu), xb(ks, rt), "0" if ks == 0 else v(acc1(st, gu, rt), 4))
                for ks in range(18) for gu in range(2) for rt in range(2)]

    acc2 = lambda tl, rt: ACC2 + (tl * 2 + rt) * 4

    def p2_mains(c, first=False):
        return [mf16(v(acc2(tl, rt), 4), ring(9 * m + tl), hr(c, m, rt), "0" if first and m == 0 else v(acc2(tl, rt), 4))
                for m in range(4) for tl in range(9) for rt in range(2)]

    def p2_stream(c, gate):
        ops = chain([(hload(c + 1, 3, 0, "s48"), 0), (hload(c + 1, 3, 1, "s48"), 8)], earliest=2)
        prev = ops[-1]
        for m in range(3):
            for rt in range(2):
                o = Op(hload(c + 2, m, rt, "s47"), [(prev, 1)] + ([(gate, 0)] if gate else []), earliest=18 * (m + 1) + 2 + 8 * rt)
                ops.append(o)
                prev = o
        ops += chain(["s_mov_b32 s48, s47", "s_add_u32 s47, s47, 2048"], after=prev)
        return ops

    hwaits = lambda c: [(18 * m - 1, f"s_waitcnt vmcnt(@h{c%2}{m})") for m in range(1, 4)] + [(70, f"s_waitcnt vmcnt(@h{(c+1)%2}0)")]
    over = []
    b(f"s_waitcnt lgkmcnt({PD-4})\n.p2align 3\nf_p1:")
    over.append(chunk(p1_mains(1), 1, progress() + flag_load(1, 40) + swiglu(0, 0)))
    over.append(chunk(p1_mains(0), 0, swiglu(1, 1), tail=["s_sub_u32 s47, s47, 1"]))
    b("s_cmp_lg_u32 s47, 0\ns_cbranch_scc1 f_p1\ns_mov_b32 s49, 5\ns_mov_b32 s48, 2048")
    stamp(b, 20)
    ck = check(1, "f17")
    first = chain([(hload(c, m, rt, "0" if c == 18 else "s48"), 4) for c in (18, 19) for m in range(4) for rt in range(2)][:14], after=ck[-1])
    fld = flag_load(1, 40)
    fld[0].deps.append((ck[-1], 0))
    over.append(chunk(p1_mains(1), 1, progress() + ck + first + fld + swiglu(0, 0), pins=[(70, "s_waitcnt vmcnt(@h00)")],
                      tail=["s_mov_b32 s47, 4096"]))
    stamp(b, 21)
    over.append(chunk(p2_mains(18, True), 0, p2_stream(18, None) + flag_load(0, 40) + swiglu(1, 1), pins=hwaits(18),
                      tail=["s_mov_b32 s49, 6", "s_mov_b32 s50, 3"]))
    stamp(b, 22)
    b(".p2align 3\nf_p3:")
    for c in (19, 20):
        ck = check(c % 2, f"f{c}")
        fld = flag_load(c % 2, 40)
        fld[0].deps.append((ck[-1], 0))
        bump = chain(["s_add_u32 s49, s49, 1"], after=ck[-1])
        over.append(chunk(p2_mains(c), c % 2, (progress() if c % 2 else []) + ck + bump + p2_stream(c, ck[-1]) + fld, pins=hwaits(c),
                          tail=[] if c % 2 else ["s_sub_u32 s50, s50, 1"]))
    b("s_cmp_lg_u32 s50, 0\ns_cbranch_scc1 f_p3")
    stamp(b, 23)
    UO, LO = DV, DV + 1
    pb = B()
    unit_offset(pb, UO, TMP, TMP + 1)
    pb(f"""
    s_lshr_b32 s36, s{SJ}, 2
    s_mul_i32 s34, s36, {SZX}
    s_mul_i32 s35, s{STW}, 36864
    s_add_u32 s34, s34, s35
    s_and_b32 s37, s{SJ}, 3
    s_mul_i32 s35, s37, 4608
    s_add_u32 s34, s34, s35
    s_add_u32 s34, s34, s{SL}
    s_add_u32 s34, s34, {PART}
    s_lshl_b32 s35, s{SI}, 2
    s_add_u32 s37, s37, s35
    """)
    setup = [x.strip() for x in pb.lines]
    setup += [f"s_cmp_eq_u32 s36, s{SW}\ns_cselect_b32 s34, {OOB}, s34", "s_add_u32 s35, s34, 4096", f"v_add_u32 v{LO}, {4*CH}, v1"]
    tmaj = [9 * m + tl for tl in range(9) for m in range(4)]
    h3 = chain([(hload(26, 3, 0, "s48"), 0), (hload(26, 3, 1, "s48"), 4)], earliest=1)
    over.append(chunk(p2_mains(25), 1, h3 + chain(setup, earliest=8), pins=hwaits(25)[:3] + [(70, "s_waitcnt vmcnt(@h03)")],
                      refill=False, nxt_order=tmaj))
    mains = [mf16(v(acc2(tl, rt), 4), ring(4 * tl + m), hr(26, m, rt), v(acc2(tl, rt), 4)) for tl in range(9) for m in range(4) for rt in range(2)]

    def out_tile(tl):
        r, p, q = ACC1 + 4 * tl, acc2(tl, 0), acc2(tl, 1)
        return [f"v_cvt_pk_bf16_f32 v{r}, v{p}, v{p+1}", f"v_cvt_pk_bf16_f32 v{r+1}, v{p+2}, v{p+3}",
                f"v_cvt_pk_bf16_f32 v{r+2}, v{q}, v{q+1}", f"v_cvt_pk_bf16_f32 v{r+3}, v{q+2}, v{q+3}",
                (f"v_permlane16_swap_b32 v{r}, v{r+2}", 1), (f"v_permlane16_swap_b32 v{r+1}, v{r+3}", 0),
                f"buffer_store_dwordx4 {v(r,4)}, v{UO}, s[12:15], s{34+tl//8} offen offset:{512*(tl%8)} sc1",
                f"ds_write_b128 v{LO}, {v(r,4)} offset:{1024*tl}"]

    outs, prev = [], None
    for tl in range(7):
        c = chain(out_tile(tl)[:7], earliest=8 * tl + 12, after=prev)
        outs += c
        prev = c[-1]
    over.append(chunk(mains, 0, outs, refill=False, order=tmaj, last=True))
    for tl in (7, 8):
        for t in out_tile(tl)[:7]:
            if isinstance(t, tuple):
                b(("s_nop 0\n" if t[1] else "") + t[0])
            else:
                b(t)
    b(f"s_cmp_lg_u32 s36, s{SW}\ns_cbranch_scc1 f_nokeep")
    for tl in range(9):
        b(out_tile(tl)[7])
    b("f_nokeep:")
    stamp(b, 24)
    signal(b, "f", C_P, 37)
    stamp(b, 25)
    print("ffn (overflow, last gap):", over, file=sys.stderr)
    return "\n".join(slow)


def phase_r(b, name):
    D0, PK = 16, 80
    b(f"s_cmp_lg_u32 s{SL}, 0\ns_mov_b32 s39, s37\ns_cbranch_scc1 r_nowq")
    wq_dma(b)
    b("r_nowq:")
    unit_offset(b, 5, 6, 7)
    tile_base(b, 34, 35)
    b(f"""
    s_mul_i32 s35, s{SW}, 3072
    s_add_u32 s35, s35, {4*CH}
    v_add_u32 v6, s35, v1
    s_add_u32 s35, s34, s{SL}
    s_add_u32 s35, s35, {PART}
    """)
    d = lambda src, n: D0 + (src * 3 + n) * 4
    for n in range(3):
        b(f"ds_read_b128 {v(d(0,n),4)}, v6 offset:{1024*n}")
    for k in range(1, 4):
        b(f"s_add_u32 s38, s36, {k}\ns_and_b32 s38, s38, 3\ns_mul_i32 s38, s38, {SZX}\ns_add_u32 s{40+k}, s38, s35")

    def add(src):
        for n in range(3):
            for j in range(4):
                for h in range(2):
                    r = RES + 8 * n + 2 * j + h
                    b(f"v_dot2_f32_bf16 v{r}, v{d(src,n)+j}, s{30+h}, v{r}")

    b("s_waitcnt lgkmcnt(0)")
    add(0)
    poll(b, "r", C_P, 39, 4, True)
    stamp(b, 26)
    b(f"s_cmp_eq_u32 s{SW}, 3\ns_cbranch_scc1 r_idle")
    for src in range(1, 4):
        for n in range(3):
            b(f"buffer_load_dwordx4 {v(d(src,n),4)}, v5, s[12:15], s{40+src} offen offset:{512*n} sc1 ;#p{src}")
    for src in range(1, 4):
        b(f"s_waitcnt vmcnt(@p{src})")
        add(src)
    stamp(b, 27)
    res_pack(b, PK)
    b(f"s_cmp_lg_u32 s{SL}, 0\ns_cbranch_scc1 r_last")
    for n in range(3):
        b(f"buffer_store_dwordx4 {v(PK+4*n,4)}, v5, s[12:15], s34 offen offset:{512*n} sc1")
    b(f"r_idle:\ns_cmp_lg_u32 s{SL}, 0\ns_cbranch_scc1 r_exit")
    stamp(b, 28)
    signal(b, "r", C_X2, STJ)
    if DIAG:
        stamp(b, 29)
        stamp_real(b, 31)
        stamp_flush(b, "2")
        stamp_real(b, 30)
        stamp(b, 0)
    b(f"""
    s_mov_b32 s{SL}, {LST}
    s_add_u32 s{SC}, s{SC}, {CL}
    s_branch layer
r_last:
    """)
    row_tile(b, 5, 34)
    srd(b, 16, 6, 0, SZX)
    for n in range(3):
        b(f"buffer_store_dwordx4 {v(PK+4*n,4)}, v5, s[16:19], s34 offen offset:{32*n}")
    b("r_exit:")


def row_tile(b, vd, sd):
    b(f"""
    v_and_b32 v{vd}, 31, v0
    v_mul_u32_u24 v{vd}, 1152, v{vd}
    v_bfe_u32 v{vd+1}, v0, 5, 1
    v_lshl_add_u32 v{vd}, v{vd+1}, 4, v{vd}
    s_and_b32 s{sd}, s{SJ}, 3
    s_mul_i32 s{sd}, s{sd}, 3
    s_add_u32 s{sd}, s{sd}, s{SW}
    s_mul_i32 s{sd}, s{sd}, 96
    s_mul_i32 s{sd+1}, s{STJ}, 36864
    s_add_u32 s{sd}, s{sd}, s{sd+1}
    """)


def gen_main(name):
    b = B()
    JB = int(OPT.get("jb", 2))
    head(b, name, 256, [(4, "ws"), (6, "out")])
    b(f"""
    v_lshrrev_b32 v5, 6, v0
    v_and_b32 v1, 63, v0
    v_lshlrev_b32 v1, 4, v1
    v_readfirstlane_b32 s{SW}, v5
    v_mov_b32 v2, 0
    v_mov_b32 v3, 1
    s_bfe_u32 s34, s2, {(4-JB) << 16}
    s_lshl_b32 s34, s34, {JB}
    s_bfe_u32 s35, s2, {(JB << 16) + 3}
    s_add_u32 s{SJ}, s34, s35
    s_bfe_u32 s34, s2, {((JB-1) << 16) + 4 - JB}
    s_lshl_b32 s34, s34, {5-JB}
    s_lshr_b32 s35, s2, {3+JB}
    s_add_u32 s{SI}, s34, s35
    s_lshl_b32 s34, s{SI}, 2
    s_add_u32 s{STW}, s34, s{SW}
    s_lshr_b32 s35, s{SJ}, 2
    s_add_u32 s{STJ}, s34, s35
    s_mov_b32 s{SL}, 0
    s_mov_b32 s{SC}, {CNT}
    s_mov_b32 s30, 0x3f80
    s_mov_b32 s31, 0x3f800000
    """)
    unit_offset(b, 7, 8, 9)
    tile_base(b, 34, 35)
    b(f"s_add_u32 s34, s34, {LST+X2}")
    b("s_waitcnt lgkmcnt(0)")
    srd(b, 12, 4, 0, WS_END)
    for n in range(3):
        b(f"buffer_load_dwordx4 {v(80+4*n,4)}, v7, s[12:15], s34 offen offset:{512*n} ;#res")
    wq_dma(b)
    b("s_waitcnt vmcnt(@res)")
    for k in range(12):
        b(f"v_lshlrev_b32 v{RES+2*k}, 16, v{80+k}\nv_and_b32 v{RES+2*k+1}, 0xffff0000, v{80+k}")
    b("layer:")
    phase_q(b)
    phase_a(b)
    phase_o(b)
    slow = phase_f(b)
    phase_r(b, name)
    finish(b, name, "3")
    b(slow)
    return dict(name=name, text=resolve_waits(b.text()), grid=256, block=256, lds=163840)


def build_all():
    import gen
    gen.OPT.clear()
    ks = [gen_prep("prep_kernel"), gen_main("main_kernel")]
    txt = gen.assemble(ks, [k["name"] for k in ks])
    return re.sub(r"quad_perm:\[(\d):(\d):(\d):(\d)\]", r"quad_perm:[\1,\2,\3,\4]", txt)


if __name__ == "__main__":
    for x in [x for x in sys.argv if "=" in x]:
        k, val = x.split("=")
        OPT[k] = val.replace("_", " ")
        sys.argv.remove(x)
    if "--diag" in sys.argv:
        DIAG = True
        sys.argv.remove("--diag")
    open(sys.argv[1], "w").write(build_all())
```

```python
import math, re, struct, sys
from asmlib import B, Prog, v, a, s, weave, Op, chain, sched, resolve_waits
from gen import fbits, sdiv, srd, mf16, transpose8, ARG, HEADER

SZX = 2048 * 576 * 2
REC = 2432
KVJ = 128 * REC
X2, OB, X1, PART, HB, KV = 0, SZX, 2 * SZX, 3 * SZX, 7 * SZX, 15 * SZX
LST = KV + 16 * KVJ
WQ = 2 * LST
WQH = 126 * 1024
WQ1 = WQ + 16 * WQH
WO = WQ1 + 16 * WQH
WOS = 164 * 1024
WF = WO + 4 * WOS
CH = 36864
WFS = 27 * CH
CNT = WF + 16 * WFS
WS_END = CNT + 131072
CL = 49152
C_PREP = 32 * 128
LOFF = 0x30000
C_KV, C_O, C_X1, C_X2, C_H, C_P = 0, 16 * 128, 64 * 128, 128 * 128, 192 * 128, 256 * 128
RES = 232
OOB = 0x40000000
QX = 131072
STAMPS = 200 << 20
OPT = {}
DIAG = False
SI, SJ, SL, SC, STW, STJ, SW = 24, 25, 26, 27, 28, 29, 33


def stamp(b, i):
    if DIAG:
        b(f"s_memtime s[62:63]\ns_waitcnt lgkmcnt(0)\ns_mov_b32 s{64+i}, s62")


def stamp_real(b, i):
    if DIAG:
        b(f"s_memrealtime s[62:63]\ns_waitcnt lgkmcnt(0)\ns_mov_b32 s{64+i}, s62")


def stamp_flush(b, slot):
    if not DIAG:
        return
    b(f"""
    s_lshl_b32 s62, {slot}, 8
    s_add_u32 s62, s62, s2
    s_lshl_b32 s62, s62, 4
    s_add_u32 s62, s62, s{SW}
    s_lshl_b32 s62, s62, 7
    s_add_u32 s96, s4, {STAMPS}
    s_addc_u32 s97, s5, 0
    s_mov_b32 s98, {32 << 20}
    s_mov_b32 s99, 0x20000
    v_mov_b32 v8, 0
    """)
    for q in range(8):
        for j in range(4):
            b(f"v_mov_b32 v{4+j}, s{64+4*q+j}")
        b(f"buffer_store_dwordx4 v[4:7], v8, s[96:99], s62 offen offset:{16*q}\ns_nop 1")


def head(b, name, nwg, loads):
    b(f"s_cmp_ge_u32 s2, {nwg}\ns_cbranch_scc1 {name}_end")
    if DIAG:
        for i in range(32):
            b(f"s_mov_b32 s{64+i}, 0")
        stamp_real(b, 30)
        stamp(b, 0)
    for reg, arg in loads:
        b(f"s_load_dwordx2 s[{reg}:{reg+1}], s[0:1], {ARG[arg]}")


def finish(b, name, slot):
    if DIAG:
        b("s_waitcnt vmcnt(0)")
        stamp(b, 29)
        stamp_real(b, 31)
        stamp_flush(b, slot)
    b(f"{name}_end:\ns_endpgm")


def window(b, d, off, size):
    b(f"s_add_u32 s{d}, s4, s{off}\ns_addc_u32 s{d+1}, s5, 0\ns_mov_b32 s{d+2}, {size}\ns_mov_b32 s{d+3}, 0x20000")


def ln_tail(b, A0, n, mean, rstd, dst):
    for j in range(n):
        b(f"v_sub_f32 v{A0+j}, v{A0+j}, v{mean}")
    for j in range(n):
        b(f"v_mul_f32 v{A0+j}, v{A0+j}, v{rstd}")
    for j in range(n // 2):
        b(f"v_cvt_pk_bf16_f32 v{dst+j}, v{A0+2*j}, v{A0+2*j+1}")


def ln_stats(b, sm, sq):
    b(f"""
    v_mul_f32 v{sm}, {fbits(1/576)}, v{sm}
    v_mul_f32 v{sq}, {fbits(1/576)}, v{sq}
    v_fma_f32 v{sq}, -v{sm}, v{sm}, v{sq}
    v_max_f32 v{sq}, 0, v{sq}
    v_add_f32 v{sq}, {fbits(1e-5)}, v{sq}
    """)


def row_reduce(b, sm, sq):
    b(f"""
    s_nop 1
    v_permlane32_swap_b32 v{sm}, v{sq}
    s_nop 0
    v_add_f32 v{sm}, v{sm}, v{sq}
    v_mov_b32 v{sq}, v{sm}
    s_nop 1
    v_permlane16_swap_b32 v{sm}, v{sq}
    s_nop 0
    v_add_f32 v{sm}, v{sm}, v{sq}
    s_nop 1
    v_add_f32 v{sm}, v{sm}, v{sm} row_ror:8 row_mask:0xf bank_mask:0xf
    """)


def gen_prep(name):
    b = B()
    head(b, name, 288, [(4, "ws"), (8, "x")])
    b(f"""
    v_lshrrev_b32 v5, 6, v0
    v_and_b32 v6, 15, v0
    v_lshrrev_b32 v7, 4, v0
    v_readfirstlane_b32 s33, v5
    s_cmp_ge_u32 s2, 216
    s_cbranch_scc1 {name}_wo
    s_load_dwordx2 s[6:7], s[0:1], {ARG['wqkv']}
    """)
    sdiv(b, 34, 2, 3, 216)
    b(f"""
    s_mul_i32 s35, s34, 3
    s_sub_u32 s35, s2, s35
    s_mul_i32 s38, s34, {8*3456}
    s_mul_i32 s36, s35, 1152
    s_add_u32 s38, s38, s36
    s_lshr_b32 s36, s34, 2
    s_mul_i32 s39, s36, 7168
    s_add_u32 s39, s39, {WQ}
    s_mov_b32 s22, {576*1728*2}
    s_mov_b32 s43, {4*3456}
    s_mov_b32 s44, {2*3456}
    s_mov_b32 s45, 3456
    s_cmp_eq_u32 s33, 8
    s_cbranch_scc1 {name}_qt
    v_lshrrev_b32 v8, 1, v7
    v_and_b32 v9, 1, v7
    v_mul_u32_u24 v10, 72, v8
    v_mul_u32_u24 v11, {WQH}, v8
    v_lshl_add_u32 v11, v9, 10, v11
    v_lshl_add_u32 v11, v6, 4, v11
    s_lshl_b32 s36, s35, 11
    s_add_u32 s39, s39, s36
    s_cmp_eq_u32 s35, 2
    s_cbranch_scc1 {name}_qv
    v_lshl_add_u32 v10, v9, 3, v10
    v_lshrrev_b32 v8, 3, v6
    v_mad_u32_u24 v10, v8, 36, v10
    v_bfe_u32 v8, v6, 2, 1
    v_lshl_add_u32 v10, v8, 4, v10
    v_and_b32 v8, 3, v6
    v_lshl_add_u32 v10, v8, 1, v10
    s_branch {name}_go
{name}_qv:
    v_mad_u32_u24 v10, v9, 36, v10
    v_lshl_add_u32 v10, v6, 1, v10
    s_branch {name}_go
{name}_qt:
    v_bfe_u32 v8, v0, 1, 5
    v_mul_u32_u24 v10, 36, v8
    v_and_b32 v8, 1, v0
    v_lshl_add_u32 v10, v8, 1, v10
    v_add_u32 v10, 32, v10
    v_bfe_u32 v8, v0, 2, 4
    v_mul_u32_u24 v11, {WQH}, v8
    v_and_b32 v8, 3, v0
    v_lshl_add_u32 v11, v8, 4, v11
    s_lshl_b32 s36, s35, 6
    s_add_u32 s39, s39, s36
    s_add_u32 s39, s39, 6144
    s_branch {name}_go
{name}_wo:
    s_load_dwordx2 s[6:7], s[0:1], {ARG['wo']}
    s_sub_u32 s34, s2, 216
    s_mov_b32 s35, 1
    s_mov_b32 s22, {576*576*2}
    s_lshr_b32 s38, s34, 1
    s_mul_i32 s38, s38, {18*1152}
    s_and_b32 s36, s34, 1
    s_mul_i32 s36, s36, {4*1152}
    s_add_u32 s38, s38, s36
    s_mov_b32 s43, {8*1152}
    s_mov_b32 s44, {2*1152}
    s_mov_b32 s45, 1152
    s_cmp_lt_u32 s34, 64
    s_cbranch_scc1 {name}_wo2
    s_sub_u32 s38, s34, 64
    s_mul_i32 s38, s38, {72*1152}
    s_add_u32 s38, s38, {16*1152}
    s_mov_b32 s43, {36*1152}
    s_mov_b32 s44, {18*1152}
{name}_wo2:
    s_mov_b32 s39, {WO}
    s_lshr_b32 s36, s34, 2
    v_lshlrev_b32 v10, 1, v0
    v_mul_u32_u24 v8, 43, v7
    v_lshrrev_b32 v8, 7, v8
    v_mul_u32_u24 v9, 3, v8
    v_sub_u32 v9, v7, v9
    v_mad_u32_u24 v9, v9, 18, s36
    v_mul_u32_u24 v12, 43, v8
    v_lshrrev_b32 v12, 7, v12
    v_mul_u32_u24 v13, 3, v12
    v_sub_u32 v8, v8, v13
    v_mad_u32_u24 v13, v8, 12, v9
    v_mad_u32_u24 v14, v8, 26, v9
    v_add_u32 v14, 24, v14
    v_lshl_add_u32 v15, v8, 4, v9
    v_add_u32 v15, 78, v15
    v_cmp_gt_u32 vcc, 12, v9
    v_cmp_gt_u32 s[40:41], 38, v9
    v_mul_u32_u24 v11, {WOS}, v12
    v_lshl_add_u32 v11, v6, 4, v11
    v_cndmask_b32 v14, v15, v14, s[40:41]
    v_cndmask_b32 v13, v14, v13, vcc
    v_lshl_add_u32 v11, v13, 10, v11
{name}_go:
    s_and_b32 s36, s34, 3
    s_lshl_b32 s36, s36, 8
    s_add_u32 s39, s39, s36
    v_lshrrev_b32 v2, 3, v0
    v_and_b32 v3, 7, v0
    v_mul_u32_u24 v4, 1152, v3
    v_lshl_add_u32 v4, v2, 4, v4
    v_lshlrev_b32 v2, 8, v2
    v_lshl_add_u32 v2, v3, 4, v2
    s_mul_i32 s11, s2, 9216
    s_waitcnt lgkmcnt(0)
    s_mov_b32 s20, s6
    s_mov_b32 s21, s7
    s_mov_b32 s23, 0x20000
    """)
    assert all((t * 43) >> 7 == t // 3 for t in range(36))
    srd(b, 16, 8, 0, SZX)
    b("buffer_load_dwordx4 v[12:15], v4, s[16:19], s11 offen ;#x")
    for j in range(8):
        b("s_mov_b32 s36, s38")
        for bit, r in ((4, 43), (2, 44), (1, 45)):
            if j & bit:
                b(f"s_add_u32 s36, s36, s{r}")
        b(f"buffer_load_ushort v{16+j}, v10, s[20:23], s36 offen ;#w")
    srd(b, 12, 4, 0, WS_END)
    srd(b, 24, 4, LST + X2, SZX)
    b(f"""
    s_lshr_b32 s10, s2, 1
    s_mul_i32 s10, s10, 18432
    s_and_b32 s11, s2, 1
    s_lshl_b32 s11, s11, 7
    s_add_u32 s10, s10, s11
    v_lshlrev_b32 v6, 2, v0
    v_mov_b32 v7, {OOB}
    v_cmp_gt_u32 vcc, 128, v0
    v_mov_b32 v8, 0
    s_lshl_b32 s11, s2, 9
    v_cndmask_b32 v6, v7, v6, vcc
    s_add_u32 s11, s11, {CNT}
    buffer_store_dword v8, v6, s[12:15], s11 offen
    v_lshlrev_b32 v3, 2, v3
    v_lshl_add_u32 v4, v5, 5, v3
    s_waitcnt vmcnt(@x)
    """)
    A0 = 32
    for j in range(4):
        b(f"v_lshlrev_b32 v{A0+2*j}, 16, v{12+j}\nv_and_b32 v{A0+2*j+1}, 0xffff0000, v{12+j}")
    b(f"v_add_f32 v6, v{A0}, v{A0+1}")
    for j in range(2, 8):
        b(f"v_add_f32 v6, v6, v{A0+j}")
    b("v_mov_b32 v7, v6")
    row_reduce(b, 6, 7)
    b("ds_write_b32 v4, v6\ns_waitcnt vmcnt(@w)")
    for j in range(4):
        b(f"v_lshl_or_b32 v{24+j}, v{17+2*j}, 16, v{16+2*j}")
    b(f"""
    buffer_store_dwordx4 v[24:27], v11, s[12:15], s39 offen
    s_lshl_b32 s36, s35, 4
    s_add_u32 s36, s36, s33
    s_cmp_lg_u32 s36, 8
    s_cbranch_scc1 {name}_noone
    """)
    for j in range(4):
        b(f"v_mov_b32 v{28+j}, 0x3f803f80")
    b(f"buffer_store_dwordx4 v[28:31], v11, s[12:15], s39 offen offset:192\n{name}_noone:\ns_waitcnt lgkmcnt(0)\ns_barrier")
    for w in range(9):
        b(f"ds_read_b32 v{40+w}, v3 offset:{32*w}")
    b("s_waitcnt lgkmcnt(0)")
    for w in range(1, 9):
        b(f"v_add_f32 v40, v40, v{40+w}")
    b(f"v_mul_f32 v40, {fbits(1/576)}, v40")
    for j in range(8):
        b(f"v_sub_f32 v{A0+j}, v{A0+j}, v40")
    for j in range(4):
        b(f"v_cvt_pk_bf16_f32 v{12+j}, v{A0+2*j}, v{A0+2*j+1}")
    b("buffer_store_dwordx4 v[12:15], v2, s[24:27], s10 offen")
    if DIAG:
        b(f"s_cmp_ge_u32 s2, 256\ns_cbranch_scc1 {name}_end")
    finish(b, name, "1")
    return dict(name=name, text=resolve_waits(b.text()), grid=288, block=576, lds=512)


def signal(b, tag, base, idx, wave=3, extra=None):
    b(f"""
    s_lshl_b32 s60, s{idx}, 7
    s_add_u32 s60, s60, s{SC}
    s_add_u32 s60, s60, {base}
    s_waitcnt vmcnt(0) lgkmcnt(0)
{tag}_bar:
    s_barrier
    s_cmp_lg_u32 s{SW}, {wave}
    s_cbranch_scc1 {tag}_sig
    s_mov_b64 exec, 1
    buffer_atomic_add v3, v2, s[12:15], s60 offen sc1
    """)
    if extra:
        b(f"buffer_atomic_add v3, v2, s[12:15], s{extra} offen sc1")
    b(f"s_mov_b64 exec, -1\n{tag}_sig:")


def poll(b, tag, base, idx, target, one_wave):
    b(f"""
    s_lshl_b32 s60, s{idx}, 7
    s_add_u32 s60, s60, s{SC}
    s_add_u32 s60, s60, {base}
    s_mov_b32 s61, 0x40000
    """)
    if one_wave:
        b(f"s_cmp_lg_u32 s{SW}, 3\ns_cbranch_scc1 {tag}_ok")
    b(f"""
{tag}_poll:
    buffer_load_dword v4, v2, s[12:15], s60 offen sc1
    s_sub_u32 s61, s61, 1
    s_waitcnt vmcnt(0)
    v_cmp_gt_u32 vcc, {target}, v4
    s_cbranch_scc1 {tag}_ok
    s_cbranch_vccnz {tag}_poll
{tag}_ok:
    """)
    if one_wave:
        b("s_barrier")


def dma_run(b, n, srdn, soff, flags=""):
    for i in range(n):
        off = f" offset:{1024*(i%4)}" if i % 4 else ""
        b(f"buffer_load_dwordx4 v1, s[{srdn}:{srdn+3}], s{soff} offen{off}{flags} lds")
        if i % 4 == 3 and i < n - 1:
            b(f"s_add_u32 m0, m0, 4096\ns_add_u32 s{soff}, s{soff}, 4096")


def pack4(b, dst, p, q):
    b(f"""
    v_cvt_pk_bf16_f32 v{dst}, v{p}, v{p+1}
    v_cvt_pk_bf16_f32 v{dst+1}, v{p+2}, v{p+3}
    v_cvt_pk_bf16_f32 v{dst+2}, v{q}, v{q+1}
    v_cvt_pk_bf16_f32 v{dst+3}, v{q+2}, v{q+3}
    """)


def unit_offset(b, dst, t0, t1):
    b(f"""
    v_bfe_u32 v{t0}, v0, 4, 1
    v_bfe_u32 v{t1}, v0, 5, 1
    v_mul_u32_u24 v{dst}, 18432, v{t0}
    v_lshl_add_u32 v{dst}, v{t1}, 8, v{dst}
    v_and_b32 v{t0}, 15, v0
    v_lshl_add_u32 v{dst}, v{t0}, 4, v{dst}
    """)


def wq_dma(b, base):
    b(f"""
    s_lshl_b32 s10, s{SW}, 10
    s_mul_i32 s11, s{SJ}, {WQH}
    s_add_u32 s11, s11, s10
    s_add_u32 s11, s11, {base}
    """)
    for i in range(11):
        b("s_mov_b32 m0, s10\ns_add_u32 s10, s10, 4096\nbuffer_load_dwordx4 v1, s[12:15], s11 offen sc1 lds\ns_add_u32 s11, s11, 4096")


def phase_q(b):
    ACC, XQ, TMP, RV, RB = 16, 80, 128, 168, 184
    IMG = QX + 9216
    b(f"""
    s_mul_i32 s34, s{STW}, 36864
    s_add_u32 s34, s34, {LST+X2}
    s_sub_u32 s34, s34, s{SL}
    s_add_u32 s16, s4, s34
    s_addc_u32 s17, s5, 0
    s_mov_b32 s18, 18432
    s_mov_b32 s19, 0x20000
    s_add_u32 s20, s16, 18432
    s_addc_u32 s21, s17, 0
    s_mov_b32 s22, 18432
    s_mov_b32 s23, 0x20000
    """)
    for i in range(8, 80):
        b(f"v_mov_b32 v{i}, 0")
    b(f"s_cmp_eq_u32 s{SL}, 0\ns_cbranch_scc1 q_ok")
    poll(b, "q", C_X2 - CL, STW, 4, False)
    stamp(b, 1)
    xq = lambda p, rt: XQ + ((p % 6) * 2 + rt) * 4
    xload = lambda p, rt: f"buffer_load_dwordx4 {v(xq(p, rt),4)}, v1, s[{16+4*rt}:{19+4*rt}], s36 offen sc1 ;#x{p%6}"
    b("s_mov_b32 s36, 0")
    for p in range(5):
        b(xload(p, 0) + "\n" + xload(p, 1) + "\ns_add_u32 s36, s36, 1024")
    acc = lambda f, rt: ACC + (f * 2 + rt) * 4
    ring = lambda ks, f: a((ks % 2) * 28 + f * 4, 4)
    reads = lambda p: [f"ds_read_b128 {ring(p, f)}, v5 offset:{(p*7+f)*1024}" for f in range(7)]
    b("v_mov_b32 v5, v1\ns_mov_b32 s37, 3\ns_waitcnt vmcnt(10)\ns_barrier")
    b("\n".join(reads(0)))
    stamp(b, 2)
    b(".p2align 3\nq_loop:")
    for p in range(6):
        mains = []
        for f in range(8):
            for rt in range(2):
                w, x, d = ring(p, min(f, 6)), v(xq(p, rt), 4), v(acc(f, rt), 4)
                mains.append(mf16(d, x, w, d) if f in (4, 5, 7) else mf16(d, w, x, d))
        pinned = [(1 + i, t) for i, t in enumerate(reads(p + 1))]
        pinned += [(0, xload(p + 5, 0)), (8, xload(p + 5, 1)), (9, "s_add_u32 s36, s36, 1024")]
        for gq in (3, 11):
            pinned += [(gq, "s_mov_b32 m0, s10"), (gq + 1, f"buffer_load_dwordx4 v1, s[12:15], s11 offen sc1 lds ;#wq{p//3}"),
                       (gq + 2, "s_add_u32 s10, s10, 4096"), (gq + 3, "s_add_u32 s11, s11, 4096")]
        if p % 3 == 2:
            pinned = [(0, f"s_waitcnt vmcnt(@wq{1-p//3})\ns_barrier")] + pinned
        if p == 5:
            pinned += [(10, "v_add_u32 v5, 43008, v5"), (10, "s_sub_u32 s37, s37, 1"),
                       (15, "s_cmp_eq_u32 s37, 1\n" + f"s_cselect_b32 s11, {OOB}, s11\ns_cselect_b32 s10, {LOFF}, s10\ns_cmp_lg_u32 s37, 0")]
        mains = [mf16(v(8 + 4 * rt, 4), v(xq(p, rt), 4), v(xq(p, rt), 4), v(8 + 4 * rt, 4)) for rt in range(2)] + mains
        first = mains[:2]
        b(f"s_waitcnt vmcnt(@x{p})\n{first[0]}\n{first[1]}\ns_waitcnt lgkmcnt(0)")
        b(sched(mains[2:], pinned, [])[0])
    b("s_cbranch_scc1 q_loop")
    stamp(b, 3)
    b(f"""
    v_and_b32 v4, 3, v0
    v_cmp_eq_u32 s[50:51], 1, v4
    v_cmp_eq_u32 s[52:53], 2, v4
    v_cmp_eq_u32 s[54:55], 3, v4
    v_and_b32 v5, 15, v0
    v_lshrrev_b32 v7, 2, v5
    v_lshl_add_u32 v7, v7, 4, v5
    v_lshlrev_b32 v7, 2, v7
    v_lshlrev_b32 v6, 2, v5
    s_waitcnt lgkmcnt(0)
    """)
    for rt in range(2):
        gq = 8 + 4 * rt
        b(f"""
        ds_bpermute_b32 v{RV+rt}, v6, v{acc(6,rt)} offset:192
        v_cndmask_b32 v{gq}, v{gq}, v{gq+1}, s[50:51]
        v_cndmask_b32 v{gq}, v{gq}, v{gq+2}, s[52:53]
        v_cndmask_b32 v{gq}, v{gq}, v{gq+3}, s[54:55]
        ds_bpermute_b32 v{RV+2+rt}, v7, v{gq}
        """)
    b(f"""
    v_mov_b32 v12, v5
    v_bfe_u32 v4, v0, 4, 2
    v_lshrrev_b32 v13, 1, v4
    v_and_b32 v14, 1, v4
    v_lshlrev_b32 v15, 4, v4
    s_mul_i32 s38, s{SW}, 1152
    s_add_u32 s38, s38, {QX}
    s_mul_i32 s39, s{SW}, {2*REC}
    s_add_u32 s39, s39, {IMG}
    v_mul_u32_u24 v6, 4608, v13
    v_lshl_add_u32 v6, v14, 9, v6
    v_lshl_add_u32 v6, v12, 4, v6
    v_add_u32 v6, s38, v6
    s_waitcnt lgkmcnt(0)
    """)
    for rt in range(2):
        ln_stats(b, RV + rt, RV + 2 + rt)
        b(f"v_rsq_f32 v{8+rt}, v{RV+2+rt}")
    b("s_nop 0")
    for rt in range(2):
        for i in range(4):
            b(f"ds_bpermute_b32 v{RV+4*rt+i}, v15, v{8+rt} offset:{4*i}")
    TA = RV + 8
    b(f"""
    v_mul_u32_u24 v7, {REC}, v13
    v_lshl_add_u32 v7, v14, 9, v7
    v_lshrrev_b32 v13, 2, v12
    v_and_b32 v15, 3, v12
    v_lshl_add_u32 v15, v13, 3, v15
    v_lshl_add_u32 v7, v15, 4, v7
    v_add_u32 v7, s39, v7
    v_cmp_eq_u32 s[48:49], 0, v4
    v_cmp_eq_u32 s[52:53], 3, v13
    s_add_u32 s40, s38, 1024
    s_add_u32 s41, s39, 2176
    v_lshl_add_u32 v{TA}, v12, 2, s40
    v_lshl_add_u32 v15, v15, 2, s41
    v_cndmask_b32 v{TA}, v15, v{TA}, s[48:49]
    v_mov_b32 v13, {REC}
    v_mov_b32 v14, 4608
    v_mov_b32 v15, 16
    v_cndmask_b32 v13, v13, v14, s[48:49]
    v_cndmask_b32 v15, v15, 64, s[48:49]
    v_add_u32 v{TA+1}, v{TA}, v13
    v_add_u32 v{TA+2}, v{TA}, v15
    v_add_u32 v{TA+3}, v{TA+1}, v15
    v_mul_u32_u24 v10, 288, v4
    v_and_b32 v14, 1, v12
    v_lshl_add_u32 v11, v14, 4, v10
    v_mov_b32 v14, 1024
    v_lshl_add_u32 v10, v12, 4, v10
    v_cndmask_b32 v11, v11, v14, s[52:53]
    v_bfe_u32 v14, v12, 1, 1
    v_mul_u32_u24 v14, {REC}, v14
    v_add3_u32 v11, v11, v14, s39
    v_add_u32 v10, s39, v10
    v_mul_f32 v12, {fbits(math.log2(math.e) / math.sqrt(18))}, v8
    v_mul_f32 v13, {fbits(math.log2(math.e) / math.sqrt(18))}, v9
    v_mov_b32 v5, 0x3f803f80
    v_cndmask_b32 v14, v8, v12, s[48:49]
    v_cndmask_b32 v15, v9, v13, s[48:49]
    """)

    def scale(f, rt, by):
        for i in range(4):
            b(f"v_mul_f32 v{acc(f,rt)+i}, v{by(i)}, v{acc(f,rt)+i}")

    T = TMP
    for rt in range(2):
        scale(2, rt, lambda i: 8 + rt)
        scale(3, rt, lambda i: 8 + rt)
        pack4(b, T, acc(2, rt), acc(3, rt))
        b(f"ds_write_b128 v7, {v(T,4)} offset:{64*rt}")
        T += 4
    for rt in range(2):
        scale(6, rt, lambda i: 14 + rt)
    pack4(b, T, acc(6, 0), acc(6, 1))
    b("s_mov_b64 exec, 0xffffffff")
    for k in range(4):
        b(f"ds_write_b32 v{TA+k}, v{T+k}")
    b("s_mov_b64 exec, -1\ns_waitcnt lgkmcnt(6)")
    T += 4
    for f in (4, 5, 7):
        for rt in range(2):
            scale(f, rt, lambda i: RV + 4 * rt + i)
        pack4(b, T, acc(f, 0), acc(f, 1))
        if f < 7:
            b(f"ds_write_b128 v10, {v(T,4)} offset:{1024+REC*(f-4)}")
        else:
            for i in range(4):
                b(f"v_cndmask_b32 v{T+i}, v{T+i}, v5, s[52:53]")
            b(f"s_mov_b32 exec_lo, 0xff00ff00\ns_mov_b32 exec_hi, 0xff00ff00\nds_write_b128 v11, {v(T,4)} offset:1280\ns_mov_b64 exec, -1")
        T += 4
    b(f"""
    v_add_u32 v7, s39, v1
    v_add_u32 v10, 4096, v1
    v_mov_b32 v11, {OOB}
    v_cmp_gt_u32 vcc, 768, v1
    s_mul_i32 s43, s{SJ}, {KVJ}
    s_mul_i32 s44, s{STW}, {2*REC}
    v_cndmask_b32 v10, v11, v10, vcc
    s_add_u32 s43, s43, s44
    s_add_u32 s43, s43, s{SL}
    s_add_u32 s43, s43, {KV}
    s_waitcnt lgkmcnt(0)
    """)
    for n in range(5):
        b(f"ds_read_b128 {v(RB+4*n,4)}, v7 offset:{1024*n}")
    scale(0, 0, lambda i: 12)
    scale(1, 0, lambda i: 12)
    for n in range(5):
        b(f"s_waitcnt lgkmcnt({4-n})")
        b(f"buffer_store_dwordx4 {v(RB+4*n,4)}, " + (f"v1, s[12:15], s43 offen offset:{1024*n}" if n < 4 else "v10, s[12:15], s43 offen") + " sc1")
    scale(0, 1, lambda i: 13)
    scale(1, 1, lambda i: 13)
    for rt in range(2):
        pack4(b, T, acc(0, rt), acc(1, rt))
        b(f"ds_write_b128 v6, {v(T,4)} offset:{256*rt}")
        T += 4
    stamp(b, 4)
    signal(b, "q", C_KV, SJ)
    stamp(b, 5)


def wo_loads(lo, hi):
    out = []
    for n in range(lo, hi):
        off = f" offset:{1024*((n-lo)%4)}" if (n - lo) % 4 else ""
        t = f"buffer_load_dwordx4 {a(4*n,4)}, v1, s[12:15], s38 offen{off}"
        if (n - lo) % 4 == 3:
            t += "\ns_add_u32 s38, s38, 4096"
        out.append(t)
    return out


def wo_base(b, part, per):
    b(f"""
    s_and_b32 s38, s{SJ}, 3
    s_mul_i32 s38, s38, {WOS}
    s_mul_i32 s39, s{SW}, {1024*per}
    s_add_u32 s38, s38, s39
    s_add_u32 s38, s38, {WO + 1024*part}
    s_cmp_eq_u32 s{SW}, 3
    s_cselect_b32 s38, {OOB}, s38
    """)


def centre(b, fr, n, tmp, mean, after=None):
    for k in range(n):
        for j in range(4):
            for h in range(2):
                b(f"v_dot2_f32_bf16 v{tmp+2*j+h}, v{fr+4*k+j}, s{30+h}, v{mean}")
        for j in range(4):
            b(f"v_cvt_pk_bf16_f32 v{fr+4*k+j}, v{tmp+2*j}, v{tmp+2*j+1}")
        if after:
            b(after(k))


def wq_centre(b):
    F0, ONE, SM = 96, 12, 8
    b(f"s_cmp_lg_u32 s{SL}, 0\ns_cbranch_scc1 c_done\ns_cmp_eq_u32 s{STW}, 63\ns_cbranch_scc1 c_done")
    sdiv(b, 34, STW, 9, 64)
    b(f"""
    s_mul_i32 s35, s34, 9
    s_sub_u32 s35, s{STW}, s35
    s_lshl_b32 s36, s34, 10
    v_add_u32 v4, s36, v1
    v_add_u32 v5, {9*7168}, v4
    s_mul_i32 s35, s35, 14336
    s_add_u32 s35, s35, s36
    v_add_u32 v6, s35, v1
    """)
    for i in range(4):
        b(f"v_mov_b32 v{ONE+i}, 0x3f803f80")
    for ks in range(18):
        b(f"ds_read_b128 {v(F0+4*ks,4)}, v{4+ks//9} offset:{7168*(ks%9)}")
        if ks == 11:
            b("s_waitcnt lgkmcnt(6)")
    b(f"ds_read_b128 {v(F0+72,4)}, v6\nds_read_b128 {v(F0+76,4)}, v6 offset:7168")
    for ks in range(18):
        if ks >= 6:
            b(f"s_waitcnt lgkmcnt({19-ks})")
        b(mf16(v(SM, 4), v(ONE, 4), v(F0 + 4 * ks, 4), "0" if ks == 0 else v(SM, 4)))
    b(f"""
    v_and_b32 v4, 12, v0
    v_cmp_eq_u32 vcc, 12, v4
    s_cmp_eq_u32 s34, 6
    s_cselect_b64 vcc, vcc, 0
    s_mul_i32 s36, s{SJ}, {WQH}
    s_add_u32 s35, s35, s36
    s_add_u32 s35, s35, {WQ1}
    s_add_u32 s36, s35, 7168
    s_waitcnt lgkmcnt(0)
    v_mul_f32 v{SM}, {fbits(-1/576)}, v{SM}
    v_cndmask_b32 v{SM}, v{SM}, v2, vcc
    """)
    centre(b, F0 + 72, 2, F0, SM)
    b(f"buffer_store_dwordx4 {v(F0+72,4)}, v1, s[12:15], s35 offen sc1\nbuffer_store_dwordx4 {v(F0+76,4)}, v1, s[12:15], s36 offen sc1\nc_done:")


def phase_a(b):
    QM, QT, KM, KT, VF, S, O, MX, IDX = 16, 32, 64, 56, 80, 96, 160, 224, 228
    VD, TR, MEAN, ONE, SM, PF, PT, AF = 40, 44, 46, 48, 52, 64, 88, 112
    AV, AT = 229, 231
    wq_centre(b)
    qm = lambda t: v(QM + 4 * t, 4)
    qt = lambda t: v(QT + 2 * t, 2)
    km = lambda k: a(KM + 4 * (k % 4), 4)
    kt = lambda k: v(KT + 2 * (k % 4), 2)
    vf = lambda k, g: a(VF + 8 * (k % 4) + 4 * g, 4)
    sb = lambda n: S + 16 * (n % 4)
    ob = lambda t: O + 16 * t
    m8 = lambda d, k, t: f"v_mfma_f32_32x32x8_bf16 {v(d,16)}, {kt(k)}, {qt(t)}, 0"
    m16 = lambda d, k, t: f"v_mfma_f32_32x32x16_bf16 {v(d,16)}, {km(k)}, {qm(t)}, {v(d,16)}"
    smf = lambda t, k, g, p: f"v_smfmac_f32_32x32x32_bf16 {v(ob(t),16)}, {vf(k,g)}, {v(p+8*g,8)}, v{IDX}"

    def rec_loads(k):
        tg = f" ;#r{k%4}"
        return [f"buffer_load_dwordx4 {km(k)}, v1, s[16:19], s46 offen sc1{tg} ;#k{k%4}",
                f"buffer_load_dword v{KT+2*(k%4)}, v{AT}, s[16:19], s46 offen offset:2176 sc1{tg} ;#k{k%4}",
                f"buffer_load_dwordx4 {vf(k,0)}, v{AV}, s[16:19], s46 offen sc1{tg}",
                f"buffer_load_dwordx4 {vf(k,1)}, v{AV+1}, s[16:19], s46 offen sc1{tg}"]

    b(f"""
    s_lshr_b32 s37, s{SW}, 1
    s_lshl_b32 s34, s{SJ}, 1
    s_add_u32 s34, s34, s37
    s_and_b32 s35, s{SW}, 1
    s_lshl_b32 s36, s35, 1
    s_mul_i32 s38, s37, 4608
    s_add_u32 s38, s38, {QX}
    s_mul_i32 s39, s36, 1152
    s_add_u32 s40, s38, s39
    s_sub_u32 s41, s38, s39
    v_and_b32 v6, 31, v0
    v_bfe_u32 v7, v0, 5, 1
    v_lshlrev_b32 v{AT}, 2, v6
    v_add_u32 v8, s40, v1
    v_add_u32 v9, s41, v1
    v_add_u32 v10, s40, v{AT}
    v_add_u32 v11, s41, v{AT}
    v_cmp_eq_u32 s[50:51], 0, v7
    """)
    for t in range(4):
        b(f"ds_read_b128 {qm(t)}, v{8 + t // 2} offset:{1152*t}")
        b(f"ds_read_b32 v{QT+2*t}, v{10 + t // 2} offset:{1152*t+1024}")
    b(f"""
    s_mul_i32 s38, s{SW}, {2*REC}
    s_mul_i32 s39, s37, {REC}
    s_add_u32 s38, s38, s39
    s_add_u32 s38, s38, {QX+9216}
    v_add_u32 v8, s38, v1
    v_add_u32 v10, s38, v{AT}
    ds_read_b128 {km(0)}, v8
    ds_read_b32 v{KT}, v10 offset:2176
    """)
    b(f"""
    s_mul_i32 s38, s{SJ}, {KVJ}
    s_add_u32 s38, s38, s39
    s_mul_i32 s39, s35, {64*REC}
    s_add_u32 s38, s38, s39
    s_add_u32 s38, s38, s{SL}
    s_add_u32 s38, s38, {KV}
    """)
    window(b, 16, 38, 63 * REC)
    b(f"""
    v_mul_u32_u24 v8, 288, v7
    v_lshl_add_u32 v8, v6, 4, v8
    v_add_u32 v9, 1600, v8
    v_add_u32 v8, 1024, v8
    v_mov_b32 v10, {OOB}
    v_mov_b32 v11, 2304
    v_and_b32 v12, 27, v6
    v_cmp_eq_u32 vcc, 18, v12
    v_cmp_gt_u32 s[52:53], 18, v6
    v_mov_b32 v{IDX}, 0xdddddddd
    v_cndmask_b32 v10, v10, v11, vcc
    v_cndmask_b32 v{AV}, v10, v8, s[52:53]
    v_cndmask_b32 v{AV+1}, v10, v9, s[52:53]
    s_mov_b32 s49, 0x07060302
    s_mov_b32 s47, 1
    s_mov_b32 s48, 0
    """)
    for k in range(4):
        b(f"v_mov_b32 v{KT+2*k+1}, 0x3f803f80")
    for i in range(8):
        b(f"v_accvgpr_write_b32 a{VF+24+i}, 0")
    wo_base(b, 0, 12)
    b("\n".join(wo_loads(0, 12)))

    def wo_mode(start):
        b(f"""
        s_and_b32 s38, s{SJ}, 3
        s_mul_i32 s38, s38, {WOS}
        s_add_u32 s38, s38, {WO + 36*1024}
        s_lshl_b32 s56, s{SW}, 12
        s_add_u32 s56, s56, {start}
        s_mov_b32 m0, s56
        s_mov_b32 s57, 16384
        """)
        window(b, 20, 38, 128 * 1024)
        for k in range(4):
            b(f"v_mov_b32 v{VD+k}, v1")

    def slots_off():
        b(f"s_mov_b32 s56, {OOB}\ns_mov_b32 s57, 0\ns_mov_b32 s40, 0\ns_mov_b32 m0, {LOFF}")

    b(f"s_mov_b32 s40, 16384\ns_mov_b32 s32, 4\ns_cmp_eq_u32 s{SL}, 0\ns_cbranch_scc1 a_raw")
    wo_mode(0)
    b(f"""
    s_branch a_set
a_raw:
    s_mov_b32 s32, 0
    v_bfe_u32 v8, v0, 4, 2
    v_bfe_u32 v9, v0, 2, 2
    v_and_b32 v10, 3, v0
    v_lshlrev_b32 v10, 3, v10
    v_lshl_add_u32 v10, v9, 7, v10
    s_lshl_b32 s38, s{SW}, 5
    v_add_u32 v10, s38, v10
    s_cmp_ge_u32 s2, 144
    s_cbranch_scc1 a_raw2
    s_and_b32 s38, s2, 1
    s_lshl_b32 s39, s38, 3
    s_add_u32 s42, s0, s39
    s_addc_u32 s43, s1, 0
    s_load_dwordx2 s[20:21], s[42:43], {ARG['w1']}
    s_lshr_b32 s39, s2, 1
    s_lshl_b32 s56, s39, 7
    s_mov_b32 s41, 9216
    s_mov_b32 s8, {fbits(-1/576)}
    s_mov_b32 s59, 2048
    s_mov_b32 s9, 0
    s_lshl_b32 s39, s39, 2
    s_add_u32 s39, s39, s{SW}
    """)
    sdiv(b, 42, 39, 18, 288)
    b(f"""
    s_mul_i32 s42, s42, {WFS-18*CH}
    s_mul_i32 s39, s39, {CH}
    s_add_u32 s58, s39, s42
    s_lshl_b32 s38, s38, 10
    s_add_u32 s58, s58, s38
    s_add_u32 s58, s58, {WF}
    v_lshl_add_u32 v{TR}, v8, 10, v10
    v_add_u32 v{TR+1}, 512, v{TR}
    s_branch a_raw3
a_raw2:
    s_load_dwordx2 s[20:21], s[0:1], {ARG['w2']}
    s_sub_u32 s38, s2, 144
    """)
    sdiv(b, 39, 38, 9, 112)
    b(f"""
    s_mul_i32 s42, s39, 9
    s_sub_u32 s38, s38, s42
    s_mul_i32 s56, s39, {576*1152}
    s_lshl_b32 s42, s38, 7
    s_add_u32 s56, s56, s42
    s_mov_b32 s41, 1152
    s_mov_b32 s8, 0
    s_mov_b32 s59, {CH}
    s_mov_b32 s9, {9216-9*CH}
    s_lshl_b32 s38, s38, 2
    s_add_u32 s38, s38, s{SW}
    """)
    sdiv(b, 42, 38, 9, 36)
    b(f"""
    s_mul_i32 s42, s42, {WFS-9216}
    s_lshl_b32 s38, s38, 10
    s_add_u32 s58, s38, s42
    s_lshr_b32 s42, s39, 1
    s_mul_i32 s42, s42, {4*WFS}
    s_add_u32 s58, s58, s42
    s_and_b32 s42, s39, 1
    s_mul_i32 s42, s42, 18432
    s_add_u32 s58, s58, s42
    s_add_u32 s58, s58, {WF+18*CH}
    s_cmp_ge_u32 s2, 216
    s_cselect_b32 s58, {OOB}, s58
    v_lshl_add_u32 v{TR}, v8, 9, v10
    v_add_u32 v{TR+1}, 2048, v{TR}
a_raw3:
    s_mov_b32 s22, {576*4608*2}
    s_mov_b32 s23, 0x20000
    v_bfe_u32 v8, v0, 3, 3
    v_mul_lo_u32 v8, v8, s41
    v_and_b32 v9, 7, v0
    v_lshl_add_u32 v{VD}, v9, 4, v8
    s_lshl_b32 s41, s41, 3
    s_sub_u32 s38, s41, 1024
    v_add_u32 v{VD+1}, s38, v{VD}
    v_add_u32 v{VD+2}, s38, v{VD+1}
    v_add_u32 v{VD+3}, s38, v{VD+2}
    s_lshl_b32 s57, s41, 4
    """)
    for i in range(4):
        b(f"v_mov_b32 v{ONE+i}, 0x3f803f80")
    b("a_set:\ns_waitcnt lgkmcnt(0)")
    for t in range(4):
        b(f"v_cndmask_b32 v{QT+2*t}, 0, v{QT+2*t}, s[50:51]")
    b("a_max:")
    for t in range(4):
        b(f"v_mov_b32 v{QT+2*t+1}, 0\nv_mov_b32 v{MX+t}, 0xff800000")
    b("s_mov_b32 s46, 0\ns_cmp_eq_u32 s48, 0\ns_cbranch_scc1 a_maxbody\na_maxloop:")
    b("\n".join(rec_loads(0)[:2]))
    b(f"s_add_u32 s46, s46, {2*REC}\ns_waitcnt vmcnt(0)\na_maxbody:")
    for t in range(4):
        b(m8(sb(t), 0, t))
        b(m16(sb(t), 0, t))
    b("s_nop 5")
    for t in range(4):
        for i in range(8):
            b(f"v_max3_f32 v{MX+t}, v{sb(t)+2*i}, v{sb(t)+2*i+1}, v{MX+t}")
    b("s_sub_u32 s47, s47, 1\ns_cmp_lg_u32 s47, 0\ns_cbranch_scc1 a_maxloop")
    x0 = sb(2)
    pb = B()
    for t in range(4):
        pb(f"""
        v_mov_b32 v{x0}, v{MX+t}
        v_mov_b32 v{sb(3)+4*t}, 0
        v_mov_b32 v{sb(3)+4*t+1}, 0
        v_permlane32_swap_b32 v{MX+t}, v{x0}
        v_mov_b32 v{sb(3)+4*t+2}, 0
        v_max_f32 v{MX+t}, v{MX+t}, v{x0}
        v_sub_f32 v{x0}, 0, v{MX+t}
        v_and_b32 v{x0+1}, 0xffff0000, v{x0}
        v_sub_f32 v{x0+2}, v{x0}, v{x0+1}
        v_and_b32 v{x0+3}, 0xffff0000, v{x0+2}
        v_sub_f32 v{x0+2}, v{x0+2}, v{x0+3}
        v_perm_b32 v{x0+1}, v{x0+3}, v{x0+1}, s49
        v_lshrrev_b32 v{x0+2}, 16, v{x0+2}
        v_cndmask_b32 v{QT+2*t+1}, v{x0+2}, v{x0+1}, s[50:51]
        v_mov_b32 v{sb(3)+4*t+3}, 0
        """)
    for i in range(64):
        pb(f"v_mov_b32 v{O+i}, 0")
    b(pb.text())
    b("s_cmp_lg_u32 s48, 0\ns_cbranch_scc1 a_go")
    stamp(b, 6)
    poll(b, "a", C_KV, SJ, 16, True)
    stamp(b, 7)
    b("a_go:\ns_mov_b32 s46, 0")
    for k in range(3):
        b("\n".join(rec_loads(k)))
        b(f"s_add_u32 s46, s46, {2*REC}")
    slot = lambda k: f"buffer_load_dwordx4 v{VD+k}, s[20:23], s56 offen" + (f" offset:{1024*k}" if k else "") + " lds ;#dm"
    b(f"""
    s_mov_b32 s47, 8
    s_cmp_lg_u32 s32, 0
    s_cbranch_scc1 a_nopre
    s_mov_b32 s47, 4
    s_lshl_b32 s38, s{SW}, 1
    s_add_u32 s38, s38, 64
    s_lshl_b32 m0, s38, 10
    s_mul_i32 s38, s38, s41
    s_add_u32 s38, s38, s56
    buffer_load_dwordx4 v{VD}, s[20:23], s38 offen lds
    buffer_load_dwordx4 v{VD+1}, s[20:23], s38 offen offset:1024 lds
    s_lshl_b32 s38, s{SW}, 2
    s_lshl_b32 m0, s38, 10
    s_mul_i32 s38, s38, s41
    s_add_u32 s56, s56, s38
a_nopre:
    s_waitcnt vmcnt(@k0)
    """)
    for t in range(2):
        b(m8(sb(t), 0, t))
        b(m16(sb(t), 0, t))
    b("s_nop 9")
    stamp(b, 8)
    b(".p2align 3\na_loop:")
    for n in range(16):
        k, t = divmod(n, 4)
        e = [f"v_exp_f32 v{sb(n)+i}, v{sb(n)+i}" for i in range(16)]
        qk, qtile = (n + 2) // 4, (n + 2) % 4
        pk, pt = (n - 1) // 4, (n - 1) % 4
        if t == 2:
            b(f"s_waitcnt vmcnt(@k{(k+1)%4})")
        b(m8(sb(n + 2), qk, qtile))
        b(rec_loads(k + 3)[t])
        b("\n".join(e[0:4]))
        b(m16(sb(n + 2), qk, qtile))
        if t == 3:
            b(f"s_add_u32 s46, s46, {2*REC}")
        b("\n".join(e[4:8]))
        if t == 1:
            b(f"s_waitcnt vmcnt(@r{k})")
        b(smf(pt, pk, 0, sb(n - 1)))
        if t == 3:
            b(slot(k))
        b("\n".join(e[8:12]))
        b(smf(pt, pk, 1, sb(n - 1)))
        if n == 15:
            b("s_add_u32 s56, s56, s57\ns_add_u32 m0, m0, s40\ns_sub_u32 s47, s47, 1\ns_cmp_lg_u32 s47, 0")
        b("\n".join(e[12:16]))
    b("s_cbranch_scc1 a_loop\ns_cmp_lt_u32 s32, 4\ns_cbranch_scc1 a_break")
    ob_ = b
    b = brk = B()
    b("a_break:\ns_cmp_lg_u32 s32, 0\ns_cbranch_scc1 a_brk1")
    wo_mode(80 * 1024)
    b("s_branch a_resume\na_brk1:\ns_cmp_lg_u32 s32, 1\ns_cbranch_scc1 a_brk2\ns_barrier")
    for pc in range(3):
        for i in range(6):
            for h in range(2):
                b(f"ds_read_b64_tr_b16 {a(AF+24*pc+4*i+2*h,2)}, v{TR+h} offset:{4096*i}")
        b(f"v_add_u32 v{TR}, {24576 if pc < 2 else -49152}, v{TR}\nv_add_u32 v{TR+1}, {24576 if pc < 2 else -49152}, v{TR+1}")
        b("s_waitcnt lgkmcnt(0)")
        for i in range(6):
            b(mf16(v(SM, 4), v(ONE, 4), a(AF + 24 * pc + 4 * i, 4), "0" if pc + i == 0 else v(SM, 4)))
    b(f"s_nop 7\nv_mul_f32 v{MEAN}, s8, v{SM}\na_brk2:")
    for i in range(6):
        for h in range(2):
            b(f"ds_read_b64_tr_b16 {v(PF+4*i+2*h,2)}, v{TR+h} offset:{4096*i}")
    b(f"""
    v_add_u32 v{TR}, 24576, v{TR}
    v_add_u32 v{TR+1}, 24576, v{TR+1}
    s_cmp_eq_u32 s32, 2
    s_cselect_b32 s38, s9, 0
    s_waitcnt lgkmcnt(0)
    """)
    centre(b, PF, 6, PT, MEAN, lambda k: f"buffer_store_dwordx4 {v(PF+4*k,4)}, v1, s[12:15], s58 offen sc1\ns_add_u32 s58, s58, s59"
           + ("\ns_add_u32 s58, s58, s38" if k == 2 else ""))
    b("s_cmp_lg_u32 s32, 3\ns_cbranch_scc1 a_resume")
    slots_off()
    b("a_resume:\ns_add_u32 s32, s32, 1\ns_mov_b32 s47, 1\ns_branch a_loop")
    b = ob_
    stamp(b, 9)
    b(smf(3, 3, 0, sb(3)))
    b(smf(3, 3, 1, sb(3)))
    b(f"""
    v_max3_f32 v8, v{ob(0)+10}, v{ob(1)+10}, 0
    v_mov_b32 v9, 0x53800000
    v_cmp_u_f32 s[52:53], v{ob(0)+10}, v{ob(1)+10}
    s_mul_i32 s45, s{SW}, 6144
    s_xor_b32 s46, s{SW}, 1
    s_mul_i32 s46, s46, 6144
    s_add_u32 s45, s45, {QX}
    s_add_u32 s46, s46, {QX}
    v_add_u32 v10, s45, v1
    v_add_u32 v11, s46, v1
    s_waitcnt vmcnt(0)
    s_nop 2
    v_max3_f32 v8, v{ob(2)+10}, v{ob(3)+10}, v8
    v_cmp_u_f32 s[54:55], v{ob(2)+10}, v{ob(3)+10}
    v_cmp_nlt_f32 vcc, v8, v9
    s_or_b64 s[52:53], s[52:53], s[54:55]
    s_or_b64 vcc, vcc, s[52:53]
    s_cbranch_vccz a_merge
    s_cmp_lg_u32 s48, 0
    s_cbranch_scc1 a_merge
    s_mov_b32 s48, 1
    s_mov_b32 s47, 32
    s_mov_b32 s56, {OOB}
    s_mov_b32 s57, 0
    s_mov_b32 s40, 0
    s_mov_b32 m0, {LOFF}
    s_branch a_max
a_merge:
    v_mov_b32 v{ob(2)+11}, v{MX+2}
    v_mov_b32 v{ob(3)+11}, v{MX+3}
    """)
    for t in range(2):
        for i in range(3):
            b(f"ds_write_b128 v10, {v(ob(2+t)+4*i,4)} offset:{3072*t+1024*i}")
    b(f"""
    v_lshrrev_b32 v5, 4, v6
    v_lshlrev_b32 v5, 14, v5
    v_and_b32 v8, 15, v6
    v_lshl_add_u32 v5, v8, 4, v5
    v_and_b32 v8, 35, v0
    v_cmp_eq_u32 vcc, 0, v8
    v_mov_b32 v8, {OOB}
    v_lshl_add_u32 v6, v7, 8, v5
    v_cndmask_b32 v7, v8, v{AT}, vcc
    s_lshl_b32 s42, s{SI}, 2
    s_add_u32 s42, s42, s36
    s_mul_i32 s42, s42, 36864
    s_add_u32 s42, s42, s{SL}
    s_add_u32 s42, s42, {OB}
    s_lshl_b32 s43, s34, 9
    s_add_u32 s43, s43, s42
    s_lshl_b32 s44, s34, 7
    s_add_u32 s42, s42, s44
    s_add_u32 s42, s42, 32768
    s_waitcnt lgkmcnt(0)
    s_barrier
    """)
    for t in range(2):
        for i in range(3):
            b(f"ds_read_b128 {v(sb(t)+4*i,4)}, v11 offset:{3072*t+1024*i}")
    for t in range(2):
        P, o0, pk = sb(t), ob(t), QM + 8 * t
        b(f"""
        s_waitcnt lgkmcnt({3 - 3*t})
        v_max_f32 v8, v{MX+t}, v{P+11}
        v_sub_f32 v9, v{MX+t}, v8
        v_sub_f32 v8, v{P+11}, v8
        v_exp_f32 v9, v9
        v_exp_f32 v8, v8
        v_mul_f32 v10, v9, v{o0+10}
        v_fmac_f32 v10, v8, v{P+10}
        v_rcp_f32 v10, v10
        s_nop 0
        v_mul_f32 v9, v9, v10
        v_mul_f32 v8, v8, v10
        """)
        for i in range(10):
            b(f"v_mul_f32 v{o0+i}, v9, v{o0+i}")
        for i in range(10):
            b(f"v_fmac_f32 v{o0+i}, v8, v{P+i}")
        for i in (4, 0, 1, 2, 3):
            b(f"v_cvt_pk_bf16_f32 v{pk+i}, v{o0+2*i}, v{o0+2*i+1}")
        b(f"buffer_store_dwordx4 {v(pk,4)}, v6, s[12:15], s43 offen sc1")
        for i in range(1, 4):
            b(f"v_mov_b32 v{pk+4+i}, v{pk+4} quad_perm:[{i}:{i}:{i}:{i}] row_mask:0xf bank_mask:0xf")
        b(f"buffer_store_dwordx4 {v(pk+4,4)}, v7, s[12:15], s42 offen sc1")
        if t == 0:
            b("s_add_u32 s42, s42, 36864\ns_add_u32 s43, s43, 36864")
    stamp(b, 10)
    b(f"s_and_b32 s38, s2, 7\ns_lshl_b32 s38, s38, 7\ns_add_u32 s38, s38, s{SC}\ns_add_u32 s38, s38, {C_PREP}")
    signal(b, "a", C_O, SI, extra=38)
    stamp(b, 11)
    return brk.text()


def res_swap(b):
    for n in range(3):
        for k in range(4):
            b(f"v_permlane16_swap_b32 v{RES+8*n+k}, v{RES+8*n+4+k}")


def res_pack(b, dst):
    for n in range(3):
        pack4(b, dst + 4 * n, RES + 8 * n, RES + 8 * n + 4)


def tile_base(b, dst, tmp):
    b(f"""
    s_and_b32 s{dst}, s{SJ}, 3
    s_mul_i32 s{dst}, s{dst}, 3
    s_add_u32 s{dst}, s{dst}, s{SW}
    s_mul_i32 s{dst}, s{dst}, 1536
    s_mul_i32 s{tmp}, s{STJ}, 36864
    s_add_u32 s{dst}, s{dst}, s{tmp}
    """)


def phase_o(b):
    PK, OF = 16, 56
    NB = int(OPT.get('nb', 96))
    b(f"""
    s_cmp_eq_u32 s{SW}, 3
    s_cbranch_scc1 o_nowo
    s_lshl_b32 s38, s{SW}, 14
    s_add_u32 s38, s38, {80*1024}
    v_add_u32 v6, s38, v1
    s_mul_i32 s38, s{SW}, {26*1024}
    v_add_u32 v7, s38, v1
    s_cmp_lg_u32 s{SL}, 0
    s_cbranch_scc1 o_flex
    """)
    wo_base(b, 36, 26)
    b("\n".join(wo_loads(12, 38)))
    b("s_branch o_rest\no_flex:")
    for n in range(12, 38):
        b(f"ds_read_b128 {a(4*n,4)}, v7 offset:{1024*(n-12)}")
        if n % 8 == 7:
            b("s_waitcnt lgkmcnt(4)")
    b("s_waitcnt lgkmcnt(4)\no_rest:")
    for n in range(38, 54):
        b(f"ds_read_b128 {a(4*n,4)}, v6 offset:{1024*(n-38)}")
        if n == 45:
            b("s_waitcnt lgkmcnt(4)")
    b(f"o_nowo:\ns_mul_i32 s38, s{SJ}, {WFS}\ns_add_u32 s38, s38, {WF}")
    window(b, 16, 38, WFS)
    unit_offset(b, 5, 6, 7)
    res_swap(b)
    tile_base(b, 34, 35)
    b(f"""
    s_mul_i32 s42, s{SW}, 9216
    s_add_u32 s37, s35, s42
    s_add_u32 s37, s37, s{SL}
    s_add_u32 s37, s37, {OB}
    s_add_u32 m0, s42, {3*CH}
    v_add_u32 v6, {3*CH}, v1
    s_add_u32 s36, s34, s{SL}
    s_add_u32 s36, s36, {X1}
    v_bfe_u32 v7, v0, 4, 2
    v_and_b32 v8, 15, v0
    v_lshlrev_b32 v7, 9, v7
    v_lshl_add_u32 v7, v8, 2, v7
    v_add_u32 v7, {3*CH+32768}, v7
    v_add_u32 v8, 2048, v7
    s_waitcnt lgkmcnt(0)
    """)
    stamp(b, 12)
    poll(b, "o", C_O, SI, 16, True)
    stamp(b, 13)
    dma_run(b, 9, 12, 37, " sc1")
    b(f"s_waitcnt vmcnt(0)\ns_barrier")
    stamp(b, 14)
    b(f"s_cmp_eq_u32 s{SW}, 3\ns_cbranch_scc1 o_ring")
    of = lambda ks, rt: OF + (ks % 3) * 8 + rt * 4

    def rd(ks):
        if ks < 16:
            return [f"ds_read_b128 {v(of(ks,rt),4)}, v6 offset:{rt*16384+ks*1024}" for rt in range(2)]
        return [f"ds_read2_b32 {v(of(ks,rt)+2*k,2)}, v{7+ks-16} offset0:{16*rt+64*k} offset1:{16*rt+64*k+32}"
                for rt in range(2) for k in range(2)]

    for ks in range(2):
        b("\n".join(rd(ks)))
    for ks in range(18):
        mains = [mf16(v(RES + 8 * n + 4 * rt, 4), a((n * 18 + ks) * 4, 4), v(of(ks, rt), 4), v(RES + 8 * n + 4 * rt, 4))
                 for n in range(3) for rt in range(2)]
        b(f"s_waitcnt lgkmcnt({len(rd(ks + 1)) if ks < 17 else 0})")
        b(sched(mains, list(enumerate(rd(ks + 2))) if ks + 2 < 18 else [], [])[0])
    b("s_nop 3")
    res_swap(b)
    for n in range(3):
        pack4(b, PK + 4 * n, RES + 8 * n, RES + 8 * n + 4)
        b(f"buffer_store_dwordx4 {v(PK+4*n,4)}, v5, s[12:15], s36 offen offset:{512*n} sc1")
    stamp(b, 15)
    signal(b, "o", C_X1, STJ, wave=0)
    stamp(b, 16)
    c = B()
    c(f"""
o_ring:
    s_cmp_lg_u32 s{SL}, 0
    s_cbranch_scc1 o_ready
    v_and_b32 v6, 7, v0
    v_lshlrev_b32 v6, 7, v6
    s_add_u32 s60, s{SC}, {C_PREP}
    s_mov_b32 s61, 0x40000
o_prep:
    buffer_load_dword v4, v6, s[12:15], s60 offen sc1
    s_sub_u32 s61, s61, 1
    s_waitcnt vmcnt(0)
    v_cmp_gt_u32 vcc, 32, v4
    s_cbranch_scc1 o_ready
    s_cbranch_vccnz o_prep
o_ready:
    s_mov_b32 m0, 0
    s_mov_b32 s43, 0
o_fill:
    """)
    dma_run(c, 4, 16, 43, " sc1")
    c(f"""
    s_add_u32 m0, m0, 4096
    s_add_u32 s43, s43, 4096
    s_waitcnt vmcnt({int(OPT.get('th', 12))})
    s_cmp_lt_u32 s43, {NB*1024}
    s_cbranch_scc1 o_fill
    s_branch o_bar
    """)
    return c.text()


def phase_f(b):
    SP, NB = int(OPT.get("sp", 6)), int(OPT.get('nb', 96))
    LA, LB, DV, C1, C2, VP, VFL = 5, 6, 7, 10, 12, 14, 15
    ACC1, TMP, STG, FL, VH, ACC2, ST, ONE = 16, 48, 64, 72, 80, 84, 84, 100
    RING, NR, PD, HR = 144, 12, 8, 192
    xb = lambda ks, rt: a((ks * 2 + rt) * 4, 4)
    ring = lambda i: a(RING + 4 * (i % NR), 4)
    hr = lambda c, m, rt: a(HR + ((c % 2) * 8 + m * 2 + rt) * 4, 4)
    b(f"""
    s_mul_i32 s43, s{SW}, {(144-NB)//4*1024}
    s_add_u32 s43, s43, {NB*1024}
    s_mov_b32 m0, s43
    v_add_u32 v{DV}, s42, v1
    """)
    dma_run(b, (144 - NB) // 4, 16, 43, ' sc1')
    b(f"""
    s_mul_i32 s39, s{STW}, 36864
    s_add_u32 s39, s39, s{SL}
    s_add_u32 s39, s39, {X1}
    s_add_u32 s40, s39, 18432
    v_add_u32 v{DV+1}, 4096, v{DV}
    v_add_u32 v{DV+2}, 8192, v{DV}
    v_mov_b32 v{LA}, v1
    v_add_u32 v{LB}, {CH}, v1
    s_mul_i32 s46, s{STW}, {16*18432}
    s_add_u32 s46, s46, s{SL}
    s_add_u32 s46, s46, {HB}
    s_and_b32 s34, s{SJ}, 12
    s_mul_i32 s34, s34, 18432
    s_add_u32 s34, s34, s46
    v_add_u32 v{VH}, s34, v1
    s_mul_i32 s34, s{SJ}, 18432
    s_add_u32 s46, s46, s34
    v_add_u32 v{VH+1}, 18432, v{VH}
    v_add_u32 v{VH+2}, 36864, v{VH}
    v_add_u32 v{VH+3}, 55296, v{VH}
    s_lshl_b32 s41, s{STJ}, 7
    s_add_u32 s41, s41, s{SC}
    s_add_u32 s41, s41, {C_H}
    s_and_b32 s34, s{SJ}, 3
    s_lshl_b32 s34, s34, 2
    v_mov_b32 v{VFL}, s34
    v_mov_b32 v{VP}, {OOB}
    v_cmp_eq_u32 vcc, 0, v0
    s_mov_b32 s43, {4*CH}
    s_mov_b32 s45, {2*CH}
    v_cndmask_b32 v{VFL}, v{VP}, v{VFL}, vcc
    v_mov_b32 v{VP}, 0
    s_mov_b32 s44, s42
    s_mov_b32 s47, 8
    """)
    for i in range(4):
        b(f"v_mov_b32 v{ONE+i}, 0x3f803f80")
    rdf = lambda gi, i, base: f"ds_read_b128 {ring(gi)}, v{base} offset:{1024*i}"
    acc1 = lambda st, gu, rt: ACC1 + 16 * st + (gu * 2 + rt) * 4
    for i in range(PD):
        b(rdf(i, i, LA))
    stamp(b, 17)
    poll(b, "f", C_X1, STW, 4, False)
    stamp(b, 18)

    def xload(ks, rt):
        off = f" offset:{1024*(ks%4)}" if ks % 4 else ""
        t = f"buffer_load_dwordx4 {xb(ks,rt)}, v1, s[12:15], s{39+rt} offen{off} sc1 ;#x{ks}"
        if ks % 4 == 3:
            t += f"\ns_add_u32 s{39+rt}, s{39+rt}, 4096"
        return t

    XA = int(OPT.get("xa", 10))
    for ks in range(XA):
        for rt in range(2):
            b(xload(ks, rt))
    for ks in range(18):
        mains = []
        for gu in range(2):
            for rt in range(2):
                d = v(acc1(0, gu, rt), 4)
                mains.append(mf16(d, ring(2 * ks + gu), xb(ks, rt), "0" if ks == 0 else d))
        for rt in range(2):
            d = v(ST + 4 * rt, 4)
            mains.append(mf16(d, v(ONE, 4), xb(ks, rt), "0" if ks == 0 else d))
            d = v(ST + 8 + 4 * rt, 4)
            mains.append(mf16(d, xb(ks, rt), xb(ks, rt), "0" if ks == 0 else d))
        pinned = []
        for gu in range(2):
            j = 2 * ks + gu + PD
            pinned.append((1 + 2 * gu, rdf(j, j % 36, LA if j < 36 else LB)))
        if ks + XA < 18:
            pinned += [(4 * rt, xload(ks + XA, rt)) for rt in range(2)]
        b(f"s_waitcnt vmcnt(@x{ks}) lgkmcnt({PD-2})")
        if ks == 12:
            b("s_barrier")
        b(sched(mains, pinned, [])[0])
    b(f"""
    v_and_b32 v{TMP}, 3, v0
    v_and_b32 v{TMP+1}, 15, v0
    v_cmp_eq_u32 s[50:51], 1, v{TMP}
    v_cmp_eq_u32 s[52:53], 2, v{TMP}
    v_cmp_eq_u32 s[54:55], 3, v{TMP}
    v_lshrrev_b32 v{TMP+2}, 2, v{TMP+1}
    v_lshl_add_u32 v{TMP+1}, v{TMP+2}, 4, v{TMP+1}
    v_lshlrev_b32 v{TMP+1}, 2, v{TMP+1}
    """)
    for rt in range(2):
        g = ST + 8 + 4 * rt
        b(f"""
        v_cndmask_b32 v{g}, v{g}, v{g+1}, s[50:51]
        v_cndmask_b32 v{g}, v{g}, v{g+2}, s[52:53]
        v_cndmask_b32 v{g}, v{g}, v{g+3}, s[54:55]
        ds_bpermute_b32 v{C2+rt}, v{TMP+1}, v{g}
        """)
    b("s_waitcnt lgkmcnt(0)")
    for rt in range(2):
        ln_stats(b, ST + 4 * rt, C2 + rt)
        b(f"v_rsq_f32 v{C1+rt}, v{C2+rt}\ns_nop 0\nv_mul_f32 v{C1+rt}, {fbits(-math.log2(math.e))}, v{C1+rt}")
    b("s_barrier")
    stamp(b, 19)

    def dma(par):
        out, prev = [], ""
        for i in range(9):
            if i % 4 == 0:
                out.append((f"s_add_u32 m0, s44, {4096*(i//4)}", max(1, SP - 1) if i else 0))
            ld = f"buffer_load_dwordx4 v{DV+i//4}, s[16:19], s43 offen" + (f" offset:{1024*(i%4)}" if i % 4 else "") + f" sc1 lds ;#d{par}"
            out.append((ld, 1 if i % 4 == 0 else SP))
        out.append((f"s_add_u32 s43, s43, {CH}", 0))
        return chain(out, earliest=1)

    def swiglu(st, half):
        ops, last = [], []
        for k in range(8):
            rt, i = divmod(k, 4)
            g, u = acc1(st, 0, rt) + i, acc1(st, 1, rt) + i
            t, p = TMP + k, TMP + 8 + k
            c = chain([f"v_mul_f32 v{t}, v{C1+rt}, v{g}", f"v_exp_f32 v{t}, v{t}",
                       f"v_fma_f32 v{t}, v{t}, v{C2+rt}, v{C2+rt}", f"v_rcp_f32 v{t}, v{t}"], earliest=3, dist=1)
            m = Op(f"v_mul_f32 v{p}, v{g}, v{u}", earliest=4)
            f = Op(f"v_mul_f32 v{p}, v{p}, v{t}", [(c[-1], 1), (m, 0)])
            ops += c + [m, f]
            last.append(f)
            if k % 2:
                cv = Op(f"v_cvt_pk_bf16_f32 v{STG+4*rt+2*half+i//2}, v{p-1}, v{p}", [(last[-2], 0), (f, 0)])
                ops.append(cv)
                if half and i == 3:
                    st_ = Op(f"buffer_store_dwordx4 {v(STG+4*rt,4)}, v1, s[12:15], s46 offen" + (" offset:1024" if rt else "") + " sc1",
                             [(cv, 0), (prevcv, 0)])
                    ops.append(st_)
                    if rt:
                        ops.append(Op("s_add_u32 s46, s46, 2048", [(st_, 0), (prevst, 0)]))
                    prevst = st_
                prevcv = cv
        return ops

    progress = lambda: chain([f"v_add_u32 v{VP}, 1, v{VP}", f"buffer_store_dword v{VP}, v{VFL}, s[12:15], s41 offen sc1"])
    fl = lambda par: FL + 4 * par
    flag_load = lambda par, g: [Op(f"buffer_load_dwordx4 {v(fl(par),4)}, v2, s[12:15], s41 offen sc1 ;#f{par}", earliest=g)]
    slow = []

    def check(par, tag):
        f = fl(par)
        slow.append(f"""
{tag}_spin:
        s_mov_b32 s61, 0x40000
{tag}_again:
        buffer_load_dwordx4 {v(f,4)}, v2, s[12:15], s41 offen sc1
        s_sub_u32 s61, s61, 1
        s_waitcnt vmcnt(0)
        v_min_u32 v{f}, v{f}, v{f+1}
        v_min3_u32 v{f}, v{f}, v{f+2}, v{f+3}
        v_cmp_gt_u32 vcc, s49, v{f}
        s_cbranch_scc1 {tag}_back
        s_cbranch_vccnz {tag}_again
        s_branch {tag}_back
        """)
        return chain([f"s_waitcnt vmcnt(@f{par})", f"v_min_u32 v{f}, v{f}, v{f+1}", f"v_min3_u32 v{f}, v{f}, v{f+2}, v{f+3}",
                      f"v_cmp_gt_u32 vcc, s49, v{f}", (f"s_cbranch_vccnz {tag}_spin\n{tag}_back:", 1)])

    def hload(c, m, rt, so):
        return f"buffer_load_dwordx4 {hr(c,m,rt)}, v{VH+m}, s[12:15], {so} offen" + (" offset:1024" if rt else "") + f" sc1 ;#h{c%2}{m}"

    def chunk(mains, par, extra, pins=(), tail=(), refill=True, order=None, nxt_order=None, last=False):
        cur, nxt = (LA, LB) if par == 0 else (LB, LA)
        order = order or list(range(36))
        nxt_order = nxt_order or list(range(36))
        pinned = ([] if last else [(0, f"v_add_u32 v{nxt}, s45, v1")]) + list(pins)
        for i in range(36):
            j = i + PD
            if j < 36 or not last:
                pinned.append((2 * i, rdf(j, order[j] if j < 36 else nxt_order[j - 36], cur if j < 36 else nxt)))
            if i % 4 == 3 and not (last and i == 35):
                n = PD - 4 if not last else max(0, min(PD - 4, 36 - (i + 5)))
                pinned.append((2 * i + 1, f"s_waitcnt vmcnt(@d{1-par}) lgkmcnt({n})" if i == 35 and refill else f"s_waitcnt lgkmcnt({n})"))
        dm, slot = [], []
        if refill:
            dm = dma(par)
            slot = chain([f"s_add_u32 s44, s44, {CH}", f"s_cmp_eq_u32 s45, {CH}\ns_cselect_b32 s44, s42, s44",
                          f"s_add_u32 s45, s45, {CH}", f"s_cmp_eq_u32 s45, {4*CH}\ns_cselect_b32 s45, 0, s45"] + list(tail), after=dm[-1])
        txt, over, lastgap = sched(mains, pinned, dm + extra + slot)
        b(txt)
        if refill:
            b("s_barrier")
        return over, lastgap

    def p1_mains(st):
        return [mf16(v(acc1(st, gu, rt), 4), ring(2 * ks + gu), xb(ks, rt), "0" if ks == 0 else v(acc1(st, gu, rt), 4))
                for ks in range(18) for gu in range(2) for rt in range(2)]

    acc2 = lambda tl, rt: ACC2 + (tl * 2 + rt) * 4

    def p2_mains(c, first=False):
        return [mf16(v(acc2(tl, rt), 4), ring(9 * m + tl), hr(c, m, rt), "0" if first and m == 0 else v(acc2(tl, rt), 4))
                for m in range(4) for tl in range(9) for rt in range(2)]

    def p2_stream(c, gate):
        ops = chain([(hload(c + 1, 3, 0, "s48"), 0), (hload(c + 1, 3, 1, "s48"), 8)], earliest=2)
        prev = ops[-1]
        for m in range(3):
            for rt in range(2):
                o = Op(hload(c + 2, m, rt, "s47"), [(prev, 1)] + ([(gate, 0)] if gate else []), earliest=18 * (m + 1) + 2 + 8 * rt)
                ops.append(o)
                prev = o
        ops += chain(["s_mov_b32 s48, s47", "s_add_u32 s47, s47, 2048"], after=prev)
        return ops

    hwaits = lambda c: [(18 * m - 1, f"s_waitcnt vmcnt(@h{c%2}{m})") for m in range(1, 4)] + [(70, f"s_waitcnt vmcnt(@h{(c+1)%2}0)")]
    over = []
    b(f"s_waitcnt lgkmcnt({PD-4})\n.p2align 3\nf_p1:")
    over.append(chunk(p1_mains(1), 1, progress() + flag_load(1, 40) + swiglu(0, 0)))
    over.append(chunk(p1_mains(0), 0, swiglu(1, 1), tail=["s_sub_u32 s47, s47, 1"]))
    b("s_cmp_lg_u32 s47, 0\ns_cbranch_scc1 f_p1\ns_mov_b32 s49, 5\ns_mov_b32 s48, 2048")
    stamp(b, 20)
    ck = check(1, "f17")
    first = chain([(hload(c, m, rt, "0" if c == 18 else "s48"), 4) for c in (18, 19) for m in range(4) for rt in range(2)][:14], after=ck[-1])
    fld = flag_load(1, 40)
    fld[0].deps.append((ck[-1], 0))
    over.append(chunk(p1_mains(1), 1, progress() + ck + first + fld + swiglu(0, 0), pins=[(70, "s_waitcnt vmcnt(@h00)")],
                      tail=["s_mov_b32 s47, 4096"]))
    stamp(b, 21)
    over.append(chunk(p2_mains(18, True), 0, p2_stream(18, None) + flag_load(0, 40) + swiglu(1, 1), pins=hwaits(18),
                      tail=["s_mov_b32 s49, 6", "s_mov_b32 s50, 3"]))
    stamp(b, 22)
    b(".p2align 3\nf_p3:")
    for c in (19, 20):
        ck = check(c % 2, f"f{c}")
        fld = flag_load(c % 2, 40)
        fld[0].deps.append((ck[-1], 0))
        bump = chain(["s_add_u32 s49, s49, 1"], after=ck[-1])
        over.append(chunk(p2_mains(c), c % 2, (progress() if c % 2 else []) + ck + bump + p2_stream(c, ck[-1]) + fld, pins=hwaits(c),
                          tail=[] if c % 2 else ["s_sub_u32 s50, s50, 1"]))
    b("s_cmp_lg_u32 s50, 0\ns_cbranch_scc1 f_p3")
    stamp(b, 23)
    UO, LO = DV, DV + 1
    pb = B()
    unit_offset(pb, UO, TMP, TMP + 1)
    pb(f"""
    s_lshr_b32 s36, s{SJ}, 2
    s_mul_i32 s34, s36, {SZX}
    s_mul_i32 s35, s{STW}, 36864
    s_add_u32 s34, s34, s35
    s_and_b32 s37, s{SJ}, 3
    s_mul_i32 s35, s37, 4608
    s_add_u32 s34, s34, s35
    s_add_u32 s34, s34, s{SL}
    s_add_u32 s34, s34, {PART}
    s_lshl_b32 s35, s{SI}, 2
    s_add_u32 s37, s37, s35
    """)
    setup = [x.strip() for x in pb.lines]
    setup += [f"s_cmp_eq_u32 s36, s{SW}\ns_cselect_b32 s34, {OOB}, s34", "s_add_u32 s35, s34, 4096", f"v_add_u32 v{LO}, {4*CH}, v1"]
    tmaj = [9 * m + tl for tl in range(9) for m in range(4)]
    h3 = chain([(hload(26, 3, 0, "s48"), 0), (hload(26, 3, 1, "s48"), 4)], earliest=1)
    over.append(chunk(p2_mains(25), 1, h3 + chain(setup, earliest=8), pins=hwaits(25)[:3] + [(70, "s_waitcnt vmcnt(@h03)")],
                      refill=False, nxt_order=tmaj))
    mains = [mf16(v(acc2(tl, rt), 4), ring(4 * tl + m), hr(26, m, rt), v(acc2(tl, rt), 4)) for tl in range(9) for m in range(4) for rt in range(2)]

    def out_tile(tl):
        r, p, q = ACC1 + 4 * tl, acc2(tl, 0), acc2(tl, 1)
        return [f"v_cvt_pk_bf16_f32 v{r}, v{p}, v{p+1}", f"v_cvt_pk_bf16_f32 v{r+1}, v{p+2}, v{p+3}",
                f"v_cvt_pk_bf16_f32 v{r+2}, v{q}, v{q+1}", f"v_cvt_pk_bf16_f32 v{r+3}, v{q+2}, v{q+3}",
                (f"v_permlane16_swap_b32 v{r}, v{r+2}", 1), (f"v_permlane16_swap_b32 v{r+1}, v{r+3}", 0),
                f"buffer_store_dwordx4 {v(r,4)}, v{UO}, s[12:15], s{34+tl//8} offen offset:{512*(tl%8)} sc1",
                f"ds_write_b128 v{LO}, {v(r,4)} offset:{1024*tl}"]

    outs, prev = [], None
    for tl in range(7):
        c = chain(out_tile(tl)[:7], earliest=8 * tl + 12, after=prev)
        outs += c
        prev = c[-1]
    over.append(chunk(mains, 0, outs, refill=False, order=tmaj, last=True))
    for tl in (7, 8):
        for t in out_tile(tl)[:7]:
            if isinstance(t, tuple):
                b(("s_nop 0\n" if t[1] else "") + t[0])
            else:
                b(t)
    b(f"s_cmp_lg_u32 s36, s{SW}\ns_cbranch_scc1 f_nokeep")
    for tl in range(9):
        b(out_tile(tl)[7])
    b("f_nokeep:")
    stamp(b, 24)
    signal(b, "f", C_P, 37)
    stamp(b, 25)
    print("ffn (overflow, last gap):", over, file=sys.stderr)
    return "\n".join(slow)


def phase_r(b, name):
    D0, PK = 16, 80
    b(f"s_cmp_lg_u32 s{SL}, 0\ns_mov_b32 s39, s37\ns_cbranch_scc1 r_nowq")
    wq_dma(b, WQ1)
    b("r_nowq:")
    unit_offset(b, 5, 6, 7)
    tile_base(b, 34, 35)
    b(f"""
    s_mul_i32 s35, s{SW}, 3072
    s_add_u32 s35, s35, {4*CH}
    v_add_u32 v6, s35, v1
    s_add_u32 s35, s34, s{SL}
    s_add_u32 s35, s35, {PART}
    """)
    d = lambda src, n: D0 + (src * 3 + n) * 4
    for n in range(3):
        b(f"ds_read_b128 {v(d(0,n),4)}, v6 offset:{1024*n}")
    for k in range(1, 4):
        b(f"s_add_u32 s38, s36, {k}\ns_and_b32 s38, s38, 3\ns_mul_i32 s38, s38, {SZX}\ns_add_u32 s{40+k}, s38, s35")

    def add(src):
        for n in range(3):
            for j in range(4):
                for h in range(2):
                    r = RES + 8 * n + 2 * j + h
                    b(f"v_dot2_f32_bf16 v{r}, v{d(src,n)+j}, s{30+h}, v{r}")

    b("s_waitcnt lgkmcnt(0)")
    add(0)
    poll(b, "r", C_P, 39, 4, True)
    stamp(b, 26)
    b(f"s_cmp_eq_u32 s{SW}, 3\ns_cbranch_scc1 r_idle")
    for src in range(1, 4):
        for n in range(3):
            b(f"buffer_load_dwordx4 {v(d(src,n),4)}, v5, s[12:15], s{40+src} offen offset:{512*n} sc1 ;#p{src}")
    for src in range(1, 4):
        b(f"s_waitcnt vmcnt(@p{src})")
        add(src)
    stamp(b, 27)
    res_pack(b, PK)
    b(f"s_cmp_lg_u32 s{SL}, 0\ns_cbranch_scc1 r_last")
    for n in range(3):
        b(f"buffer_store_dwordx4 {v(PK+4*n,4)}, v5, s[12:15], s34 offen offset:{512*n} sc1")
    b(f"r_idle:\ns_cmp_lg_u32 s{SL}, 0\ns_cbranch_scc1 r_exit")
    stamp(b, 28)
    signal(b, "r", C_X2, STJ)
    if DIAG:
        stamp(b, 29)
        stamp_real(b, 31)
        stamp_flush(b, "2")
        stamp_real(b, 30)
        stamp(b, 0)
    b(f"""
    s_mov_b32 s{SL}, {LST}
    s_add_u32 s{SC}, s{SC}, {CL}
    s_branch layer
r_last:
    """)
    row_tile(b, 5, 34)
    srd(b, 16, 6, 0, SZX)
    for n in range(3):
        b(f"buffer_store_dwordx4 {v(PK+4*n,4)}, v5, s[16:19], s34 offen offset:{32*n}")
    b("r_exit:")


def row_tile(b, vd, sd):
    b(f"""
    v_and_b32 v{vd}, 31, v0
    v_mul_u32_u24 v{vd}, 1152, v{vd}
    v_bfe_u32 v{vd+1}, v0, 5, 1
    v_lshl_add_u32 v{vd}, v{vd+1}, 4, v{vd}
    s_and_b32 s{sd}, s{SJ}, 3
    s_mul_i32 s{sd}, s{sd}, 3
    s_add_u32 s{sd}, s{sd}, s{SW}
    s_mul_i32 s{sd}, s{sd}, 96
    s_mul_i32 s{sd+1}, s{STJ}, 36864
    s_add_u32 s{sd}, s{sd}, s{sd+1}
    """)


def gen_main(name):
    b = B()
    JB = int(OPT.get("jb", 2))
    head(b, name, 256, [(4, "ws"), (6, "out"), (8, "x")])
    b(f"""
    v_lshrrev_b32 v5, 6, v0
    v_and_b32 v1, 63, v0
    v_lshlrev_b32 v1, 4, v1
    v_readfirstlane_b32 s{SW}, v5
    v_mov_b32 v2, 0
    v_mov_b32 v3, 1
    s_bfe_u32 s34, s2, {(4-JB) << 16}
    s_lshl_b32 s34, s34, {JB}
    s_bfe_u32 s35, s2, {(JB << 16) + 3}
    s_add_u32 s{SJ}, s34, s35
    s_bfe_u32 s34, s2, {((JB-1) << 16) + 4 - JB}
    s_lshl_b32 s34, s34, {5-JB}
    s_lshr_b32 s35, s2, {3+JB}
    s_add_u32 s{SI}, s34, s35
    s_lshl_b32 s34, s{SI}, 2
    s_add_u32 s{STW}, s34, s{SW}
    s_lshr_b32 s35, s{SJ}, 2
    s_add_u32 s{STJ}, s34, s35
    s_mov_b32 s{SL}, 0
    s_mov_b32 s{SC}, {CNT}
    s_mov_b32 s30, 0x3f80
    s_mov_b32 s31, 0x3f800000
    """)
    row_tile(b, 7, 34)
    b("s_waitcnt lgkmcnt(0)")
    srd(b, 12, 4, 0, WS_END)
    wq_dma(b, WQ)
    srd(b, 16, 8, 0, SZX)
    for n in range(3):
        b(f"buffer_load_dwordx4 {v(208+4*n,4)}, v7, s[16:19], s34 offen offset:{32*n}")
    b("layer:")
    phase_q(b)
    b(f"s_cmp_lg_u32 s{SL}, 0\ns_cbranch_scc1 res_ok")
    for k in range(12):
        b(f"v_lshlrev_b32 v{RES+2*k}, 16, v{208+k}\nv_and_b32 v{RES+2*k+1}, 0xffff0000, v{208+k}")
    b("res_ok:")
    slow = phase_a(b)
    slow += phase_o(b)
    slow += phase_f(b)
    phase_r(b, name)
    finish(b, name, "3")
    b(slow)
    return dict(name=name, text=resolve_waits(b.text()), grid=256, block=256, lds=163840)


def build_all():
    import gen
    gen.OPT.clear()
    ks = [gen_prep("prep_kernel"), gen_main("main_kernel")]
    txt = gen.assemble(ks, [k["name"] for k in ks])
    return re.sub(r"quad_perm:\[(\d):(\d):(\d):(\d)\]", r"quad_perm:[\1,\2,\3,\4]", txt)


if __name__ == "__main__":
    for x in [x for x in sys.argv if "=" in x]:
        k, val = x.split("=")
        OPT[k] = val.replace("_", " ")
        sys.argv.remove(x)
    if "--diag" in sys.argv:
        DIAG = True
        sys.argv.remove("--diag")
    open(sys.argv[1], "w").write(build_all())
```

```python
import re

TRANS = ("v_exp_", "v_log_", "v_rcp_", "v_rsq_", "v_sqrt_", "v_sin_", "v_cos_")
NO_DST_SALU = ("s_cmp", "s_waitcnt", "s_barrier", "s_nop", "s_branch", "s_cbranch", "s_setprio", "s_sleep",
               "s_endpgm", "s_set_gpr_idx_off", "s_bitcmp", "s_setreg", "s_sethalt")
REG_RE = re.compile(r"^-?\|?(?:abs\()?([vas])(?:\[(\d+):(\d+)\]|(\d+))\)?\|?$")


def regs_of(op):
    op = op.strip()
    if op in ("vcc", "vcc_lo", "vcc_hi"):
        return {"vcc"}
    if op in ("exec", "exec_lo", "exec_hi"):
        return {"exec"}
    if op == "m0":
        return {"m0"}
    m = REG_RE.match(op)
    if not m:
        return set()
    if m.group(4) is not None:
        return {m.group(1) + m.group(4)}
    return {m.group(1) + str(i) for i in range(int(m.group(2)), int(m.group(3)) + 1)}


class Ins:
    def __init__(self, text, idx):
        self.text, self.idx = text, idx
        body = text.split(";")[0].strip()
        parts = body.split(None, 1)
        self.op = parts[0]
        rest = parts[1] if len(parts) > 1 else ""
        ops = [o.strip() for o in rest.split(",")] if rest else []
        self.mods = ""
        if ops:
            last = ops[-1].split(None, 1)
            if len(last) > 1 and not self.op.startswith("s_waitcnt"):
                ops[-1], self.mods = last[0], last[1]
        self.ops = ops
        op = self.op
        R = [regs_of(o) for o in ops]
        u = lambda xs: set().union(*xs) if xs else set()
        self.kind = "other"
        self.w, self.r = set(), set()
        self.passes = 0
        self.srcC = set()
        self.srcAB = set()
        self.store_data = set()
        if op.startswith("v_mfma") or op.startswith("v_smfmac"):
            self.kind = "mfma"
            self.passes = 4 if "16x16" in op else 8
            self.w = R[0]
            if op.startswith("v_smfmac"):
                self.srcC, self.srcAB = R[0], R[1] | R[2] | R[3]
            else:
                self.srcC, self.srcAB = R[3], R[1] | R[2]
            self.r = self.srcC | self.srcAB
        elif op.startswith("v_"):
            self.kind = "valu"
            if op.startswith("v_permlane") and "swap" in op or op.startswith("v_swap"):
                self.w = R[0] | R[1]
                self.r = R[0] | R[1]
            elif op.startswith("v_nop"):
                pass
            elif re.match(r"v_(add|sub|subrev|addc|subb)_co_", op) or op.startswith("v_mad_u64"):
                self.w = R[0] | R[1]
                self.r = u(R[2:])
            else:
                self.w = set(R[0])
                self.r = u(R[1:])
                if op.startswith("v_cmpx"):
                    self.w |= {"exec"}
                if op.startswith(("v_fmac", "v_dot2c", "v_writelane", "v_pk_fmac")) or "row_" in self.mods \
                        or "quad_perm" in self.mods or "UNUSED_PRESERVE" in self.mods:
                    self.r |= R[0]
                if op.startswith("v_cndmask") and len(ops) == 3:
                    self.r |= {"vcc"}
        elif op.startswith("ds_"):
            self.kind = "ds"
            if op.startswith(("ds_read", "ds_bpermute", "ds_permute", "ds_swizzle")):
                self.w = R[0]
                self.r = u(R[1:])
            else:
                self.r = u(R)
        elif op.startswith(("buffer_", "global_")):
            self.kind = "vmem"
            lds = re.search(r"\blds\b", self.mods) is not None or "load_lds" in op
            self.lds = lds
            if op.startswith(("buffer_wbl2", "buffer_inv")):
                pass
            elif "load" in op and not lds:
                self.w = R[0]
                self.r = u(R[1:])
            elif lds:
                self.r = u(R) | {"m0"}
            else:
                self.r = u(R)
                data = R[0] if op.startswith("buffer_") else R[1]
                if op.endswith(("x3", "x4")):
                    self.store_data = data
                if "atomic" in op and "sc0" in self.mods:
                    self.w = data
        elif op.startswith(("s_load", "s_buffer_load", "s_memtime", "s_memrealtime", "s_atomic")):
            self.kind = "smem"
            self.w = R[0]
            self.r = u(R[1:])
        elif op.startswith("s_"):
            self.kind = "salu"
            if op.startswith("s_set_gpr_idx_on"):
                self.w = {"m0"}
                self.r = R[0]
            elif op.startswith(NO_DST_SALU):
                self.r = u(R)
                if "vcc" in op:
                    self.r |= {"vcc"}
                if "exec" in op:
                    self.r |= {"exec"}
            else:
                self.w = set(R[0])
                self.r = u(R[1:])
                if "saveexec" in op:
                    self.w |= {"exec"}
                if op.startswith(("s_addk", "s_mulk", "s_cmov", "s_bitset")):
                    self.r |= R[0]
        self.trans = op.startswith(TRANS)
        self.dot = op.startswith("v_dot")
        self.dpp = "row_" in self.mods or "quad_perm" in self.mods
        self.states = 1
        if op == "s_nop":
            self.states = int(ops[0], 0) + 1


def is_v(r):
    return r[0] in "va" and r != "vcc"


def need_states(p, c):
    n = 0
    pv = {r for r in p.w if is_v(r)}
    ps = p.w - pv
    if p.kind == "valu":
        if c.kind == "mfma" and pv & c.r:
            n = max(n, 3 if p.dot else 2)
        if c.kind == "mfma" and "exec" in p.w:
            n = max(n, 4)
        if c.kind == "valu":
            if p.trans and not c.trans and pv & c.r:
                n = max(n, 1)
            if c.op.startswith(("v_readlane", "v_readfirstlane")) and pv & c.r:
                n = max(n, 1)
            if (c.op.startswith("v_permlane") or c.dpp) and pv & c.r:
                n = max(n, 2)
            if ps & c.r:
                n = max(n, 4 if c.op.startswith(("v_readlane", "v_writelane")) else 2)
            if "exec" in p.w:
                if c.dpp:
                    n = max(n, 5)
                if c.op.startswith(("v_readlane", "v_readfirstlane", "v_writelane", "v_permlane")):
                    n = max(n, 4)
            if ("sdwa" in p.op or "op_sel" in p.mods) and not p.op.startswith("v_pk") and pv & (c.r | c.w):
                n = max(n, 1)
        if p.dot and pv & (c.r | c.w) and c.kind in ("valu", "ds", "vmem"):
            same_c = c.op == p.op and not (pv & (regs_of(c.ops[1]) | regs_of(c.ops[2])))
            if not same_c:
                n = max(n, 3)
        if c.kind == "vmem" and ps & c.r:
            n = max(n, 5)
        if c.kind == "salu" and ps & c.r:
            n = max(n, 1)
    if p.kind == "mfma":
        big = p.passes == 8
        if c.kind == "mfma":
            if p.w & c.srcAB:
                n = max(n, 12 if big else 8)
            if p.w & c.srcC and not (p.w == c.srcC and p.passes == c.passes):
                n = max(n, 10 if big else 6)
            if p.w & c.w and not (p.w & c.srcC) and p.passes > c.passes:
                n = max(n, 10 if big else 6)
        elif c.kind in ("valu", "ds", "vmem"):
            if p.w & (c.r | c.w):
                n = max(n, 12 if big else 8)
            if c.kind == "valu" and p.srcC & c.w:
                n = max(n, 7 if big else 3)
    if p.kind == "vmem" and p.store_data & c.w:
        n = max(n, 2 if c.kind in ("valu", "mfma") else 1)
    if p.kind == "salu" and "m0" in p.w and c.kind == "vmem" and "m0" in c.r:
        n = max(n, 1)
    return n


class Prog:
    def __init__(self, text):
        self.ins, self.labels = [], {}
        for line in text.splitlines():
            s = line.split(";")[0].strip()
            if not s or s.startswith("."):
                continue
            if s.endswith(":"):
                self.labels[s[:-1]] = len(self.ins)
                continue
            self.ins.append(Ins(line.strip(), len(self.ins)))
        n = len(self.ins)
        self.succ = [[] for _ in range(n)]
        self.pred = [[] for _ in range(n)]
        for i, x in enumerate(self.ins):
            if x.op == "s_endpgm":
                continue
            if x.op.startswith(("s_branch", "s_cbranch")):
                t = self.labels[x.ops[0]]
                if t < n:
                    self.succ[i].append(t)
            if x.op != "s_branch" and i + 1 < n:
                self.succ[i].append(i + 1)
        for i, ss in enumerate(self.succ):
            for t in ss:
                self.pred[t].append(i)

    def hazards(self):
        errs = []
        for c in self.ins:
            if c.kind == "other" or c.op in ("s_nop", "s_waitcnt", "s_barrier"):
                continue
            best = {}
            stack = [(p, 0) for p in self.pred[c.idx]]
            while stack:
                i, d = stack.pop()
                if d >= 13 or best.get(i, 99) <= d:
                    continue
                best[i] = d
                p = self.ins[i]
                need = need_states(p, c)
                if need > d:
                    errs.append(f"hazard: need {need} have {d}: [{p.idx}] {p.text}  ->  [{c.idx}] {c.text}")
                stack.extend((q, d + p.states) for q in self.pred[i])
        return errs

    def waits(self, start=0, max_back=2, limit=3_000_000):
        errs, seen, steps = set(), set(), 0
        stack = [(start, (), (), ())]
        while stack:
            i, vm, lg, back = stack.pop()
            vm, lg, back = list(vm), list(lg), dict(back)
            while True:
                steps += 1
                if steps > limit:
                    errs.add("wait walk: step limit reached")
                    return sorted(errs)
                x = self.ins[i]
                if x.op == "s_waitcnt":
                    t = " ".join(x.ops)
                    m = re.search(r"vmcnt\((\d+)\)", t)
                    if m:
                        k = int(m.group(1))
                        vm = vm[len(vm) - k:] if k and len(vm) > k else (vm if k else [])
                    m = re.search(r"lgkmcnt\((\d+)\)", t)
                    if m:
                        k = int(m.group(1))
                        if k == 0:
                            lg = []
                        elif any(self.ins[j].kind == "smem" for j in lg):
                            errs.add(f"counted lgkmcnt with SMEM outstanding at [{i}] {x.text}")
                        elif len(lg) > k:
                            lg = lg[len(lg) - k:]
                else:
                    use = x.r | x.w
                    for j in vm + lg:
                        p = self.ins[j]
                        if p.w & use and not (x.kind == p.kind and x.kind in ("vmem", "ds") and not (p.w & x.r)):
                            errs.add(f"unwaited: [{j}] {p.text}  ->  [{i}] {x.text}")
                    if x.kind == "vmem":
                        vm.append(i)
                        if len(vm) > 63:
                            errs.add(f"more than 63 vmem ops outstanding at [{i}] {x.text}")
                            vm = vm[-63:]
                    elif x.kind in ("ds", "smem"):
                        lg.append(i)
                        if len(lg) > 15 and x.kind == "ds":
                            errs.add(f"more than 15 lgkm ops outstanding at [{i}] {x.text}")
                            lg = lg[-15:]
                nxt = []
                for t in self.succ[i]:
                    if t <= i:
                        if back.get(i, 0) < max_back:
                            b2 = dict(back)
                            b2[i] = b2.get(i, 0) + 1
                            nxt.append((t, b2))
                    else:
                        nxt.append((t, back))
                if not nxt:
                    break
                if len(nxt) > 1:
                    fresh = []
                    for t, b in nxt:
                        key = (t, tuple(vm), tuple(lg))
                        if key not in seen:
                            seen.add(key)
                            fresh.append((t, b))
                    nxt = fresh
                    if not nxt:
                        break
                    for t, b in nxt[1:]:
                        stack.append((t, tuple(vm), tuple(lg), tuple(b.items())))
                i, back = nxt[0]
        return sorted(errs)

    def max_regs(self):
        mx = {"v": -1, "a": -1, "s": -1}
        for x in self.ins:
            for r in x.r | x.w:
                if r[0] in mx and r[1:].isdigit():
                    mx[r[0]] = max(mx[r[0]], int(r[1:]))
        return mx


class B:
    def __init__(self):
        self.lines = []

    def __call__(self, text):
        for ln in text.strip("\n").splitlines():
            s = ln.strip()
            if s:
                self.lines.append(s if s.endswith(":") or s.startswith(".") else "  " + s)

    def text(self):
        return "\n".join(self.lines) + "\n"


def v(a, n=1):
    return f"v{a}" if n == 1 else f"v[{a}:{a + n - 1}]"


def a(i, n=1):
    return f"a{i}" if n == 1 else f"a[{i}:{i + n - 1}]"


def s(i, n=1):
    return f"s{i}" if n == 1 else f"s[{i}:{i + n - 1}]"


def cost(text):
    return sum(2 if ln.strip().startswith(TRANS) else 1 for ln in text.strip().splitlines())


def weave(mains, streams, cap=2):
    n = len(mains)
    gaps = [[] for _ in range(n)]
    used = [0] * n
    for st in streams:
        for e in st:
            if len(e) == 3:
                gaps[e[0]].append(e[1])
                used[e[0]] += cost(e[1])
    for st in streams:
        g = 0
        for e in st:
            if len(e) == 3:
                g = max(g, e[0])
                continue
            g = max(g, e[0])
            c = cost(e[1])
            while g < n - 1 and used[g] + c > cap and not (c > cap and used[g] == 0):
                g += 1
            gaps[g].append(e[1])
            used[g] += c
    out = []
    for m, gp in zip(mains, gaps):
        out.append(m)
        out.extend(gp)
    over = sum(max(0, x - cap) for x in used)
    return "\n".join(out), over


class Op:
    def __init__(self, text, deps=(), earliest=0, deadline=None):
        self.text, self.deps, self.earliest, self.deadline = text, list(deps), earliest, deadline
        self.cost = cost(text)
        self.gap = None


def chain(texts, earliest=0, dist=0, after=None):
    out, prev = [], after
    for t in texts:
        t, d = t if isinstance(t, tuple) else (t, dist)
        o = Op(t, [(prev, d)] if prev else [], earliest)
        out.append(o)
        prev = o
    return out


def sched(mains, pinned, ops, cap=2, vspan=None):
    n = len(mains)
    gaps = [[] for _ in range(n)]
    used = [0] * n
    for g, t in pinned:
        gaps[g].append(t)
        used[g] += cost(t)
    todo = list(ops)
    wide_mem = lambda o: "buffer_" in o.text and "x4" in o.text
    nmem = sum(map(wide_mem, ops))
    step = vspan / max(nmem, 1) if vspan else 0
    nxt_mem = 0.0
    for g in range(n):
        while todo:
            free = cap - used[g]
            ready = [o for o in todo if o.earliest <= g and all(d.gap is not None and d.gap + k <= g for d, k in o.deps)]
            if g == n - 1:
                ready = [o for o in todo if all(d.gap is not None for d, k in o.deps)]
                fit = ready
            else:
                fit = [o for o in ready if o.cost <= free or (o.cost > cap and used[g] == 0)]
                if vspan:
                    fit = [o for o in fit if not wide_mem(o) or g >= int(nxt_mem)]
            if not fit:
                break
            wide = [o for o in fit if o.cost >= cap]
            mem = [o for o in fit if vspan and (wide_mem(o) or "m0," in o.text)]
            o = (wide or mem or fit)[0]
            if any(k and d.gap == g and gaps[g][-1] == d.text for d, k in o.deps):
                gaps[g].append("s_nop 0")
                used[g] += 1
            if vspan and wide_mem(o):
                nxt_mem = max(nxt_mem + step, g + step - 1.5)
            o.gap = g
            gaps[g].append(o.text)
            used[g] += o.cost
            todo.remove(o)
    assert not todo
    for o in ops:
        assert o.deadline is None or o.gap <= o.deadline, f"deadline missed: {o.text} at gap {o.gap}"
    out = []
    for m, gp in zip(mains, gaps):
        out.append(m)
        out.extend(gp)
    return "\n".join(out), sum(max(0, x - cap) for x in used), max((o.gap for o in ops), default=0)


def resolve_waits(text, max_back=2):
    lines = text.splitlines()
    pat = re.compile(r"vmcnt\(@([\w,]+)\)")
    if not any(pat.search(x) for x in lines):
        return text
    prog = Prog(pat.sub("vmcnt(63)", text))
    src = [k for k, ln in enumerate(lines)
           if (lambda t: t and not t.startswith(".") and not t.endswith(":"))(ln.split(";")[0].strip())]
    want = {i: set(pat.search(lines[k]).group(1).split(",")) for i, k in enumerate(src) if pat.search(lines[k])}
    tags = {i: set(re.findall(r";#(\w+)", lines[k])) for i, k in enumerate(src)}
    best = {i: 63 for i in want}
    seen = set()
    stack = [(0, (), ())]
    while stack:
        i, vm, back = stack.pop()
        vm, back = list(vm), dict(back)
        while True:
            x = prog.ins[i]
            if i in want:
                for n, j in enumerate(reversed(vm)):
                    if tags[j] & want[i]:
                        best[i] = min(best[i], n)
                        vm = vm[len(vm) - n:] if n else []
                        break
            elif x.op == "s_waitcnt":
                m = re.search(r"vmcnt\((\d+)\)", " ".join(x.ops))
                if m:
                    k = int(m.group(1))
                    vm = vm[len(vm) - k:] if k and len(vm) > k else (vm if k else [])
            elif x.kind == "vmem":
                vm = (vm + [i])[-63:]
            nxt = []
            for t in prog.succ[i]:
                if t <= i:
                    if back.get(i, 0) < max_back:
                        b2 = dict(back)
                        b2[i] = b2.get(i, 0) + 1
                        nxt.append((t, b2))
                else:
                    nxt.append((t, back))
            if len(nxt) > 1:
                fresh = []
                for t, b in nxt:
                    key = (t, tuple(vm))
                    if key not in seen:
                        seen.add(key)
                        fresh.append((t, b))
                nxt = fresh
            if not nxt:
                break
            for t, b in nxt[1:]:
                stack.append((t, tuple(vm), tuple(b.items())))
            i, back = nxt[0]
    for i, n in best.items():
        lines[src[i]] = pat.sub(f"vmcnt({n})", lines[src[i]]) + " ; " + ",".join(sorted(want[i]))
    return "\n".join(re.sub(r"\s*;#\w+", "", ln) for ln in lines) + "\n"
```

```python
import math, re, struct, sys
from asmlib import B, Prog, v, a, s, weave, Op, chain, sched, resolve_waits
from gen import fbits, sdiv, srd, mf16, transpose8, ARG, HEADER

SZX = 2048 * 576 * 2
REC = 2432
KVJ = 128 * REC
X2, OB, X1, PART, HB, KV = 0, SZX, 2 * SZX, 3 * SZX, 7 * SZX, 15 * SZX
LST = KV + 16 * KVJ
WQ = 2 * LST
WQH = 126 * 1024
WO = WQ + 16 * WQH
WOS = 164 * 1024
WF = WO + 4 * WOS
CH = 36864
WFS = 31 * CH
CNT = WF + 16 * WFS
WS_END = CNT + 131072
CL = 49152
C_PREP = 32 * 128
LOFF = 0x30000
C_KV, C_O, C_X1, C_X2, C_H, C_P = 0, 16 * 128, 64 * 128, 128 * 128, 192 * 128, 256 * 128
RES = 232
OOB = 0x40000000
QX = 131072
STAMPS = 200 << 20
OPT = {}
DIAG = False
SI, SJ, SL, SC, STW, STJ, SW = 24, 25, 26, 27, 28, 29, 33


def stamp(b, i):
    if DIAG:
        b(f"s_memtime s[62:63]\ns_waitcnt lgkmcnt(0)\ns_mov_b32 s{64+i}, s62")


def stamp_real(b, i):
    if DIAG:
        b(f"s_memrealtime s[62:63]\ns_waitcnt lgkmcnt(0)\ns_mov_b32 s{64+i}, s62")


def stamp_flush(b, slot):
    if not DIAG:
        return
    b(f"""
    s_lshl_b32 s62, {slot}, 8
    s_add_u32 s62, s62, s2
    s_lshl_b32 s62, s62, 4
    s_add_u32 s62, s62, s{SW}
    s_lshl_b32 s62, s62, 7
    s_add_u32 s96, s4, {STAMPS}
    s_addc_u32 s97, s5, 0
    s_mov_b32 s98, {32 << 20}
    s_mov_b32 s99, 0x20000
    v_mov_b32 v8, 0
    """)
    for q in range(8):
        for j in range(4):
            b(f"v_mov_b32 v{4+j}, s{64+4*q+j}")
        b(f"buffer_store_dwordx4 v[4:7], v8, s[96:99], s62 offen offset:{16*q}\ns_nop 1")


def head(b, name, nwg, loads):
    b(f"s_cmp_ge_u32 s2, {nwg}\ns_cbranch_scc1 {name}_end")
    if DIAG:
        for i in range(32):
            b(f"s_mov_b32 s{64+i}, 0")
        stamp_real(b, 30)
        stamp(b, 0)
    for reg, arg in loads:
        b(f"s_load_dwordx2 s[{reg}:{reg+1}], s[0:1], {ARG[arg]}")


def finish(b, name, slot):
    if DIAG:
        b("s_waitcnt vmcnt(0)")
        stamp(b, 29)
        stamp_real(b, 31)
        stamp_flush(b, slot)
    b(f"{name}_end:\ns_endpgm")


def window(b, d, off, size):
    b(f"s_add_u32 s{d}, s4, s{off}\ns_addc_u32 s{d+1}, s5, 0\ns_mov_b32 s{d+2}, {size}\ns_mov_b32 s{d+3}, 0x20000")


def ln_tail(b, A0, n, mean, rstd, dst):
    for j in range(n):
        b(f"v_sub_f32 v{A0+j}, v{A0+j}, v{mean}")
    for j in range(n):
        b(f"v_mul_f32 v{A0+j}, v{A0+j}, v{rstd}")
    for j in range(n // 2):
        b(f"v_cvt_pk_bf16_f32 v{dst+j}, v{A0+2*j}, v{A0+2*j+1}")


def ln_stats(b, sm, sq):
    b(f"""
    v_mul_f32 v{sm}, {fbits(1/576)}, v{sm}
    v_mul_f32 v{sq}, {fbits(1/576)}, v{sq}
    v_fma_f32 v{sq}, -v{sm}, v{sm}, v{sq}
    v_max_f32 v{sq}, 0, v{sq}
    v_add_f32 v{sq}, {fbits(1e-5)}, v{sq}
    """)


def row_reduce(b, sm, sq):
    b(f"""
    s_nop 1
    v_permlane32_swap_b32 v{sm}, v{sq}
    s_nop 0
    v_add_f32 v{sm}, v{sm}, v{sq}
    v_mov_b32 v{sq}, v{sm}
    s_nop 1
    v_permlane16_swap_b32 v{sm}, v{sq}
    s_nop 0
    v_add_f32 v{sm}, v{sm}, v{sq}
    s_nop 1
    v_add_f32 v{sm}, v{sm}, v{sm} row_ror:8 row_mask:0xf bank_mask:0xf
    """)


def gen_prep(name):
    b = B()
    head(b, name, 288, [(4, "ws"), (8, "x")])
    b(f"""
    v_lshrrev_b32 v5, 6, v0
    v_and_b32 v6, 15, v0
    v_lshrrev_b32 v7, 4, v0
    v_readfirstlane_b32 s33, v5
    s_cmp_ge_u32 s2, 216
    s_cbranch_scc1 {name}_wo
    s_load_dwordx2 s[6:7], s[0:1], {ARG['wqkv']}
    """)
    sdiv(b, 34, 2, 3, 216)
    b(f"""
    s_mul_i32 s35, s34, 3
    s_sub_u32 s35, s2, s35
    s_mul_i32 s38, s34, {8*3456}
    s_mul_i32 s36, s35, 1152
    s_add_u32 s38, s38, s36
    s_lshr_b32 s36, s34, 2
    s_mul_i32 s39, s36, 7168
    s_add_u32 s39, s39, {WQ}
    s_mov_b32 s22, {576*1728*2}
    s_mov_b32 s43, {4*3456}
    s_mov_b32 s44, {2*3456}
    s_mov_b32 s45, 3456
    s_cmp_eq_u32 s33, 8
    s_cbranch_scc1 {name}_qt
    v_lshrrev_b32 v8, 1, v7
    v_and_b32 v9, 1, v7
    v_mul_u32_u24 v10, 72, v8
    v_mul_u32_u24 v11, {WQH}, v8
    v_lshl_add_u32 v11, v9, 10, v11
    v_lshl_add_u32 v11, v6, 4, v11
    s_lshl_b32 s36, s35, 11
    s_add_u32 s39, s39, s36
    s_cmp_eq_u32 s35, 2
    s_cbranch_scc1 {name}_qv
    v_lshl_add_u32 v10, v9, 3, v10
    v_lshrrev_b32 v8, 3, v6
    v_mad_u32_u24 v10, v8, 36, v10
    v_bfe_u32 v8, v6, 2, 1
    v_lshl_add_u32 v10, v8, 4, v10
    v_and_b32 v8, 3, v6
    v_lshl_add_u32 v10, v8, 1, v10
    s_branch {name}_go
{name}_qv:
    v_mad_u32_u24 v10, v9, 36, v10
    v_lshl_add_u32 v10, v6, 1, v10
    s_branch {name}_go
{name}_qt:
    v_bfe_u32 v8, v0, 1, 5
    v_mul_u32_u24 v10, 36, v8
    v_and_b32 v8, 1, v0
    v_lshl_add_u32 v10, v8, 1, v10
    v_add_u32 v10, 32, v10
    v_bfe_u32 v8, v0, 2, 4
    v_mul_u32_u24 v11, {WQH}, v8
    v_and_b32 v8, 3, v0
    v_lshl_add_u32 v11, v8, 4, v11
    s_lshl_b32 s36, s35, 6
    s_add_u32 s39, s39, s36
    s_add_u32 s39, s39, 6144
    s_branch {name}_go
{name}_wo:
    s_load_dwordx2 s[6:7], s[0:1], {ARG['wo']}
    s_sub_u32 s34, s2, 216
    s_mov_b32 s35, 1
    s_mov_b32 s22, {576*576*2}
    s_lshr_b32 s38, s34, 1
    s_mul_i32 s38, s38, {18*1152}
    s_and_b32 s36, s34, 1
    s_mul_i32 s36, s36, {4*1152}
    s_add_u32 s38, s38, s36
    s_mov_b32 s43, {8*1152}
    s_mov_b32 s44, {2*1152}
    s_mov_b32 s45, 1152
    s_cmp_lt_u32 s34, 64
    s_cbranch_scc1 {name}_wo2
    s_sub_u32 s38, s34, 64
    s_mul_i32 s38, s38, {72*1152}
    s_add_u32 s38, s38, {16*1152}
    s_mov_b32 s43, {36*1152}
    s_mov_b32 s44, {18*1152}
{name}_wo2:
    s_mov_b32 s39, {WO}
    s_lshr_b32 s36, s34, 2
    v_lshlrev_b32 v10, 1, v0
    v_mul_u32_u24 v8, 43, v7
    v_lshrrev_b32 v8, 7, v8
    v_mul_u32_u24 v9, 3, v8
    v_sub_u32 v9, v7, v9
    v_mad_u32_u24 v9, v9, 18, s36
    v_mul_u32_u24 v12, 43, v8
    v_lshrrev_b32 v12, 7, v12
    v_mul_u32_u24 v13, 3, v12
    v_sub_u32 v8, v8, v13
    v_mad_u32_u24 v13, v8, 12, v9
    v_mad_u32_u24 v14, v8, 26, v9
    v_add_u32 v14, 24, v14
    v_lshl_add_u32 v15, v8, 4, v9
    v_add_u32 v15, 78, v15
    v_cmp_gt_u32 vcc, 12, v9
    v_cmp_gt_u32 s[40:41], 38, v9
    v_mul_u32_u24 v11, {WOS}, v12
    v_lshl_add_u32 v11, v6, 4, v11
    v_cndmask_b32 v14, v15, v14, s[40:41]
    v_cndmask_b32 v13, v14, v13, vcc
    v_lshl_add_u32 v11, v13, 10, v11
{name}_go:
    s_and_b32 s36, s34, 3
    s_lshl_b32 s36, s36, 8
    s_add_u32 s39, s39, s36
    v_lshrrev_b32 v2, 3, v0
    v_and_b32 v3, 7, v0
    v_mul_u32_u24 v4, 1152, v3
    v_lshl_add_u32 v4, v2, 4, v4
    v_lshlrev_b32 v2, 8, v2
    v_lshl_add_u32 v2, v3, 4, v2
    s_mul_i32 s11, s2, 9216
    s_waitcnt lgkmcnt(0)
    s_mov_b32 s20, s6
    s_mov_b32 s21, s7
    s_mov_b32 s23, 0x20000
    """)
    assert all((t * 43) >> 7 == t // 3 for t in range(36))
    srd(b, 16, 8, 0, SZX)
    b("buffer_load_dwordx4 v[12:15], v4, s[16:19], s11 offen ;#x")
    for j in range(8):
        b("s_mov_b32 s36, s38")
        for bit, r in ((4, 43), (2, 44), (1, 45)):
            if j & bit:
                b(f"s_add_u32 s36, s36, s{r}")
        b(f"buffer_load_ushort v{16+j}, v10, s[20:23], s36 offen ;#w")
    if int(OPT.get("pf", 1)):
        b(f"""
        s_cmp_lg_u32 s33, 8
        s_cbranch_scc1 {name}_nopf
        s_getpc_b64 s[46:47]
{name}_pc:
        s_add_u32 s46, s46, main_kernel-{name}_pc
        s_addc_u32 s47, s47, 0
        s_bfe_u32 s36, s2, 0x50003
        s_lshl_b32 s36, s36, 11
        v_and_b32 v50, 15, v0
        v_lshl_add_u32 v50, v50, 7, s36
        v_min_u32 v50, main_code_end-main_kernel-4, v50
        v_mov_b32 v51, s47
        v_add_co_u32 v50, vcc, s46, v50
        s_nop 1
        v_addc_co_u32 v51, vcc, 0, v51, vcc
        global_load_dword v52, v[50:51], off
{name}_nopf:
        """)
    srd(b, 12, 4, 0, WS_END)
    srd(b, 24, 4, LST + X2, SZX)
    b(f"""
    s_lshr_b32 s10, s2, 1
    s_mul_i32 s10, s10, 18432
    s_and_b32 s11, s2, 1
    s_lshl_b32 s11, s11, 7
    s_add_u32 s10, s10, s11
    v_lshlrev_b32 v6, 2, v0
    v_mov_b32 v7, {OOB}
    v_cmp_gt_u32 vcc, 128, v0
    v_mov_b32 v8, 0
    s_lshl_b32 s11, s2, 9
    v_cndmask_b32 v6, v7, v6, vcc
    s_add_u32 s11, s11, {CNT}
    buffer_store_dword v8, v6, s[12:15], s11 offen
    v_lshlrev_b32 v3, 2, v3
    v_lshl_add_u32 v4, v5, 5, v3
    s_waitcnt vmcnt(@x)
    """)
    A0 = 32
    for j in range(4):
        b(f"v_lshlrev_b32 v{A0+2*j}, 16, v{12+j}\nv_and_b32 v{A0+2*j+1}, 0xffff0000, v{12+j}")
    b(f"v_add_f32 v6, v{A0}, v{A0+1}")
    for j in range(2, 8):
        b(f"v_add_f32 v6, v6, v{A0+j}")
    b("v_mov_b32 v7, v6")
    row_reduce(b, 6, 7)
    b("ds_write_b32 v4, v6\ns_waitcnt vmcnt(@w)")
    for j in range(4):
        b(f"v_lshl_or_b32 v{24+j}, v{17+2*j}, 16, v{16+2*j}")
    b(f"""
    buffer_store_dwordx4 v[24:27], v11, s[12:15], s39 offen{OPT.get("pst", "")}
    s_lshl_b32 s36, s35, 4
    s_add_u32 s36, s36, s33
    s_cmp_lg_u32 s36, 8
    s_cbranch_scc1 {name}_noone
    """)
    for j in range(4):
        b(f"v_mov_b32 v{28+j}, 0x3f803f80")
    b(f"buffer_store_dwordx4 v[28:31], v11, s[12:15], s39 offen offset:192\n{name}_noone:\ns_waitcnt lgkmcnt(0)\ns_barrier")
    for w in range(9):
        b(f"ds_read_b32 v{40+w}, v3 offset:{32*w}")
    b("s_waitcnt lgkmcnt(0)")
    for w in range(1, 9):
        b(f"v_add_f32 v40, v40, v{40+w}")
    b(f"v_mul_f32 v40, {fbits(1/576)}, v40")
    for j in range(8):
        b(f"v_sub_f32 v{A0+j}, v{A0+j}, v40")
    for j in range(4):
        b(f"v_cvt_pk_bf16_f32 v{12+j}, v{A0+2*j}, v{A0+2*j+1}")
    b("buffer_store_dwordx4 v[12:15], v2, s[24:27], s10 offen" + OPT.get("pst", ""))
    if DIAG:
        b(f"s_cmp_ge_u32 s2, 256\ns_cbranch_scc1 {name}_end")
    finish(b, name, "1")
    return dict(name=name, text=resolve_waits(b.text()), grid=288, block=576, lds=512)


def signal(b, tag, base, idx, wave=3, extra=None):
    b(f"""
    s_lshl_b32 s60, s{idx}, 7
    s_add_u32 s60, s60, s{SC}
    s_add_u32 s60, s60, {base}
    s_waitcnt vmcnt(0) lgkmcnt(0)
{tag}_bar:
    s_barrier
    s_cmp_lg_u32 s{SW}, {wave}
    s_cbranch_scc1 {tag}_sig
    s_mov_b64 exec, 1
    buffer_atomic_add v3, v2, s[12:15], s60 offen sc1
    """)
    if extra:
        b(f"buffer_atomic_add v3, v2, s[12:15], s{extra} offen sc1")
    b(f"s_mov_b64 exec, -1\n{tag}_sig:")


def poll(b, tag, base, idx, target, one_wave):
    b(f"""
    s_lshl_b32 s60, s{idx}, 7
    s_add_u32 s60, s60, s{SC}
    s_add_u32 s60, s60, {base}
    s_mov_b32 s61, 0x40000
    """)
    if one_wave:
        b(f"s_cmp_lg_u32 s{SW}, 3\ns_cbranch_scc1 {tag}_ok")
    b(f"""
{tag}_poll:
    buffer_load_dword v4, v2, s[12:15], s60 offen sc1
    s_sub_u32 s61, s61, 1
    s_waitcnt vmcnt(0)
    v_cmp_gt_u32 vcc, {target}, v4
    s_cbranch_scc1 {tag}_ok
    s_cbranch_vccnz {tag}_poll
{tag}_ok:
    """)
    if one_wave:
        b("s_barrier")


def dma_run(b, n, srdn, soff, flags=""):
    for i in range(n):
        off = f" offset:{1024*(i%4)}" if i % 4 else ""
        b(f"buffer_load_dwordx4 v1, s[{srdn}:{srdn+3}], s{soff} offen{off}{flags} lds")
        if i % 4 == 3 and i < n - 1:
            b(f"s_add_u32 m0, m0, 4096\ns_add_u32 s{soff}, s{soff}, 4096")


def pack4(b, dst, p, q):
    b(f"""
    v_cvt_pk_bf16_f32 v{dst}, v{p}, v{p+1}
    v_cvt_pk_bf16_f32 v{dst+1}, v{p+2}, v{p+3}
    v_cvt_pk_bf16_f32 v{dst+2}, v{q}, v{q+1}
    v_cvt_pk_bf16_f32 v{dst+3}, v{q+2}, v{q+3}
    """)


def unit_offset(b, dst, t0, t1):
    b(f"""
    v_bfe_u32 v{t0}, v0, 4, 1
    v_bfe_u32 v{t1}, v0, 5, 1
    v_mul_u32_u24 v{dst}, 18432, v{t0}
    v_lshl_add_u32 v{dst}, v{t1}, 8, v{dst}
    v_and_b32 v{t0}, 15, v0
    v_lshl_add_u32 v{dst}, v{t0}, 4, v{dst}
    """)


IMG = QX + 9216
QSCALE = fbits(math.log2(math.e) / math.sqrt(18))


def phase_q(b):
    ACC, XQ, TMP, RV, RB, AD = 16, 80, 128, 168, 184, 208
    AQ, AKK, AVV, AVT, TA, GS, GD, RD, ST4 = AD, AD + 1, AD + 2, AD + 3, AD + 4, AD + 8, AD + 9, AD + 10, AD + 11
    b(f"""
    s_mul_i32 s34, s{STW}, 36864
    s_add_u32 s34, s34, {LST+X2}
    s_sub_u32 s34, s34, s{SL}
    s_add_u32 s16, s4, s34
    s_addc_u32 s17, s5, 0
    s_mov_b32 s18, 18432
    s_mov_b32 s19, 0x20000
    s_add_u32 s20, s16, 18432
    s_addc_u32 s21, s17, 0
    s_mov_b32 s22, 18432
    s_mov_b32 s23, 0x20000
    """)
    b(f"""
    v_and_b32 v12, 15, v0
    v_bfe_u32 v4, v0, 4, 2
    v_lshrrev_b32 v13, 1, v4
    v_and_b32 v14, 1, v4
    s_mul_i32 s38, s{SW}, 1152
    s_add_u32 s38, s38, {QX}
    s_mul_i32 s39, s{SW}, {2*REC}
    s_add_u32 s39, s39, {IMG}
    v_mul_u32_u24 v{AQ}, 4608, v13
    v_lshl_add_u32 v{AQ}, v14, 9, v{AQ}
    v_lshl_add_u32 v{AQ}, v12, 4, v{AQ}
    v_add_u32 v{AQ}, s38, v{AQ}
    v_mul_u32_u24 v{AKK}, {REC}, v13
    v_lshl_add_u32 v{AKK}, v14, 9, v{AKK}
    v_lshrrev_b32 v13, 2, v12
    v_and_b32 v15, 3, v12
    v_cmp_eq_u32 s[50:51], 1, v15
    v_cmp_eq_u32 s[52:53], 2, v15
    v_cmp_eq_u32 s[54:55], 3, v15
    v_cmp_eq_u32 s[48:49], 0, v4
    v_cmp_eq_u32 s[56:57], 3, v13
    v_lshl_add_u32 v{GD}, v13, 4, v12
    v_lshlrev_b32 v{GD}, 2, v{GD}
    v_lshlrev_b32 v{GS}, 2, v12
    v_lshlrev_b32 v6, 4, v4
    v_lshl_add_u32 v15, v13, 3, v15
    v_lshl_add_u32 v{AKK}, v15, 4, v{AKK}
    v_add_u32 v{AKK}, s39, v{AKK}
    s_add_u32 s40, s38, 1024
    s_add_u32 s41, s39, 2176
    v_lshl_add_u32 v{TA}, v12, 2, s40
    v_lshl_add_u32 v15, v15, 2, s41
    v_cndmask_b32 v{TA}, v15, v{TA}, s[48:49]
    v_mov_b32 v13, {REC}
    v_mov_b32 v14, 4608
    v_mov_b32 v15, 16
    v_cndmask_b32 v13, v13, v14, s[48:49]
    v_cndmask_b32 v15, v15, 64, s[48:49]
    v_add_u32 v{TA+1}, v{TA}, v13
    v_add_u32 v{TA+2}, v{TA}, v15
    v_add_u32 v{TA+3}, v{TA+1}, v15
    v_mul_u32_u24 v{AVV}, 288, v4
    v_and_b32 v14, 1, v12
    v_lshl_add_u32 v{AVT}, v14, 4, v{AVV}
    v_mov_b32 v14, 1024
    v_lshl_add_u32 v{AVV}, v12, 4, v{AVV}
    v_cndmask_b32 v{AVT}, v{AVT}, v14, s[56:57]
    v_bfe_u32 v14, v12, 1, 1
    v_mul_u32_u24 v14, {REC}, v14
    v_add3_u32 v{AVT}, v{AVT}, v14, s39
    v_add_u32 v{AVV}, s39, v{AVV}
    v_add_u32 v{RD}, s39, v1
    v_add_u32 v{ST4}, 4096, v1
    v_mov_b32 v14, {OOB}
    v_cmp_gt_u32 vcc, 768, v1
    s_mul_i32 s43, s{SJ}, {KVJ}
    s_mul_i32 s44, s{STW}, {2*REC}
    v_cndmask_b32 v{ST4}, v14, v{ST4}, vcc
    s_add_u32 s43, s43, s44
    s_add_u32 s43, s43, s{SL}
    s_add_u32 s43, s43, {KV}
    v_mov_b32 v7, 0x3f803f80
    v_mov_b32 v5, v1
    s_mov_b32 s37, 3
    """)
    for i in range(8, 80):
        b(f"v_mov_b32 v{i}, 0")
    b(f"""
    s_cmp_eq_u32 s{SL}, 0
    s_cbranch_scc1 q_ok
    """)
    poll(b, "q", C_X2 - CL, STW, 4, False)
    stamp(b, 1)
    xq = lambda p, rt: XQ + ((p % 6) * 2 + rt) * 4
    xload = lambda p, rt: f"buffer_load_dwordx4 {v(xq(p, rt),4)}, v1, s[{16+4*rt}:{19+4*rt}], s36 offen sc1 ;#x{p%6}"
    b("s_mov_b32 s36, 0")
    for p in range(5):
        b(xload(p, 0) + "\n" + xload(p, 1) + "\ns_add_u32 s36, s36, 1024")
    acc = lambda f, rt: ACC + (f * 2 + rt) * 4
    ring = lambda ks, f: a((ks % 2) * 28 + f * 4, 4)
    forder = (6, 0, 1, 2, 3, 4, 5)
    reads = lambda p: [f"ds_read_b128 {ring(p, f)}, v5 offset:{(p*7+f)*1024}" for f in forder]
    b("s_waitcnt vmcnt(10)\ns_barrier")
    b("\n".join(reads(0)))
    stamp(b, 2)
    b(".p2align 3\nq_loop:")
    for p in range(6):
        mains = []
        for f in (6, 7, 0, 1, 2, 3, 4, 5):
            for rt in range(2):
                w, x, d = ring(p, min(f, 6)), v(xq(p, rt), 4), v(acc(f, rt), 4)
                mains.append(mf16(d, x, w, d) if f in (4, 5, 7) else mf16(d, w, x, d))
        pinned = [(1 + i, t) for i, t in enumerate(reads(p + 1))]
        pinned += [(0, xload(p + 5, 0)), (8, xload(p + 5, 1)), (9, "s_add_u32 s36, s36, 1024")]
        for gq in (3, 11):
            pinned += [(gq, "s_mov_b32 m0, s10"), (gq + 1, f"buffer_load_dwordx4 v1, s[12:15], s11 offen sc1 lds ;#wq{p//3}"),
                       (gq + 2, "s_add_u32 s10, s10, 4096"), (gq + 3, "s_add_u32 s11, s11, 4096")]
        if p % 3 == 2:
            pinned = [(0, f"s_waitcnt vmcnt(@wq{1-p//3})\ns_barrier")] + pinned
        ops = []
        if p == 4:
            pinned += [(10, "s_sub_u32 s37, s37, 1")]
        if p == 5:
            pinned += [(8, "v_add_u32 v5, 43008, v5"),
                       (15, "s_cmp_le_u32 s37, s9\n" + f"s_cselect_b32 s11, {OOB}, s11\ns_cselect_b32 s10, {LOFF}, s10\ns_cmp_lg_u32 s37, 0")]
            for rt in range(2):
                gq, t = 8 + 4 * rt, RV + 4 + rt
                ops += chain([f"v_cndmask_b32 v{t}, v{gq}, v{gq+1}, s[50:51]", f"v_cndmask_b32 v{t}, v{t}, v{gq+2}, s[52:53]",
                              f"v_cndmask_b32 v{t}, v{t}, v{gq+3}, s[54:55]", f"ds_bpermute_b32 v{RV+2+rt}, v{GD}, v{t}",
                              f"ds_bpermute_b32 v{RV+rt}, v{GS}, v{acc(6,rt)} offset:192"], earliest=7)
        gram = [mf16(v(8 + 4 * rt, 4), v(xq(p, rt), 4), v(xq(p, rt), 4), v(8 + 4 * rt, 4)) for rt in range(2)]
        b(f"s_waitcnt vmcnt(@x{p})\n{gram[0]}\n{gram[1]}\ns_waitcnt lgkmcnt(0)")
        txt = sched(mains, pinned, ops)[0]
        if p == 5:
            txt = txt.replace("s_cmp_lg_u32 s37, 0\n", "") + "\ns_cmp_lg_u32 s37, 0" if not txt.endswith("s_cmp_lg_u32 s37, 0") else txt
        b(txt)
    b("s_cbranch_scc1 q_loop")
    stamp(b, 3)
    b("s_waitcnt lgkmcnt(0)")
    for rt in range(2):
        ln_stats(b, RV + rt, RV + 2 + rt)
        b(f"v_rsq_f32 v{8+rt}, v{RV+2+rt}")
    b(f"v_mul_f32 v12, {QSCALE}, v8")
    for rt in range(2):
        for i in range(4):
            b(f"ds_bpermute_b32 v{RV+4*rt+i}, v6, v{8+rt} offset:{4*i}")
    b(f"v_mul_f32 v13, {QSCALE}, v9\nv_cndmask_b32 v14, v8, v12, s[48:49]\nv_cndmask_b32 v15, v9, v13, s[48:49]")

    def scale(f, rt, by):
        for i in (0, 2):
            d = v(acc(f, rt) + i, 2)
            if isinstance(by, int):
                sel = "op_sel:[1,0] op_sel_hi:[1,1]" if by & 1 else "op_sel_hi:[0,1]"
                b(f"v_pk_mul_f32 {d}, {v(by & ~1, 2)}, {d} {sel.replace(',', ':')}")
            else:
                b(f"v_pk_mul_f32 {d}, {v(by[0]+i,2)}, {d}")

    T = TMP
    for rt in range(2):
        scale(2, rt, 8 + rt)
        scale(3, rt, 8 + rt)
        pack4(b, T, acc(2, rt), acc(3, rt))
        b(f"ds_write_b128 v{AKK}, {v(T,4)} offset:{64*rt}")
        T += 4
    for rt in range(2):
        scale(6, rt, 14 + rt)
    pack4(b, T, acc(6, 0), acc(6, 1))
    b("s_mov_b64 exec, 0xffffffff")
    for k in range(4):
        b(f"ds_write_b32 v{TA+k}, v{T+k}")
    b("s_mov_b64 exec, -1\ns_waitcnt lgkmcnt(6)")
    T += 4
    for f in (4, 5, 7):
        for rt in range(2):
            scale(f, rt, [RV + 4 * rt])
        pack4(b, T, acc(f, 0), acc(f, 1))
        if f < 7:
            b(f"ds_write_b128 v{AVV}, {v(T,4)} offset:{1024+REC*(f-4)}")
        else:
            for i in range(4):
                b(f"v_cndmask_b32 v{T+i}, v{T+i}, v7, s[56:57]")
            b(f"s_mov_b32 exec_lo, 0xff00ff00\ns_mov_b32 exec_hi, 0xff00ff00\nds_write_b128 v{AVT}, {v(T,4)} offset:1280\ns_mov_b64 exec, -1")
        T += 4
    for n in range(5):
        b(f"ds_read_b128 {v(RB+4*n,4)}, v{RD} offset:{1024*n}")
    for rt in range(2):
        scale(0, rt, 12 + rt)
        scale(1, rt, 12 + rt)
        pack4(b, T + 4 * rt, acc(0, rt), acc(1, rt))
    for n in range(5):
        b(f"s_waitcnt lgkmcnt({4-n})")
        b(f"buffer_store_dwordx4 {v(RB+4*n,4)}, " + (f"v1, s[12:15], s43 offen offset:{1024*n}" if n < 4 else f"v{ST4}, s[12:15], s43 offen") + " sc1")
    for rt in range(2):
        b(f"ds_write_b128 v{AQ}, {v(T+4*rt,4)} offset:{256*rt}")
    stamp(b, 4)


def wo_loads(lo, hi):
    out = []
    for n in range(lo, hi):
        off = f" offset:{1024*((n-lo)%4)}" if (n - lo) % 4 else ""
        t = f"buffer_load_dwordx4 {a(4*n,4)}, v1, s[12:15], s38 offen{off}"
        if (n - lo) % 4 == 3:
            t += "\ns_add_u32 s38, s38, 4096"
        out.append(t)
    return out


def wo_base(b, part, per):
    b(f"""
    s_and_b32 s38, s{SJ}, 3
    s_mul_i32 s38, s38, {WOS}
    s_mul_i32 s39, s{SW}, {1024*per}
    s_add_u32 s38, s38, s39
    s_add_u32 s38, s38, {WO + 1024*part}
    s_cmp_eq_u32 s{SW}, 3
    s_cselect_b32 s38, {OOB}, s38
    """)


def centre(b, fr, n, tmp, mean, after=None):
    for k in range(n):
        for j in range(4):
            for h in range(2):
                b(f"v_dot2_f32_bf16 v{tmp+2*j+h}, v{fr+4*k+j}, s{30+h}, v{mean}")
        for j in range(4):
            b(f"v_cvt_pk_bf16_f32 v{fr+4*k+j}, v{tmp+2*j}, v{tmp+2*j+1}")
        if after:
            b(after(k))


def row_tile(b, vd, sd):
    b(f"""
    v_and_b32 v{vd}, 31, v0
    v_mul_u32_u24 v{vd}, 1152, v{vd}
    v_bfe_u32 v{vd+1}, v0, 5, 1
    v_lshl_add_u32 v{vd}, v{vd+1}, 4, v{vd}
    s_and_b32 s{sd}, s{SJ}, 3
    s_mul_i32 s{sd}, s{sd}, 3
    s_add_u32 s{sd}, s{sd}, s{SW}
    s_mul_i32 s{sd}, s{sd}, 96
    s_mul_i32 s{sd+1}, s{STJ}, 36864
    s_add_u32 s{sd}, s{sd}, s{sd+1}
    """)


def layer0_jobs(b, VD, TR, ONE, SM, PF, PT, AF):
    b(f"s_load_dwordx2 s[20:21], s[0:1], {ARG['x']}\ns_mov_b32 s22, {SZX}\ns_mov_b32 s23, 0x20000")
    row_tile(b, 8, 38)
    for i in range(4):
        b(f"v_mov_b32 v{ONE+i}, 0x3f803f80")
    b("s_waitcnt lgkmcnt(0)")
    for n in range(3):
        b(f"buffer_load_dwordx4 {v(RES+12+4*n,4)}, v8, s[20:23], s38 offen offset:{32*n}")
    sdiv(b, 41, STW, 9, 64)
    b(f"""
    s_mul_i32 s38, s41, 9
    s_sub_u32 s38, s{STW}, s38
    s_lshl_b32 s39, s41, 10
    v_add_u32 v8, s39, v1
    v_add_u32 v9, {9*7168}, v8
    s_mul_i32 s38, s38, 14336
    s_add_u32 s38, s38, s39
    v_add_u32 v12, s38, v1
    """)
    for ks in range(18):
        b(f"ds_read_b128 {a(AF+4*ks,4)}, v{8+ks//9} offset:{7168*(ks%9)}")
        if ks == 11:
            b("s_waitcnt lgkmcnt(6)")
    b(f"ds_read_b128 {v(PF,4)}, v12\nds_read_b128 {v(PF+4,4)}, v12 offset:7168")
    for ks in range(18):
        if ks >= 6:
            b(f"s_waitcnt lgkmcnt({19-ks})")
        b(mf16(v(SM, 4), v(ONE, 4), a(AF + 4 * ks, 4), "0" if ks == 0 else v(SM, 4)))
    b(f"""
    v_and_b32 v8, 12, v0
    v_cmp_eq_u32 vcc, 12, v8
    s_cmp_eq_u32 s41, 6
    s_cselect_b64 vcc, vcc, 0
    s_add_u32 s39, s38, 7168
    s_mul_i32 s41, s{SJ}, {WFS}
    s_add_u32 s41, s41, {WF+28*CH}
    s_cmp_eq_u32 s{STW}, 63
    s_cselect_b32 s41, {OOB}, s41
    """)
    for r in (38, 39):
        b(f"s_cmp_ge_u32 s{r}, {3*CH}\ns_cselect_b32 s44, {4*CH}, 0\ns_sub_u32 s{r}, s{r}, s44\ns_add_u32 s{r}, s{r}, s41")
    b(f"s_waitcnt lgkmcnt(0)\nv_mul_f32 v{SM}, {fbits(-1/576)}, v{SM}\nv_cndmask_b32 v{SM}, v{SM}, v2, vcc")
    centre(b, PF, 2, PT, SM, lambda k: f"buffer_store_dwordx4 {v(PF+4*k,4)}, v1, s[12:15], s{38+k} offen sc1")
    b(f"""
    s_mov_b32 s32, 0
    v_bfe_u32 v8, v0, 4, 2
    v_bfe_u32 v9, v0, 2, 2
    v_and_b32 v12, 3, v0
    v_lshlrev_b32 v12, 3, v12
    v_lshl_add_u32 v12, v9, 7, v12
    s_lshl_b32 s38, s{SW}, 5
    v_add_u32 v12, s38, v12
    s_cmp_ge_u32 s2, 144
    s_cbranch_scc1 a_raw2
    s_and_b32 s38, s2, 1
    s_lshl_b32 s39, s38, 3
    s_add_u32 s44, s0, s39
    s_addc_u32 s45, s1, 0
    s_load_dwordx2 s[20:21], s[44:45], {ARG['w1']}
    s_lshr_b32 s39, s2, 1
    s_lshl_b32 s56, s39, 7
    s_mov_b32 s41, 9216
    s_mov_b32 s8, {fbits(-1/576)}
    s_mov_b32 s59, 2048
    s_mov_b32 s9, 0
    s_lshl_b32 s39, s39, 2
    s_add_u32 s39, s39, s{SW}
    """)
    sdiv(b, 44, 39, 18, 288)
    b(f"""
    s_mul_i32 s44, s44, {WFS-18*CH}
    s_mul_i32 s39, s39, {CH}
    s_add_u32 s58, s39, s44
    s_lshl_b32 s38, s38, 10
    s_add_u32 s58, s58, s38
    s_add_u32 s58, s58, {WF}
    v_lshl_add_u32 v{TR}, v8, 10, v12
    v_add_u32 v{TR+1}, 512, v{TR}
    s_branch a_raw3
a_raw2:
    s_load_dwordx2 s[20:21], s[0:1], {ARG['w2']}
    s_sub_u32 s38, s2, 144
    """)
    sdiv(b, 39, 38, 9, 112)
    b(f"""
    s_mul_i32 s44, s39, 9
    s_sub_u32 s38, s38, s44
    s_mul_i32 s56, s39, {576*1152}
    s_lshl_b32 s44, s38, 7
    s_add_u32 s56, s56, s44
    s_mov_b32 s41, 1152
    s_mov_b32 s8, 0
    s_mov_b32 s59, {CH}
    s_lshl_b32 s38, s38, 2
    s_add_u32 s38, s38, s{SW}
    """)
    sdiv(b, 44, 38, 9, 36)
    b(f"""
    s_lshl_b32 s45, s39, 1
    s_sub_u32 s45, s45, s44
    s_and_b32 s45, s45, 3
    s_mov_b32 s9, {9216-9*CH}
    s_cmp_eq_u32 s45, 3
    s_cselect_b32 s9, {-3*9216-9*CH}, s9
    s_mul_i32 s45, s45, 9216
    s_mul_i32 s44, s44, {WFS-9216}
    s_lshl_b32 s38, s38, 10
    s_add_u32 s58, s38, s44
    s_add_u32 s58, s58, s45
    s_lshr_b32 s44, s39, 1
    s_mul_i32 s44, s44, {4*WFS}
    s_add_u32 s58, s58, s44
    s_add_u32 s58, s58, {WF+18*CH}
    s_cmp_ge_u32 s2, 216
    s_cselect_b32 s58, {OOB}, s58
    v_lshl_add_u32 v{TR}, v8, 9, v12
    v_add_u32 v{TR+1}, 2048, v{TR}
a_raw3:
    s_mov_b32 s22, {576*4608*2}
    v_bfe_u32 v8, v0, 3, 3
    v_mul_lo_u32 v8, v8, s41
    v_and_b32 v9, 7, v0
    v_lshl_add_u32 v{VD}, v9, 4, v8
    s_lshl_b32 s41, s41, 3
    s_sub_u32 s38, s41, 1024
    v_add_u32 v{VD+1}, s38, v{VD}
    v_add_u32 v{VD+2}, s38, v{VD+1}
    v_add_u32 v{VD+3}, s38, v{VD+2}
    s_lshl_b32 s57, s41, 4
    s_waitcnt lgkmcnt(0)
    """)


def phase_a(b):
    QM, QT, KM, KT, VF, S, O, MX, IDX = 16, 32, 64, 56, 80, 96, 160, 224, 228
    VD, TR, MEAN, ONE, SM, PF, PT, AF = 40, 44, 46, 48, 52, 64, 88, 112
    AV, AT = 229, 231
    OM, OT, MW, MR = 6, 7, 10, 11
    qm = lambda t: v(QM + 4 * t, 4)
    qt = lambda t: v(QT + 2 * t, 2)
    km = lambda k: a(KM + 4 * (k % 4), 4)
    kt = lambda k: v(KT + 2 * (k % 4), 2)
    vf = lambda k, g: a(VF + 8 * (k % 4) + 4 * g, 4)
    sb = lambda n: S + 16 * (n % 4)
    ob = lambda t: O + 16 * t
    m8 = lambda d, k, t: f"v_mfma_f32_32x32x8_bf16 {v(d,16)}, {kt(k)}, {qt(t)}, 0"
    m16 = lambda d, k, t: f"v_mfma_f32_32x32x16_bf16 {v(d,16)}, {km(k)}, {qm(t)}, {v(d,16)}"
    smf = lambda t, k, g, p: f"v_smfmac_f32_32x32x32_bf16 {v(ob(t),16)}, {vf(k,g)}, {v(p+8*g,8)}, v{IDX}"

    def rec_loads(k):
        tg = f" ;#r{k%4}"
        return [f"buffer_load_dwordx4 {km(k)}, v1, s[16:19], s46 offen sc1{tg} ;#k{k%4}",
                f"buffer_load_dword v{KT+2*(k%4)}, v{AT}, s[16:19], s46 offen offset:2176 sc1{tg} ;#k{k%4}",
                f"buffer_load_dwordx4 {vf(k,0)}, v{AV}, s[16:19], s46 offen sc1{tg}",
                f"buffer_load_dwordx4 {vf(k,1)}, v{AV+1}, s[16:19], s46 offen sc1{tg}"]

    def wo_mode(b, start):
        b(f"""
        s_and_b32 s38, s{SJ}, 3
        s_mul_i32 s38, s38, {WOS}
        s_add_u32 s38, s38, {WO + 36*1024}
        s_lshl_b32 s56, s{SW}, 12
        s_add_u32 s56, s56, {start}
        s_mov_b32 m0, s56
        s_mov_b32 s57, 16384
        """)
        window(b, 20, 38, 128 * 1024)
        for k in range(4):
            b(f"v_mov_b32 v{VD+k}, v1")

    slots_off = f"s_mov_b32 s56, {OOB}\ns_mov_b32 s57, 0\ns_mov_b32 s40, 0\ns_mov_b32 m0, {LOFF}"
    b(f"""
    s_lshr_b32 s37, s{SW}, 1
    s_lshl_b32 s34, s{SJ}, 1
    s_add_u32 s34, s34, s37
    s_and_b32 s35, s{SW}, 1
    s_mul_i32 s38, s37, 4608
    s_add_u32 s38, s38, {QX}
    s_mul_i32 s39, s35, 2304
    s_add_u32 s40, s38, s39
    s_sub_u32 s41, s38, s39
    v_and_b32 v4, 31, v0
    v_bfe_u32 v5, v0, 5, 1
    v_lshlrev_b32 v{AT}, 2, v4
    v_add_u32 v8, s40, v1
    v_add_u32 v9, s41, v1
    v_add_u32 v12, s40, v{AT}
    v_add_u32 v13, s41, v{AT}
    v_cmp_eq_u32 s[50:51], 0, v5
    s_mul_i32 s38, s{SW}, {2*REC}
    s_mul_i32 s39, s37, {REC}
    s_add_u32 s38, s38, s39
    s_add_u32 s38, s38, {IMG}
    v_add_u32 v14, s38, v1
    v_add_u32 v15, s38, v{AT}
    s_waitcnt lgkmcnt(0)
    s_barrier
    ds_read_b128 {km(0)}, v14
    ds_read_b32 v{KT}, v15 offset:2176
    """)
    for t in range(4):
        b(f"ds_read_b128 {qm(t)}, v{8 + t // 2} offset:{1152*t}")
        b(f"ds_read_b32 v{QT+2*t}, v{12 + t // 2} offset:{1152*t+1024}")
    b(f"""
    s_mul_i32 s38, s{SJ}, {KVJ}
    s_add_u32 s38, s38, s39
    s_mul_i32 s39, s35, {64*REC}
    s_add_u32 s38, s38, s39
    s_add_u32 s38, s38, s{SL}
    s_add_u32 s38, s38, {KV}
    s_mov_b32 s49, 0x07060302
    s_mov_b32 s47, 1
    s_mov_b32 s3, 0
    v_mov_b32 v{KT+1}, 0x3f803f80
    s_waitcnt vmcnt(5) lgkmcnt(0)
    """)
    window(b, 16, 38, 63 * REC)
    for t in range(4):
        b(f"v_cndmask_b32 v{QT+2*t}, 0, v{QT+2*t}, s[50:51]")
    b("a_max:")
    for t in range(4):
        b(f"v_mov_b32 v{QT+2*t+1}, 0\nv_mov_b32 v{MX+t}, 0xff800000")
    b("s_mov_b32 s46, 0\ns_cmp_eq_u32 s3, 0\ns_cbranch_scc1 a_maxbody\na_maxloop:")
    b("\n".join(rec_loads(0)[:2]))
    b(f"s_add_u32 s46, s46, {2*REC}\ns_waitcnt vmcnt(0)\na_maxbody:")
    for t in range(4):
        b(m8(sb(t), 0, t))
        b(m16(sb(t), 0, t))
    b("s_nop 5")
    for t in range(4):
        for i in range(8):
            b(f"v_max3_f32 v{MX+t}, v{sb(t)+2*i}, v{sb(t)+2*i+1}, v{MX+t}")
    b("s_sub_u32 s47, s47, 1\ns_cmp_lg_u32 s47, 0\ns_cbranch_scc1 a_maxloop\ns_cmp_lg_u32 s3, 0\ns_cbranch_scc1 a_init")
    stamp(b, 5)
    signal(b, "q", C_KV, SJ)
    stamp(b, 6)
    wo_base(b, 0, 12)
    pb = B()
    pb(f"""
    v_mul_u32_u24 v8, 288, v5
    v_lshl_add_u32 v8, v4, 4, v8
    v_add_u32 v9, 1600, v8
    v_add_u32 v8, 1024, v8
    v_mov_b32 v12, {OOB}
    v_mov_b32 v13, 2304
    v_and_b32 v14, 27, v4
    v_cmp_eq_u32 vcc, 18, v14
    v_cmp_gt_u32 s[52:53], 18, v4
    v_mov_b32 v{IDX}, 0xdddddddd
    v_cndmask_b32 v13, v12, v13, vcc
    v_cndmask_b32 v{AV}, v13, v8, s[52:53]
    v_cndmask_b32 v{AV+1}, v13, v9, s[52:53]
    v_lshrrev_b32 v{OM}, 4, v4
    v_lshlrev_b32 v{OM}, 14, v{OM}
    v_and_b32 v8, 15, v4
    v_lshl_add_u32 v{OM}, v8, 4, v{OM}
    v_and_b32 v8, 35, v0
    v_cmp_eq_u32 vcc, 0, v8
    v_lshl_add_u32 v{OM}, v5, 8, v{OM}
    s_lshl_b32 s42, s{SI}, 1
    v_cndmask_b32 v{OT}, v12, v{AT}, vcc
    s_add_u32 s42, s42, 1
    s_sub_u32 s42, s42, s35
    s_mul_i32 s42, s42, 73728
    s_add_u32 s42, s42, s{SL}
    s_add_u32 s42, s42, {OB}
    s_lshl_b32 s43, s34, 9
    s_add_u32 s43, s43, s42
    s_lshl_b32 s44, s34, 7
    s_add_u32 s42, s42, s44
    s_add_u32 s42, s42, 32768
    s_mul_i32 s44, s{SW}, 6144
    s_xor_b32 s45, s{SW}, 1
    s_mul_i32 s45, s45, 6144
    s_add_u32 s44, s44, {QX}
    s_add_u32 s45, s45, {QX}
    v_add_u32 v{MW}, s44, v1
    v_add_u32 v{MR}, s45, v1
    """)
    for k in range(1, 4):
        pb(f"v_mov_b32 v{KT+2*k+1}, 0x3f803f80")
    for i in range(8):
        pb(f"v_accvgpr_write_b32 a{VF+24+i}, 0")
    lines, lds = [x.strip() for x in pb.lines], wo_loads(0, 12)
    for i, x in enumerate(lines):
        if i % 4 == 0 and lds:
            b(lds.pop(0))
        b(x)
    assert not lds
    b(f"s_mov_b32 s40, 16384\ns_cmp_eq_u32 s{SL}, 0\ns_cbranch_scc1 a_jobs\ns_mov_b32 s32, 4")
    wo_mode(b, 0)
    b("a_init:")
    side = B()
    side("a_jobs:")
    layer0_jobs(side, VD, TR, ONE, SM, PF, PT, AF)
    side("s_branch a_init")
    x0 = sb(2)
    for t in range(4):
        b(f"""
        v_mov_b32 v{x0}, v{MX+t}
        v_mov_b32 v{sb(3)+4*t}, 0
        v_mov_b32 v{sb(3)+4*t+1}, 0
        v_permlane32_swap_b32 v{MX+t}, v{x0}
        v_mov_b32 v{sb(3)+4*t+2}, 0
        v_max_f32 v{MX+t}, v{MX+t}, v{x0}
        v_sub_f32 v{x0}, 0, v{MX+t}
        v_and_b32 v{x0+1}, 0xffff0000, v{x0}
        v_sub_f32 v{x0+2}, v{x0}, v{x0+1}
        v_and_b32 v{x0+3}, 0xffff0000, v{x0+2}
        v_sub_f32 v{x0+2}, v{x0+2}, v{x0+3}
        v_perm_b32 v{x0+1}, v{x0+3}, v{x0+1}, s49
        v_lshrrev_b32 v{x0+2}, 16, v{x0+2}
        v_cndmask_b32 v{QT+2*t+1}, v{x0+2}, v{x0+1}, s[50:51]
        v_mov_b32 v{sb(3)+4*t+3}, 0
        """)
    b("s_cmp_lg_u32 s3, 0\ns_cbranch_scc1 a_go")
    stamp(b, 7)
    poll(b, "a", C_KV, SJ, 16, True)
    stamp(b, 8)
    b("a_go:\ns_mov_b32 s46, 0")
    for k in range(3):
        b("\n".join(rec_loads(k)))
        b(f"s_add_u32 s46, s46, {2*REC}")
    slot = lambda k: f"buffer_load_dwordx4 v{VD+k}, s[20:23], s56 offen" + (f" offset:{1024*k}" if k else "") + " lds"
    b(f"""
    s_mov_b32 s47, 8
    s_cmp_lg_u32 s32, 0
    s_cbranch_scc1 a_nopre
    s_mov_b32 s47, 4
    s_lshl_b32 s38, s{SW}, 1
    s_add_u32 s38, s38, 64
    s_lshl_b32 m0, s38, 10
    s_mul_i32 s38, s38, s41
    s_add_u32 s38, s38, s56
    buffer_load_dwordx4 v{VD}, s[20:23], s38 offen lds
    buffer_load_dwordx4 v{VD+1}, s[20:23], s38 offen offset:1024 lds
    s_lshl_b32 s38, s{SW}, 2
    s_lshl_b32 m0, s38, 10
    s_mul_i32 s38, s38, s41
    s_add_u32 s56, s56, s38
a_nopre:
    """)
    for i in range(64):
        b(f"v_mov_b32 v{O+i}, 0")
    b("s_waitcnt vmcnt(@k0)")
    for t in range(2):
        b(m8(sb(t), 0, t))
        b(m16(sb(t), 0, t))
    b("s_nop 7")
    stamp(b, 9)
    b(".p2align 3\na_loop:")
    for n in range(16):
        k, t = divmod(n, 4)
        e = [f"v_exp_f32 v{sb(n)+i}, v{sb(n)+i}" for i in range(16)]
        qk, qtile = (n + 2) // 4, (n + 2) % 4
        pk, pt = (n - 1) // 4, (n - 1) % 4
        if t == 2:
            b(f"s_waitcnt vmcnt(@k{(k+1)%4})")
        b(m8(sb(n + 2), qk, qtile))
        b(rec_loads(k + 3)[t])
        b("\n".join(e[0:4]))
        b(m16(sb(n + 2), qk, qtile))
        if t == 3:
            b(f"s_add_u32 s46, s46, {2*REC}")
        b("\n".join(e[4:8]))
        if t == 1:
            b(f"s_waitcnt vmcnt(@r{k})")
        b(smf(pt, pk, 0, sb(n - 1)))
        if t == 3:
            b(slot(k))
        b("\n".join(e[8:12]))
        b(smf(pt, pk, 1, sb(n - 1)))
        if n == 15:
            b("s_add_u32 s56, s56, s57\ns_add_u32 m0, m0, s40\ns_sub_u32 s47, s47, 1\ns_cmp_lg_u32 s47, 0")
        b("\n".join(e[12:16]))
    b("s_cbranch_scc1 a_loop\ns_cmp_lt_u32 s32, 4\ns_cbranch_scc1 a_break")
    stamp(b, 10)
    c = side
    c("a_break:\ns_cmp_lg_u32 s32, 0\ns_cbranch_scc1 a_brk1")
    wo_mode(c, 80 * 1024)
    c("s_branch a_resume\na_brk1:\ns_cmp_lg_u32 s32, 1\ns_cbranch_scc1 a_brk2\ns_barrier")
    for pc in range(3):
        for i in range(6):
            for h in range(2):
                c(f"ds_read_b64_tr_b16 {a(AF+24*pc+4*i+2*h,2)}, v{TR+h} offset:{4096*i}")
        c(f"v_add_u32 v{TR}, {24576 if pc < 2 else -49152}, v{TR}\nv_add_u32 v{TR+1}, {24576 if pc < 2 else -49152}, v{TR+1}")
        c("s_waitcnt lgkmcnt(0)")
        for i in range(6):
            c(mf16(v(SM, 4), v(ONE, 4), a(AF + 24 * pc + 4 * i, 4), "0" if pc + i == 0 else v(SM, 4)))
    c(f"s_nop 7\nv_mul_f32 v{MEAN}, s8, v{SM}\na_brk2:")
    for i in range(6):
        for h in range(2):
            c(f"ds_read_b64_tr_b16 {v(PF+4*i+2*h,2)}, v{TR+h} offset:{4096*i}")
    c(f"""
    v_add_u32 v{TR}, 24576, v{TR}
    v_add_u32 v{TR+1}, 24576, v{TR+1}
    s_cmp_eq_u32 s32, 2
    s_cselect_b32 s38, s9, 0
    s_waitcnt lgkmcnt(10)
    """)
    centre(c, PF, 6, PT, MEAN, lambda k: f"buffer_store_dwordx4 {v(PF+4*k,4)}, v1, s[12:15], s58 offen sc1\ns_add_u32 s58, s58, s59"
           + ("\ns_add_u32 s58, s58, s38" if k == 2 else "") + ("\ns_waitcnt lgkmcnt(0)" if k == 0 else ""))
    c(f"s_cmp_lg_u32 s32, 3\ns_cbranch_scc1 a_resume\n{slots_off}")
    c("a_resume:\ns_add_u32 s32, s32, 1\ns_mov_b32 s47, 1\ns_branch a_loop")
    c(f"a_redo:\ns_mov_b32 s3, 1\ns_mov_b32 s47, 32\n{slots_off}\ns_waitcnt vmcnt(0)\ns_branch a_max")
    b(smf(3, 3, 0, sb(3)))
    b(f"v_mov_b32 v{ob(0)+11}, v{MX}\nv_mov_b32 v{ob(1)+11}, v{MX+1}")
    b(smf(3, 3, 1, sb(3)))
    for t in range(2):
        for i in range(3):
            b(f"ds_write_b128 v{MW}, {v(ob(t)+4*i,4)} offset:{3072*t+1024*i}")
    b(f"""
    v_max3_f32 v8, v{ob(0)+10}, v{ob(1)+10}, v{ob(2)+10}
    v_mov_b32 v9, 0x53800000
    v_cmp_u_f32 s[52:53], v{ob(0)+10}, v{ob(1)+10}
    s_and_b32 s38, s2, 7
    s_lshl_b32 s38, s38, 7
    s_add_u32 s38, s38, s{SC}
    v_max_f32 v8, v{ob(3)+10}, v8
    v_cmp_u_f32 s[54:55], v{ob(2)+10}, v{ob(3)+10}
    v_cmp_nlt_f32 vcc, v8, v9
    s_add_u32 s38, s38, {C_PREP}
    s_or_b64 s[52:53], s[52:53], s[54:55]
    s_or_b64 vcc, vcc, s[52:53]
    s_cmp_eq_u32 s3, 0
    s_cselect_b64 vcc, vcc, 0
    s_waitcnt lgkmcnt(0)
    s_cbranch_vccnz a_redo
    s_barrier
    """)
    for t in range(2):
        for i in (2, 0, 1):
            b(f"ds_read_b128 {v(sb(t)+4*i,4)}, v{MR} offset:{3072*t+1024*i}")
    for t in range(2):
        P, o0, pk = sb(t), ob(2 + t), QM + 8 * t
        b(f"""
        s_waitcnt lgkmcnt({5 - 3*t})
        v_max_f32 v8, v{MX+2+t}, v{P+11}
        v_sub_f32 v9, v{MX+2+t}, v8
        v_sub_f32 v8, v{P+11}, v8
        v_exp_f32 v9, v9
        v_exp_f32 v8, v8
        v_mul_f32 v12, v9, v{o0+10}
        v_fmac_f32 v12, v8, v{P+10}
        v_rcp_f32 v12, v12
        s_waitcnt lgkmcnt({3 - 3*t})
        v_pk_mul_f32 v[8:9], v[8:9], v[12:13] op_sel_hi:[1:0]
        """)
        for i in (8, 0, 2, 4, 6):
            b(f"v_pk_mul_f32 {v(o0+i,2)}, v[8:9], {v(o0+i,2)} op_sel:[1:0] op_sel_hi:[1:1]")
        for i in (8, 0, 2, 4, 6):
            b(f"v_pk_fma_f32 {v(o0+i,2)}, v[8:9], {v(P+i,2)}, {v(o0+i,2)} op_sel_hi:[0:1:1]")
        for i in (4, 0, 1, 2, 3):
            b(f"v_cvt_pk_bf16_f32 v{pk+i}, v{o0+2*i}, v{o0+2*i+1}")
        b(f"buffer_store_dwordx4 {v(pk,4)}, v{OM}, s[12:15], s43 offen sc1")
        for i in range(1, 4):
            b(f"v_mov_b32 v{pk+4+i}, v{pk+4} quad_perm:[{i}:{i}:{i}:{i}] row_mask:0xf bank_mask:0xf")
        b(f"buffer_store_dwordx4 {v(pk+4,4)}, v{OT}, s[12:15], s42 offen sc1")
        if t == 0:
            b("s_add_u32 s42, s42, 36864\ns_add_u32 s43, s43, 36864")
    stamp(b, 11)
    signal(b, "a", C_O, SI, extra=38)
    stamp(b, 12)
    return side.text()


def res_swap(b):
    for n in range(3):
        for k in range(4):
            b(f"v_permlane16_swap_b32 v{RES+8*n+k}, v{RES+8*n+4+k}")


def tile_base(b, dst, tmp):
    b(f"""
    s_and_b32 s{dst}, s{SJ}, 3
    s_mul_i32 s{dst}, s{dst}, 3
    s_add_u32 s{dst}, s{dst}, s{SW}
    s_mul_i32 s{dst}, s{dst}, 1536
    s_mul_i32 s{tmp}, s{STJ}, 36864
    s_add_u32 s{dst}, s{dst}, s{tmp}
    """)


def phase_o(b):
    PK, OF = 16, 56
    NB = int(OPT.get('nb', 80))
    b(f"""
    s_cmp_eq_u32 s{SW}, 3
    s_cbranch_scc1 o_nowo
    s_lshl_b32 s38, s{SW}, 14
    s_add_u32 s38, s38, {80*1024}
    v_add_u32 v6, s38, v1
    s_mul_i32 s38, s{SW}, {26*1024}
    v_add_u32 v7, s38, v1
    s_cmp_eq_u32 s{SL}, 0
    s_cbranch_scc1 o_first
    """)
    side = B()
    side("o_first:")
    wo_base(side, 36, 26)
    side("\n".join(wo_loads(12, 38)))
    for k in range(12):
        side(f"v_lshlrev_b32 v{RES+2*k}, 16, v{RES+12+k}\nv_and_b32 v{RES+2*k+1}, 0xffff0000, v{RES+12+k}")
    side("s_branch o_rest")
    for n in range(12, 38):
        b(f"ds_read_b128 {a(4*n,4)}, v7 offset:{1024*(n-12)}")
        if n % 8 == 7:
            b("s_waitcnt lgkmcnt(4)")
    b("s_waitcnt lgkmcnt(4)\no_rest:")
    for n in range(38, 54):
        b(f"ds_read_b128 {a(4*n,4)}, v6 offset:{1024*(n-38)}")
        if n == 45:
            b("s_waitcnt lgkmcnt(4)")
    b(f"o_nowo:\ns_mul_i32 s38, s{SJ}, {WFS}\ns_add_u32 s38, s38, {WF}")
    window(b, 16, 38, WFS)
    b(f"s_cmp_eq_u32 s{SL}, 0\ns_cselect_b32 s18, s18, {27*CH}")
    unit_offset(b, 5, 6, 7)
    res_swap(b)
    tile_base(b, 34, 35)
    b(f"""
    s_lshl_b32 s38, s{SW}, 10
    s_add_u32 s37, s35, s38
    s_add_u32 s37, s37, s{SL}
    s_add_u32 s37, s37, {OB}
    s_add_u32 s38, s38, {3*CH}
    v_add_u32 v6, {3*CH}, v1
    s_add_u32 s36, s34, s{SL}
    s_add_u32 s36, s36, {X1}
    v_bfe_u32 v7, v0, 4, 2
    v_and_b32 v8, 15, v0
    v_lshlrev_b32 v7, 9, v7
    v_lshl_add_u32 v7, v8, 2, v7
    v_add_u32 v7, {3*CH+32768}, v7
    v_add_u32 v8, 2048, v7
    s_waitcnt lgkmcnt(0)
    """)
    stamp(b, 13)
    poll(b, "o", C_O, SI, 16, True)
    stamp(b, 14)
    for i in range(9):
        off = 4096 * (i // 2) + 16384 * (i % 2) if i < 8 else 32768
        b(f"s_add_u32 m0, s38, {off}\ns_add_u32 s39, s37, {off}\nbuffer_load_dwordx4 v1, s[12:15], s39 offen sc1 lds")
    b(f"s_waitcnt vmcnt(5)\ns_barrier")
    stamp(b, 15)
    b(f"s_cmp_eq_u32 s{SW}, 3\ns_cbranch_scc1 o_ring")
    of = lambda ks, rt: OF + (ks % 3) * 8 + rt * 4

    def rd(ks):
        if ks < 16:
            return [f"ds_read_b128 {v(of(ks,rt),4)}, v6 offset:{rt*16384+ks*1024}" for rt in range(2)]
        return [f"ds_read2_b32 {v(of(ks,rt)+2*k,2)}, v{7+ks-16} offset0:{16*rt+64*k} offset1:{16*rt+64*k+32}"
                for rt in range(2) for k in range(2)]

    for ks in range(2):
        b("\n".join(rd(ks)))
    for ks in range(18):
        mains = [mf16(v(RES + 8 * n + 4 * rt, 4), a((n * 18 + ks) * 4, 4), v(of(ks, rt), 4), v(RES + 8 * n + 4 * rt, 4))
                 for n in range(3) for rt in range(2)]
        b(f"s_waitcnt lgkmcnt({len(rd(ks + 1)) if ks < 17 else 0})")
        pins = list(enumerate(rd(ks + 2))) if ks + 2 < 18 else []
        if ks == 5:
            pins.append((4, "s_waitcnt vmcnt(0)\ns_barrier"))
        b(sched(mains, pins, [])[0])
    b("s_nop 3")
    for n in range(3):
        for k in range(4):
            b(f"v_permlane16_swap_b32 v{RES+8*n+k}, v{RES+8*n+4+k}")
        pack4(b, PK + 4 * n, RES + 8 * n, RES + 8 * n + 4)
        b(f"buffer_store_dwordx4 {v(PK+4*n,4)}, v5, s[12:15], s36 offen offset:{512*n} sc1")
    stamp(b, 16)
    signal(b, "o", C_X1, STJ, wave=0)
    stamp(b, 17)
    c = side
    c(f"""
o_ring:
    s_waitcnt vmcnt(0)
    s_barrier
    s_cmp_lg_u32 s{SL}, 0
    s_cbranch_scc1 o_ready
    """)
    if int(OPT.get("pf2", 0)):
        c("""
        s_getpc_b64 s[38:39]
o_pc:
        s_sub_u32 s38, s38, o_pc-o_sig
        s_subb_u32 s39, s39, 0
        s_bfe_u32 s40, s2, 0x50003
        s_lshl_b32 s40, s40, 10
        v_and_b32 v6, 7, v0
        v_lshl_add_u32 v6, v6, 7, s40
        v_min_u32 v6, main_code_end-o_sig-4, v6
        v_mov_b32 v7, s39
        v_add_co_u32 v6, vcc, s38, v6
        s_nop 1
        v_addc_co_u32 v7, vcc, 0, v7, vcc
        global_load_dword v8, v[6:7], off
        """)
    c(f"""
    v_and_b32 v6, 7, v0
    v_lshlrev_b32 v6, 7, v6
    s_add_u32 s60, s{SC}, {C_PREP}
    s_mov_b32 s61, 0x40000
o_prep:
    buffer_load_dword v4, v6, s[12:15], s60 offen sc1
    s_sub_u32 s61, s61, 1
    s_waitcnt vmcnt(0)
    v_cmp_gt_u32 vcc, 32, v4
    s_cbranch_scc1 o_ready
    s_cbranch_vccnz o_prep
o_ready:
    s_mov_b32 m0, 0
    s_mov_b32 s43, 0
o_fill:
    """)
    dma_run(c, 4, 16, 43, " sc1")
    c(f"""
    s_add_u32 m0, m0, 4096
    s_add_u32 s43, s43, 4096
    s_waitcnt vmcnt({int(OPT.get('th', 28))})
    s_cmp_lt_u32 s43, {NB*1024}
    s_cbranch_scc1 o_fill
    s_branch o_bar
    """)
    return c.text()


def phase_f(b):
    VS, NB = int(OPT.get("vs", 68)), int(OPT.get('nb', 80))
    LA, LB, DV, C1, C2, VP, VFL = 5, 6, 7, 10, 12, 14, 15
    ACC1, TMP, STG, FL, VH, ACC2, ST, ONE, UO, LO = 16, 48, 64, 72, 80, 84, 84, 100, 156, 157
    RING, NR, PD, HR = 144, 12, 8, 192
    xb = lambda ks, rt: a((ks * 2 + rt) * 4, 4)
    ring = lambda i: a(RING + 4 * (i % NR), 4)

    def hr(c, m, rt):
        u, o = c - 18, (m * 2 + rt) * 4
        if u in (2, 3):
            return v(160 + 32 * (u - 2) + o, 4)
        return a({0: HR, 1: HR + 32, 8: HR}.get(u, 32 * (u - 4)) + o, 4)

    P0 = int(OPT.get("p0", 11))
    b(f"""
    s_mul_i32 s43, s{SW}, {(144-NB)//4*1024}
    s_add_u32 s43, s43, {NB*1024}
    s_mov_b32 m0, s43
    s_mul_i32 s39, s{STW}, 36864
    """)
    pb = B()
    unit_offset(pb, UO, TMP, TMP + 1)
    pb(f"""
    s_mul_i32 s44, s{SW}, 9216
    v_add_u32 v{DV}, s44, v1
    s_lshl_b32 s45, s44, 1
    s_add_u32 s45, s45, {2*CH}
    v_add_u32 v{DV+1}, 4096, v{DV}
    v_add_u32 v{DV+2}, 8192, v{DV}
    s_mul_i32 s46, s{STW}, {16*18432}
    s_add_u32 s46, s46, s{SL}
    s_add_u32 s46, s46, {HB}
    s_and_b32 s35, s{SJ}, 12
    """)
    for m in range(4):
        pb(f"""
        s_add_u32 s34, s{SJ}, {m}
        s_and_b32 s34, s34, 3
        s_add_u32 s34, s34, s35
        s_mul_i32 s34, s34, 18432
        s_add_u32 s34, s34, s46
        v_add_u32 v{VH+m}, s34, v1
        """)
    pb(f"""
    s_mul_i32 s34, s{SJ}, 18432
    s_add_u32 s46, s46, s34
    s_lshl_b32 s41, s{STJ}, 7
    s_add_u32 s41, s41, s{SC}
    s_add_u32 s41, s41, {C_H}
    s_and_b32 s37, s{SJ}, 3
    s_lshl_b32 s34, s37, 2
    v_mov_b32 v{VFL}, s34
    v_mov_b32 v{VP}, {OOB}
    v_cmp_eq_u32 vcc, 0, v0
    s_mov_b32 s47, {P0//2}
    v_cndmask_b32 v{VFL}, v{VP}, v{VFL}, vcc
    v_mov_b32 v{VP}, 1
    s_lshr_b32 s36, s{SJ}, 2
    s_mul_i32 s34, s36, {SZX}
    s_mul_i32 s35, s{STW}, 36864
    s_add_u32 s34, s34, s35
    s_mul_i32 s35, s37, 4608
    s_add_u32 s34, s34, s35
    s_add_u32 s34, s34, s{SL}
    s_add_u32 s34, s34, {PART}
    s_lshl_b32 s35, s{SI}, 2
    s_add_u32 s37, s37, s35
    s_cmp_eq_u32 s36, s{SW}
    s_cselect_b32 s34, {OOB}, s34
    s_add_u32 s35, s34, 4096
    v_add_u32 v{LO}, {4*CH}, v1
    v_and_b32 v{TMP}, 3, v0
    v_and_b32 v{TMP+1}, 15, v0
    v_cmp_eq_u32 s[50:51], 1, v{TMP}
    v_cmp_eq_u32 s[52:53], 2, v{TMP}
    v_cmp_eq_u32 s[54:55], 3, v{TMP}
    v_lshrrev_b32 v{TMP+2}, 2, v{TMP+1}
    v_lshl_add_u32 v{TMP+1}, v{TMP+2}, 4, v{TMP+1}
    v_lshlrev_b32 v{STG}, 2, v{TMP+1}
    """)
    for i in range(4):
        pb(f"v_mov_b32 v{ONE+i}, 0x3f803f80")
    db = B()
    dma_run(db, (144 - NB) // 4, 16, 43, " sc1")
    dl, sl = [x.strip() for x in db.lines], [x.strip() for x in pb.lines]
    per = -(-len(sl) // ((144 - NB) // 4))
    for x in dl:
        b(x)
        if "buffer" in x:
            n = per + ("s_cmp" in "".join(sl[per-1:per]))
            b("\n".join(sl[:n]))
            sl = sl[n:]
    b("\n".join(sl + [f"s_mov_b32 s43, {4*CH}"]))
    b(f"s_add_u32 s39, s39, s{SL}\ns_add_u32 s39, s39, {X1}\ns_add_u32 s40, s39, 18432")
    stamp(b, 18)
    poll(b, "f", C_X1, STW, 4, False)
    stamp(b, 19)

    def xload(ks, rt):
        off = f" offset:{1024*(ks%4)}" if ks % 4 else ""
        t = f"buffer_load_dwordx4 {xb(ks,rt)}, v1, s[12:15], s{39+rt} offen{off} sc1 ;#x{ks}"
        if ks % 4 == 3:
            t += f"\ns_add_u32 s{39+rt}, s{39+rt}, 4096"
        return t

    XA = int(OPT.get("xa", 5))
    for ks in range(XA):
        for rt in range(2):
            b(xload(ks, rt))
    rdf = lambda gi, i, base: f"ds_read_b128 {ring(gi)}, v{base} offset:{1024*i}"
    acc1 = lambda st, gu, rt: ACC1 + 16 * st + (gu * 2 + rt) * 4

    def rd01(j):
        if j >= 72:
            return rdf(j, j - 72, LA)
        return rdf(j, 2 * (j // 4) + j % 2, 1 if j % 4 < 2 else LB)

    b(f"v_add_u32 v{LA}, {2*CH}, v1\nv_add_u32 v{LB}, {CH}, v1\ns_barrier")
    for j in range(PD):
        b(rd01(j))
    for ks in range(18):
        mains = []
        for rt in range(2):
            d = v(ST + 8 + 4 * rt, 4)
            mains.append(mf16(d, xb(ks, rt), xb(ks, rt), "0" if ks == 0 else d))
            d = v(ST + 4 * rt, 4)
            mains.append(mf16(d, v(ONE, 4), xb(ks, rt), "0" if ks == 0 else d))
        for st in range(2):
            for gu in range(2):
                for rt in range(2):
                    d = v(acc1(st, gu, rt), 4)
                    mains.append(mf16(d, ring(4 * ks + 2 * st + gu), xb(ks, rt), "0" if ks == 0 else d))
        pinned = [(3, f"s_waitcnt lgkmcnt({PD-4})")] + [(5 + 2 * k, rd01(4 * ks + k + PD)) for k in range(4)]
        if ks + XA < 18:
            pinned += [(6 * rt, xload(ks + XA, rt)) for rt in range(2)]
        ops = []
        if ks == 17:
            for rt in range(2):
                g = ST + 8 + 4 * rt
                ops += chain([f"v_cndmask_b32 v{g}, v{g}, v{g+1}, s[50:51]", f"v_cndmask_b32 v{g}, v{g}, v{g+2}, s[52:53]",
                              f"v_cndmask_b32 v{g}, v{g}, v{g+3}, s[54:55]", f"ds_bpermute_b32 v{C2+rt}, v{STG}, v{g}"], earliest=6 + rt)
        b(f"s_waitcnt vmcnt(@x{ks})")
        b(sched(mains, pinned, ops)[0])
    b("s_barrier\ns_waitcnt lgkmcnt(0)")
    for rt in range(2):
        ln_stats(b, ST + 4 * rt, C2 + rt)
        b(f"v_rsq_f32 v{C1+rt}, v{C2+rt}")
    b(f"v_mul_f32 v{C1}, {fbits(-math.log2(math.e))}, v{C1}\nv_mul_f32 v{C1+1}, {fbits(-math.log2(math.e))}, v{C1+1}")

    def dma(par, others=(), gate=None):
        out, others = [], list(others)
        per = len(others) / 9
        for i in range(9):
            if i % 4 == 0:
                out.append((f"s_add_u32 m0, s44, {4096*(i//4) + (0 if par else CH)}", 0))
            ld = f"buffer_load_dwordx4 v{DV+i//4}, s[16:19], s43 offen" + (f" offset:{1024*(i%4)}" if i % 4 else "") + f" sc1 lds ;#d{par}"
            out.append((ld, 1 if i % 4 == 0 else 0))
            take = len(others) if i == 7 else min(len(others), int((i + 1) * per + 0.999) - int(i * per + 0.999))
            for _ in range(take if i < 8 else 0):
                out += [(x, 0) for x in others.pop(0)]
        out.append((f"s_add_u32 s43, s43, {CH}", 0))
        if par == 0:
            out.append(("s_sub_u32 s44, s45, s44", 0))
        ops = chain(out, earliest=1)
        if gate:
            for o in ops:
                if "s[12:15]" in o.text:
                    o.deps.append((gate, 0))
        return ops

    def swiglu(st, half):
        ops, last = [], []
        for k in range(8):
            rt, i = divmod(k, 4)
            g, u = acc1(st, 0, rt) + i, acc1(st, 1, rt) + i
            t, p = TMP + k, TMP + 8 + k
            c = chain([f"v_mul_f32 v{t}, v{C1+rt}, v{g}", f"v_exp_f32 v{t}, v{t}",
                       f"v_fma_f32 v{t}, v{t}, v{C2+rt}, v{C2+rt}", f"v_rcp_f32 v{t}, v{t}"], earliest=3, dist=1)
            m = Op(f"v_mul_f32 v{p}, v{g}, v{u}", earliest=4)
            f = Op(f"v_mul_f32 v{p}, v{p}, v{t}", [(c[-1], 1), (m, 0)])
            ops += c + [m, f]
            last.append(f)
            if k % 2:
                cv = Op(f"v_cvt_pk_bf16_f32 v{STG+4*rt+2*half+i//2}, v{p-1}, v{p}", [(last[-2], 0), (f, 0)])
                ops.append(cv)
                if half and i == 3:
                    st_ = Op(f"buffer_store_dwordx4 {v(STG+4*rt,4)}, v1, s[12:15], s46 offen" + (" offset:1024" if rt else "") + " sc1",
                             [(cv, 0), (prevcv, 0)])
                    ops.append(st_)
                    if rt:
                        ops.append(Op("s_add_u32 s46, s46, 2048", [(st_, 0), (prevst, 0)]))
                    prevst = st_
                prevcv = cv
        return ops

    stage = [[], [], [], [], [], [], []]
    for k in range(8):
        rt, i = divmod(k, 4)
        g, u, t, p = acc1(0, 0, rt) + i, acc1(0, 1, rt) + i, TMP + k, TMP + 8 + k
        for n, x in enumerate([f"v_mul_f32 v{t}, v{C1+rt}, v{g}", f"v_exp_f32 v{t}, v{t}", f"v_mul_f32 v{p}, v{g}, v{u}",
                               f"v_fma_f32 v{t}, v{t}, v{C2+rt}, v{C2+rt}", f"v_rcp_f32 v{t}, v{t}", f"v_mul_f32 v{p}, v{p}, v{t}"]):
            stage[n].append(x)
        if k % 2:
            stage[6].append(f"v_cvt_pk_bf16_f32 v{STG+4*rt+i//2}, v{p-1}, v{p}")
    flat, dm = [x for st in stage for x in st], [o.text for o in dma(1)]
    for i, x in enumerate(flat):
        if i % 4 == 0 and dm:
            b(dm.pop(0))
        b(x)
    assert not dm
    stamp(b, 20)
    b("s_branch f_p1b")

    progress = lambda: chain([f"v_add_u32 v{VP}, 1, v{VP}", f"buffer_store_dword v{VP}, v{VFL}, s[12:15], s41 offen sc1"])
    fl = lambda par: FL + 4 * par
    slow = []

    flag_load = lambda par: [[f"buffer_load_dwordx4 {v(fl(par),4)}, v2, s[12:15], s41 offen sc1"]]

    def check(par, tag, need):
        f = fl(par)
        slow.append(f"""
{tag}_spin:
        s_mov_b32 s61, 0x40000
{tag}_again:
        buffer_load_dwordx4 {v(f,4)}, v2, s[12:15], s41 offen sc1
        s_sub_u32 s61, s61, 1
        s_waitcnt vmcnt(0)
        v_min_u32 v{f}, v{f}, v{f+1}
        v_min3_u32 v{f}, v{f}, v{f+2}, v{f+3}
        v_cmp_gt_u32 vcc, {need}, v{f}
        s_cbranch_scc1 {tag}_back
        s_cbranch_vccnz {tag}_again
        s_branch {tag}_back
        """)
        c = chain([f"v_min_u32 v{f}, v{f}, v{f+1}", f"v_min3_u32 v{f}, v{f}, v{f+2}, v{f+3}",
                   f"v_cmp_gt_u32 vcc, {need}, v{f}", (f"s_cbranch_vccnz {tag}_spin\n{tag}_back:", 1)])
        c[-1].cost = 1
        return c

    def chunk(mains, par, extra, pins=(), order=None, nxt_order=None, last=False, endtag='', loads=(), gate=None):
        cur, nxt = (LA, LB) if par == 0 else (LB, LA)
        order = order or list(range(36))
        nxt_order = nxt_order or list(range(36))
        pinned = ([] if last else [(0, f"v_xor_b32 v{nxt}, {2*CH}, v{nxt}")]) + list(pins)
        for i in range(36):
            j = i + PD
            if j < 36 or not last:
                pinned.append((2 * i, rdf(j, order[j] if j < 36 else nxt_order[j - 36], cur if j < 36 else nxt)))
            if i % 4 == 3 and not (last and i == 35):
                n = PD - 4 if not last else max(0, min(PD - 4, 36 - (i + 5)))
                pinned.append((2 * i + 1, f"s_waitcnt vmcnt(@d{1-par}{endtag}) lgkmcnt({n})" if i == 35 else f"s_waitcnt lgkmcnt({n})"))
        st = [o for o in extra[1] if 'store' in o.text]
        rest = [o for o in extra[1] if 'store' not in o.text]
        txt, over, lastgap = sched(mains, pinned, extra[0] + st + dma(par, loads, gate) + rest, vspan=VS)
        b(txt)
        if not last:
            b("s_barrier")
        return over, lastgap

    def p1_mains(st):
        return [mf16(v(acc1(st, gu, rt), 4), ring(2 * ks + gu), xb(ks, rt), "0" if ks == 0 else v(acc1(st, gu, rt), 4))
                for ks in range(18) for gu in range(2) for rt in range(2)]

    acc2 = lambda tl, rt: ACC2 + (tl * 2 + rt) * 4

    def p2_mains(c, first=False):
        return [mf16(v(acc2(tl, rt), 4), ring(9 * m + tl), hr(c, m, rt), "0" if first and m == 0 else v(acc2(tl, rt), 4))
                for m in range(4) for tl in range(9) for rt in range(2)]

    plan = {c: [] for c in range(P0, 27)}
    early = [(u, m, rt) for u in range(4) for m in range(4) for rt in range(2)]
    for k, x in enumerate(early):
        plan[P0 + k * (18 - P0) // len(early)].append(x)
    late = [(u, m, rt) for u in range(4, 8) for m in range(4) for rt in range(2)]
    L0, L1 = int(OPT.get("l0", 18)), int(OPT.get("l1", 24))
    for k, x in enumerate(late):
        plan[L0 + k * (L1 - L0) // len(late)].append(x)
    plan[24] += [(8, m, rt) for m in range(4) for rt in range(2)]
    need = {c: max([u for u, _, _ in plan[c]], default=-3) + 3 for c in plan}
    checks, seen = {}, 0
    for c in plan:
        if c % 2 == 0 and c - 2 < P0:
            continue
        want = max(need[c], need[c + 1] if c == P0 else 0)
        if want > seen:
            want = max([want] + [need[d] for d in plan if need[d] <= (c - 3) // 2])
            checks[c] = seen = want
    print("h plan", {c: len(x) for c, x in plan.items()}, "checks", checks, file=sys.stderr)

    def hstream(c):
        ld, cur = [], None
        for u, m, rt in plan[c]:
            off = 2048 * (u % 2) + 1024 * rt
            x = [f"buffer_load_dwordx4 {hr(18+u,m,rt)}, v{VH+m}, s[12:15], s47 offen" + (f" offset:{off}" if off else "") + f" sc1 ;#h{u}"]
            if u // 2 != cur:
                cur = u // 2
                x.insert(0, f"s_mov_b32 s47, {4096*cur}")
            ld.append(x)
        return ld

    over = []
    b(".p2align 3\nf_p1:")
    over.append(chunk(p1_mains(1), 1, (progress(), swiglu(0, 0)), loads=[[], [], [], [], []] + flag_load(1)))
    b("f_p1b:")
    over.append(chunk(p1_mains(0), 0, ([], swiglu(1, 1) + [Op("s_sub_u32 s47, s47, 1")])))
    b("s_cmp_lg_u32 s47, 0\ns_cbranch_scc1 f_p1")
    stamp(b, 21)
    tmaj = [9 * m + tl for tl in range(9) for m in range(4)]
    for c in range(P0, 26):
        ck = check(c % 2, f"f{c}", checks[c]) if c in checks else []
        gate = ck[-1] if ck else None
        front = (progress() if c % 2 and c <= 21 else []) + ck
        loads = hstream(c) + (flag_load(c % 2) if c + 2 in checks else [])
        act = swiglu(1 - c % 2, 1 - c % 2) if c <= 18 else []
        over.append(chunk(p1_mains(c % 2) if c < 18 else p2_mains(c, c == 18), c % 2, (front, act),
                          endtag=f",h{c-17}" if c >= 17 else "", nxt_order=tmaj if c == 25 else None, loads=loads, gate=gate))
        if c in (17, 18, 24):
            stamp(b, {17: 22, 18: 23, 24: 24}[c])
    mains = [mf16(v(acc2(tl, rt), 4), ring(4 * tl + m), hr(26, m, rt), v(acc2(tl, rt), 4)) for tl in range(9) for m in range(4) for rt in range(2)]

    def out_tile(tl):
        r, p, q = ACC1 + 4 * tl, acc2(tl, 0), acc2(tl, 1)
        return [f"v_cvt_pk_bf16_f32 v{r}, v{p}, v{p+1}", f"v_cvt_pk_bf16_f32 v{r+1}, v{p+2}, v{p+3}",
                f"v_cvt_pk_bf16_f32 v{r+2}, v{q}, v{q+1}", f"v_cvt_pk_bf16_f32 v{r+3}, v{q+2}, v{q+3}",
                (f"v_permlane16_swap_b32 v{r}, v{r+2}", 1), (f"v_permlane16_swap_b32 v{r+1}, v{r+3}", 0),
                f"buffer_store_dwordx4 {v(r,4)}, v{UO}, s[12:15], s{34+tl//8} offen offset:{512*(tl%8)} sc1",
                f"ds_write_b128 v{LO}, {v(r,4)} offset:{1024*tl}"]

    outs, prev = [], None
    for tl in range(7):
        c = chain(out_tile(tl)[:7], earliest=8 * tl + 12, after=prev)
        outs += c
        prev = c[-1]
    over.append(chunk(mains, 0, (outs, []), order=tmaj, last=True))
    for tl in (7, 8):
        for t in out_tile(tl)[:7]:
            if isinstance(t, tuple):
                b(("s_nop 0\n" if t[1] else "") + t[0])
            else:
                b(t)
    b(f"s_cmp_lg_u32 s36, s{SW}\ns_cbranch_scc1 f_nokeep")
    for tl in range(9):
        b(out_tile(tl)[7])
    b("f_nokeep:")
    stamp(b, 25)
    signal(b, "f", C_P, 37)
    stamp(b, 26)
    b(f"s_cmp_lg_u32 s{SL}, 0\ns_cbranch_scc1 f_nowq")
    for o in dma(1):
        b(o.text + ("\ns_nop 0" if "m0," in o.text else ""))
    b("f_nowq:")
    print("ffn (overflow, last gap):", over, file=sys.stderr)
    return "\n".join(slow)


def phase_r(b, name):
    D0, PK, UO = 16, 80, 156
    side = B()
    tile_base(b, 34, 35)
    b(f"""
    s_mul_i32 s35, s{SW}, 3072
    s_add_u32 s35, s35, {4*CH}
    v_add_u32 v6, s35, v1
    s_add_u32 s35, s34, s{SL}
    s_add_u32 s35, s35, {PART}
    """)
    d = lambda src, n: D0 + (src * 3 + n) * 4
    for n in range(3):
        b(f"ds_read_b128 {v(d(0,n),4)}, v6 offset:{1024*n}")
    for k in range(1, 4):
        b(f"s_add_u32 s38, s36, {k}\ns_and_b32 s38, s38, 3\ns_mul_i32 s38, s38, {SZX}\ns_add_u32 s{40+k}, s38, s35")

    def add(src, n):
        for j in range(4):
            for h in range(2):
                r = RES + 8 * n + 2 * j + h
                b(f"v_dot2_f32_bf16 v{r}, v{d(src,n)+j}, s{30+h}, v{r}")

    b(f"""
    s_mov_b32 s16, s12
    s_mov_b32 s17, s13
    s_mov_b32 s18, {SZX}
    s_mov_b32 s19, 0x20000
    v_mov_b32 v7, v{UO}
    s_cmp_eq_u32 s{SL}, 0
    s_cbranch_scc1 r_mid
    """)
    row_tile(b, 7, 34)
    b("s_mov_b32 s16, s6\ns_mov_b32 s17, s7\nr_mid:\ns_waitcnt lgkmcnt(0)")
    for n in range(3):
        add(0, n)
    poll(b, "r", C_P, 37, 4, True)
    stamp(b, 27)
    b(f"s_cmp_eq_u32 s{SW}, 3\ns_cbranch_scc1 r_idle")
    for n in range(3):
        for src in range(1, 4):
            b(f"buffer_load_dwordx4 {v(d(src,n),4)}, v{UO}, s[12:15], s{40+src} offen offset:{512*n} sc1 ;#p{src}{n}")
    b(f"s_cmp_lg_u32 s{SL}, 0")
    for n in range(3):
        for src in range(1, 4):
            b(f"s_waitcnt vmcnt(@p{src}{n})")
            add(src, n)
        pack4(b, PK + 4 * n, RES + 8 * n, RES + 8 * n + 4)
        b(f"""
        s_cbranch_scc1 r_out{n}
        buffer_store_dwordx4 {v(PK+4*n,4)}, v7, s[16:19], s34 offen offset:{512*n} sc1
r_back{n}:
        """)
        side(f"r_out{n}:\nbuffer_store_dwordx4 {v(PK+4*n,4)}, v7, s[16:19], s34 offen offset:{32*n}\ns_branch r_back{n}")
    b(f"r_idle:\ns_cmp_lg_u32 s{SL}, 0\ns_cbranch_scc1 r_exit")
    stamp(b, 28)
    signal(b, "r", C_X2, STJ)
    if DIAG:
        stamp(b, 29)
        stamp_real(b, 31)
        stamp_flush(b, "2")
        stamp_real(b, 30)
        stamp(b, 0)
    b(f"""
    s_mov_b32 s{SL}, {LST}
    s_add_u32 s{SC}, s{SC}, {CL}
    s_mov_b32 s9, 3
    s_mov_b32 s10, {LOFF}
    s_mov_b32 s11, {OOB}
    s_branch layer
r_exit:
    """)
    return side.text()


def gen_main(name):
    b = B()
    JB = int(OPT.get("jb", 2))
    head(b, name, 256, [(4, "ws"), (6, "out")])
    b(f"""
    v_lshrrev_b32 v5, 6, v0
    v_and_b32 v1, 63, v0
    v_lshlrev_b32 v1, 4, v1
    v_readfirstlane_b32 s{SW}, v5
    v_mov_b32 v2, 0
    v_mov_b32 v3, 1
    s_bfe_u32 s34, s2, {(4-JB) << 16}
    s_lshl_b32 s34, s34, {JB}
    s_bfe_u32 s35, s2, {(JB << 16) + 3}
    s_add_u32 s{SJ}, s34, s35
    s_bfe_u32 s34, s2, {((JB-1) << 16) + 4 - JB}
    s_lshl_b32 s34, s34, {5-JB}
    s_lshr_b32 s35, s2, {3+JB}
    s_add_u32 s{SI}, s34, s35
    s_lshl_b32 s34, s{SI}, 2
    s_add_u32 s{STW}, s34, s{SW}
    s_lshr_b32 s35, s{SJ}, 2
    s_add_u32 s{STJ}, s34, s35
    s_mov_b32 s{SL}, 0
    s_mov_b32 s{SC}, {CNT}
    s_mov_b32 s30, 0x3f80
    s_mov_b32 s31, 0x3f800000
    s_mov_b32 s9, 1
    s_lshl_b32 s10, s{SW}, 10
    s_mul_i32 s11, s{SJ}, {WQH}
    s_add_u32 s11, s11, s10
    s_add_u32 s11, s11, {WQ}
    s_waitcnt lgkmcnt(0)
    """)
    srd(b, 12, 4, 0, WS_END)
    for i in range(11):
        b("s_mov_b32 m0, s10\ns_add_u32 s10, s10, 4096\nbuffer_load_dwordx4 v1, s[12:15], s11 offen lds\ns_add_u32 s11, s11, 4096")
    b("layer:")
    phase_q(b)
    slow = phase_a(b)
    slow += phase_o(b)
    slow += phase_f(b)
    slow += "\n" + phase_r(b, name)
    finish(b, name, "3")
    b(slow)
    b("main_code_end:")
    return dict(name=name, text=resolve_waits(b.text()), grid=256, block=256, lds=163840)


def build_all():
    import gen
    gen.OPT.clear()
    ks = [gen_prep("prep_kernel"), gen_main("main_kernel")]
    txt = gen.assemble(ks, [k["name"] for k in ks])
    return re.sub(r"(quad_perm|op_sel|op_sel_hi):\[([\d:]+)\]", lambda m: f"{m.group(1)}:[{m.group(2).replace(':', ',')}]", txt)


if __name__ == "__main__":
    for x in [x for x in sys.argv if "=" in x]:
        k, val = x.split("=")
        OPT[k] = val.replace("_", " ")
        sys.argv.remove(x)
    if "--diag" in sys.argv:
        DIAG = True
        sys.argv.remove("--diag")
    open(sys.argv[1], "w").write(build_all())
```

```python
import re

TRANS = ("v_exp_", "v_log_", "v_rcp_", "v_rsq_", "v_sqrt_", "v_sin_", "v_cos_")
NO_DST_SALU = ("s_cmp", "s_waitcnt", "s_barrier", "s_nop", "s_branch", "s_cbranch", "s_setprio", "s_sleep",
               "s_endpgm", "s_set_gpr_idx_off", "s_bitcmp", "s_setreg", "s_sethalt")
REG_RE = re.compile(r"^-?\|?(?:abs\()?([vas])(?:\[(\d+):(\d+)\]|(\d+))\)?\|?$")


def regs_of(op):
    op = op.strip()
    if op in ("vcc", "vcc_lo", "vcc_hi"):
        return {"vcc"}
    if op in ("exec", "exec_lo", "exec_hi"):
        return {"exec"}
    if op == "m0":
        return {"m0"}
    m = REG_RE.match(op)
    if not m:
        return set()
    if m.group(4) is not None:
        return {m.group(1) + m.group(4)}
    return {m.group(1) + str(i) for i in range(int(m.group(2)), int(m.group(3)) + 1)}


class Ins:
    def __init__(self, text, idx):
        self.text, self.idx = text, idx
        body = text.split(";")[0].strip()
        parts = body.split(None, 1)
        self.op = parts[0]
        rest = parts[1] if len(parts) > 1 else ""
        ops = [o.strip() for o in rest.split(",")] if rest else []
        self.mods = ""
        if ops:
            last = ops[-1].split(None, 1)
            if len(last) > 1 and not self.op.startswith("s_waitcnt"):
                ops[-1], self.mods = last[0], last[1]
        self.ops = ops
        op = self.op
        R = [regs_of(o) for o in ops]
        u = lambda xs: set().union(*xs) if xs else set()
        self.kind = "other"
        self.w, self.r = set(), set()
        self.passes = 0
        self.srcC = set()
        self.srcAB = set()
        self.store_data = set()
        if op.startswith("v_mfma") or op.startswith("v_smfmac"):
            self.kind = "mfma"
            self.passes = 4 if "16x16" in op else 8
            self.w = R[0]
            if op.startswith("v_smfmac"):
                self.srcC, self.srcAB = R[0], R[1] | R[2] | R[3]
            else:
                self.srcC, self.srcAB = R[3], R[1] | R[2]
            self.r = self.srcC | self.srcAB
        elif op.startswith("v_"):
            self.kind = "valu"
            if op.startswith("v_permlane") and "swap" in op or op.startswith("v_swap"):
                self.w = R[0] | R[1]
                self.r = R[0] | R[1]
            elif op.startswith("v_nop"):
                pass
            elif re.match(r"v_(add|sub|subrev|addc|subb)_co_", op) or op.startswith("v_mad_u64"):
                self.w = R[0] | R[1]
                self.r = u(R[2:])
            else:
                self.w = set(R[0])
                self.r = u(R[1:])
                if op.startswith("v_cmpx"):
                    self.w |= {"exec"}
                if op.startswith(("v_fmac", "v_dot2c", "v_writelane", "v_pk_fmac")) or "row_" in self.mods \
                        or "quad_perm" in self.mods or "UNUSED_PRESERVE" in self.mods:
                    self.r |= R[0]
                if op.startswith("v_cndmask") and len(ops) == 3:
                    self.r |= {"vcc"}
        elif op.startswith("ds_"):
            self.kind = "ds"
            if op.startswith(("ds_read", "ds_bpermute", "ds_permute", "ds_swizzle")):
                self.w = R[0]
                self.r = u(R[1:])
            else:
                self.r = u(R)
        elif op.startswith(("buffer_", "global_")):
            self.kind = "vmem"
            lds = re.search(r"\blds\b", self.mods) is not None or "load_lds" in op
            self.lds = lds
            if op.startswith(("buffer_wbl2", "buffer_inv")):
                pass
            elif "load" in op and not lds:
                self.w = R[0]
                self.r = u(R[1:])
            elif lds:
                self.r = u(R) | {"m0"}
            else:
                self.r = u(R)
                data = R[0] if op.startswith("buffer_") else R[1]
                if op.endswith(("x3", "x4")):
                    self.store_data = data
                if "atomic" in op and "sc0" in self.mods:
                    self.w = data
        elif op.startswith(("s_load", "s_buffer_load", "s_memtime", "s_memrealtime", "s_atomic")):
            self.kind = "smem"
            self.w = R[0]
            self.r = u(R[1:])
        elif op.startswith("s_"):
            self.kind = "salu"
            if op.startswith("s_set_gpr_idx_on"):
                self.w = {"m0"}
                self.r = R[0]
            elif op.startswith(NO_DST_SALU):
                self.r = u(R)
                if "vcc" in op:
                    self.r |= {"vcc"}
                if "exec" in op:
                    self.r |= {"exec"}
            else:
                self.w = set(R[0])
                self.r = u(R[1:])
                if "saveexec" in op:
                    self.w |= {"exec"}
                if op.startswith(("s_addk", "s_mulk", "s_cmov", "s_bitset")):
                    self.r |= R[0]
        self.trans = op.startswith(TRANS)
        self.dot = op.startswith("v_dot")
        self.dpp = "row_" in self.mods or "quad_perm" in self.mods
        self.states = 1
        if op == "s_nop":
            self.states = int(ops[0], 0) + 1


def is_v(r):
    return r[0] in "va" and r != "vcc"


def need_states(p, c):
    n = 0
    pv = {r for r in p.w if is_v(r)}
    ps = p.w - pv
    if p.kind == "valu":
        if c.kind == "mfma" and pv & c.r:
            n = max(n, 3 if p.dot else 2)
        if c.kind == "mfma" and "exec" in p.w:
            n = max(n, 4)
        if c.kind == "valu":
            if p.trans and not c.trans and pv & c.r:
                n = max(n, 1)
            if c.op.startswith(("v_readlane", "v_readfirstlane")) and pv & c.r:
                n = max(n, 1)
            if (c.op.startswith("v_permlane") or c.dpp) and pv & c.r:
                n = max(n, 2)
            if ps & c.r:
                n = max(n, 4 if c.op.startswith(("v_readlane", "v_writelane")) else 2)
            if "exec" in p.w:
                if c.dpp:
                    n = max(n, 5)
                if c.op.startswith(("v_readlane", "v_readfirstlane", "v_writelane", "v_permlane")):
                    n = max(n, 4)
            if ("sdwa" in p.op or "op_sel" in p.mods) and not p.op.startswith("v_pk") and pv & (c.r | c.w):
                n = max(n, 1)
        if p.dot and pv & (c.r | c.w) and c.kind in ("valu", "ds", "vmem"):
            same_c = c.op == p.op and not (pv & (regs_of(c.ops[1]) | regs_of(c.ops[2])))
            if not same_c:
                n = max(n, 3)
        if c.kind == "vmem" and ps & c.r:
            n = max(n, 5)
        if c.kind == "salu" and ps & c.r:
            n = max(n, 1)
    if p.kind == "mfma":
        big = p.passes == 8
        if c.kind == "mfma":
            if p.w & c.srcAB:
                n = max(n, 12 if big else 8)
            if p.w & c.srcC and not (p.w == c.srcC and p.passes == c.passes):
                n = max(n, 10 if big else 6)
            if p.w & c.w and not (p.w & c.srcC) and p.passes > c.passes:
                n = max(n, 10 if big else 6)
        elif c.kind in ("valu", "ds", "vmem"):
            if p.w & (c.r | c.w):
                n = max(n, 12 if big else 8)
            if c.kind == "valu" and p.srcC & c.w:
                n = max(n, 7 if big else 3)
    if p.kind == "vmem" and p.store_data & c.w:
        n = max(n, 2 if c.kind in ("valu", "mfma") else 1)
    if p.kind == "salu" and "m0" in p.w and c.kind == "vmem" and "m0" in c.r:
        n = max(n, 1)
    return n


class Prog:
    def __init__(self, text):
        self.ins, self.labels = [], {}
        for line in text.splitlines():
            s = line.split(";")[0].strip()
            if not s or s.startswith("."):
                continue
            if s.endswith(":"):
                self.labels[s[:-1]] = len(self.ins)
                continue
            self.ins.append(Ins(line.strip(), len(self.ins)))
        n = len(self.ins)
        self.succ = [[] for _ in range(n)]
        self.pred = [[] for _ in range(n)]
        for i, x in enumerate(self.ins):
            if x.op == "s_endpgm":
                continue
            if x.op.startswith(("s_branch", "s_cbranch")):
                t = self.labels[x.ops[0]]
                if t < n:
                    self.succ[i].append(t)
            if x.op != "s_branch" and i + 1 < n:
                self.succ[i].append(i + 1)
        for i, ss in enumerate(self.succ):
            for t in ss:
                self.pred[t].append(i)

    def hazards(self):
        errs = []
        for c in self.ins:
            if c.kind == "other" or c.op in ("s_nop", "s_waitcnt", "s_barrier"):
                continue
            best = {}
            stack = [(p, 0) for p in self.pred[c.idx]]
            while stack:
                i, d = stack.pop()
                if d >= 13 or best.get(i, 99) <= d:
                    continue
                best[i] = d
                p = self.ins[i]
                need = need_states(p, c)
                if need > d:
                    errs.append(f"hazard: need {need} have {d}: [{p.idx}] {p.text}  ->  [{c.idx}] {c.text}")
                stack.extend((q, d + p.states) for q in self.pred[i])
        return errs

    def waits(self, start=0, max_back=2, limit=3_000_000):
        errs, seen, steps = set(), set(), 0
        stack = [(start, (), (), ())]
        while stack:
            i, vm, lg, back = stack.pop()
            vm, lg, back = list(vm), list(lg), dict(back)
            while True:
                steps += 1
                if steps > limit:
                    errs.add("wait walk: step limit reached")
                    return sorted(errs)
                x = self.ins[i]
                if x.op == "s_waitcnt":
                    t = " ".join(x.ops)
                    m = re.search(r"vmcnt\((\d+)\)", t)
                    if m:
                        k = int(m.group(1))
                        vm = vm[len(vm) - k:] if k and len(vm) > k else (vm if k else [])
                    m = re.search(r"lgkmcnt\((\d+)\)", t)
                    if m:
                        k = int(m.group(1))
                        if k == 0:
                            lg = []
                        elif any(self.ins[j].kind == "smem" for j in lg):
                            errs.add(f"counted lgkmcnt with SMEM outstanding at [{i}] {x.text}")
                        elif len(lg) > k:
                            lg = lg[len(lg) - k:]
                else:
                    use = x.r | x.w
                    for j in vm + lg:
                        p = self.ins[j]
                        if p.w & use and not (x.kind == p.kind and x.kind in ("vmem", "ds") and not (p.w & x.r)):
                            errs.add(f"unwaited: [{j}] {p.text}  ->  [{i}] {x.text}")
                    if x.kind == "vmem":
                        vm.append(i)
                        if len(vm) > 63:
                            errs.add(f"more than 63 vmem ops outstanding at [{i}] {x.text}")
                            vm = vm[-63:]
                    elif x.kind in ("ds", "smem"):
                        lg.append(i)
                        if len(lg) > 15 and x.kind == "ds":
                            errs.add(f"more than 15 lgkm ops outstanding at [{i}] {x.text}")
                            lg = lg[-15:]
                nxt = []
                for t in self.succ[i]:
                    if t <= i:
                        if back.get(i, 0) < max_back:
                            b2 = dict(back)
                            b2[i] = b2.get(i, 0) + 1
                            nxt.append((t, b2))
                    else:
                        nxt.append((t, back))
                if not nxt:
                    break
                if len(nxt) > 1:
                    fresh = []
                    for t, b in nxt:
                        key = (t, tuple(vm), tuple(lg))
                        if key not in seen:
                            seen.add(key)
                            fresh.append((t, b))
                    nxt = fresh
                    if not nxt:
                        break
                    for t, b in nxt[1:]:
                        stack.append((t, tuple(vm), tuple(lg), tuple(b.items())))
                i, back = nxt[0]
        return sorted(errs)

    def max_regs(self):
        mx = {"v": -1, "a": -1, "s": -1}
        for x in self.ins:
            for r in x.r | x.w:
                if r[0] in mx and r[1:].isdigit():
                    mx[r[0]] = max(mx[r[0]], int(r[1:]))
        return mx


class B:
    def __init__(self):
        self.lines = []

    def __call__(self, text):
        for ln in text.strip("\n").splitlines():
            s = ln.strip()
            if s:
                self.lines.append(s if s.endswith(":") or s.startswith(".") else "  " + s)

    def text(self):
        return "\n".join(self.lines) + "\n"


def v(a, n=1):
    return f"v{a}" if n == 1 else f"v[{a}:{a + n - 1}]"


def a(i, n=1):
    return f"a{i}" if n == 1 else f"a[{i}:{i + n - 1}]"


def s(i, n=1):
    return f"s{i}" if n == 1 else f"s[{i}:{i + n - 1}]"


def cost(text):
    return sum(2 if ln.strip().startswith(TRANS) else 1 for ln in text.strip().splitlines())


def weave(mains, streams, cap=2):
    n = len(mains)
    gaps = [[] for _ in range(n)]
    used = [0] * n
    for st in streams:
        for e in st:
            if len(e) == 3:
                gaps[e[0]].append(e[1])
                used[e[0]] += cost(e[1])
    for st in streams:
        g = 0
        for e in st:
            if len(e) == 3:
                g = max(g, e[0])
                continue
            g = max(g, e[0])
            c = cost(e[1])
            while g < n - 1 and used[g] + c > cap and not (c > cap and used[g] == 0):
                g += 1
            gaps[g].append(e[1])
            used[g] += c
    out = []
    for m, gp in zip(mains, gaps):
        out.append(m)
        out.extend(gp)
    over = sum(max(0, x - cap) for x in used)
    return "\n".join(out), over


class Op:
    def __init__(self, text, deps=(), earliest=0, deadline=None):
        self.text, self.deps, self.earliest, self.deadline = text, list(deps), earliest, deadline
        self.cost = cost(text)
        self.gap = None


def chain(texts, earliest=0, dist=0, after=None):
    out, prev = [], after
    for t in texts:
        t, d = t if isinstance(t, tuple) else (t, dist)
        o = Op(t, [(prev, d)] if prev else [], earliest)
        out.append(o)
        prev = o
    return out


def sched(mains, pinned, ops, cap=2, vspan=None):
    n = len(mains)
    gaps = [[] for _ in range(n)]
    used = [0] * n
    for g, t in pinned:
        gaps[g].append(t)
        used[g] += cost(t)
    todo = list(ops)
    wide_mem = lambda o: "buffer_" in o.text and "x4" in o.text
    nmem = sum(map(wide_mem, ops))
    step = vspan / max(nmem, 1) if vspan else 0
    nxt_mem = 0.0
    for g in range(n):
        while todo:
            free = cap - used[g]
            ready = [o for o in todo if o.earliest <= g and all(d.gap is not None and d.gap + k <= g for d, k in o.deps)]
            if g == n - 1:
                ready = [o for o in todo if all(d.gap is not None for d, k in o.deps)]
                fit = ready
            else:
                fit = [o for o in ready if o.cost <= free or (o.cost > cap and used[g] == 0)]
                if vspan:
                    fit = [o for o in fit if not wide_mem(o) or g >= int(nxt_mem)]
            if not fit:
                break
            wide = [o for o in fit if o.cost >= cap]
            mem = [o for o in fit if vspan and (wide_mem(o) or "m0," in o.text)]
            o = (wide or mem or fit)[0]
            if any(k and d.gap == g and gaps[g][-1] == d.text for d, k in o.deps):
                gaps[g].append("s_nop 0")
                used[g] += 1
            if vspan and wide_mem(o):
                nxt_mem = max(nxt_mem + step, g + step - 1.5)
            o.gap = g
            gaps[g].append(o.text)
            used[g] += o.cost
            todo.remove(o)
    assert not todo
    for o in ops:
        assert o.deadline is None or o.gap <= o.deadline, f"deadline missed: {o.text} at gap {o.gap}"
    out = []
    for m, gp in zip(mains, gaps):
        out.append(m)
        out.extend(gp)
    return "\n".join(out), sum(max(0, x - cap) for x in used), max((o.gap for o in ops), default=0)


def resolve_waits(text, max_back=2):
    lines = text.splitlines()
    pat = re.compile(r"vmcnt\(@([\w,]+)\)")
    if not any(pat.search(x) for x in lines):
        return text
    prog = Prog(pat.sub("vmcnt(63)", text))
    src = [k for k, ln in enumerate(lines)
           if (lambda t: t and not t.startswith(".") and not t.endswith(":"))(ln.split(";")[0].strip())]
    want = {i: set(pat.search(lines[k]).group(1).split(",")) for i, k in enumerate(src) if pat.search(lines[k])}
    tags = {i: set(re.findall(r";#(\w+)", lines[k])) for i, k in enumerate(src)}
    best = {i: 63 for i in want}
    seen = set()
    stack = [(0, (), ())]
    while stack:
        i, vm, back = stack.pop()
        vm, back = list(vm), dict(back)
        while True:
            x = prog.ins[i]
            if i in want:
                for n, j in enumerate(reversed(vm)):
                    if tags[j] & want[i]:
                        best[i] = min(best[i], n)
                        vm = vm[len(vm) - n:] if n else []
                        break
            elif x.op == "s_waitcnt":
                m = re.search(r"vmcnt\((\d+)\)", " ".join(x.ops))
                if m:
                    k = int(m.group(1))
                    vm = vm[len(vm) - k:] if k and len(vm) > k else (vm if k else [])
            elif x.kind == "vmem":
                vm = (vm + [i])[-63:]
            nxt = []
            for t in prog.succ[i]:
                if t <= i:
                    if back.get(i, 0) < max_back:
                        b2 = dict(back)
                        b2[i] = b2.get(i, 0) + 1
                        nxt.append((t, b2))
                else:
                    nxt.append((t, back))
            if len(nxt) > 1:
                fresh = []
                for t, b in nxt:
                    key = (t, tuple(vm))
                    if key not in seen:
                        seen.add(key)
                        fresh.append((t, b))
                nxt = fresh
            if not nxt:
                break
            for t, b in nxt[1:]:
                stack.append((t, tuple(vm), tuple(b.items())))
            i, back = nxt[0]
    for i, n in best.items():
        lines[src[i]] = pat.sub(f"vmcnt({n})", lines[src[i]]) + " ; " + ",".join(sorted(want[i]))
    return "\n".join(re.sub(r"\s*;#\w+", "", ln) for ln in lines) + "\n"


def klass(text):
    t = text.strip()
    if t.startswith(("buffer_", "global_")):
        return "L"
    if t.startswith("ds_"):
        return "d"
    if t.startswith("v_"):
        return "v"
    return "s"


def gap_units(items):
    lines = [ln for x in items for ln in x.strip().splitlines() if not ln.strip().endswith(":")]
    t = 0
    for ln in lines:
        k = klass(ln)
        if k == "v":
            t = max(t, 1) + cost(ln)
        else:
            t += {"L": 3, "d": 2, "s": 1}[k]
    return t


def _tr(o):
    return 1 + max((_tr_cached(d) for d, k in o.deps), default=0)


def _tr_cached(o):
    if getattr(o, "_tr", None) is None:
        o._tr = _tr(o)
    return o._tr


def sched2(mains, pinned, ops, vspan=None, vstart=0):
    n = len(mains)
    rank = {"L": 0, "d": 0, "s": 1, "v": 2}
    gaps = [[] for _ in range(n)]
    for g, t in pinned:
        gaps[g].append(t)
    npin = [len(x) for x in gaps]

    def placed(g, t):
        x = gaps[g][:]
        i = len(x)
        while i > 0 and rank[klass(x[i - 1])] > rank[klass(t)]:
            i -= 1
        x.insert(i, t)
        return x

    todo = list(ops)
    wide = lambda o: klass(o.text) == "L" and "x4" in o.text
    depth = {}
    for o in reversed(sorted(ops, key=_tr_cached)):
        depth.setdefault(id(o), 0)
        for d, k in o.deps:
            depth[id(d)] = max(depth.get(id(d), 0), depth[id(o)] + 1)
    for o in ops:
        depth[id(o)] += getattr(o, 'bias', 0)
    vend = vstart + (vspan or 0)
    nxt = float(vstart)
    for g in range(n):
        while todo:
            def ok(o):
                for d, k in o.deps:
                    if d.gap is None:
                        return False
                    if rank[klass(d.text)] > rank[klass(o.text)]:
                        k = max(k, 1)
                    if d.gap + k > g:
                        return False
                return o.earliest <= g
            fit = [o for o in todo if ok(o) and (gap_units(placed(g, o.text)) <= 3 or (not gaps[g] and gap_units([o.text]) > 3))
                   and not (wide(o) and g < int(nxt))]
            if not fit:
                break
            has_d = any(klass(x) == "d" for x in gaps[g])
            feeds = lambda o: any(klass(x.text) == "L" and any(d is o for d, k in x.deps) for x in todo) and g + 3 >= int(nxt)
            urgent = [o for o in fit if getattr(o, "urgent", False)]
            mem = [o for o in fit if klass(o.text) == "L"]
            big = [o for o in fit if klass(o.text) == "v" and o.cost == 2]
            sca = [o for o in fit if klass(o.text) in "sd"]
            vec = sorted([o for o in fit if klass(o.text) == "v"], key=lambda o: -depth[id(o)])
            big.sort(key=lambda o: -depth[id(o)])
            if has_d:
                o = (urgent or [x for x in sca if feeds(x)] or vec or sca)[0]
            else:
                free_s = sca if not any(klass(x) == "s" for x in gaps[g]) else []
                o = (mem or urgent or big or free_s or vec or sca)[0]
            if wide(o):
                left = sum(map(wide, todo)) - 1
                nxt = g + max(4, (vend - g) / max(left, 1) - 0.5) if vspan else 0
            o.gap = g
            gaps[g] = placed(g, o.text)
            todo.remove(o)
    tail = []
    while todo:
        o = [x for x in todo if all(d.gap is not None for d, k in x.deps)][0]
        todo.remove(o)
        prev = tail[-1] if tail else (gaps[-1] or [""])[-1]
        if any(k and prev == d.text for d, k in o.deps):
            tail.append("s_nop %d" % (max(k for d, k in o.deps) - 1))
        o.gap = n - 1
        tail.append(o.text)
    for o in ops:
        assert o.deadline is None or o.gap <= o.deadline, f"deadline missed: {o.text} at gap {o.gap}"
    out = []
    for m, gp in zip(mains, gaps):
        out.append(m)
        out.extend(gp)
    over = sum(max(0, gap_units(x) - 3) for x in gaps) + gap_units(tail)
    return "\n".join(out + tail), over, max((o.gap for o in ops), default=0)
```

```python
import math, re, struct, sys
from asmlib import B, Prog, v, a, s, weave, Op, chain, sched, sched2, resolve_waits
from gen import fbits, sdiv, srd, mf16, transpose8, ARG, HEADER

SZX = 2048 * 576 * 2
REC = 2432
KVJ = 128 * REC
X2, OB, X1, PART, HB, KV = 0, SZX, 2 * SZX, 3 * SZX, 7 * SZX, 15 * SZX
S1 = KV + 16 * KVJ
S2 = S1 + 64 * 3072
LST = S2 + 64 * 3072
WQ = 2 * LST
WQH = 126 * 1024
WO = WQ + 16 * WQH
WOS = 164 * 1024
WF = WO + 4 * WOS
CH = 36864
WFS = 31 * CH
CNT = WF + 16 * WFS
WS_END = CNT + 131072
CL = 49152
C_PREP = 32 * 128
LOFF = 0x30000
C_KV, C_O, C_X1, C_X2, C_H, C_P = 0, 16 * 128, 64 * 128, 128 * 128, 192 * 128, 256 * 128
RES = 232
OOB = 0x40000000
QX = 131072
STAMPS = 200 << 20
OPT = {}
DIAG = False
SI, SJ, SL, SC, STW, STJ, SW = 24, 25, 26, 27, 28, 29, 33


def bstamp(b, k):
    if DIAG and OPT.get("brk"):
        b("s_memtime s[62:63]\ns_waitcnt lgkmcnt(0)")
        for st in range(4):
            b(f"s_cmp_eq_u32 s32, {st}\ns_cselect_b32 s{74+2*st+k}, s62, s{74+2*st+k}")


def stamp(b, i):
    if OPT.get("brk") and 10 <= i < 29:
        i = {10: 18}.get(i)
    if DIAG and i is not None:
        b(f"s_memtime s[62:63]\ns_waitcnt lgkmcnt(0)\ns_mov_b32 s{64+i}, s62")


def stamp_real(b, i):
    if DIAG:
        b(f"s_memrealtime s[62:63]\ns_waitcnt lgkmcnt(0)\ns_mov_b32 s{64+i}, s62")


def stamp_flush(b, slot):
    if not DIAG:
        return
    b(f"""
    s_lshl_b32 s62, {slot}, 8
    s_add_u32 s62, s62, s2
    s_lshl_b32 s62, s62, 4
    s_add_u32 s62, s62, s{SW}
    s_lshl_b32 s62, s62, 7
    s_add_u32 s96, s4, {STAMPS}
    s_addc_u32 s97, s5, 0
    s_mov_b32 s98, {32 << 20}
    s_mov_b32 s99, 0x20000
    v_mov_b32 v8, 0
    """)
    for q in range(8):
        for j in range(4):
            b(f"v_mov_b32 v{4+j}, s{64+4*q+j}")
        b(f"buffer_store_dwordx4 v[4:7], v8, s[96:99], s62 offen offset:{16*q}\ns_nop 1")


def head(b, name, nwg, loads):
    b(f"s_cmp_ge_u32 s2, {nwg}\ns_cbranch_scc1 {name}_end")
    if DIAG:
        for i in range(32):
            b(f"s_mov_b32 s{64+i}, 0")
        stamp_real(b, 30)
        stamp(b, 0)
    for reg, arg in loads:
        b(f"s_load_dwordx2 s[{reg}:{reg+1}], s[0:1], {ARG[arg]}")


def finish(b, name, slot):
    if DIAG:
        b("s_waitcnt vmcnt(0)")
        stamp(b, 29)
        stamp_real(b, 31)
        stamp_flush(b, slot)
    b(f"{name}_end:\ns_endpgm")


def window(b, d, off, size):
    b(f"s_add_u32 s{d}, s4, s{off}\ns_addc_u32 s{d+1}, s5, 0\ns_mov_b32 s{d+2}, {size}\ns_mov_b32 s{d+3}, 0x20000")


def ln_tail(b, A0, n, mean, rstd, dst):
    for j in range(n):
        b(f"v_sub_f32 v{A0+j}, v{A0+j}, v{mean}")
    for j in range(n):
        b(f"v_mul_f32 v{A0+j}, v{A0+j}, v{rstd}")
    for j in range(n // 2):
        b(f"v_cvt_pk_bf16_f32 v{dst+j}, v{A0+2*j}, v{A0+2*j+1}")


def ln_stats(b, sm, sq):
    b(f"""
    v_mul_f32 v{sm}, {fbits(1/576)}, v{sm}
    v_mul_f32 v{sq}, {fbits(1/576)}, v{sq}
    v_fma_f32 v{sq}, -v{sm}, v{sm}, v{sq}
    v_max_f32 v{sq}, 0, v{sq}
    v_add_f32 v{sq}, {fbits(1e-5)}, v{sq}
    """)


def row_reduce(b, sm, sq):
    b(f"""
    s_nop 1
    v_permlane32_swap_b32 v{sm}, v{sq}
    s_nop 0
    v_add_f32 v{sm}, v{sm}, v{sq}
    v_mov_b32 v{sq}, v{sm}
    s_nop 1
    v_permlane16_swap_b32 v{sm}, v{sq}
    s_nop 0
    v_add_f32 v{sm}, v{sm}, v{sq}
    s_nop 1
    v_add_f32 v{sm}, v{sm}, v{sm} row_ror:8 row_mask:0xf bank_mask:0xf
    """)


def gen_prep(name):
    b = B()
    head(b, name, 288, [(4, "ws"), (8, "x")])
    b(f"""
    v_lshrrev_b32 v5, 6, v0
    v_and_b32 v6, 15, v0
    v_lshrrev_b32 v7, 4, v0
    v_readfirstlane_b32 s33, v5
    s_cmp_ge_u32 s2, 216
    s_cbranch_scc1 {name}_wo
    s_load_dwordx2 s[6:7], s[0:1], {ARG['wqkv']}
    """)
    sdiv(b, 34, 2, 3, 216)
    b(f"""
    s_mul_i32 s35, s34, 3
    s_sub_u32 s35, s2, s35
    s_mul_i32 s38, s34, {8*3456}
    s_mul_i32 s36, s35, 1152
    s_add_u32 s38, s38, s36
    s_lshr_b32 s36, s34, 2
    s_mul_i32 s39, s36, 7168
    s_add_u32 s39, s39, {WQ}
    s_mov_b32 s22, {576*1728*2}
    s_mov_b32 s43, {4*3456}
    s_mov_b32 s44, {2*3456}
    s_mov_b32 s45, 3456
    s_cmp_eq_u32 s33, 8
    s_cbranch_scc1 {name}_qt
    v_lshrrev_b32 v8, 1, v7
    v_and_b32 v9, 1, v7
    v_mul_u32_u24 v10, 72, v8
    v_mul_u32_u24 v11, {WQH}, v8
    v_lshl_add_u32 v11, v9, 10, v11
    v_lshl_add_u32 v11, v6, 4, v11
    s_lshl_b32 s36, s35, 11
    s_add_u32 s39, s39, s36
    s_cmp_eq_u32 s35, 2
    s_cbranch_scc1 {name}_qv
    v_lshl_add_u32 v10, v9, 3, v10
    v_lshrrev_b32 v8, 3, v6
    v_mad_u32_u24 v10, v8, 36, v10
    v_bfe_u32 v8, v6, 2, 1
    v_lshl_add_u32 v10, v8, 4, v10
    v_and_b32 v8, 3, v6
    v_lshl_add_u32 v10, v8, 1, v10
    s_branch {name}_go
{name}_qv:
    v_mad_u32_u24 v10, v9, 36, v10
    v_lshl_add_u32 v10, v6, 1, v10
    s_branch {name}_go
{name}_qt:
    v_bfe_u32 v8, v0, 1, 5
    v_mul_u32_u24 v10, 36, v8
    v_and_b32 v8, 1, v0
    v_lshl_add_u32 v10, v8, 1, v10
    v_add_u32 v10, 32, v10
    v_bfe_u32 v8, v0, 2, 4
    v_mul_u32_u24 v11, {WQH}, v8
    v_and_b32 v8, 3, v0
    v_lshl_add_u32 v11, v8, 4, v11
    s_lshl_b32 s36, s35, 6
    s_add_u32 s39, s39, s36
    s_add_u32 s39, s39, 6144
    s_branch {name}_go
{name}_wo:
    s_load_dwordx2 s[6:7], s[0:1], {ARG['wo']}
    s_sub_u32 s34, s2, 216
    s_mov_b32 s35, 1
    s_mov_b32 s22, {576*576*2}
    s_lshr_b32 s38, s34, 1
    s_mul_i32 s38, s38, {18*1152}
    s_and_b32 s36, s34, 1
    s_mul_i32 s36, s36, {4*1152}
    s_add_u32 s38, s38, s36
    s_mov_b32 s43, {8*1152}
    s_mov_b32 s44, {2*1152}
    s_mov_b32 s45, 1152
    s_cmp_lt_u32 s34, 64
    s_cbranch_scc1 {name}_wo2
    s_sub_u32 s38, s34, 64
    s_mul_i32 s38, s38, {72*1152}
    s_add_u32 s38, s38, {16*1152}
    s_mov_b32 s43, {36*1152}
    s_mov_b32 s44, {18*1152}
{name}_wo2:
    s_mov_b32 s39, {WO}
    s_lshr_b32 s36, s34, 2
    v_lshlrev_b32 v10, 1, v0
    v_mul_u32_u24 v8, 43, v7
    v_lshrrev_b32 v8, 7, v8
    v_mul_u32_u24 v9, 3, v8
    v_sub_u32 v9, v7, v9
    v_mad_u32_u24 v9, v9, 18, s36
    v_mul_u32_u24 v12, 43, v8
    v_lshrrev_b32 v12, 7, v12
    v_mul_u32_u24 v13, 3, v12
    v_sub_u32 v8, v8, v13
    v_mad_u32_u24 v13, v8, 12, v9
    v_mad_u32_u24 v14, v8, 26, v9
    v_add_u32 v14, 24, v14
    v_lshl_add_u32 v15, v8, 4, v9
    v_add_u32 v15, 78, v15
    v_cmp_gt_u32 vcc, 12, v9
    v_cmp_gt_u32 s[40:41], 38, v9
    v_mul_u32_u24 v11, {WOS}, v12
    v_lshl_add_u32 v11, v6, 4, v11
    v_cndmask_b32 v14, v15, v14, s[40:41]
    v_cndmask_b32 v13, v14, v13, vcc
    v_lshl_add_u32 v11, v13, 10, v11
{name}_go:
    s_and_b32 s36, s34, 3
    s_lshl_b32 s36, s36, 8
    s_add_u32 s39, s39, s36
    v_lshrrev_b32 v2, 3, v0
    v_and_b32 v3, 7, v0
    v_mul_u32_u24 v4, 1152, v3
    v_lshl_add_u32 v4, v2, 4, v4
    v_lshlrev_b32 v2, 8, v2
    v_lshl_add_u32 v2, v3, 4, v2
    s_mul_i32 s11, s2, 9216
    s_waitcnt lgkmcnt(0)
    s_mov_b32 s20, s6
    s_mov_b32 s21, s7
    s_mov_b32 s23, 0x20000
    """)
    assert all((t * 43) >> 7 == t // 3 for t in range(36))
    srd(b, 16, 8, 0, SZX)
    b("buffer_load_dwordx4 v[12:15], v4, s[16:19], s11 offen ;#x")
    for j in range(8):
        b("s_mov_b32 s36, s38")
        for bit, r in ((4, 43), (2, 44), (1, 45)):
            if j & bit:
                b(f"s_add_u32 s36, s36, s{r}")
        b(f"buffer_load_ushort v{16+j}, v10, s[20:23], s36 offen ;#w")
    if int(OPT.get("pf", 1)):
        b(f"""
        s_cmp_lg_u32 s33, 8
        s_cbranch_scc1 {name}_nopf
        s_getpc_b64 s[46:47]
{name}_pc:
        s_add_u32 s46, s46, main_kernel-{name}_pc
        s_addc_u32 s47, s47, 0
        s_bfe_u32 s36, s2, 0x50003
        s_lshl_b32 s36, s36, 11
        v_and_b32 v50, 15, v0
        v_lshl_add_u32 v50, v50, 7, s36
        v_min_u32 v50, main_code_end-main_kernel-4, v50
        v_mov_b32 v51, s47
        v_add_co_u32 v50, vcc, s46, v50
        s_nop 1
        v_addc_co_u32 v51, vcc, 0, v51, vcc
        global_load_dword v52, v[50:51], off
{name}_nopf:
        """)
    srd(b, 12, 4, 0, WS_END)
    srd(b, 24, 4, LST + X2, SZX)
    b(f"""
    s_lshr_b32 s10, s2, 1
    s_mul_i32 s10, s10, 18432
    s_and_b32 s11, s2, 1
    s_lshl_b32 s11, s11, 7
    s_add_u32 s10, s10, s11
    v_lshlrev_b32 v6, 2, v0
    v_mov_b32 v7, {OOB}
    v_cmp_gt_u32 vcc, 128, v0
    v_mov_b32 v8, 0
    s_lshl_b32 s11, s2, 9
    v_cndmask_b32 v6, v7, v6, vcc
    s_add_u32 s11, s11, {CNT}
    buffer_store_dword v8, v6, s[12:15], s11 offen
    v_lshlrev_b32 v3, 3, v3
    v_lshl_add_u32 v4, v5, 6, v3
    s_waitcnt vmcnt(@x)
    """)
    A0 = 32
    for j in range(4):
        b(f"v_lshlrev_b32 v{A0+2*j}, 16, v{12+j}\nv_and_b32 v{A0+2*j+1}, 0xffff0000, v{12+j}")
    b(f"v_add_f32 v6, v{A0}, v{A0+1}\nv_mul_f32 v7, v{A0}, v{A0}")
    for j in range(1, 8):
        if j > 1:
            b(f"v_add_f32 v6, v6, v{A0+j}")
        b(f"v_fmac_f32 v7, v{A0+j}, v{A0+j}")
    row_reduce(b, 6, 7)
    b("v_bfe_u32 v8, v0, 5, 1\nv_lshl_add_u32 v4, v8, 2, v4\nds_write_b32 v4, v6\ns_waitcnt vmcnt(@w)")
    for j in range(4):
        b(f"v_lshl_or_b32 v{24+j}, v{17+2*j}, 16, v{16+2*j}")
    b(f"""
    buffer_store_dwordx4 v[24:27], v11, s[12:15], s39 offen{OPT.get("pst", "")}
    s_lshl_b32 s36, s35, 4
    s_add_u32 s36, s36, s33
    s_cmp_lg_u32 s36, 8
    s_cbranch_scc1 {name}_noone
    """)
    for j in range(4):
        b(f"v_mov_b32 v{28+j}, 0x3f803f80")
    b(f"buffer_store_dwordx4 v[28:31], v11, s[12:15], s39 offen offset:192\n{name}_noone:\ns_waitcnt lgkmcnt(0)\ns_barrier")
    for w in range(9):
        b(f"ds_read_b64 {v(56+2*w,2)}, v3 offset:{64*w}")
    b("s_waitcnt lgkmcnt(0)")
    for w in range(1, 9):
        b(f"v_pk_add_f32 v[56:57], v[56:57], {v(56+2*w,2)}")
    ln_stats(b, 56, 57)
    b("v_rsq_f32 v57, v57")
    ln_tail(b, A0, 8, 56, 57, 12)
    b("buffer_store_dwordx4 v[12:15], v2, s[24:27], s10 offen" + OPT.get("pst", ""))
    if DIAG:
        b(f"s_cmp_ge_u32 s2, 256\ns_cbranch_scc1 {name}_end")
    finish(b, name, "1")
    return dict(name=name, text=resolve_waits(b.text()), grid=288, block=576, lds=1024)


def signal(b, tag, base, idx, wave=3, extra=None):
    b(f"""
    s_lshl_b32 s60, s{idx}, 7
    s_add_u32 s60, s60, s{SC}
    s_add_u32 s60, s60, {base}
    s_waitcnt vmcnt(0) lgkmcnt(0)
{tag}_bar:
    s_barrier
    s_cmp_lg_u32 s{SW}, {wave}
    s_cbranch_scc1 {tag}_sig
    s_mov_b64 exec, 1
    buffer_atomic_add v3, v2, s[12:15], s60 offen sc1
    """)
    if extra:
        b(f"buffer_atomic_add v3, v2, s[12:15], s{extra} offen sc1")
    b(f"s_mov_b64 exec, -1\n{tag}_sig:")


def poll(b, tag, base, idx, target, one_wave):
    b(f"""
    s_lshl_b32 s60, s{idx}, 7
    s_add_u32 s60, s60, s{SC}
    s_add_u32 s60, s60, {base}
    s_mov_b32 s61, 0x40000
    """)
    if one_wave:
        b(f"s_cmp_lg_u32 s{SW}, 3\ns_cbranch_scc1 {tag}_ok")
    b(f"""
{tag}_poll:
    buffer_load_dword v4, v2, s[12:15], s60 offen sc1
    s_sub_u32 s61, s61, 1
    s_waitcnt vmcnt(0)
    v_cmp_gt_u32 vcc, {target}, v4
    s_cbranch_scc1 {tag}_ok
    s_cbranch_vccnz {tag}_poll
{tag}_ok:
    """)
    if one_wave:
        b("s_barrier")


def dma_run(b, n, srdn, soff, flags=""):
    for i in range(n):
        off = f" offset:{1024*(i%4)}" if i % 4 else ""
        b(f"buffer_load_dwordx4 v1, s[{srdn}:{srdn+3}], s{soff} offen{off}{flags} lds")
        if i % 4 == 3 and i < n - 1:
            b(f"s_add_u32 m0, m0, 4096\ns_add_u32 s{soff}, s{soff}, 4096")


def pack4(b, dst, p, q):
    b(f"""
    v_cvt_pk_bf16_f32 v{dst}, v{p}, v{p+1}
    v_cvt_pk_bf16_f32 v{dst+1}, v{p+2}, v{p+3}
    v_cvt_pk_bf16_f32 v{dst+2}, v{q}, v{q+1}
    v_cvt_pk_bf16_f32 v{dst+3}, v{q+2}, v{q+3}
    """)


def unit_offset(b, dst, t0, t1):
    b(f"""
    v_bfe_u32 v{t0}, v0, 4, 1
    v_bfe_u32 v{t1}, v0, 5, 1
    v_mul_u32_u24 v{dst}, 18432, v{t0}
    v_lshl_add_u32 v{dst}, v{t1}, 8, v{dst}
    v_and_b32 v{t0}, 15, v0
    v_lshl_add_u32 v{dst}, v{t0}, 4, v{dst}
    """)


TIM = QX + 18432
VD, TR = 72, 76
QSCALE = fbits(math.log2(math.e) / math.sqrt(18))


def stats_publish(b, base):
    b(f"""
    v_pk_add_f32 v[8:9], {v(RES,2)}, {v(RES+2,2)}
    v_pk_mul_f32 v[10:11], {v(RES,2)}, {v(RES,2)}
    """)
    for k in range(2, 24, 2):
        if k > 2:
            b(f"v_pk_add_f32 v[8:9], v[8:9], {v(RES+k,2)}")
        b(f"v_pk_fma_f32 v[10:11], {v(RES+k,2)}, {v(RES+k,2)}, v[10:11]")
    b(f"""
    v_add_f32 v8, v8, v9
    v_add_f32 v9, v10, v11
    s_add_u32 s38, s62, s{SL}
    s_add_u32 s38, s38, {base}
    v_permlane32_swap_b32 v8, v9
    s_nop 0
    v_add_f32 v8, v8, v9
    buffer_store_dword v8, v13, s[12:15], s38 offen sc1
    """.replace("s62", "s59"))


def stats_target(b):
    b(f"""
    v_and_b32 v13, 15, v0
    v_lshlrev_b32 v13, 4, v13
    v_bfe_u32 v14, v0, 4, 1
    v_lshl_add_u32 v13, v14, 3, v13
    v_bfe_u32 v14, v0, 5, 1
    v_lshl_add_u32 v13, v14, 2, v13
    s_and_b32 s59, s{SJ}, 3
    s_mul_i32 s59, s59, 3
    s_add_u32 s59, s59, s{SW}
    s_lshl_b32 s59, s59, 8
    s_mul_i32 s38, s{STJ}, 3072
    s_add_u32 s59, s59, s38
    """)


def stats_loads(t, so):
    return [f"buffer_load_dwordx4 {v(t+4*n,4)}, v1, s[12:15], s{so} offen offset:{1024*n} sc1 ;#st" for n in range(3)]


def stats_reduce(src, t, eps):
    out = [f"v_add_f32 v{t+k}, v{src+k}, v{src+4+k}" for k in range(4)] + [f"v_add_f32 v{t+k}, v{t+k}, v{src+8+k}" for k in range(4)]
    out += [(f"v_permlane32_swap_b32 v{t}, v{t+1}", 2), f"v_permlane32_swap_b32 v{t+2}, v{t+3}",
            (f"v_add_f32 v{t}, v{t}, v{t+1}", 1), f"v_add_f32 v{t+2}, v{t+2}, v{t+3}",
            (f"v_permlane16_swap_b32 v{t}, v{t+2}", 2), (f"v_add_f32 v{t}, v{t}, v{t+2}", 1), f"v_mul_f32 v{t}, {fbits(1/576)}, v{t}",
            f"v_mov_b32 v{t+1}, v{t}", (f"v_permlane32_swap_b32 v{t}, v{t+1}", 2),
            (f"v_fma_f32 v{t}, -v{t}, v{t}, v{t+1}", 1), f"v_max_f32 v{t}, 0, v{t}", f"v_add_f32 v{t}, {eps}, v{t}",
            f"v_mov_b32 v{t+1}, v{t}", (f"v_permlane16_swap_b32 v{t}, v{t+1}", 2)]
    return out


def emit_chain(b, items):
    for x in items:
        if isinstance(x, tuple):
            b(f"s_nop {x[1]-1}\n{x[0]}")
        else:
            b(x)


def phase_q(b):
    ACC, XQ, TMP, STT, RV, AD = 16, 80, 128, 164, 184, 208
    AQ, GK, GV, AVT, TA, AON, RD, GT = AD, AD + 1, AD + 2, AD + 3, AD + 4, AD + 8, AD + 9, AD + 10
    b(f"""
    s_mul_i32 s34, s{STW}, 36864
    s_add_u32 s34, s34, {LST+X2}
    s_sub_u32 s34, s34, s{SL}
    s_add_u32 s16, s4, s34
    s_addc_u32 s17, s5, 0
    s_mov_b32 s18, 18432
    s_mov_b32 s19, 0x20000
    s_add_u32 s20, s16, 18432
    s_addc_u32 s21, s17, 0
    s_mov_b32 s22, 18432
    s_mov_b32 s23, 0x20000
    v_and_b32 v12, 15, v0
    v_bfe_u32 v4, v0, 4, 2
    v_lshrrev_b32 v13, 1, v4
    v_and_b32 v14, 1, v4
    s_mul_i32 s38, s{SW}, 1152
    s_add_u32 s38, s38, {QX}
    s_mul_i32 s39, s{SW}, 768
    s_add_u32 s39, s39, {TIM}
    v_lshlrev_b32 v15, 4, v12
    v_lshl_add_u32 v15, v14, 9, v15
    v_mul_u32_u24 v{AQ}, 4608, v13
    v_add3_u32 v{AQ}, v{AQ}, v15, s38
    v_mul_u32_u24 v{GK}, {REC}, v13
    v_add_u32 v{GK}, v{GK}, v15
    v_cmp_eq_u32 s[48:49], 0, v4
    v_lshlrev_b32 v6, 4, v4
    v_lshrrev_b32 v13, 2, v12
    v_and_b32 v15, 3, v12
    v_lshlrev_b32 v{AVT}, 5, v13
    v_lshl_add_u32 v{AVT}, v15, 1, v{AVT}
    v_add_u32 v{AVT}, s39, v{AVT}
    s_add_u32 s40, s38, 1024
    s_add_u32 s41, s39, 128
    v_lshl_add_u32 v{TA}, v12, 2, s40
    v_lshl_add_u32 v15, v12, 2, s41
    v_cndmask_b32 v{TA}, v15, v{TA}, s[48:49]
    v_mov_b32 v13, 384
    v_mov_b32 v14, 4608
    v_cndmask_b32 v13, v13, v14, s[48:49]
    v_add_u32 v{TA+1}, v{TA}, v13
    v_and_b32 v14, 3, v0
    v_bfe_u32 v13, v0, 2, 1
    v_mul_u32_u24 v13, 384, v13
    v_lshl_add_u32 v13, v14, 2, v13
    v_add_u32 v{AON}, s39, v13
    v_add_u32 v{RD}, s39, v1
    v_add_u32 v13, {REC-384}, v1
    v_cmp_gt_u32 vcc, 384, v1
    v_mov_b32 v14, {OOB}
    s_mul_i32 s43, s{SJ}, {KVJ}
    v_cndmask_b32 v13, v13, v1, vcc
    v_cmp_gt_u32 vcc, 768, v1
    s_mul_i32 s44, s{STW}, {2*REC}
    s_add_u32 s43, s43, s44
    v_cndmask_b32 v{GT}, v14, v13, vcc
    s_add_u32 s43, s43, s{SL}
    s_add_u32 s43, s43, {KV}
    s_mul_i32 s42, s{STW}, 3072
    s_add_u32 s42, s42, {S2}
    s_mov_b32 s45, {fbits(1e-5)}
    v_mov_b32 v7, 0x3f803f80
    v_mov_b32 v5, v1
    s_mov_b32 s37, 3
    """)
    for i in range(16, 72):
        b(f"v_mov_b32 v{i}, 0")
    b(f"s_cmp_eq_u32 s{SL}, 0\ns_cselect_b32 s42, {OOB}, s42\ns_cselect_b32 s45, 1.0, s45\ns_cbranch_scc1 q_ok")
    poll(b, "q", C_X2 - CL, STW, 4, False)
    stamp(b, 1)
    xq = lambda p, rt: XQ + ((p % 6) * 2 + rt) * 4
    xload = lambda p, rt: f"buffer_load_dwordx4 {v(xq(p, rt),4)}, v1, s[{16+4*rt}:{19+4*rt}], s36 offen sc1 ;#x{p%6}"
    acc = lambda f, rt: ACC + (f * 2 + rt) * 4
    ring = lambda ks, f: a((ks % 2) * 28 + f * 4, 4)
    reads = lambda p: [f"ds_read_b128 {ring(p, f)}, v5 offset:{(p*7+f)*1024}" for f in range(7)]
    b("s_mov_b32 s36, 0\ns_mov_b32 m0, s10")
    for p in range(5):
        b(xload(p, 0) + "\n" + xload(p, 1) + "\ns_add_u32 s36, s36, 1024")
        if p == 1:
            b("s_waitcnt vmcnt(4)\ns_barrier")
            b("\n".join(reads(0) + stats_loads(STT, 42)))
    stamp(b, 2)
    b(f"s_cmp_lg_u32 s{SL}, 0\ns_waitcnt vmcnt(@x0) lgkmcnt(0)\ns_cbranch_scc1 q_loop1")
    for fill in (1, 0):
        mains, pinned = [], []
        for p in range(6):
            for f in (6, 2, 3, 4, 5, 0, 1):
                for rt in range(2):
                    w, x, d = ring(p, f), v(xq(p, rt), 4), v(acc(f, rt), 4)
                    mains.append(mf16(d, x, w, d) if f in (4, 5) else mf16(d, w, x, d))
            rd = reads(p + 1)
            dm = "buffer_load_dwordx4 v1, s[12:15], s11 offen lds ;#wq"
            pin = [(0, xload(p + 5, 0))]
            if p == 5 and fill:
                pin += [(1, "s_waitcnt vmcnt(@wq)"), (1, "s_barrier")]
            pin += [(1, rd[0]), (2, rd[1]), (4, rd[2]), (5, rd[3]), (6, rd[4]), (7, xload(p + 5, 1)), (8, rd[5]), (8, "s_add_u32 s36, s36, 1024"),
                    (9, rd[6])]
            for gq in (3, 10, 11, 12)[:(4, 4, 3, 0, 0, 0)[p] * fill]:
                pin += [(gq, dm), (gq, "s_add_u32 m0, m0, 4096"), (gq, "s_add_u32 s11, s11, 4096")]
            pin += [(13, f"s_waitcnt vmcnt(@x{(p+1)%6}) lgkmcnt(0)")]
            if p == 0:
                pin += [(6, "s_sub_u32 s37, s37, 1")]
            if p == 5:
                pin += [(11, "v_add_u32 v5, 43008, v5"), (13, f"s_cmp_lg_u32 s37, {fill}")]
            pinned += [(14 * p + gp, t) for gp, t in pin]
        ops = [] if fill else chain(stats_reduce(STT, STT + 12, "s45") + [
            (f"v_rsq_f32 v8, v{STT+12}", 1), f"v_rsq_f32 v9, v{STT+13}", (f"v_mul_f32 v12, {QSCALE}, v8", 1), f"v_mul_f32 v13, {QSCALE}, v9",
            "v_cndmask_b32 v14, v8, v12, s[48:49]", "v_cndmask_b32 v15, v9, v13, s[48:49]"], earliest=27)
        txt, over, lastgap = sched2(mains, pinned, ops)
        print("q loop (overflow, last gap):", over, lastgap, file=sys.stderr)
        b(f".p2align 3\nq_loop{1-fill}:\n{txt}\ns_cbranch_scc1 q_loop{1-fill}")
    stamp(b, 3)
    for rt in range(2):
        for i in range(4):
            b(f"ds_bpermute_b32 v{RV+4*rt+i}, v6, v{8+rt} offset:{4*i}")

    def scale(f, rt, by):
        for i in (0, 2):
            d = v(acc(f, rt) + i, 2)
            if isinstance(by, int):
                sel = "op_sel:[1:0] op_sel_hi:[1:1]" if by & 1 else "op_sel_hi:[0:1]"
                b(f"v_pk_mul_f32 {d}, {v(by & ~1, 2)}, {d} {sel}")
            else:
                b(f"v_pk_mul_f32 {d}, {v(by[0]+i,2)}, {d}")

    T = TMP
    for rt in range(2):
        scale(6, rt, 14 + rt)
    pack4(b, T, acc(6, 0), acc(6, 1))
    b(f"ds_write_b32 v{AON}, v7 offset:256\ns_mov_b64 exec, 0xffffffff")
    for k in range(4):
        b(f"ds_write_b32 v{TA+k%2}, v{T+k} offset:{64*(k//2)}")
    b("s_mov_b32 exec_lo, 0\ns_mov_b32 exec_hi, 0xffff\ns_waitcnt lgkmcnt(5)")
    for k in range(4):
        off = 384 * (k % 2) + 8 * (k // 2)
        b(f"ds_write_b16 v{AVT}, v{T+k} offset:{off}\nds_write_b16_d16_hi v{AVT}, v{T+k} offset:{off+16}")
    b(f"s_mov_b64 exec, -1\nds_read_b128 {v(TMP+32,4)}, v{RD}")
    T += 4
    for rt in range(2):
        scale(2, rt, 8 + rt)
        scale(3, rt, 8 + rt)
        pack4(b, T, acc(2, rt), acc(3, rt))
        b(f"buffer_store_dwordx4 {v(T,4)}, v{GK}, s[12:15], s43 offen offset:{256*rt} sc1")
        T += 4
    for f in (4, 5):
        for rt in range(2):
            scale(f, rt, [RV + 4 * rt])
        pack4(b, T, acc(f, 0), acc(f, 1))
        b(f"buffer_store_dwordx4 {v(T,4)}, v1, s[12:15], s43 offen offset:{1024+REC*(f-4)} sc1")
        T += 4
    b(f"s_waitcnt lgkmcnt(0)\nbuffer_store_dwordx4 {v(TMP+32,4)}, v{GT}, s[12:15], s43 offen offset:2048 sc1")
    for rt in range(2):
        b(f"ds_write_b128 v{AQ}, {v(TMP+4+4*rt,4)} offset:{9216+256*rt}")
        scale(0, rt, 12 + rt)
        scale(1, rt, 12 + rt)
        pack4(b, T, acc(0, rt), acc(1, rt))
        b(f"ds_write_b128 v{AQ}, {v(T,4)} offset:{256*rt}")
        T += 4
    stamp(b, 4)


def wo_loads(lo, hi):
    out = []
    for n in range(lo, hi):
        off = f" offset:{1024*((n-lo)%4)}" if (n - lo) % 4 else ""
        t = f"buffer_load_dwordx4 {a(4*n,4)}, v1, s[12:15], s38 offen{off}"
        if (n - lo) % 4 == 3:
            t += "\ns_add_u32 s38, s38, 4096"
        out.append(t)
    return out


def wo_base(b, part, per):
    b(f"""
    s_and_b32 s38, s{SJ}, 3
    s_mul_i32 s38, s38, {WOS}
    s_mul_i32 s39, s{SW}, {1024*per}
    s_add_u32 s38, s38, s39
    s_add_u32 s38, s38, {WO + 1024*part}
    s_cmp_eq_u32 s{SW}, 3
    s_cselect_b32 s38, {OOB}, s38
    """)


def centre(b, fr, n, tmp, mean, after=None):
    for k in range(n):
        for j in range(4):
            for h in range(2):
                b(f"v_dot2_f32_bf16 v{tmp+2*j+h}, v{fr+4*k+j}, s{30+h}, v{mean}")
        for j in range(4):
            b(f"v_cvt_pk_bf16_f32 v{fr+4*k+j}, v{tmp+2*j}, v{tmp+2*j+1}")
        if after:
            b(after(k))


def row_tile(b, vd, sd):
    b(f"""
    v_and_b32 v{vd}, 31, v0
    v_mul_u32_u24 v{vd}, 1152, v{vd}
    v_bfe_u32 v{vd+1}, v0, 5, 1
    v_lshl_add_u32 v{vd}, v{vd+1}, 4, v{vd}
    s_and_b32 s{sd}, s{SJ}, 3
    s_mul_i32 s{sd}, s{sd}, 3
    s_add_u32 s{sd}, s{sd}, s{SW}
    s_mul_i32 s{sd}, s{sd}, 96
    s_mul_i32 s{sd+1}, s{STJ}, 36864
    s_add_u32 s{sd}, s{sd}, s{sd+1}
    """)


def layer0_jobs(b, ONE, SM, PF, PT, AF):
    srd(b, 20, 100, 0, SZX)
    row_tile(b, 8, 38)
    for i in range(4):
        b(f"v_mov_b32 v{ONE+i}, 0x3f803f80")
    for n in range(3):
        b(f"buffer_load_dwordx4 {v(RES+12+4*n,4)}, v8, s[20:23], s38 offen offset:{32*n}")
    sdiv(b, 41, STW, 9, 64)
    b(f"""
    s_mul_i32 s38, s41, 9
    s_sub_u32 s38, s{STW}, s38
    s_lshl_b32 s39, s41, 10
    v_add_u32 v8, s39, v1
    v_add_u32 v9, {9*7168}, v8
    s_mul_i32 s38, s38, 14336
    s_add_u32 s38, s38, s39
    v_add_u32 v12, s38, v1
    """)
    for ks in range(18):
        b(f"ds_read_b128 {a(AF+4*ks,4)}, v{8+ks//9} offset:{7168*(ks%9)}")
        if ks == 11:
            b("s_waitcnt lgkmcnt(6)")
    b(f"ds_read_b128 {v(PF,4)}, v12\nds_read_b128 {v(PF+4,4)}, v12 offset:7168")
    for ks in range(18):
        if ks >= 6:
            b(f"s_waitcnt lgkmcnt({19-ks})")
        b(mf16(v(SM, 4), v(ONE, 4), a(AF + 4 * ks, 4), "0" if ks == 0 else v(SM, 4)))
    b(f"""
    v_and_b32 v8, 12, v0
    v_cmp_eq_u32 vcc, 12, v8
    s_cmp_eq_u32 s41, 6
    s_cselect_b64 vcc, vcc, 0
    s_add_u32 s39, s38, 7168
    s_mul_i32 s41, s{SJ}, {WFS}
    s_add_u32 s41, s41, {WF+28*CH}
    s_cmp_eq_u32 s{STW}, 63
    s_cselect_b32 s41, {OOB}, s41
    """)
    for r in (38, 39):
        b(f"s_cmp_ge_u32 s{r}, {3*CH}\ns_cselect_b32 s44, {4*CH}, 0\ns_sub_u32 s{r}, s{r}, s44\ns_add_u32 s{r}, s{r}, s41")
    b(f"s_waitcnt lgkmcnt(0)\nv_mul_f32 v{SM}, {fbits(-1/576)}, v{SM}\nv_cndmask_b32 v{SM}, v{SM}, v2, vcc")
    centre(b, PF, 2, PT, SM, lambda k: f"buffer_store_dwordx4 {v(PF+4*k,4)}, v1, s[12:15], s{38+k} offen sc1")
    srd(b, 20, 54, 0, 576 * 4608 * 2)
    b("s_mov_b32 s32, 0\ns_mov_b32 s41, s52")


def raw_setup(b):
    b(f"""
    v_bfe_u32 v8, v0, 4, 2
    v_bfe_u32 v9, v0, 2, 2
    v_and_b32 v12, 3, v0
    v_lshlrev_b32 v12, 3, v12
    v_lshl_add_u32 v12, v9, 7, v12
    v_bfe_u32 v13, v0, 3, 2
    v_xor_b32 v13, s{SW}, v13
    s_cmp_ge_u32 s2, 144
    s_cbranch_scc1 a_raw2
    s_and_b32 s38, s2, 1
    s_lshl_b32 s39, s38, 3
    s_add_u32 s44, s0, s39
    s_addc_u32 s45, s1, 0
    s_load_dwordx2 s[54:55], s[44:45], {ARG['w1']}
    s_lshr_b32 s39, s2, 1
    s_lshl_b32 s56, s39, 7
    s_mov_b32 s41, 9216
    s_mov_b32 s8, {fbits(-1/576)}
    s_mov_b32 s59, 2048
    s_mov_b32 s9, 0
    s_lshl_b32 s39, s39, 2
    s_add_u32 s39, s39, s{SW}
    """)
    sdiv(b, 44, 39, 18, 288)
    b(f"""
    s_mul_i32 s44, s44, {WFS-18*CH}
    s_mul_i32 s39, s39, {CH}
    s_add_u32 s58, s39, s44
    s_lshl_b32 s38, s38, 10
    s_add_u32 s58, s58, s38
    s_add_u32 s58, s58, {WF}
    v_lshl_add_u32 v12, v8, 10, v12
    v_lshl_add_u32 v{TR}, v13, 5, v12
    v_xor_b32 v{TR+1}, {512+64}, v{TR}
    s_branch a_raw3
a_raw2:
    s_load_dwordx2 s[54:55], s[0:1], {ARG['w2']}
    s_sub_u32 s38, s2, 144
    """)
    sdiv(b, 39, 38, 9, 112)
    b(f"""
    s_mul_i32 s44, s39, 9
    s_sub_u32 s38, s38, s44
    s_mul_i32 s56, s39, {576*1152}
    s_lshl_b32 s44, s38, 7
    s_add_u32 s56, s56, s44
    s_mov_b32 s41, 1152
    s_mov_b32 s8, 0
    s_mov_b32 s59, {CH}
    s_lshl_b32 s38, s38, 2
    s_add_u32 s38, s38, s{SW}
    """)
    sdiv(b, 44, 38, 9, 36)
    b(f"""
    s_lshl_b32 s45, s39, 1
    s_sub_u32 s45, s45, s44
    s_and_b32 s45, s45, 3
    s_mov_b32 s9, {9216-9*CH}
    s_cmp_eq_u32 s45, 3
    s_cselect_b32 s9, {-3*9216-9*CH}, s9
    s_mul_i32 s45, s45, 9216
    s_mul_i32 s44, s44, {WFS-9216}
    s_lshl_b32 s38, s38, 10
    s_add_u32 s58, s38, s44
    s_add_u32 s58, s58, s45
    s_lshr_b32 s44, s39, 1
    s_mul_i32 s44, s44, {4*WFS}
    s_add_u32 s58, s58, s44
    s_add_u32 s58, s58, {WF+18*CH}
    s_cmp_ge_u32 s2, 216
    s_cselect_b32 s58, {OOB}, s58
    v_lshl_add_u32 v12, v8, 9, v12
    v_and_b32 v8, 2, v8
    v_xor_b32 v13, v13, v8
    v_lshl_add_u32 v{TR}, v13, 5, v12
    v_add_u32 v{TR+1}, 2048, v{TR}
a_raw3:
    v_bfe_u32 v8, v0, 3, 3
    v_mul_lo_u32 v12, v8, s41
    v_and_b32 v8, 6, v8
    v_and_b32 v9, 7, v0
    v_xor_b32 v9, v9, v8
    v_lshl_add_u32 v{VD}, v9, 4, v12
    v_xor_b32 v9, 4, v9
    v_lshl_add_u32 v{VD+1}, v9, 4, v12
    s_lshl_b32 s52, s41, 3
    s_sub_u32 s38, s52, 1024
    v_add_u32 v{VD+1}, s38, v{VD+1}
    s_lshl_b32 s38, s38, 1
    v_add_u32 v{VD+2}, s38, v{VD}
    v_add_u32 v{VD+3}, s38, v{VD+1}
    s_lshl_b32 s57, s52, 4
    s_waitcnt lgkmcnt(0)
    """)


def phase_a(b):
    QM, QT, KM, KT, VF, S, O, MX, IDX = 16, 32, 64, 40, 80, 96, 160, 224, 228
    MEAN, ONE, SM, PF, PT, AF = 78, 80, 84, 48, 88, 112
    AV, AT, AK = 229, 231, 79
    OM, OT, MW, MR = 6, 7, 10, 11
    qm = lambda t: v(QM + 4 * t, 4)
    qt = lambda t: v(QT + 2 * t, 2)
    km = lambda k: a(KM + 4 * (k % 4), 4)
    kt = lambda k: v(KT + 2 * (k % 4), 2)
    vf = lambda k, g: a(VF + 8 * (k % 4) + 4 * g, 4)
    sb = lambda n: S + 16 * (n % 4)
    ob = lambda t: O + 16 * t
    m8 = lambda d, k, t: f"v_mfma_f32_32x32x8_bf16 {v(d,16)}, {kt(k)}, {qt(t)}, 0"
    m16 = lambda d, k, t: f"v_mfma_f32_32x32x16_bf16 {v(d,16)}, {km(k)}, {qm(t)}, {v(d,16)}"
    smf = lambda t, k, g, p: f"v_smfmac_f32_32x32x32_bf16 {v(ob(t),16)}, {vf(k,g)}, {v(p+8*g,8)}, v{IDX}"

    def rec_loads(k):
        tg = f" ;#r{k%4}"
        return [f"buffer_load_dwordx4 {km(k)}, v{AK}, s[16:19], s46 offen sc1{tg} ;#k{k%4}",
                f"buffer_load_dword v{KT+2*(k%4)}, v{AT}, s[16:19], s46 offen offset:2176 sc1{tg} ;#k{k%4}",
                f"buffer_load_dwordx4 {vf(k,0)}, v{AV}, s[16:19], s46 offen sc1{tg}",
                f"buffer_load_dwordx4 {vf(k,1)}, v{AV+1}, s[16:19], s46 offen sc1{tg}"]

    def wo_mode(b, start):
        b(f"""
        s_and_b32 s38, s{SJ}, 3
        s_mul_i32 s38, s38, {WOS}
        s_add_u32 s38, s38, {WO + 36*1024}
        s_lshl_b32 s56, s{SW}, 12
        s_add_u32 s56, s56, {start-16384}
        s_mov_b32 m0, s56
        s_mov_b32 s57, 16384
        """)
        window(b, 20, 38, 128 * 1024)
        for k in range(4):
            b(f"v_mov_b32 v{VD+k}, v1")

    slots_off = f"s_mov_b32 s56, {OOB}\ns_mov_b32 s57, 0\ns_mov_b32 s40, 0\ns_mov_b32 m0, {LOFF}"
    b(f"""
    s_lshr_b32 s37, s{SW}, 1
    s_lshl_b32 s34, s{SJ}, 1
    s_add_u32 s34, s34, s37
    s_and_b32 s35, s{SW}, 1
    s_mul_i32 s38, s37, 4608
    s_add_u32 s38, s38, {QX}
    s_mul_i32 s39, s35, 2304
    s_add_u32 s40, s38, s39
    s_sub_u32 s41, s38, s39
    v_and_b32 v4, 31, v0
    v_bfe_u32 v5, v0, 5, 1
    v_lshlrev_b32 v6, 2, v4
    v_add_u32 v8, s40, v1
    v_add_u32 v9, s41, v1
    v_add_u32 v12, s40, v6
    v_add_u32 v13, s41, v6
    v_cmp_eq_u32 s[50:51], 0, v5
    s_mul_i32 s38, s35, 1536
    s_mul_i32 s39, s37, 384
    s_add_u32 s38, s38, s39
    s_add_u32 s38, s38, {TIM+128}
    v_add_u32 v15, s38, v6
    s_mul_i32 s39, s37, {REC}
    s_waitcnt lgkmcnt(0)
    s_barrier
    ds_read_b128 {km(0)}, v8 offset:9216
    ds_read_b32 v{KT}, v15
    """)
    for t in range(4):
        b(f"ds_read_b128 {qm(t)}, v{8 + t // 2} offset:{1152*t}")
        b(f"ds_read_b32 v{QT+2*t}, v{12 + t // 2} offset:{1152*t+1024}")
    b(f"""
    s_mul_i32 s38, s{SJ}, {KVJ}
    s_add_u32 s38, s38, s39
    s_mul_i32 s39, s35, {64*REC}
    s_add_u32 s38, s38, s39
    s_add_u32 s38, s38, s{SL}
    s_add_u32 s38, s38, {KV}
    s_mov_b32 s49, 0x07060302
    s_mov_b32 s47, 1
    s_mov_b32 s3, 0
    v_mov_b32 v{KT+1}, 0x3f803f80
    s_waitcnt vmcnt(5) lgkmcnt(0)
    """)
    window(b, 16, 38, 63 * REC)
    for t in range(4):
        b(f"v_cndmask_b32 v{QT+2*t}, 0, v{QT+2*t}, s[50:51]")
    b("a_max:")
    for t in range(4):
        b(f"v_mov_b32 v{QT+2*t+1}, 0\nv_mov_b32 v{MX+t}, 0xff800000")
    b("s_mov_b32 s46, 0\ns_cmp_eq_u32 s3, 0\ns_cbranch_scc1 a_maxbody\na_maxloop:")
    b("\n".join(rec_loads(0)[:2]))
    b(f"s_add_u32 s46, s46, {2*REC}\ns_waitcnt vmcnt(0)\na_maxbody:")
    for t in range(4):
        b(m8(sb(t), 0, t))
        b(m16(sb(t), 0, t))
    b("s_cmp_lg_u32 s3, 0\ns_nop 3\ns_cbranch_scc1 q_sig")
    stamp(b, 5)
    signal(b, "q", C_KV, SJ)
    stamp(b, 6)
    for t in range(4):
        for i in range(8):
            b(f"v_max3_f32 v{MX+t}, v{sb(t)+2*i}, v{sb(t)+2*i+1}, v{MX+t}")
    b("s_sub_u32 s47, s47, 1\ns_cmp_lg_u32 s47, 0\ns_cbranch_scc1 a_maxloop")
    for i in range(64):
        b(f"v_mov_b32 v{O+i}, 0")
    b("s_cmp_lg_u32 s3, 0\ns_cbranch_scc1 a_go")
    wo_base(b, 0, 12)
    pb = B()
    pb(f"""
    v_lshlrev_b32 v8, 8, v5
    v_lshl_add_u32 v8, v4, 4, v8
    v_add_u32 v8, 1024, v8
    v_lshlrev_b32 v9, 5, v5
    v_lshl_add_u32 v9, v4, 4, v9
    v_add_u32 v9, {2048-256}, v9
    v_mov_b32 v12, {OOB}
    v_mov_b32 v13, 2304
    v_and_b32 v14, 27, v4
    v_cmp_eq_u32 vcc, 18, v14
    v_cmp_gt_u32 s[60:61], 18, v4
    v_cmp_gt_u32 s[36:37], 16, v4
    v_cndmask_b32 v13, v12, v13, vcc
    v_cndmask_b32 v14, v13, v9, s[60:61]
    v_cndmask_b32 v{AV}, v14, v8, s[36:37]
    v_add_u32 v8, 512, v8
    v_add_u32 v9, 64, v9
    v_cndmask_b32 v14, v13, v9, s[60:61]
    v_cndmask_b32 v{AV+1}, v14, v8, s[36:37]
    v_mov_b32 v{IDX}, 0xdddddddd
    v_bfe_u32 v8, v4, 2, 1
    v_lshrrev_b32 v9, 3, v4
    v_lshlrev_b32 v9, 2, v9
    v_lshl_add_u32 v8, v8, 4, v9
    v_and_b32 v9, 3, v4
    v_add_u32 v8, v8, v9
    v_lshlrev_b32 v{AT}, 2, v8
    v_lshlrev_b32 v8, 4, v8
    v_lshl_add_u32 v{AK}, v5, 9, v8
    v_lshlrev_b32 v13, 2, v4
    v_lshrrev_b32 v{OM}, 4, v4
    v_lshlrev_b32 v{OM}, 14, v{OM}
    v_and_b32 v8, 15, v4
    v_lshl_add_u32 v{OM}, v8, 4, v{OM}
    v_and_b32 v8, 35, v0
    v_cmp_eq_u32 vcc, 0, v8
    v_lshl_add_u32 v{OM}, v5, 8, v{OM}
    s_lshl_b32 s42, s{SI}, 1
    v_cndmask_b32 v{OT}, v12, v13, vcc
    s_add_u32 s42, s42, 1
    s_sub_u32 s42, s42, s35
    s_mul_i32 s42, s42, 73728
    s_add_u32 s42, s42, s{SL}
    s_add_u32 s42, s42, {OB}
    s_lshl_b32 s43, s34, 9
    s_add_u32 s43, s43, s42
    s_lshl_b32 s44, s34, 7
    s_add_u32 s42, s42, s44
    s_add_u32 s42, s42, 32768
    s_mul_i32 s44, s{SW}, 6144
    s_xor_b32 s45, s{SW}, 1
    s_mul_i32 s45, s45, 6144
    s_add_u32 s44, s44, {QX}
    s_add_u32 s45, s45, {QX}
    v_add_u32 v{MW}, s44, v1
    v_add_u32 v{MR}, s45, v1
    """)
    for k in range(1, 4):
        pb(f"v_mov_b32 v{KT+2*k+1}, 0x3f803f80")
    for i in range(8):
        pb(f"v_accvgpr_write_b32 a{VF+24+i}, 0")
    lines, lds = [x.strip() for x in pb.lines], wo_loads(0, 12)
    for i, x in enumerate(lines):
        if i % 5 == 0 and lds:
            b(lds.pop(0))
        b(x)
    assert not lds
    b(f"s_mov_b32 s40, 16384\ns_cmp_eq_u32 s{SL}, 0\ns_cbranch_scc1 a_jobs\ns_mov_b32 s32, 4")
    wo_mode(b, 0)
    b("a_init:")
    side = B()
    side("a_jobs:")
    layer0_jobs(side, ONE, SM, PF, PT, AF)
    side("s_branch a_init")
    stamp(b, 7)
    poll(b, "a", C_KV, SJ, 16, True)
    stamp(b, 8)
    b("a_go:\ns_mov_b32 s46, 0")
    for k in range(3):
        b("\n".join(rec_loads(k)))
        if k < 2:
            b(f"s_add_u32 s46, s46, {2*REC}")
    slot = lambda k: f"buffer_load_dwordx4 v{VD+k}, s[20:23], s56 offen" + (f" offset:{1024*k}" if k else "") + " lds"
    b(f"""
    s_mov_b32 s47, 8
    s_cmp_lg_u32 s32, 0
    s_cbranch_scc1 a_nopre
    s_mov_b32 s47, 4
    s_lshl_b32 s38, s{SW}, 1
    s_add_u32 s38, s38, 64
    s_lshl_b32 m0, s38, 10
    s_mul_i32 s38, s38, s41
    s_add_u32 s38, s38, s56
    buffer_load_dwordx4 v{VD}, s[20:23], s38 offen lds
    buffer_load_dwordx4 v{VD+1}, s[20:23], s38 offen offset:1024 lds
    s_lshl_b32 s38, s{SW}, 2
    s_sub_u32 s38, s38, 16
    s_lshl_b32 m0, s38, 10
    s_mul_i32 s38, s38, s41
    s_add_u32 s56, s56, s38
a_nopre:
    """)
    x0 = sb(2)
    for t in range(4):
        b(f"""
        v_mov_b32 v{x0}, v{MX+t}
        v_mov_b32 v{sb(3)+4*t}, 0
        v_mov_b32 v{sb(3)+4*t+1}, 0
        v_permlane32_swap_b32 v{MX+t}, v{x0}
        v_mov_b32 v{sb(3)+4*t+2}, 0
        v_max_f32 v{MX+t}, v{MX+t}, v{x0}
        v_sub_f32 v{x0}, 0, v{MX+t}
        v_and_b32 v{x0+1}, 0xffff0000, v{x0}
        v_sub_f32 v{x0+2}, v{x0}, v{x0+1}
        v_and_b32 v{x0+3}, 0xffff0000, v{x0+2}
        v_sub_f32 v{x0+2}, v{x0+2}, v{x0+3}
        v_perm_b32 v{x0+1}, v{x0+3}, v{x0+1}, s49
        v_lshrrev_b32 v{x0+2}, 16, v{x0+2}
        v_cndmask_b32 v{QT+2*t+1}, v{x0+2}, v{x0+1}, s[50:51]
        v_mov_b32 v{sb(3)+4*t+3}, 0
        """)
    b("s_waitcnt vmcnt(@k0)")
    for t in range(2):
        b(m8(sb(t), 0, t))
        b(m16(sb(t), 0, t))
    b("s_nop 8")
    stamp(b, 9)
    b(".p2align 3\na_loop:")
    for n in range(16):
        k, t = divmod(n, 4)
        e = [f"v_exp_f32 v{sb(n)+i}, v{sb(n)+i}" for i in range(16)]
        qk, qtile = (n + 2) // 4, (n + 2) % 4
        pk, pt = (n - 1) // 4, (n - 1) % 4
        b(m8(sb(n + 2), qk, qtile))
        b("\n".join(e[0:4]))
        b(m16(sb(n + 2), qk, qtile))
        if t == 1:
            b(f"s_waitcnt vmcnt(@r{k})")
        if t == 0:
            b(f"s_add_u32 s46, s46, {2*REC}")
        if n == 14:
            b("s_sub_u32 s47, s47, 1")
        if n == 15:
            b("s_cmp_lg_u32 s47, 0")
        b("\n".join(e[4:8]))
        b(smf(pt, pk, 0, sb(n - 1)))
        b(rec_loads(k + 3)[t])
        b("\n".join(e[8:12]))
        b(smf(pt, pk, 1, sb(n - 1)))
        if t == 1:
            b(f"s_waitcnt vmcnt(@k{(k+1)%4})")
        if t == 3:
            b(slot(k))
        if n == 0:
            b("s_add_u32 s56, s56, s57\ns_add_u32 m0, m0, s40")
        b("\n".join(e[12:16]))
    b("s_cbranch_scc1 a_loop\ns_cmp_lt_u32 s32, 4\ns_cbranch_scc1 a_break")
    stamp(b, 10)
    c = side
    c("a_break:")
    bstamp(c, 0)
    c("s_cmp_lg_u32 s32, 0\ns_cbranch_scc1 a_brk1")
    wo_mode(c, 80 * 1024)
    c("s_branch a_resume\na_brk1:\ns_cmp_lg_u32 s32, 1\ns_cbranch_scc1 a_brk2\ns_waitcnt lgkmcnt(0)\ns_barrier")
    for i in range(25):
        if i < 18:
            for h in range(2):
                c(f"ds_read_b64_tr_b16 {a(AF+4*i+2*h,2)}, v{TR+h} offset:{4096*(i%9)}")
            if i in (8, 17):
                st = 36864 if i == 8 else -36864
                c(f"v_add_u32 v{TR}, {st}, v{TR}\nv_add_u32 v{TR+1}, {st}, v{TR+1}")
        if 6 <= i < 24:
            k = i - 6
            c(f"s_waitcnt lgkmcnt({2*min(6, 17-k)})")
            c(mf16(v(SM, 4), v(ONE, 4), a(AF + 4 * k, 4), "0" if k == 0 else v(SM, 4)))
    prd = lambda i: "\n".join(f"ds_read_b64_tr_b16 {v(PF+4*i+2*h,2)}, v{TR+h} offset:{4096*i}" for h in range(2))
    for i in range(6):
        c(prd(i))
    c(f"""
    v_mul_f32 v{MEAN}, s8, v{SM}
a_brk2:
    v_add_u32 v{TR}, 24576, v{TR}
    v_add_u32 v{TR+1}, 24576, v{TR+1}
    s_cmp_eq_u32 s32, 2
    s_cselect_b32 s38, s9, 0
    s_waitcnt lgkmcnt(0)
    """)
    centre(c, PF, 6, PT, MEAN, lambda k: f"buffer_store_dwordx4 {v(PF+4*k,4)}, v1, s[12:15], s58 offen sc1\ns_add_u32 s58, s58, s59"
           + ("\ns_add_u32 s58, s58, s38" if k == 2 else "") + ("\n" + prd(k - 1) if k else ""))
    c(prd(5))
    c(f"s_cmp_lg_u32 s32, 3\ns_cbranch_scc1 a_resume\n{slots_off}")
    c("a_resume:")
    bstamp(c, 1)
    c("s_add_u32 s32, s32, 1\ns_mov_b32 s47, 1\ns_branch a_loop")
    c(f"a_redo:\ns_mov_b32 s3, 1\ns_mov_b32 s47, 32\n{slots_off}\ns_waitcnt vmcnt(0)\ns_branch a_max")
    b(smf(3, 3, 0, sb(3)))
    b("s_waitcnt lgkmcnt(0)")
    b(f"v_mov_b32 v{ob(0)+11}, v{MX}\nv_mov_b32 v{ob(1)+11}, v{MX+1}")
    b(smf(3, 3, 1, sb(3)))
    for t in range(2):
        for i in range(3):
            b(f"ds_write_b128 v{MW}, {v(ob(t)+4*i,4)} offset:{3072*t+1024*i}")
    b(f"""
    v_max3_f32 v8, v{ob(0)+10}, v{ob(1)+10}, v{ob(2)+10}
    v_mov_b32 v9, 0x53800000
    v_cmp_u_f32 s[52:53], v{ob(0)+10}, v{ob(1)+10}
    s_and_b32 s38, s2, 7
    s_lshl_b32 s38, s38, 7
    s_add_u32 s38, s38, s{SC}
    v_max_f32 v8, v{ob(3)+10}, v8
    v_cmp_u_f32 s[54:55], v{ob(2)+10}, v{ob(3)+10}
    v_cmp_nlt_f32 vcc, v8, v9
    s_add_u32 s38, s38, {C_PREP}
    s_or_b64 s[52:53], s[52:53], s[54:55]
    s_or_b64 vcc, vcc, s[52:53]
    s_cmp_eq_u32 s3, 0
    s_cselect_b64 vcc, vcc, 0
    s_waitcnt lgkmcnt(0)
    s_cbranch_vccnz a_redo
    s_barrier
    """)
    for t in range(2):
        for i in (2, 0, 1):
            b(f"ds_read_b128 {v(sb(t)+4*i,4)}, v{MR} offset:{3072*t+1024*i}")
    for t in range(2):
        P, o0, pk = sb(t), ob(2 + t), QM + 8 * t
        b(f"""
        s_waitcnt lgkmcnt({5 - 3*t})
        v_max_f32 v8, v{MX+2+t}, v{P+11}
        v_sub_f32 v9, v{MX+2+t}, v8
        v_sub_f32 v8, v{P+11}, v8
        v_exp_f32 v9, v9
        v_exp_f32 v8, v8
        v_mul_f32 v12, v9, v{o0+10}
        v_fmac_f32 v12, v8, v{P+10}
        v_rcp_f32 v12, v12
        s_waitcnt lgkmcnt({3 - 3*t})
        v_pk_mul_f32 v[8:9], v[8:9], v[12:13] op_sel_hi:[1:0]
        """)
        for i in (8, 0, 2, 4, 6):
            b(f"v_pk_mul_f32 {v(o0+i,2)}, v[8:9], {v(o0+i,2)} op_sel:[1:0] op_sel_hi:[1:1]")
        for i in (8, 0, 2, 4, 6):
            b(f"v_pk_fma_f32 {v(o0+i,2)}, v[8:9], {v(P+i,2)}, {v(o0+i,2)} op_sel_hi:[0:1:1]")
        for i in (4, 0, 1, 2, 3):
            b(f"v_cvt_pk_bf16_f32 v{pk+i}, v{o0+2*i}, v{o0+2*i+1}")
        b(f"buffer_store_dwordx4 {v(pk,4)}, v{OM}, s[12:15], s43 offen sc1")
        for i in range(1, 4):
            b(f"v_mov_b32 v{pk+4+i}, v{pk+4} quad_perm:[{i}:{i}:{i}:{i}] row_mask:0xf bank_mask:0xf")
        b(f"buffer_store_dwordx4 {v(pk+4,4)}, v{OT}, s[12:15], s42 offen sc1")
        if t == 0:
            b("s_add_u32 s42, s42, 36864\ns_add_u32 s43, s43, 36864")
    stamp(b, 11)
    signal(b, "a", C_O, SI, extra=38)
    stamp(b, 12)
    return side.text()


def res_swap(b):
    for n in range(3):
        for k in range(4):
            b(f"v_permlane16_swap_b32 v{RES+8*n+k}, v{RES+8*n+4+k}")


def tile_base(b, dst, tmp):
    b(f"""
    s_and_b32 s{dst}, s{SJ}, 3
    s_mul_i32 s{dst}, s{dst}, 3
    s_add_u32 s{dst}, s{dst}, s{SW}
    s_mul_i32 s{dst}, s{dst}, 1536
    s_mul_i32 s{tmp}, s{STJ}, 36864
    s_add_u32 s{dst}, s{dst}, s{tmp}
    """)


def phase_o(b):
    PK, OF = 16, 56
    NB = int(OPT.get('nb', 80))
    b(f"""
    s_cmp_eq_u32 s{SW}, 3
    s_cbranch_scc1 o_nowo
    s_lshl_b32 s38, s{SW}, 14
    s_add_u32 s38, s38, {80*1024}
    v_add_u32 v6, s38, v1
    s_mul_i32 s38, s{SW}, {26*1024}
    v_add_u32 v7, s38, v1
    s_cmp_eq_u32 s{SL}, 0
    s_cbranch_scc1 o_first
    """)
    side = B()
    side("o_first:")
    wo_base(side, 36, 26)
    side("\n".join(wo_loads(12, 38)))
    for k in range(12):
        side(f"v_lshlrev_b32 v{RES+2*k}, 16, v{RES+12+k}\nv_and_b32 v{RES+2*k+1}, 0xffff0000, v{RES+12+k}")
    side("s_branch o_rest")
    for n in range(12, 38):
        b(f"ds_read_b128 {a(4*n,4)}, v7 offset:{1024*(n-12)}")
        if n % 8 == 7:
            b("s_waitcnt lgkmcnt(4)")
    b("s_waitcnt lgkmcnt(4)\no_rest:")
    for n in range(38, 54):
        b(f"ds_read_b128 {a(4*n,4)}, v6 offset:{1024*(n-38)}")
        if n == 45:
            b("s_waitcnt lgkmcnt(4)")
    b(f"o_nowo:\ns_mul_i32 s38, s{SJ}, {WFS}\ns_add_u32 s38, s38, {WF}")
    window(b, 16, 38, WFS)
    b(f"s_cmp_eq_u32 s{SL}, 0\ns_cselect_b32 s18, s18, {27*CH}")
    unit_offset(b, 5, 6, 7)
    stats_target(b)
    res_swap(b)
    tile_base(b, 34, 35)
    b(f"""
    s_lshl_b32 s38, s{SW}, 10
    s_add_u32 s37, s35, s38
    s_add_u32 s37, s37, s{SL}
    s_add_u32 s37, s37, {OB}
    s_add_u32 s38, s38, {3*CH}
    v_add_u32 v6, {3*CH}, v1
    s_add_u32 s36, s34, s{SL}
    s_add_u32 s36, s36, {X1}
    v_bfe_u32 v7, v0, 4, 2
    v_and_b32 v8, 15, v0
    v_lshlrev_b32 v7, 9, v7
    v_lshl_add_u32 v7, v8, 2, v7
    v_add_u32 v7, {3*CH+32768}, v7
    v_add_u32 v8, 2048, v7
    s_waitcnt lgkmcnt(0)
    """)
    stamp(b, 13)
    poll(b, "o", C_O, SI, 16, True)
    stamp(b, 14)
    for i in range(9):
        off = 4096 * (i // 2) + 16384 * (i % 2) if i < 8 else 32768
        b(f"s_add_u32 m0, s38, {off}\ns_add_u32 s39, s37, {off}\nbuffer_load_dwordx4 v1, s[12:15], s39 offen sc1 lds")
    b(f"s_waitcnt vmcnt(5)\ns_barrier")
    stamp(b, 15)
    b(f"s_cmp_eq_u32 s{SW}, 3\ns_cbranch_scc1 o_ring")
    of = lambda ks, rt: OF + (ks % 3) * 8 + rt * 4

    def rd(ks):
        if ks < 16:
            return [f"ds_read_b128 {v(of(ks,rt),4)}, v6 offset:{rt*16384+ks*1024}" for rt in range(2)]
        return [f"ds_read2_b32 {v(of(ks,rt)+2*k,2)}, v{7+ks-16} offset0:{16*rt+64*k} offset1:{16*rt+64*k+32}"
                for rt in range(2) for k in range(2)]

    for ks in range(2):
        b("\n".join(rd(ks)))
    for ks in range(18):
        mains = [mf16(v(RES + 8 * n + 4 * rt, 4), a((n * 18 + ks) * 4, 4), v(of(ks, rt), 4), v(RES + 8 * n + 4 * rt, 4))
                 for n in range(3) for rt in range(2)]
        pins = list(enumerate(rd(ks + 2))) if ks + 2 < 18 else []
        if ks == 5:
            pins += [(4, "s_waitcnt vmcnt(0)"), (4, "s_barrier")]
        if ks == 0:
            b("s_waitcnt lgkmcnt(2)")
        if ks < 17:
            pins.append((5, f"s_waitcnt lgkmcnt({len(rd(ks + 2)) if ks < 16 else 0})"))
        b(sched2(mains, pins, [])[0])
    b("s_nop 3")
    for n in range(3):
        for k in range(4):
            b(f"v_permlane16_swap_b32 v{RES+8*n+k}, v{RES+8*n+4+k}")
        pack4(b, PK + 4 * n, RES + 8 * n, RES + 8 * n + 4)
        b(f"buffer_store_dwordx4 {v(PK+4*n,4)}, v5, s[12:15], s36 offen offset:{512*n} sc1")
    stats_publish(b, S1)
    stamp(b, 16)
    signal(b, "o", C_X1, STJ, wave=0)
    stamp(b, 17)
    c = side
    c(f"""
o_ring:
    s_waitcnt vmcnt(0)
    s_barrier
    s_cmp_lg_u32 s{SL}, 0
    s_cbranch_scc1 o_ready
    """)
    if int(OPT.get("pf2", 0)):
        c("""
        s_getpc_b64 s[38:39]
o_pc:
        s_sub_u32 s38, s38, o_pc-o_sig
        s_subb_u32 s39, s39, 0
        s_bfe_u32 s40, s2, 0x50003
        s_lshl_b32 s40, s40, 10
        v_and_b32 v6, 7, v0
        v_lshl_add_u32 v6, v6, 7, s40
        v_min_u32 v6, main_code_end-o_sig-4, v6
        v_mov_b32 v7, s39
        v_add_co_u32 v6, vcc, s38, v6
        s_nop 1
        v_addc_co_u32 v7, vcc, 0, v7, vcc
        global_load_dword v8, v[6:7], off
        """)
    c(f"""
    v_and_b32 v6, 7, v0
    v_lshlrev_b32 v6, 7, v6
    s_add_u32 s60, s{SC}, {C_PREP}
    s_mov_b32 s61, 0x40000
o_prep:
    buffer_load_dword v4, v6, s[12:15], s60 offen sc1
    s_sub_u32 s61, s61, 1
    s_waitcnt vmcnt(0)
    v_cmp_gt_u32 vcc, 32, v4
    s_cbranch_scc1 o_ready
    s_cbranch_vccnz o_prep
o_ready:
    s_mov_b32 m0, 0
    s_mov_b32 s43, 0
o_fill:
    """)
    dma_run(c, 4, 16, 43, " sc1")
    c(f"""
    s_add_u32 m0, m0, 4096
    s_add_u32 s43, s43, 4096
    s_waitcnt vmcnt({int(OPT.get('th', 28))})
    s_cmp_lt_u32 s43, {NB*1024}
    s_cbranch_scc1 o_fill
    s_branch o_bar
    """)
    return c.text()


def phase_f(b):
    VS, NB = int(OPT.get("vs", 66)), int(OPT.get('nb', 80))
    LA, LB, DV, C1, C2, VP, VFL = 5, 6, 7, 10, 12, 14, 15
    ACC1, TMP, STG, FL, VH, ACC2, ST, ONE, UO, LO = 16, 48, 64, 72, 80, 84, 84, 100, 156, 157
    RING, NR, PD, HR = 144, 12, 8, 192
    xb = lambda ks, rt: a((ks * 2 + rt) * 4, 4)
    ring = lambda i: a(RING + 4 * (i % NR), 4)

    def hr(c, m, rt):
        u, o = c - 18, (m * 2 + rt) * 4
        if u in (2, 3):
            return v(160 + 32 * (u - 2) + o, 4)
        return a({0: HR, 1: HR + 32, 8: HR}.get(u, 32 * (u - 4)) + o, 4)

    P0 = int(OPT.get("p0", 11))
    SOFT, SG = int(OPT.get('sb', 1)), 1
    SFL, SFC, SFW, SFR = 224, 228, 229, 230
    b(f"""
    s_mul_i32 s43, s{SW}, {(144-NB)//4*1024}
    s_add_u32 s43, s43, {NB*1024}
    s_mov_b32 m0, s43
    s_mul_i32 s39, s{STW}, 36864
    """)
    pb = B()
    unit_offset(pb, UO, TMP, TMP + 1)
    pb(f"""
    s_mul_i32 s44, s{SW}, 9216
    v_add_u32 v{DV}, s44, v1
    s_lshl_b32 s45, s44, 1
    s_add_u32 s45, s45, {2*CH}
    v_add_u32 v{DV+1}, 4096, v{DV}
    v_add_u32 v{DV+2}, 8192, v{DV}
    s_mul_i32 s46, s{STW}, {16*18432}
    s_add_u32 s46, s46, s{SL}
    s_add_u32 s46, s46, {HB}
    s_and_b32 s35, s{SJ}, 12
    """)
    for m in range(4):
        pb(f"""
        s_add_u32 s34, s{SJ}, {m}
        s_and_b32 s34, s34, 3
        s_add_u32 s34, s34, s35
        s_mul_i32 s34, s34, 18432
        s_add_u32 s34, s34, s46
        v_add_u32 v{VH+m}, s34, v1
        """)
    pb(f"""
    s_mul_i32 s34, s{SJ}, 18432
    s_add_u32 s46, s46, s34
    s_lshl_b32 s41, s{STJ}, 7
    s_add_u32 s41, s41, s{SC}
    s_add_u32 s41, s41, {C_H}
    s_and_b32 s37, s{SJ}, 3
    s_lshl_b32 s34, s37, 2
    v_mov_b32 v{VFL}, s34
    v_mov_b32 v{VP}, {OOB}
    v_cmp_eq_u32 vcc, 0, v0
    s_mov_b32 s47, {P0//2}
    s_lshr_b32 s36, s{SJ}, 2
    v_cndmask_b32 v{VFL}, v{VP}, v{VFL}, vcc
    v_mov_b32 v{VP}, 1
    s_mul_i32 s34, s36, {SZX}
    s_mul_i32 s35, s{STW}, 36864
    s_add_u32 s34, s34, s35
    s_mul_i32 s35, s37, 4608
    s_add_u32 s34, s34, s35
    s_add_u32 s34, s34, s{SL}
    s_add_u32 s34, s34, {PART}
    s_lshl_b32 s35, s{SI}, 2
    s_add_u32 s37, s37, s35
    s_cmp_eq_u32 s36, s{SW}
    s_cselect_b32 s34, {OOB}, s34
    s_add_u32 s35, s34, 4096
    v_add_u32 v{LO}, {4*CH}, v1
    v_mov_b32 v{SFC}, 0
    v_and_b32 v{FL+2}, 3, v0
    v_lshlrev_b32 v{FL+2}, 2, v{FL+2}
    v_add_u32 v{SFR}, {4*CH+12288}, v{FL+2}
    s_lshl_b32 s38, s{SW}, 2
    s_add_u32 s38, s38, {4*CH+12288}
    v_mov_b32 v{SFW}, s38
    ds_write_b32 v{SFW}, v{SFC}
    s_mul_i32 s38, s{STW}, 3072
    s_add_u32 s38, s38, s{SL}
    s_add_u32 s38, s38, {S1}
    v_add_u32 v{LA}, {2*CH}, v1
    v_add_u32 v{LB}, {CH}, v1
    """)
    db = B()
    dma_run(db, (144 - NB) // 4, 16, 43, " sc1")
    dl, sl = [x.strip() for x in db.lines], [x.strip() for x in pb.lines]
    per = -(-len(sl) // ((144 - NB) // 4))
    for x in dl:
        b(x)
        if "buffer" in x:
            n = per + ("s_cmp" in "".join(sl[per-1:per]))
            b("\n".join(sl[:n]))
            sl = sl[n:]
    b("\n".join(sl + [f"s_mov_b32 s43, {4*CH}"]))
    b(f"s_add_u32 s39, s39, s{SL}\ns_add_u32 s39, s39, {X1}\ns_add_u32 s40, s39, 18432")
    rdf = lambda gi, i, base: f"ds_read_b128 {ring(gi)}, v{base} offset:{1024*i}"
    acc1 = lambda st, gu, rt: ACC1 + 16 * st + (gu * 2 + rt) * 4

    def rd01(j):
        if j >= 72:
            return rdf(j, j - 72, LA)
        return rdf(j, 2 * (j // 4) + j % 2, 1 if j % 4 < 2 else LB)

    stamp(b, 18)
    b(f"""
    s_lshl_b32 s60, s{STW}, 7
    s_add_u32 s60, s60, s{SC}
    s_add_u32 s60, s60, {C_X1}
    buffer_load_dword v4, v2, s[12:15], s60 offen sc1
    s_waitcnt vmcnt(1) lgkmcnt(0)
    s_barrier
    """)
    for j in range(PD):
        b(rd01(j))
    b("s_waitcnt vmcnt(0)\nv_cmp_gt_u32 vcc, 4, v4\ns_nop 0\ns_cbranch_vccz f_ok")
    poll(b, "f", C_X1, STW, 4, False)
    stamp(b, 19)

    def xload(ks, rt):
        off = f" offset:{1024*(ks%4)}" if ks % 4 else ""
        t = f"buffer_load_dwordx4 {xb(ks,rt)}, v1, s[12:15], s{39+rt} offen{off} sc1 ;#x{ks}"
        if ks % 4 == 3:
            t += f"\ns_add_u32 s{39+rt}, s{39+rt}, 4096"
        return t

    XA = int(OPT.get("xa", 4))
    for ks in range(XA):
        for rt in range(2):
            b(xload(ks, rt))
    mains, pinned = [], []
    for ks in range(18):
        g0 = 8 * ks
        for st in range(2):
            for gu in range(2):
                for rt in range(2):
                    d = v(acc1(st, gu, rt), 4)
                    mains.append(mf16(d, ring(4 * ks + 2 * st + gu), xb(ks, rt), "0" if ks == 0 else d))
        pinned += [(g0 + 2 * k, rd01(4 * ks + k + PD)) for k in range(4)]
        pinned.append((g0 + 7, f"s_waitcnt vmcnt(@x{ks+1}) lgkmcnt({PD-4})" if ks < 17 else "s_barrier"))
        if ks + XA < 18:
            for rt in range(2):
                for k, x in enumerate(xload(ks + XA, rt).split("\n")):
                    pinned.append((g0 + 1 + 4 * rt + k, x))
        if ks in (1, 3, 5):
            pinned.append((g0 + 3, stats_loads(ST, 38)[ks // 2]))
    NL = fbits(-math.log2(math.e))
    ops = chain(stats_reduce(ST, ST, fbits(1e-5)) + [(f"v_rsq_f32 v{C1}, v{ST}", 1), f"v_rsq_f32 v{C1+1}, v{ST+1}", f"v_mov_b32 v{C2}, v{ST}", f"v_mov_b32 v{C2+1}, v{ST+1}",
                                    f"v_mul_f32 v{C1}, {NL}, v{C1}", f"v_mul_f32 v{C1+1}, {NL}, v{C1+1}"], earliest=8 * (6 + XA))
    b(f"s_waitcnt vmcnt(@x0) lgkmcnt({PD-4})")
    b(sched2(mains, pinned, ops)[0])
    b("s_nop 1")

    def dma(par, others=(), gate=None, sin=False):
        out, others = [], list(others)
        if sin:
            for _ in range(min(2, len(others))):
                out += [(x, 0) for x in others.pop(0)]
        per = len(others) / 9
        for i in range(9):
            if i % 4 == 0:
                out.append((f"s_add_u32 m0, s44, {4096*(i//4) + (0 if par else CH)}", 0))
            ld = f"buffer_load_dwordx4 v{DV+i//4}, s[16:19], s43 offen" + (f" offset:{1024*(i%4)}" if i % 4 else "") + f" sc1 lds ;#d{par}"
            out.append((ld, 1 if i % 4 == 0 else 0))
            take = len(others) if i == 7 else min(len(others), int((i + 1) * per + 0.999) - int(i * per + 0.999))
            for _ in range(take if i < 8 else 0):
                out += [(x, 0) for x in others.pop(0)]
        out.append((f"s_add_u32 s43, s43, {CH}", 0))
        if par == 0:
            out.append(("s_sub_u32 s44, s45, s44", 0))
        ops = chain(out)
        if gate:
            for o in ops:
                if "s[12:15]" in o.text:
                    o.deps.append((gate, 0))
        return ops

    def swiglu(st, half):
        ops, last = [], []
        for k in range(8):
            rt, i = divmod(k, 4)
            g, u = acc1(st, 0, rt) + i, acc1(st, 1, rt) + i
            t, p = TMP + k, TMP + 8 + k
            c = chain([f"v_mul_f32 v{t}, v{C1+rt}, v{g}", f"v_exp_f32 v{t}, v{t}",
                       f"v_fma_f32 v{t}, v{t}, v{C2+rt}, v{C2+rt}", f"v_rcp_f32 v{t}, v{t}"], earliest=3, dist=1)
            m = Op(f"v_mul_f32 v{p}, v{g}, v{u}", earliest=4)
            f = Op(f"v_mul_f32 v{p}, v{p}, v{t}", [(c[-1], 1), (m, 0)])
            ops += c + [m, f]
            for o in c + [m, f]:
                o.bias = 3 * (1 - rt)
            last.append(f)
            if k % 2:
                cv = Op(f"v_cvt_pk_bf16_f32 v{STG+4*rt+2*half+i//2}, v{p-1}, v{p}", [(last[-2], 0), (f, 0)])
                ops.append(cv)
                if half and i == 3:
                    st_ = Op(f"buffer_store_dwordx4 {v(STG+4*rt,4)}, v1, s[12:15], s46 offen" + (" offset:1024" if rt else "") + " sc1",
                             [(cv, 0), (prevcv, 0)])
                    ops.append(st_)
                    if rt:
                        ops.append(Op("s_add_u32 s46, s46, 2048", [(st_, 0), (prevst, 0)]))
                    prevst = st_
                prevcv = cv
        return ops

    stage = [[], [], [], [], [], [], []]
    for k in range(8):
        rt, i = divmod(k, 4)
        g, u, t, p = acc1(0, 0, rt) + i, acc1(0, 1, rt) + i, TMP + k, TMP + 8 + k
        for n, x in enumerate([f"v_mul_f32 v{t}, v{C1+rt}, v{g}", f"v_exp_f32 v{t}, v{t}", f"v_mul_f32 v{p}, v{g}, v{u}",
                               f"v_fma_f32 v{t}, v{t}, v{C2+rt}, v{C2+rt}", f"v_rcp_f32 v{t}, v{t}", f"v_mul_f32 v{p}, v{p}, v{t}"]):
            stage[n].append(x)
        if k % 2:
            stage[6].append(f"v_cvt_pk_bf16_f32 v{STG+4*rt+i//2}, v{p-1}, v{p}")
    flat, dm = [x for st in stage for x in st], [o.text for o in dma(1)]
    for i, x in enumerate(flat):
        if i % 4 == 0 and dm:
            b(dm.pop(0))
        b(x)
    assert not dm
    stamp(b, 20)
    b(f"s_waitcnt lgkmcnt({PD-4})\ns_branch f_p1b")

    progress = lambda: chain([f"v_add_u32 v{VP}, 1, v{VP}", f"buffer_store_dword v{VP}, v{VFL}, s[12:15], s41 offen sc1"])
    slow = []
    flag_load = lambda par: [[f"buffer_load_dword v{FL+par}, v{FL+2}, s[12:15], s41 offen sc1"]]

    def guard(tag, load, wait, cmp, earliest):
        slow.append(f"""
{tag}_spin:
        s_mov_b32 s61, 0x80000
{tag}_again:
        {load}
        s_sub_u32 s61, s61, 1
        s_waitcnt {wait}(0)
        {cmp}
        s_cbranch_scc1 {tag}_back
        s_cbranch_vccnz {tag}_again
        s_branch {tag}_back
        """)
        c = chain([cmp, (f"s_cbranch_vccnz {tag}_spin\n{tag}_back:", 2)], earliest=earliest)
        for o in c:
            o.urgent = True
        return c

    check = lambda par, tag, need: guard(tag, flag_load(par)[0][0], "vmcnt", f"v_cmp_gt_u32 vcc, {need}, v{FL+par}", 0)
    soft_read = f"ds_read_b32 v{SFL}, v{SFR}"
    soft_check = lambda: guard(f"fs{len(slow)}", soft_read, "lgkmcnt", f"v_cmp_gt_u32 vcc, v{SFC}, v{SFL}", SG + 6)

    def chunk(mains, par, extra, pins=(), order=None, nxt_order=None, last=False, endtag='', loads=(), gate=None, prog=False, sin=False, sout=False):
        cur, nxt = (LA, LB) if par == 0 else (LB, LA)
        order = order or list(range(36))
        nxt_order = nxt_order or list(range(36))
        pinned = list(pins)
        for i in range(36):
            j = i + PD
            if j < 36 or not last:
                pinned.append((2 * i, rdf(j, order[j] if j < 36 else nxt_order[j - 36], cur if j < 36 else nxt)))
            if i % 4 == 3 and not (last and i == 35):
                n = PD - 4 if not last else max(0, min(PD - 4, 36 - (i + 5)))
                vm = ""
                if sin and 2 * i + 1 == SG + 6:
                    n = 3
                if sout:
                    if i == 31:
                        vm = f"vmcnt(@d{1-par}) "
                    if i == 35:
                        n += 1
                elif i == 35:
                    vm = f"vmcnt(@d{1-par}{endtag}) "
                pinned.append((2 * i + 1, f"s_waitcnt {vm}lgkmcnt({n})"))
        if not last:
            pinned.append((40, f"v_xor_b32 v{nxt}, {2*CH}, v{nxt}"))
        st = [o for o in extra[1] if 'store' in o.text]
        rest = [o for o in extra[1] if 'store' not in o.text]
        dm, pr, sc = dma(par, loads, gate, sin), (progress() if prog else []), []
        if sin:
            sc = soft_check()
            if gate:
                sc[0].deps.append((gate, 0))
            pinned.append((SG, soft_read))
            for o in dm + pr:
                if " lds" in o.text or "store" in o.text:
                    o.deps.append((sc[-1], 0))
        if sout:
            pinned += [(62, f"v_add_u32 v{SFC}, 1, v{SFC}"), (65, f"ds_write_b32 v{SFW}, v{SFC}")]
        txt, over, lastgap = sched2(mains, pinned, extra[0] + sc + pr + st + dm + rest, vspan=VS, vstart=1)
        b(txt)
        if not last and not sout:
            b("s_barrier")
        return over, lastgap

    def p1_mains(st):
        return [mf16(v(acc1(st, gu, rt), 4), ring(2 * ks + gu), xb(ks, rt), "0" if ks == 0 else v(acc1(st, gu, rt), 4))
                for ks in range(18) for gu in range(2) for rt in range(2)]

    acc2 = lambda tl, rt: ACC2 + (tl * 2 + rt) * 4

    def p2_mains(c, first=False):
        return [mf16(v(acc2(tl, rt), 4), ring(9 * m + tl), hr(c, m, rt), "0" if first and m == 0 else v(acc2(tl, rt), 4))
                for m in range(4) for tl in range(9) for rt in range(2)]

    plan = {c: [] for c in range(P0, 27)}
    early = [(u, m, rt) for u in range(4) for m in range(4) for rt in range(2)]
    quota = {c: 0 for c in range(P0, 18)}
    for _ in early:
        c = min(quota, key=lambda c: (quota[c] + (0 if c % 2 else 1), c))
        quota[c] += 1
    for c in quota:
        plan[c], early = early[:quota[c]], early[quota[c]:]
    late = [(u, m, rt) for u in range(4, 8) for m in range(4) for rt in range(2)]
    L0, L1 = int(OPT.get("l0", 18)), int(OPT.get("l1", 24))
    for k, x in enumerate(late):
        plan[L0 + k * (L1 - L0) // len(late)].append(x)
    plan[24] += [(8, m, rt) for m in range(4) for rt in range(2)]
    need = {c: max([u for u, _, _ in plan[c]], default=-3) + 3 for c in plan}
    checks, seen = {}, 0
    for c in plan:
        if c % 2 == 0 and c - 2 < P0:
            continue
        want = max(need[c], need[c + 1] if c == P0 else 0)
        if want > seen:
            want = max([want] + [need[d] for d in plan if need[d] <= (c - 3) // 2])
            checks[c] = seen = want
    print("h plan", {c: len(x) for c, x in plan.items()}, "checks", checks, file=sys.stderr)

    def hstream(c):
        ld, cur = [], None
        for u, m, rt in plan[c]:
            off = 2048 * (u % 2) + 1024 * rt
            x = [f"buffer_load_dwordx4 {hr(18+u,m,rt)}, v{VH+m}, s[12:15], s47 offen" + (f" offset:{off}" if off else "") + f" sc1 ;#h{u}"]
            if u // 2 != cur:
                cur = u // 2
                x.insert(0, f"s_mov_b32 s47, {4096*cur}")
            ld.append(x)
        return ld

    over = []
    b(".p2align 3\nf_p1:")
    over.append(chunk(p1_mains(1), 1, ([], swiglu(0, 0)), loads=[[], [], [], [], []] + flag_load(1), prog=True, sin=SOFT, sout=SOFT))
    b("f_p1b:")
    over.append(chunk(p1_mains(0), 0, ([], swiglu(1, 1) + [Op("s_sub_u32 s47, s47, 1")]), sin=SOFT, sout=SOFT))
    b("s_cmp_lg_u32 s47, 0\ns_cbranch_scc1 f_p1")
    stamp(b, 21)
    tmaj = [9 * m + tl for tl in range(9) for m in range(4)]
    for c in range(P0, 26):
        ck = check(c % 2, f"f{c}", checks[c]) if c in checks else []
        gate = ck[-1] if ck else None
        front = ck
        loads = hstream(c) + (flag_load(c % 2) if c + 2 in checks else [])
        act = swiglu(1 - c % 2, 1 - c % 2) if c <= 18 else []
        over.append(chunk(p1_mains(c % 2) if c < 18 else p2_mains(c, c == 18), c % 2, (front, act),
                          endtag=f",h{c-17}" if c >= 17 else "", nxt_order=tmaj if c == 25 else None, loads=loads, gate=gate, prog=c % 2 and c <= 21, sin=SOFT and c == P0))
        if c in (17, 18, 24):
            stamp(b, {17: 22, 18: 23, 24: 24}[c])
    mains = [mf16(v(acc2(tl, rt), 4), ring(4 * tl + m), hr(26, m, rt), v(acc2(tl, rt), 4)) for tl in range(9) for m in range(4) for rt in range(2)]

    def out_tile(tl):
        r, p, q = ACC1 + 4 * tl, acc2(tl, 0), acc2(tl, 1)
        return [f"v_cvt_pk_bf16_f32 v{r}, v{p}, v{p+1}", f"v_cvt_pk_bf16_f32 v{r+1}, v{p+2}, v{p+3}",
                f"v_cvt_pk_bf16_f32 v{r+2}, v{q}, v{q+1}", f"v_cvt_pk_bf16_f32 v{r+3}, v{q+2}, v{q+3}",
                (f"v_permlane16_swap_b32 v{r}, v{r+2}", 1), (f"v_permlane16_swap_b32 v{r+1}, v{r+3}", 0),
                f"buffer_store_dwordx4 {v(r,4)}, v{UO}, s[12:15], s{34+tl//8} offen offset:{512*(tl%8)} sc1",
                f"ds_write_b128 v{LO}, {v(r,4)} offset:{1024*tl}"]

    outs, prev = [], None
    for tl in range(7):
        c = chain(out_tile(tl)[:7], earliest=8 * tl + 12, after=prev)
        outs += c
        prev = c[-1]
    over.append(chunk(mains, 0, (outs, []), order=tmaj, last=True))
    for tl in (7, 8):
        for t in out_tile(tl)[:7]:
            if isinstance(t, tuple):
                b(("s_nop 0\n" if t[1] else "") + t[0])
            else:
                b(t)
    b(f"s_cmp_lg_u32 s36, s{SW}\ns_cbranch_scc1 f_nokeep")
    for tl in range(9):
        b(out_tile(tl)[7])
    b("f_nokeep:")
    stamp(b, 25)
    signal(b, "f", C_P, 37)
    stamp(b, 26)
    b(f"s_cmp_lg_u32 s{SL}, 0\ns_cbranch_scc1 f_nowq")
    for o in dma(1):
        b(o.text + ("\ns_nop 0" if "m0," in o.text else ""))
    b("f_nowq:")
    print("ffn (overflow, last gap):", over, file=sys.stderr)
    return "\n".join(slow)


def phase_r(b, name):
    D0, PK, UO = 16, 80, 156
    side = B()
    stats_target(b)
    tile_base(b, 34, 35)
    b(f"""
    s_mul_i32 s35, s{SW}, 3072
    s_add_u32 s35, s35, {4*CH}
    v_add_u32 v6, s35, v1
    s_add_u32 s35, s34, s{SL}
    s_add_u32 s35, s35, {PART}
    """)
    d = lambda src, n: D0 + (src * 3 + n) * 4
    for n in range(3):
        b(f"ds_read_b128 {v(d(0,n),4)}, v6 offset:{1024*n}")
    for k in range(1, 4):
        b(f"s_add_u32 s38, s36, {k}\ns_and_b32 s38, s38, 3\ns_mul_i32 s38, s38, {SZX}\ns_add_u32 s{40+k}, s38, s35")

    def add(src, n):
        for j in range(4):
            for h in range(2):
                r = RES + 8 * n + 2 * j + h
                b(f"v_dot2_f32_bf16 v{r}, v{d(src,n)+j}, s{30+h}, v{r}")

    b(f"""
    s_mov_b32 s16, s12
    s_mov_b32 s17, s13
    s_mov_b32 s18, {SZX}
    s_mov_b32 s19, 0x20000
    v_mov_b32 v7, v{UO}
    s_cmp_eq_u32 s{SL}, 0
    s_cbranch_scc1 r_mid
    """)
    row_tile(b, 7, 34)
    b("s_mov_b32 s16, s6\ns_mov_b32 s17, s7\nr_mid:\ns_waitcnt lgkmcnt(0)")
    for n in range(3):
        add(0, n)
    poll(b, "r", C_P, 37, 4, True)
    stamp(b, 27)
    b(f"s_cmp_eq_u32 s{SW}, 3\ns_cbranch_scc1 r_idle")
    for n in range(3):
        for src in range(1, 4):
            b(f"buffer_load_dwordx4 {v(d(src,n),4)}, v{UO}, s[12:15], s{40+src} offen offset:{512*n} sc1 ;#p{src}{n}")
    b(f"s_cmp_lg_u32 s{SL}, 0")
    for n in range(3):
        for src in range(1, 4):
            b(f"s_waitcnt vmcnt(@p{src}{n})")
            add(src, n)
        pack4(b, PK + 4 * n, RES + 8 * n, RES + 8 * n + 4)
        b(f"""
        s_cbranch_scc1 r_out{n}
        buffer_store_dwordx4 {v(PK+4*n,4)}, v7, s[16:19], s34 offen offset:{512*n} sc1
r_back{n}:
        """)
        side(f"r_out{n}:\nbuffer_store_dwordx4 {v(PK+4*n,4)}, v7, s[16:19], s34 offen offset:{32*n}\ns_branch r_back{n}")
    b("s_cbranch_scc1 r_exit")
    stats_publish(b, S2)
    b(f"r_idle:\ns_cmp_lg_u32 s{SL}, 0\ns_cbranch_scc1 r_exit")
    stamp(b, 28)
    signal(b, "r", C_X2, STJ)
    if DIAG:
        stamp(b, 29)
        stamp_real(b, 31)
        stamp_flush(b, "2")
        stamp_real(b, 30)
        stamp(b, 0)
    b(f"""
    s_mov_b32 s{SL}, {LST}
    s_add_u32 s{SC}, s{SC}, {CL}
    s_branch layer
r_exit:
    """)
    return side.text()


def gen_main(name):
    b = B()
    JB = int(OPT.get("jb", 2))
    head(b, name, 256, [(4, "ws"), (6, "out"), (100, "x")])
    b(f"""
    v_lshrrev_b32 v5, 6, v0
    v_and_b32 v1, 63, v0
    v_lshlrev_b32 v1, 4, v1
    v_readfirstlane_b32 s{SW}, v5
    v_mov_b32 v2, 0
    v_mov_b32 v3, 1
    s_bfe_u32 s34, s2, {(4-JB) << 16}
    s_lshl_b32 s34, s34, {JB}
    s_bfe_u32 s35, s2, {(JB << 16) + 3}
    s_add_u32 s{SJ}, s34, s35
    s_bfe_u32 s34, s2, {((JB-1) << 16) + 4 - JB}
    s_lshl_b32 s34, s34, {5-JB}
    s_lshr_b32 s35, s2, {3+JB}
    s_add_u32 s{SI}, s34, s35
    s_lshl_b32 s34, s{SI}, 2
    s_add_u32 s{STW}, s34, s{SW}
    s_lshr_b32 s35, s{SJ}, 2
    s_add_u32 s{STJ}, s34, s35
    s_mov_b32 s{SL}, 0
    s_mov_b32 s{SC}, {CNT}
    s_mov_b32 s30, 0x3f80
    s_mov_b32 s31, 0x3f800000
    s_lshl_b32 s10, s{SW}, 10
    s_mul_i32 s11, s{SJ}, {WQH}
    s_add_u32 s11, s11, s10
    s_add_u32 s11, s11, {WQ}
    s_waitcnt lgkmcnt(0)
    """)
    srd(b, 12, 4, 0, WS_END)
    for i in range(11):
        b("s_mov_b32 m0, s10\ns_add_u32 s10, s10, 4096\nbuffer_load_dwordx4 v1, s[12:15], s11 offen lds\ns_add_u32 s11, s11, 4096")
    raw_setup(b)
    b("layer:")
    phase_q(b)
    slow = phase_a(b)
    slow += phase_o(b)
    slow += phase_f(b)
    slow += "\n" + phase_r(b, name)
    finish(b, name, "3")
    b(slow)
    b("main_code_end:")
    return dict(name=name, text=resolve_waits(b.text()), grid=256, block=256, lds=163840)


def build_all():
    import gen
    gen.OPT.clear()
    ks = [gen_prep("prep_kernel"), gen_main("main_kernel")]
    txt = gen.assemble(ks, [k["name"] for k in ks])
    return re.sub(r"(quad_perm|op_sel|op_sel_hi):\[([\d:]+)\]", lambda m: f"{m.group(1)}:[{m.group(2).replace(':', ',')}]", txt)


if __name__ == "__main__":
    for x in [x for x in sys.argv if "=" in x]:
        k, val = x.split("=")
        OPT[k] = val.replace("_", " ")
        sys.argv.remove(x)
    if "--diag" in sys.argv:
        DIAG = True
        sys.argv.remove("--diag")
    open(sys.argv[1], "w").write(build_all())
```

```python
import math, re, struct, sys
from asmlib import B, Prog, v, a, s, weave, Op, chain, sched, sched2, resolve_waits
from gen import fbits, sdiv, srd, mf16, transpose8, ARG, HEADER

SZX = 2048 * 576 * 2
REC = 2432
KVJ = 128 * REC
X2, OB, X1, PART, HB, KV = 0, SZX, 2 * SZX, 3 * SZX, 7 * SZX, 15 * SZX
S1 = KV + 16 * KVJ
S2 = S1 + 64 * 3072
LST = S2 + 64 * 3072
WQ = 2 * LST
WQH = 126 * 1024
WO = WQ + 16 * WQH
WOS = 164 * 1024
WF = WO + 4 * WOS
CH = 36864
WFS = 31 * CH
CNT = WF + 16 * WFS
WS_END = CNT + 131072
CL = 49152
C_PREP = 32 * 128
C_ROLE = 320 * 128
LOFF = 0x30000
C_KV, C_O, C_X1, C_X2, C_H, C_P = 0, 16 * 128, 64 * 128, 128 * 128, 192 * 128, 256 * 128
RES = 232
OOB = 0x40000000
QX = 131072
STAMPS = 200 << 20
OPT = {}
DIAG = False
SI, SJ, SL, SC, STW, STJ, SW = 24, 25, 26, 27, 28, 29, 33


def bstamp(b, k):
    if DIAG and OPT.get("brk"):
        b("s_memtime s[62:63]\ns_waitcnt lgkmcnt(0)")
        for st in range(4):
            b(f"s_cmp_eq_u32 s32, {st}\ns_cselect_b32 s{74+2*st+k}, s62, s{74+2*st+k}")


def stamp(b, i):
    if OPT.get("brk") and 10 <= i < 29:
        i = {10: 18}.get(i)
    if DIAG and i is not None:
        b(f"s_memtime s[62:63]\ns_waitcnt lgkmcnt(0)\ns_mov_b32 s{64+i}, s62")


def stamp_real(b, i):
    if DIAG:
        b(f"s_memrealtime s[62:63]\ns_waitcnt lgkmcnt(0)\ns_mov_b32 s{64+i}, s62")


def stamp_flush(b, slot):
    if not DIAG:
        return
    b(f"""
    s_lshl_b32 s62, {slot}, 8
    s_add_u32 s62, s62, s2
    s_lshl_b32 s62, s62, 4
    s_add_u32 s62, s62, s{SW}
    s_lshl_b32 s62, s62, 7
    s_add_u32 s96, s4, {STAMPS}
    s_addc_u32 s97, s5, 0
    s_mov_b32 s98, {32 << 20}
    s_mov_b32 s99, 0x20000
    v_mov_b32 v8, 0
    """)
    for q in range(8):
        for j in range(4):
            b(f"v_mov_b32 v{4+j}, s{64+4*q+j}")
        b(f"buffer_store_dwordx4 v[4:7], v8, s[96:99], s62 offen offset:{16*q}\ns_nop 1")


def head(b, name, nwg, loads):
    b(f"s_cmp_ge_u32 s2, {nwg}\ns_cbranch_scc1 {name}_end")
    if DIAG:
        for i in range(32):
            b(f"s_mov_b32 s{64+i}, 0")
        stamp_real(b, 30)
        stamp(b, 0)
    for reg, arg in loads:
        b(f"s_load_dwordx2 s[{reg}:{reg+1}], s[0:1], {ARG[arg]}")


def finish(b, name, slot):
    if DIAG:
        b("s_waitcnt vmcnt(0)")
        stamp(b, 29)
        stamp_real(b, 31)
        stamp_flush(b, slot)
    b(f"{name}_end:\ns_endpgm")


def window(b, d, off, size):
    b(f"s_add_u32 s{d}, s4, s{off}\ns_addc_u32 s{d+1}, s5, 0\ns_mov_b32 s{d+2}, {size}\ns_mov_b32 s{d+3}, 0x20000")


def ln_tail(b, A0, n, mean, rstd, dst):
    for j in range(n):
        b(f"v_sub_f32 v{A0+j}, v{A0+j}, v{mean}")
    for j in range(n):
        b(f"v_mul_f32 v{A0+j}, v{A0+j}, v{rstd}")
    for j in range(n // 2):
        b(f"v_cvt_pk_bf16_f32 v{dst+j}, v{A0+2*j}, v{A0+2*j+1}")


def ln_stats(b, sm, sq):
    b(f"""
    v_mul_f32 v{sm}, {fbits(1/576)}, v{sm}
    v_mul_f32 v{sq}, {fbits(1/576)}, v{sq}
    v_fma_f32 v{sq}, -v{sm}, v{sm}, v{sq}
    v_max_f32 v{sq}, 0, v{sq}
    v_add_f32 v{sq}, {fbits(1e-5)}, v{sq}
    """)


def row_reduce(b, sm, sq):
    b(f"""
    s_nop 1
    v_permlane32_swap_b32 v{sm}, v{sq}
    s_nop 0
    v_add_f32 v{sm}, v{sm}, v{sq}
    v_mov_b32 v{sq}, v{sm}
    s_nop 1
    v_permlane16_swap_b32 v{sm}, v{sq}
    s_nop 0
    v_add_f32 v{sm}, v{sm}, v{sq}
    s_nop 1
    v_add_f32 v{sm}, v{sm}, v{sm} row_ror:8 row_mask:0xf bank_mask:0xf
    """)


def gen_prep(name):
    b = B()
    head(b, name, 288, [(4, "ws"), (8, "x")])
    b(f"""
    v_lshrrev_b32 v5, 6, v0
    v_and_b32 v6, 15, v0
    v_lshrrev_b32 v7, 4, v0
    v_readfirstlane_b32 s33, v5
    s_cmp_ge_u32 s2, 216
    s_cbranch_scc1 {name}_wo
    s_load_dwordx2 s[6:7], s[0:1], {ARG['wqkv']}
    """)
    sdiv(b, 34, 2, 3, 216)
    b(f"""
    s_mul_i32 s35, s34, 3
    s_sub_u32 s35, s2, s35
    s_mul_i32 s38, s34, {8*3456}
    s_mul_i32 s36, s35, 1152
    s_add_u32 s38, s38, s36
    s_lshr_b32 s36, s34, 2
    s_mul_i32 s39, s36, 7168
    s_add_u32 s39, s39, {WQ}
    s_mov_b32 s22, {576*1728*2}
    s_mov_b32 s43, {4*3456}
    s_mov_b32 s44, {2*3456}
    s_mov_b32 s45, 3456
    s_cmp_eq_u32 s33, 8
    s_cbranch_scc1 {name}_qt
    v_lshrrev_b32 v8, 1, v7
    v_and_b32 v9, 1, v7
    v_mul_u32_u24 v10, 72, v8
    v_mul_u32_u24 v11, {WQH}, v8
    v_lshl_add_u32 v11, v9, 10, v11
    v_lshl_add_u32 v11, v6, 4, v11
    s_lshl_b32 s36, s35, 11
    s_add_u32 s39, s39, s36
    s_cmp_eq_u32 s35, 2
    s_cbranch_scc1 {name}_qv
    v_lshl_add_u32 v10, v9, 3, v10
    v_lshrrev_b32 v8, 3, v6
    v_mad_u32_u24 v10, v8, 36, v10
    v_bfe_u32 v8, v6, 2, 1
    v_lshl_add_u32 v10, v8, 4, v10
    v_and_b32 v8, 3, v6
    v_lshl_add_u32 v10, v8, 1, v10
    s_branch {name}_go
{name}_qv:
    v_mad_u32_u24 v10, v9, 36, v10
    v_lshl_add_u32 v10, v6, 1, v10
    s_branch {name}_go
{name}_qt:
    v_bfe_u32 v8, v0, 1, 5
    v_mul_u32_u24 v10, 36, v8
    v_and_b32 v8, 1, v0
    v_lshl_add_u32 v10, v8, 1, v10
    v_add_u32 v10, 32, v10
    v_bfe_u32 v8, v0, 2, 4
    v_mul_u32_u24 v11, {WQH}, v8
    v_and_b32 v8, 3, v0
    v_lshl_add_u32 v11, v8, 4, v11
    s_lshl_b32 s36, s35, 6
    s_add_u32 s39, s39, s36
    s_add_u32 s39, s39, 6144
    s_branch {name}_go
{name}_wo:
    s_load_dwordx2 s[6:7], s[0:1], {ARG['wo']}
    s_sub_u32 s34, s2, 216
    s_mov_b32 s35, 1
    s_mov_b32 s22, {576*576*2}
    s_lshr_b32 s38, s34, 1
    s_mul_i32 s38, s38, {18*1152}
    s_and_b32 s36, s34, 1
    s_mul_i32 s36, s36, {4*1152}
    s_add_u32 s38, s38, s36
    s_mov_b32 s43, {8*1152}
    s_mov_b32 s44, {2*1152}
    s_mov_b32 s45, 1152
    s_cmp_lt_u32 s34, 64
    s_cbranch_scc1 {name}_wo2
    s_sub_u32 s38, s34, 64
    s_mul_i32 s38, s38, {72*1152}
    s_add_u32 s38, s38, {16*1152}
    s_mov_b32 s43, {36*1152}
    s_mov_b32 s44, {18*1152}
{name}_wo2:
    s_mov_b32 s39, {WO}
    s_lshr_b32 s36, s34, 2
    v_lshlrev_b32 v10, 1, v0
    v_mul_u32_u24 v8, 43, v7
    v_lshrrev_b32 v8, 7, v8
    v_mul_u32_u24 v9, 3, v8
    v_sub_u32 v9, v7, v9
    v_mad_u32_u24 v9, v9, 18, s36
    v_mul_u32_u24 v12, 43, v8
    v_lshrrev_b32 v12, 7, v12
    v_mul_u32_u24 v13, 3, v12
    v_sub_u32 v8, v8, v13
    v_mad_u32_u24 v13, v8, 12, v9
    v_mad_u32_u24 v14, v8, 26, v9
    v_add_u32 v14, 24, v14
    v_lshl_add_u32 v15, v8, 4, v9
    v_add_u32 v15, 78, v15
    v_cmp_gt_u32 vcc, 12, v9
    v_cmp_gt_u32 s[40:41], 38, v9
    v_mul_u32_u24 v11, {WOS}, v12
    v_lshl_add_u32 v11, v6, 4, v11
    v_cndmask_b32 v14, v15, v14, s[40:41]
    v_cndmask_b32 v13, v14, v13, vcc
    v_lshl_add_u32 v11, v13, 10, v11
{name}_go:
    s_and_b32 s36, s34, 3
    s_lshl_b32 s36, s36, 8
    s_add_u32 s39, s39, s36
    v_lshrrev_b32 v2, 3, v0
    v_and_b32 v3, 7, v0
    v_mul_u32_u24 v4, 1152, v3
    v_lshl_add_u32 v4, v2, 4, v4
    v_lshlrev_b32 v2, 8, v2
    v_lshl_add_u32 v2, v3, 4, v2
    s_mul_i32 s11, s2, 9216
    s_waitcnt lgkmcnt(0)
    s_mov_b32 s20, s6
    s_mov_b32 s21, s7
    s_mov_b32 s23, 0x20000
    """)
    assert all((t * 43) >> 7 == t // 3 for t in range(36))
    srd(b, 16, 8, 0, SZX)
    b("buffer_load_dwordx4 v[12:15], v4, s[16:19], s11 offen ;#x")
    for j in range(8):
        b("s_mov_b32 s36, s38")
        for bit, r in ((4, 43), (2, 44), (1, 45)):
            if j & bit:
                b(f"s_add_u32 s36, s36, s{r}")
        b(f"buffer_load_ushort v{16+j}, v10, s[20:23], s36 offen ;#w")
    if int(OPT.get("pf", 1)):
        b(f"""
        s_cmp_lg_u32 s33, 8
        s_cbranch_scc1 {name}_nopf
        s_getpc_b64 s[46:47]
{name}_pc:
        s_add_u32 s46, s46, main_kernel-{name}_pc
        s_addc_u32 s47, s47, 0
        s_bfe_u32 s36, s2, 0x50003
        s_lshl_b32 s36, s36, 11
        v_and_b32 v50, 15, v0
        v_lshl_add_u32 v50, v50, 7, s36
        v_min_u32 v50, main_code_end-main_kernel-4, v50
        v_mov_b32 v51, s47
        v_add_co_u32 v50, vcc, s46, v50
        s_nop 1
        v_addc_co_u32 v51, vcc, 0, v51, vcc
        global_load_dword v52, v[50:51], off
{name}_nopf:
        """)
    srd(b, 12, 4, 0, WS_END)
    srd(b, 24, 4, LST + X2, SZX)
    b(f"""
    s_lshr_b32 s10, s2, 1
    s_mul_i32 s10, s10, 18432
    s_and_b32 s11, s2, 1
    s_lshl_b32 s11, s11, 7
    s_add_u32 s10, s10, s11
    v_lshlrev_b32 v6, 2, v0
    v_mov_b32 v7, {OOB}
    v_cmp_gt_u32 vcc, 128, v0
    v_mov_b32 v8, 0
    s_lshl_b32 s11, s2, 9
    v_cndmask_b32 v6, v7, v6, vcc
    s_add_u32 s11, s11, {CNT}
    buffer_store_dword v8, v6, s[12:15], s11 offen
    v_lshlrev_b32 v3, 3, v3
    v_lshl_add_u32 v4, v5, 6, v3
    s_waitcnt vmcnt(@x)
    """)
    A0 = 32
    for j in range(4):
        b(f"v_lshlrev_b32 v{A0+2*j}, 16, v{12+j}\nv_and_b32 v{A0+2*j+1}, 0xffff0000, v{12+j}")
    b(f"v_add_f32 v6, v{A0}, v{A0+1}\nv_mul_f32 v7, v{A0}, v{A0}")
    for j in range(1, 8):
        if j > 1:
            b(f"v_add_f32 v6, v6, v{A0+j}")
        b(f"v_fmac_f32 v7, v{A0+j}, v{A0+j}")
    row_reduce(b, 6, 7)
    b("v_bfe_u32 v8, v0, 5, 1\nv_lshl_add_u32 v4, v8, 2, v4\nds_write_b32 v4, v6\ns_waitcnt vmcnt(@w)")
    for j in range(4):
        b(f"v_lshl_or_b32 v{24+j}, v{17+2*j}, 16, v{16+2*j}")
    b(f"""
    buffer_store_dwordx4 v[24:27], v11, s[12:15], s39 offen{OPT.get("pst", "")}
    s_lshl_b32 s36, s35, 4
    s_add_u32 s36, s36, s33
    s_cmp_lg_u32 s36, 8
    s_cbranch_scc1 {name}_noone
    """)
    for j in range(4):
        b(f"v_mov_b32 v{28+j}, 0x3f803f80")
    b(f"buffer_store_dwordx4 v[28:31], v11, s[12:15], s39 offen offset:192\n{name}_noone:\ns_waitcnt lgkmcnt(0)\ns_barrier")
    for w in range(9):
        b(f"ds_read_b64 {v(56+2*w,2)}, v3 offset:{64*w}")
    b("s_waitcnt lgkmcnt(0)")
    for w in range(1, 9):
        b(f"v_pk_add_f32 v[56:57], v[56:57], {v(56+2*w,2)}")
    ln_stats(b, 56, 57)
    b("v_rsq_f32 v57, v57")
    ln_tail(b, A0, 8, 56, 57, 12)
    b("buffer_store_dwordx4 v[12:15], v2, s[24:27], s10 offen" + OPT.get("pst", ""))
    if DIAG:
        b(f"s_cmp_ge_u32 s2, 256\ns_cbranch_scc1 {name}_end")
    finish(b, name, "1")
    return dict(name=name, text=resolve_waits(b.text()), grid=288, block=576, lds=1024)


def signal(b, tag, base, idx, wave=3, extra=None):
    b(f"""
    s_lshl_b32 s60, s{idx}, 7
    s_add_u32 s60, s60, s{SC}
    s_add_u32 s60, s60, {base}
    s_waitcnt vmcnt(0) lgkmcnt(0)
{tag}_bar:
    s_barrier
    s_cmp_lg_u32 s{SW}, {wave}
    s_cbranch_scc1 {tag}_sig
    s_mov_b64 exec, 1
    buffer_atomic_add v3, v2, s[12:15], s60 offen sc1
    """)
    if extra:
        b(f"buffer_atomic_add v3, v2, s[12:15], s{extra} offen sc1")
    b(f"s_mov_b64 exec, -1\n{tag}_sig:")


def poll(b, tag, base, idx, target, one_wave):
    b(f"""
    s_lshl_b32 s60, s{idx}, 7
    s_add_u32 s60, s60, s{SC}
    s_add_u32 s60, s60, {base}
    s_mov_b32 s61, 0x40000
    """)
    if one_wave:
        b(f"s_cmp_lg_u32 s{SW}, 3\ns_cbranch_scc1 {tag}_ok")
    b(f"""
{tag}_poll:
    buffer_load_dword v4, v2, s[12:15], s60 offen sc1
    s_sub_u32 s61, s61, 1
    s_waitcnt vmcnt(0)
    v_cmp_gt_u32 vcc, {target}, v4
    s_cbranch_scc1 {tag}_ok
    s_cbranch_vccnz {tag}_poll
{tag}_ok:
    """)
    if one_wave:
        b("s_barrier")


def dma_run(b, n, srdn, soff, flags=""):
    for i in range(n):
        off = f" offset:{1024*(i%4)}" if i % 4 else ""
        b(f"buffer_load_dwordx4 v1, s[{srdn}:{srdn+3}], s{soff} offen{off}{flags} lds")
        if i % 4 == 3 and i < n - 1:
            b(f"s_add_u32 m0, m0, 4096\ns_add_u32 s{soff}, s{soff}, 4096")


def pack4(b, dst, p, q):
    b(f"""
    v_cvt_pk_bf16_f32 v{dst}, v{p}, v{p+1}
    v_cvt_pk_bf16_f32 v{dst+1}, v{p+2}, v{p+3}
    v_cvt_pk_bf16_f32 v{dst+2}, v{q}, v{q+1}
    v_cvt_pk_bf16_f32 v{dst+3}, v{q+2}, v{q+3}
    """)


def unit_offset(b, dst, t0, t1):
    b(f"""
    v_bfe_u32 v{t0}, v0, 4, 1
    v_bfe_u32 v{t1}, v0, 5, 1
    v_mul_u32_u24 v{dst}, 18432, v{t0}
    v_lshl_add_u32 v{dst}, v{t1}, 8, v{dst}
    v_and_b32 v{t0}, 15, v0
    v_lshl_add_u32 v{dst}, v{t0}, 4, v{dst}
    """)


TIM = QX + 18432
VD, TR = 72, 76
QSCALE = fbits(math.log2(math.e) / math.sqrt(18))


def stats_publish(b, base):
    b(f"""
    v_pk_add_f32 v[8:9], {v(RES,2)}, {v(RES+2,2)}
    v_pk_mul_f32 v[10:11], {v(RES,2)}, {v(RES,2)}
    """)
    for k in range(2, 24, 2):
        if k > 2:
            b(f"v_pk_add_f32 v[8:9], v[8:9], {v(RES+k,2)}")
        b(f"v_pk_fma_f32 v[10:11], {v(RES+k,2)}, {v(RES+k,2)}, v[10:11]")
    b(f"""
    v_add_f32 v8, v8, v9
    v_add_f32 v9, v10, v11
    s_add_u32 s38, s62, s{SL}
    s_add_u32 s38, s38, {base}
    v_permlane32_swap_b32 v8, v9
    s_nop 0
    v_add_f32 v8, v8, v9
    buffer_store_dword v8, v13, s[12:15], s38 offen sc1
    """.replace("s62", "s59"))


def stats_target(b):
    b(f"""
    v_and_b32 v13, 15, v0
    v_lshlrev_b32 v13, 4, v13
    v_bfe_u32 v14, v0, 4, 1
    v_lshl_add_u32 v13, v14, 3, v13
    v_bfe_u32 v14, v0, 5, 1
    v_lshl_add_u32 v13, v14, 2, v13
    s_and_b32 s59, s{SJ}, 3
    s_mul_i32 s59, s59, 3
    s_add_u32 s59, s59, s{SW}
    s_lshl_b32 s59, s59, 8
    s_mul_i32 s38, s{STJ}, 3072
    s_add_u32 s59, s59, s38
    """)


def stats_loads(t, so):
    return [f"buffer_load_dwordx4 {v(t+4*n,4)}, v1, s[12:15], s{so} offen offset:{1024*n} sc1 ;#st" for n in range(3)]


def stats_reduce(src, t, eps):
    out = [f"v_add_f32 v{t+k}, v{src+k}, v{src+4+k}" for k in range(4)] + [f"v_add_f32 v{t+k}, v{t+k}, v{src+8+k}" for k in range(4)]
    out += [(f"v_permlane32_swap_b32 v{t}, v{t+1}", 2), f"v_permlane32_swap_b32 v{t+2}, v{t+3}",
            (f"v_add_f32 v{t}, v{t}, v{t+1}", 1), f"v_add_f32 v{t+2}, v{t+2}, v{t+3}",
            (f"v_permlane16_swap_b32 v{t}, v{t+2}", 2), (f"v_add_f32 v{t}, v{t}, v{t+2}", 1), f"v_mul_f32 v{t}, {fbits(1/576)}, v{t}",
            f"v_mov_b32 v{t+1}, v{t}", (f"v_permlane32_swap_b32 v{t}, v{t+1}", 2),
            (f"v_fma_f32 v{t}, -v{t}, v{t}, v{t+1}", 1), f"v_max_f32 v{t}, 0, v{t}", f"v_add_f32 v{t}, {eps}, v{t}",
            f"v_mov_b32 v{t+1}, v{t}", (f"v_permlane16_swap_b32 v{t}, v{t+1}", 2)]
    return out


def emit_chain(b, items):
    for x in items:
        if isinstance(x, tuple):
            b(f"s_nop {x[1]-1}\n{x[0]}")
        else:
            b(x)


def phase_q(b):
    ACC, XQ, TMP, STT, RV, AD = 16, 80, 128, 164, 184, 208
    AQ, GK, GV, AVT, TA, AON, RD, GT = AD, AD + 1, AD + 2, AD + 3, AD + 4, AD + 8, AD + 9, AD + 10
    b(f"""
    s_mul_i32 s34, s{STW}, 36864
    s_add_u32 s34, s34, {LST+X2}
    s_sub_u32 s34, s34, s{SL}
    s_add_u32 s16, s4, s34
    s_addc_u32 s17, s5, 0
    s_mov_b32 s18, 18432
    s_mov_b32 s19, 0x20000
    s_add_u32 s20, s16, 18432
    s_addc_u32 s21, s17, 0
    s_mov_b32 s22, 18432
    s_mov_b32 s23, 0x20000
    v_and_b32 v12, 15, v0
    v_bfe_u32 v4, v0, 4, 2
    v_lshrrev_b32 v13, 1, v4
    v_and_b32 v14, 1, v4
    s_mul_i32 s38, s{SW}, 1152
    s_add_u32 s38, s38, {QX}
    s_mul_i32 s39, s{SW}, 768
    s_add_u32 s39, s39, {TIM}
    v_lshlrev_b32 v15, 4, v12
    v_lshl_add_u32 v15, v14, 9, v15
    v_mul_u32_u24 v{AQ}, 4608, v13
    v_add3_u32 v{AQ}, v{AQ}, v15, s38
    v_mul_u32_u24 v{GK}, {REC}, v13
    v_add_u32 v{GK}, v{GK}, v15
    v_cmp_eq_u32 s[48:49], 0, v4
    v_lshlrev_b32 v6, 4, v4
    v_lshrrev_b32 v13, 2, v12
    v_and_b32 v15, 3, v12
    v_lshlrev_b32 v{AVT}, 5, v13
    v_lshl_add_u32 v{AVT}, v15, 1, v{AVT}
    v_add_u32 v{AVT}, s39, v{AVT}
    s_add_u32 s40, s38, 1024
    s_add_u32 s41, s39, 128
    v_lshl_add_u32 v{TA}, v12, 2, s40
    v_lshl_add_u32 v15, v12, 2, s41
    v_cndmask_b32 v{TA}, v15, v{TA}, s[48:49]
    v_mov_b32 v13, 384
    v_mov_b32 v14, 4608
    v_cndmask_b32 v13, v13, v14, s[48:49]
    v_add_u32 v{TA+1}, v{TA}, v13
    v_and_b32 v14, 3, v0
    v_bfe_u32 v13, v0, 2, 1
    v_mul_u32_u24 v13, 384, v13
    v_lshl_add_u32 v13, v14, 2, v13
    v_add_u32 v{AON}, s39, v13
    v_add_u32 v{RD}, s39, v1
    v_add_u32 v13, {REC-384}, v1
    v_cmp_gt_u32 vcc, 384, v1
    v_mov_b32 v14, {OOB}
    s_mul_i32 s43, s{SJ}, {KVJ}
    v_cndmask_b32 v13, v13, v1, vcc
    v_cmp_gt_u32 vcc, 768, v1
    s_mul_i32 s44, s{STW}, {2*REC}
    s_add_u32 s43, s43, s44
    v_cndmask_b32 v{GT}, v14, v13, vcc
    s_add_u32 s43, s43, s{SL}
    s_add_u32 s43, s43, {KV}
    s_mul_i32 s42, s{STW}, 3072
    s_add_u32 s42, s42, {S2}
    s_mov_b32 s45, {fbits(1e-5)}
    v_mov_b32 v7, 0x3f803f80
    v_mov_b32 v5, v1
    s_mov_b32 s37, 3
    """)
    for i in range(16, 72):
        b(f"v_mov_b32 v{i}, 0")
    b(f"s_cmp_eq_u32 s{SL}, 0\ns_cselect_b32 s42, {OOB}, s42\ns_cselect_b32 s45, 1.0, s45\ns_cbranch_scc1 q_ok")
    poll(b, "q", C_X2 - CL, STW, 4, False)
    stamp(b, 1)
    xq = lambda p, rt: XQ + ((p % 6) * 2 + rt) * 4
    xload = lambda p, rt: f"buffer_load_dwordx4 {v(xq(p, rt),4)}, v1, s[{16+4*rt}:{19+4*rt}], s36 offen sc1 ;#x{p%6}"
    acc = lambda f, rt: ACC + (f * 2 + rt) * 4
    ring = lambda ks, f: a((ks % 2) * 28 + f * 4, 4)
    reads = lambda p: [f"ds_read_b128 {ring(p, f)}, v5 offset:{(p*7+f)*1024}" for f in range(7)]
    b("s_mov_b32 s36, 0\ns_mov_b32 m0, s10")
    for p in range(5):
        b(xload(p, 0) + "\n" + xload(p, 1) + "\ns_add_u32 s36, s36, 1024")
        if p == 1:
            b("s_waitcnt vmcnt(4)\ns_barrier")
            b("\n".join(reads(0) + stats_loads(STT, 42)))
    stamp(b, 2)
    b(f"s_cmp_lg_u32 s{SL}, 0\ns_waitcnt vmcnt(@x0) lgkmcnt(0)\ns_cbranch_scc1 q_loop1")
    for fill in (1, 0):
        mains, pinned = [], []
        for p in range(6):
            for f in (6, 2, 3, 4, 5, 0, 1):
                for rt in range(2):
                    w, x, d = ring(p, f), v(xq(p, rt), 4), v(acc(f, rt), 4)
                    mains.append(mf16(d, x, w, d) if f in (4, 5) else mf16(d, w, x, d))
            rd = reads(p + 1)
            dm = "buffer_load_dwordx4 v1, s[12:15], s11 offen lds ;#wq"
            pin = [(0, xload(p + 5, 0))]
            if p == 5 and fill:
                pin += [(1, "s_waitcnt vmcnt(@wq)"), (1, "s_barrier")]
            pin += [(1, rd[0]), (2, rd[1]), (4, rd[2]), (5, rd[3]), (6, rd[4]), (7, xload(p + 5, 1)), (8, rd[5]), (8, "s_add_u32 s36, s36, 1024"),
                    (9, rd[6])]
            for gq in (3, 10, 11, 12)[:(4, 4, 3, 0, 0, 0)[p] * fill]:
                pin += [(gq, dm), (gq, "s_add_u32 m0, m0, 4096"), (gq, "s_add_u32 s11, s11, 4096")]
            pin += [(13, f"s_waitcnt vmcnt(@x{(p+1)%6}) lgkmcnt(0)")]
            if p == 0:
                pin += [(6, "s_sub_u32 s37, s37, 1")]
            if p == 5:
                pin += [(11, "v_add_u32 v5, 43008, v5"), (13, f"s_cmp_lg_u32 s37, {fill}")]
            pinned += [(14 * p + gp, t) for gp, t in pin]
        ops = [] if fill else chain(stats_reduce(STT, STT + 12, "s45") + [
            (f"v_rsq_f32 v8, v{STT+12}", 1), f"v_rsq_f32 v9, v{STT+13}", (f"v_mul_f32 v12, {QSCALE}, v8", 1), f"v_mul_f32 v13, {QSCALE}, v9",
            "v_cndmask_b32 v14, v8, v12, s[48:49]", "v_cndmask_b32 v15, v9, v13, s[48:49]"], earliest=27)
        txt, over, lastgap = sched2(mains, pinned, ops)
        print("q loop (overflow, last gap):", over, lastgap, file=sys.stderr)
        b(f".p2align 3\nq_loop{1-fill}:\n{txt}\ns_cbranch_scc1 q_loop{1-fill}")
    stamp(b, 3)
    for rt in range(2):
        for i in range(4):
            b(f"ds_bpermute_b32 v{RV+4*rt+i}, v6, v{8+rt} offset:{4*i}")

    def scale(f, rt, by):
        for i in (0, 2):
            d = v(acc(f, rt) + i, 2)
            if isinstance(by, int):
                sel = "op_sel:[1:0] op_sel_hi:[1:1]" if by & 1 else "op_sel_hi:[0:1]"
                b(f"v_pk_mul_f32 {d}, {v(by & ~1, 2)}, {d} {sel}")
            else:
                b(f"v_pk_mul_f32 {d}, {v(by[0]+i,2)}, {d}")

    T = TMP
    for rt in range(2):
        scale(6, rt, 14 + rt)
    pack4(b, T, acc(6, 0), acc(6, 1))
    b(f"ds_write_b32 v{AON}, v7 offset:256\ns_mov_b64 exec, 0xffffffff")
    for k in range(4):
        b(f"ds_write_b32 v{TA+k%2}, v{T+k} offset:{64*(k//2)}")
    b("s_mov_b32 exec_lo, 0\ns_mov_b32 exec_hi, 0xffff\ns_waitcnt lgkmcnt(5)")
    for k in range(4):
        off = 384 * (k % 2) + 8 * (k // 2)
        b(f"ds_write_b16 v{AVT}, v{T+k} offset:{off}\nds_write_b16_d16_hi v{AVT}, v{T+k} offset:{off+16}")
    b(f"s_mov_b64 exec, -1\nds_read_b128 {v(TMP+32,4)}, v{RD}")
    T += 4
    for rt in range(2):
        scale(2, rt, 8 + rt)
        scale(3, rt, 8 + rt)
        pack4(b, T, acc(2, rt), acc(3, rt))
        b(f"buffer_store_dwordx4 {v(T,4)}, v{GK}, s[12:15], s43 offen offset:{256*rt} sc1")
        T += 4
    for f in (4, 5):
        for rt in range(2):
            scale(f, rt, [RV + 4 * rt])
        pack4(b, T, acc(f, 0), acc(f, 1))
        b(f"buffer_store_dwordx4 {v(T,4)}, v1, s[12:15], s43 offen offset:{1024+REC*(f-4)} sc1")
        T += 4
    b(f"s_waitcnt lgkmcnt(0)\nbuffer_store_dwordx4 {v(TMP+32,4)}, v{GT}, s[12:15], s43 offen offset:2048 sc1")
    for rt in range(2):
        b(f"ds_write_b128 v{AQ}, {v(TMP+4+4*rt,4)} offset:{9216+256*rt}")
        scale(0, rt, 12 + rt)
        scale(1, rt, 12 + rt)
        pack4(b, T, acc(0, rt), acc(1, rt))
        b(f"ds_write_b128 v{AQ}, {v(T,4)} offset:{256*rt}")
        T += 4
    stamp(b, 4)


def wo_loads(lo, hi):
    out = []
    for n in range(lo, hi):
        off = f" offset:{1024*((n-lo)%4)}" if (n - lo) % 4 else ""
        t = f"buffer_load_dwordx4 {a(4*n,4)}, v1, s[12:15], s38 offen{off}"
        if (n - lo) % 4 == 3:
            t += "\ns_add_u32 s38, s38, 4096"
        out.append(t)
    return out


def wo_base(b, part, per):
    b(f"""
    s_and_b32 s38, s{SJ}, 3
    s_mul_i32 s38, s38, {WOS}
    s_mul_i32 s39, s{SW}, {1024*per}
    s_add_u32 s38, s38, s39
    s_add_u32 s38, s38, {WO + 1024*part}
    s_cmp_eq_u32 s{SW}, 3
    s_cselect_b32 s38, {OOB}, s38
    """)


def centre(b, fr, n, tmp, mean, after=None):
    for k in range(n):
        for j in range(4):
            for h in range(2):
                b(f"v_dot2_f32_bf16 v{tmp+2*j+h}, v{fr+4*k+j}, s{30+h}, v{mean}")
        for j in range(4):
            b(f"v_cvt_pk_bf16_f32 v{fr+4*k+j}, v{tmp+2*j}, v{tmp+2*j+1}")
        if after:
            b(after(k))


def row_tile(b, vd, sd):
    b(f"""
    v_and_b32 v{vd}, 31, v0
    v_mul_u32_u24 v{vd}, 1152, v{vd}
    v_bfe_u32 v{vd+1}, v0, 5, 1
    v_lshl_add_u32 v{vd}, v{vd+1}, 4, v{vd}
    s_and_b32 s{sd}, s{SJ}, 3
    s_mul_i32 s{sd}, s{sd}, 3
    s_add_u32 s{sd}, s{sd}, s{SW}
    s_mul_i32 s{sd}, s{sd}, 96
    s_mul_i32 s{sd+1}, s{STJ}, 36864
    s_add_u32 s{sd}, s{sd}, s{sd+1}
    """)


def layer0_jobs(b, ONE, SM, PF, PT, AF):
    srd(b, 20, 100, 0, SZX)
    row_tile(b, 8, 38)
    for i in range(4):
        b(f"v_mov_b32 v{ONE+i}, 0x3f803f80")
    for n in range(3):
        b(f"buffer_load_dwordx4 {v(RES+12+4*n,4)}, v8, s[20:23], s38 offen offset:{32*n}")
    sdiv(b, 41, STW, 9, 64)
    b(f"""
    s_mul_i32 s38, s41, 9
    s_sub_u32 s38, s{STW}, s38
    s_lshl_b32 s39, s41, 10
    v_add_u32 v8, s39, v1
    v_add_u32 v9, {9*7168}, v8
    s_mul_i32 s38, s38, 14336
    s_add_u32 s38, s38, s39
    v_add_u32 v12, s38, v1
    """)
    for ks in range(18):
        b(f"ds_read_b128 {a(AF+4*ks,4)}, v{8+ks//9} offset:{7168*(ks%9)}")
        if ks == 11:
            b("s_waitcnt lgkmcnt(6)")
    b(f"ds_read_b128 {v(PF,4)}, v12\nds_read_b128 {v(PF+4,4)}, v12 offset:7168")
    for ks in range(18):
        if ks >= 6:
            b(f"s_waitcnt lgkmcnt({19-ks})")
        b(mf16(v(SM, 4), v(ONE, 4), a(AF + 4 * ks, 4), "0" if ks == 0 else v(SM, 4)))
    b(f"""
    v_and_b32 v8, 12, v0
    v_cmp_eq_u32 vcc, 12, v8
    s_cmp_eq_u32 s41, 6
    s_cselect_b64 vcc, vcc, 0
    s_add_u32 s39, s38, 7168
    s_mul_i32 s41, s{SJ}, {WFS}
    s_add_u32 s41, s41, {WF+28*CH}
    s_cmp_eq_u32 s{STW}, 63
    s_cselect_b32 s41, {OOB}, s41
    """)
    for r in (38, 39):
        b(f"s_cmp_ge_u32 s{r}, {3*CH}\ns_cselect_b32 s44, {4*CH}, 0\ns_sub_u32 s{r}, s{r}, s44\ns_add_u32 s{r}, s{r}, s41")
    b(f"s_waitcnt lgkmcnt(0)\nv_mul_f32 v{SM}, {fbits(-1/576)}, v{SM}\nv_cndmask_b32 v{SM}, v{SM}, v2, vcc")
    centre(b, PF, 2, PT, SM, lambda k: f"buffer_store_dwordx4 {v(PF+4*k,4)}, v1, s[12:15], s{38+k} offen sc1")
    srd(b, 20, 54, 0, 576 * 4608 * 2)
    b("s_mov_b32 s32, 0\ns_mov_b32 s41, s52")


def raw_setup(b):
    b(f"""
    v_bfe_u32 v8, v0, 4, 2
    v_bfe_u32 v9, v0, 2, 2
    v_and_b32 v12, 3, v0
    v_lshlrev_b32 v12, 3, v12
    v_lshl_add_u32 v12, v9, 7, v12
    v_bfe_u32 v13, v0, 3, 2
    v_xor_b32 v13, s{SW}, v13
    s_cmp_ge_u32 s2, 144
    s_cbranch_scc1 a_raw2
    s_and_b32 s38, s2, 1
    s_lshl_b32 s39, s38, 3
    s_add_u32 s44, s0, s39
    s_addc_u32 s45, s1, 0
    s_load_dwordx2 s[54:55], s[44:45], {ARG['w1']}
    s_lshr_b32 s39, s2, 1
    s_lshl_b32 s56, s39, 7
    s_mov_b32 s41, 9216
    s_mov_b32 s8, {fbits(-1/576)}
    s_mov_b32 s59, 2048
    s_mov_b32 s9, 0
    s_lshl_b32 s39, s39, 2
    s_add_u32 s39, s39, s{SW}
    """)
    sdiv(b, 44, 39, 18, 288)
    b(f"""
    s_mul_i32 s44, s44, {WFS-18*CH}
    s_mul_i32 s39, s39, {CH}
    s_add_u32 s58, s39, s44
    s_lshl_b32 s38, s38, 10
    s_add_u32 s58, s58, s38
    s_add_u32 s58, s58, {WF}
    v_lshl_add_u32 v12, v8, 10, v12
    v_lshl_add_u32 v{TR}, v13, 5, v12
    v_xor_b32 v{TR+1}, {512+64}, v{TR}
    s_branch a_raw3
a_raw2:
    s_load_dwordx2 s[54:55], s[0:1], {ARG['w2']}
    s_sub_u32 s38, s2, 144
    """)
    sdiv(b, 39, 38, 9, 112)
    b(f"""
    s_mul_i32 s44, s39, 9
    s_sub_u32 s38, s38, s44
    s_mul_i32 s56, s39, {576*1152}
    s_lshl_b32 s44, s38, 7
    s_add_u32 s56, s56, s44
    s_mov_b32 s41, 1152
    s_mov_b32 s8, 0
    s_mov_b32 s59, {CH}
    s_lshl_b32 s38, s38, 2
    s_add_u32 s38, s38, s{SW}
    """)
    sdiv(b, 44, 38, 9, 36)
    b(f"""
    s_lshl_b32 s45, s39, 1
    s_sub_u32 s45, s45, s44
    s_and_b32 s45, s45, 3
    s_mov_b32 s9, {9216-9*CH}
    s_cmp_eq_u32 s45, 3
    s_cselect_b32 s9, {-3*9216-9*CH}, s9
    s_mul_i32 s45, s45, 9216
    s_mul_i32 s44, s44, {WFS-9216}
    s_lshl_b32 s38, s38, 10
    s_add_u32 s58, s38, s44
    s_add_u32 s58, s58, s45
    s_lshr_b32 s44, s39, 1
    s_mul_i32 s44, s44, {4*WFS}
    s_add_u32 s58, s58, s44
    s_add_u32 s58, s58, {WF+18*CH}
    s_cmp_ge_u32 s2, 216
    s_cselect_b32 s58, {OOB}, s58
    v_lshl_add_u32 v12, v8, 9, v12
    v_and_b32 v8, 2, v8
    v_xor_b32 v13, v13, v8
    v_lshl_add_u32 v{TR}, v13, 5, v12
    v_add_u32 v{TR+1}, 2048, v{TR}
a_raw3:
    v_bfe_u32 v8, v0, 3, 3
    v_mul_lo_u32 v12, v8, s41
    v_and_b32 v8, 6, v8
    v_and_b32 v9, 7, v0
    v_xor_b32 v9, v9, v8
    v_lshl_add_u32 v{VD}, v9, 4, v12
    v_xor_b32 v9, 4, v9
    v_lshl_add_u32 v{VD+1}, v9, 4, v12
    s_lshl_b32 s52, s41, 3
    s_sub_u32 s38, s52, 1024
    v_add_u32 v{VD+1}, s38, v{VD+1}
    s_lshl_b32 s38, s38, 1
    v_add_u32 v{VD+2}, s38, v{VD}
    v_add_u32 v{VD+3}, s38, v{VD+1}
    s_lshl_b32 s57, s52, 4
    s_waitcnt lgkmcnt(0)
    """)


def phase_a(b):
    QM, QT, KM, KT, VF, S, O, MX, IDX = 16, 32, 64, 40, 80, 96, 160, 224, 228
    MEAN, ONE, SM, PF, PT, AF = 78, 80, 84, 48, 88, 112
    AV, AT, AK = 229, 231, 79
    OM, OT, MW, MR = 6, 7, 10, 11
    qm = lambda t: v(QM + 4 * t, 4)
    qt = lambda t: v(QT + 2 * t, 2)
    km = lambda k: a(KM + 4 * (k % 4), 4)
    kt = lambda k: v(KT + 2 * (k % 4), 2)
    vf = lambda k, g: a(VF + 8 * (k % 4) + 4 * g, 4)
    sb = lambda n: S + 16 * (n % 4)
    ob = lambda t: O + 16 * t
    m8 = lambda d, k, t: f"v_mfma_f32_32x32x8_bf16 {v(d,16)}, {kt(k)}, {qt(t)}, 0"
    m16 = lambda d, k, t: f"v_mfma_f32_32x32x16_bf16 {v(d,16)}, {km(k)}, {qm(t)}, {v(d,16)}"
    smf = lambda t, k, g, p: f"v_smfmac_f32_32x32x32_bf16 {v(ob(t),16)}, {vf(k,g)}, {v(p+8*g,8)}, v{IDX}"

    def rec_loads(k):
        tg = f" ;#r{k%4}"
        return [f"buffer_load_dwordx4 {km(k)}, v{AK}, s[16:19], s46 offen sc1{tg} ;#k{k%4}",
                f"buffer_load_dword v{KT+2*(k%4)}, v{AT}, s[16:19], s46 offen offset:2176 sc1{tg} ;#k{k%4}",
                f"buffer_load_dwordx4 {vf(k,0)}, v{AV}, s[16:19], s46 offen sc1{tg}",
                f"buffer_load_dwordx4 {vf(k,1)}, v{AV+1}, s[16:19], s46 offen sc1{tg}"]

    def wo_mode(b, start):
        b(f"""
        s_and_b32 s38, s{SJ}, 3
        s_mul_i32 s38, s38, {WOS}
        s_add_u32 s38, s38, {WO + 36*1024}
        s_lshl_b32 s56, s{SW}, 12
        s_add_u32 s56, s56, {start-16384}
        s_mov_b32 m0, s56
        s_mov_b32 s57, 16384
        """)
        window(b, 20, 38, 128 * 1024)
        for k in range(4):
            b(f"v_mov_b32 v{VD+k}, v1")

    slots_off = f"s_mov_b32 s56, {OOB}\ns_mov_b32 s57, 0\ns_mov_b32 s40, 0\ns_mov_b32 m0, {LOFF}"
    b(f"""
    s_lshr_b32 s37, s{SW}, 1
    s_lshl_b32 s34, s{SJ}, 1
    s_add_u32 s34, s34, s37
    s_and_b32 s35, s{SW}, 1
    s_mul_i32 s38, s37, 4608
    s_add_u32 s38, s38, {QX}
    s_mul_i32 s39, s35, 2304
    s_add_u32 s40, s38, s39
    s_sub_u32 s41, s38, s39
    v_and_b32 v4, 31, v0
    v_bfe_u32 v5, v0, 5, 1
    v_lshlrev_b32 v6, 2, v4
    v_add_u32 v8, s40, v1
    v_add_u32 v9, s41, v1
    v_add_u32 v12, s40, v6
    v_add_u32 v13, s41, v6
    v_cmp_eq_u32 s[50:51], 0, v5
    s_mul_i32 s38, s35, 1536
    s_mul_i32 s39, s37, 384
    s_add_u32 s38, s38, s39
    s_add_u32 s38, s38, {TIM+128}
    v_add_u32 v15, s38, v6
    s_mul_i32 s39, s37, {REC}
    s_waitcnt lgkmcnt(0)
    s_barrier
    ds_read_b128 {km(0)}, v8 offset:9216
    ds_read_b32 v{KT}, v15
    """)
    for t in range(4):
        b(f"ds_read_b128 {qm(t)}, v{8 + t // 2} offset:{1152*t}")
        b(f"ds_read_b32 v{QT+2*t}, v{12 + t // 2} offset:{1152*t+1024}")
    b(f"""
    s_mul_i32 s38, s{SJ}, {KVJ}
    s_add_u32 s38, s38, s39
    s_mul_i32 s39, s35, {64*REC}
    s_add_u32 s38, s38, s39
    s_add_u32 s38, s38, s{SL}
    s_add_u32 s38, s38, {KV}
    s_mov_b32 s49, 0x07060302
    s_mov_b32 s47, 1
    s_mov_b32 s3, 0
    v_mov_b32 v{KT+1}, 0x3f803f80
    s_waitcnt vmcnt(5) lgkmcnt(0)
    """)
    window(b, 16, 38, 63 * REC)
    for t in range(4):
        b(f"v_cndmask_b32 v{QT+2*t}, 0, v{QT+2*t}, s[50:51]")
    b("a_max:")
    for t in range(4):
        b(f"v_mov_b32 v{QT+2*t+1}, 0\nv_mov_b32 v{MX+t}, 0xff800000")
    b("s_mov_b32 s46, 0\ns_cmp_eq_u32 s3, 0\ns_cbranch_scc1 a_maxbody\na_maxloop:")
    b("\n".join(rec_loads(0)[:2]))
    b(f"s_add_u32 s46, s46, {2*REC}\ns_waitcnt vmcnt(0)\na_maxbody:")
    for t in range(4):
        b(m8(sb(t), 0, t))
        b(m16(sb(t), 0, t))
    b("s_cmp_lg_u32 s3, 0\ns_nop 3\ns_cbranch_scc1 q_sig")
    stamp(b, 5)
    signal(b, "q", C_KV, SJ)
    stamp(b, 6)
    for t in range(4):
        for i in range(8):
            b(f"v_max3_f32 v{MX+t}, v{sb(t)+2*i}, v{sb(t)+2*i+1}, v{MX+t}")
    b("s_sub_u32 s47, s47, 1\ns_cmp_lg_u32 s47, 0\ns_cbranch_scc1 a_maxloop")
    for i in range(64):
        b(f"v_mov_b32 v{O+i}, 0")
    b("s_cmp_lg_u32 s3, 0\ns_cbranch_scc1 a_go")
    wo_base(b, 0, 12)
    pb = B()
    pb(f"""
    v_lshlrev_b32 v8, 8, v5
    v_lshl_add_u32 v8, v4, 4, v8
    v_add_u32 v8, 1024, v8
    v_lshlrev_b32 v9, 5, v5
    v_lshl_add_u32 v9, v4, 4, v9
    v_add_u32 v9, {2048-256}, v9
    v_mov_b32 v12, {OOB}
    v_mov_b32 v13, 2304
    v_and_b32 v14, 27, v4
    v_cmp_eq_u32 vcc, 18, v14
    v_cmp_gt_u32 s[60:61], 18, v4
    v_cmp_gt_u32 s[36:37], 16, v4
    v_cndmask_b32 v13, v12, v13, vcc
    v_cndmask_b32 v14, v13, v9, s[60:61]
    v_cndmask_b32 v{AV}, v14, v8, s[36:37]
    v_add_u32 v8, 512, v8
    v_add_u32 v9, 64, v9
    v_cndmask_b32 v14, v13, v9, s[60:61]
    v_cndmask_b32 v{AV+1}, v14, v8, s[36:37]
    v_mov_b32 v{IDX}, 0xdddddddd
    v_bfe_u32 v8, v4, 2, 1
    v_lshrrev_b32 v9, 3, v4
    v_lshlrev_b32 v9, 2, v9
    v_lshl_add_u32 v8, v8, 4, v9
    v_and_b32 v9, 3, v4
    v_add_u32 v8, v8, v9
    v_lshlrev_b32 v{AT}, 2, v8
    v_lshlrev_b32 v8, 4, v8
    v_lshl_add_u32 v{AK}, v5, 9, v8
    v_lshlrev_b32 v13, 2, v4
    v_lshrrev_b32 v{OM}, 4, v4
    v_lshlrev_b32 v{OM}, 14, v{OM}
    v_and_b32 v8, 15, v4
    v_lshl_add_u32 v{OM}, v8, 4, v{OM}
    v_and_b32 v8, 35, v0
    v_cmp_eq_u32 vcc, 0, v8
    v_lshl_add_u32 v{OM}, v5, 8, v{OM}
    s_lshl_b32 s42, s{SI}, 1
    v_cndmask_b32 v{OT}, v12, v13, vcc
    s_add_u32 s42, s42, 1
    s_sub_u32 s42, s42, s35
    s_mul_i32 s42, s42, 73728
    s_add_u32 s42, s42, s{SL}
    s_add_u32 s42, s42, {OB}
    s_lshl_b32 s43, s34, 9
    s_add_u32 s43, s43, s42
    s_lshl_b32 s44, s34, 7
    s_add_u32 s42, s42, s44
    s_add_u32 s42, s42, 32768
    s_mul_i32 s44, s{SW}, 6144
    s_xor_b32 s45, s{SW}, 1
    s_mul_i32 s45, s45, 6144
    s_add_u32 s44, s44, {QX}
    s_add_u32 s45, s45, {QX}
    v_add_u32 v{MW}, s44, v1
    v_add_u32 v{MR}, s45, v1
    """)
    for k in range(1, 4):
        pb(f"v_mov_b32 v{KT+2*k+1}, 0x3f803f80")
    for i in range(8):
        pb(f"v_accvgpr_write_b32 a{VF+24+i}, 0")
    lines, lds = [x.strip() for x in pb.lines], wo_loads(0, 12)
    for i, x in enumerate(lines):
        if i % 5 == 0 and lds:
            b(lds.pop(0))
        b(x)
    assert not lds
    b(f"s_mov_b32 s40, 16384\ns_cmp_eq_u32 s{SL}, 0\ns_cbranch_scc1 a_jobs\ns_mov_b32 s32, 4")
    wo_mode(b, 0)
    b("a_init:")
    side = B()
    side("a_jobs:")
    layer0_jobs(side, ONE, SM, PF, PT, AF)
    side("s_branch a_init")
    stamp(b, 7)
    poll(b, "a", C_KV, SJ, 16, True)
    stamp(b, 8)
    b("a_go:\ns_mov_b32 s46, 0")
    for k in range(3):
        b("\n".join(rec_loads(k)))
        if k < 2:
            b(f"s_add_u32 s46, s46, {2*REC}")
    slot = lambda k: f"buffer_load_dwordx4 v{VD+k}, s[20:23], s56 offen" + (f" offset:{1024*k}" if k else "") + " lds"
    b(f"""
    s_mov_b32 s47, 8
    s_cmp_lg_u32 s32, 0
    s_cbranch_scc1 a_nopre
    s_mov_b32 s47, 4
    s_lshl_b32 s38, s{SW}, 1
    s_add_u32 s38, s38, 64
    s_lshl_b32 m0, s38, 10
    s_mul_i32 s38, s38, s41
    s_add_u32 s38, s38, s56
    buffer_load_dwordx4 v{VD}, s[20:23], s38 offen lds
    buffer_load_dwordx4 v{VD+1}, s[20:23], s38 offen offset:1024 lds
    s_lshl_b32 s38, s{SW}, 2
    s_sub_u32 s38, s38, 16
    s_lshl_b32 m0, s38, 10
    s_mul_i32 s38, s38, s41
    s_add_u32 s56, s56, s38
a_nopre:
    """)
    x0 = sb(2)
    for t in range(4):
        b(f"""
        v_mov_b32 v{x0}, v{MX+t}
        v_mov_b32 v{sb(3)+4*t}, 0
        v_mov_b32 v{sb(3)+4*t+1}, 0
        v_permlane32_swap_b32 v{MX+t}, v{x0}
        v_mov_b32 v{sb(3)+4*t+2}, 0
        v_max_f32 v{MX+t}, v{MX+t}, v{x0}
        v_sub_f32 v{x0}, 0, v{MX+t}
        v_and_b32 v{x0+1}, 0xffff0000, v{x0}
        v_sub_f32 v{x0+2}, v{x0}, v{x0+1}
        v_and_b32 v{x0+3}, 0xffff0000, v{x0+2}
        v_sub_f32 v{x0+2}, v{x0+2}, v{x0+3}
        v_perm_b32 v{x0+1}, v{x0+3}, v{x0+1}, s49
        v_lshrrev_b32 v{x0+2}, 16, v{x0+2}
        v_cndmask_b32 v{QT+2*t+1}, v{x0+2}, v{x0+1}, s[50:51]
        v_mov_b32 v{sb(3)+4*t+3}, 0
        """)
    b("s_waitcnt vmcnt(@k0)")
    for t in range(2):
        b(m8(sb(t), 0, t))
        b(m16(sb(t), 0, t))
    b("s_nop 8")
    stamp(b, 9)
    b(".p2align 3\na_loop:")
    for n in range(16):
        k, t = divmod(n, 4)
        e = [f"v_exp_f32 v{sb(n)+i}, v{sb(n)+i}" for i in range(16)]
        qk, qtile = (n + 2) // 4, (n + 2) % 4
        pk, pt = (n - 1) // 4, (n - 1) % 4
        b(m8(sb(n + 2), qk, qtile))
        b("\n".join(e[0:4]))
        b(m16(sb(n + 2), qk, qtile))
        if t == 1:
            b(f"s_waitcnt vmcnt(@r{k})")
        if t == 0:
            b(f"s_add_u32 s46, s46, {2*REC}")
        if n == 14:
            b("s_sub_u32 s47, s47, 1")
        if n == 15:
            b("s_cmp_lg_u32 s47, 0")
        b("\n".join(e[4:8]))
        b(smf(pt, pk, 0, sb(n - 1)))
        b(rec_loads(k + 3)[t])
        b("\n".join(e[8:12]))
        b(smf(pt, pk, 1, sb(n - 1)))
        if t == 1:
            b(f"s_waitcnt vmcnt(@k{(k+1)%4})")
        if t == 3:
            b(slot(k))
        if n == 0:
            b("s_add_u32 s56, s56, s57\ns_add_u32 m0, m0, s40")
        b("\n".join(e[12:16]))
    b("s_cbranch_scc1 a_loop\ns_cmp_lt_u32 s32, 4\ns_cbranch_scc1 a_break")
    stamp(b, 10)
    c = side
    c("a_break:")
    bstamp(c, 0)
    c("s_cmp_lg_u32 s32, 0\ns_cbranch_scc1 a_brk1")
    wo_mode(c, 80 * 1024)
    c("s_branch a_resume\na_brk1:\ns_cmp_lg_u32 s32, 1\ns_cbranch_scc1 a_brk2\ns_waitcnt lgkmcnt(0)\ns_barrier")
    for i in range(25):
        if i < 18:
            for h in range(2):
                c(f"ds_read_b64_tr_b16 {a(AF+4*i+2*h,2)}, v{TR+h} offset:{4096*(i%9)}")
            if i in (8, 17):
                st = 36864 if i == 8 else -36864
                c(f"v_add_u32 v{TR}, {st}, v{TR}\nv_add_u32 v{TR+1}, {st}, v{TR+1}")
        if 6 <= i < 24:
            k = i - 6
            c(f"s_waitcnt lgkmcnt({2*min(6, 17-k)})")
            c(mf16(v(SM, 4), v(ONE, 4), a(AF + 4 * k, 4), "0" if k == 0 else v(SM, 4)))
    prd = lambda i: "\n".join(f"ds_read_b64_tr_b16 {v(PF+4*i+2*h,2)}, v{TR+h} offset:{4096*i}" for h in range(2))
    for i in range(6):
        c(prd(i))
    c(f"""
    v_mul_f32 v{MEAN}, s8, v{SM}
a_brk2:
    v_add_u32 v{TR}, 24576, v{TR}
    v_add_u32 v{TR+1}, 24576, v{TR+1}
    s_cmp_eq_u32 s32, 2
    s_cselect_b32 s38, s9, 0
    s_waitcnt lgkmcnt(0)
    """)
    centre(c, PF, 6, PT, MEAN, lambda k: f"buffer_store_dwordx4 {v(PF+4*k,4)}, v1, s[12:15], s58 offen sc1\ns_add_u32 s58, s58, s59"
           + ("\ns_add_u32 s58, s58, s38" if k == 2 else "") + ("\n" + prd(k - 1) if k else ""))
    c(prd(5))
    c(f"s_cmp_lg_u32 s32, 3\ns_cbranch_scc1 a_resume\n{slots_off}")
    c("a_resume:")
    bstamp(c, 1)
    c("s_add_u32 s32, s32, 1\ns_mov_b32 s47, 1\ns_branch a_loop")
    c(f"a_redo:\ns_mov_b32 s3, 1\ns_mov_b32 s47, 32\n{slots_off}\ns_waitcnt vmcnt(0)\ns_branch a_max")
    b(smf(3, 3, 0, sb(3)))
    b("s_waitcnt lgkmcnt(0)")
    b(f"v_mov_b32 v{ob(0)+11}, v{MX}\nv_mov_b32 v{ob(1)+11}, v{MX+1}")
    b(smf(3, 3, 1, sb(3)))
    for t in range(2):
        for i in range(3):
            b(f"ds_write_b128 v{MW}, {v(ob(t)+4*i,4)} offset:{3072*t+1024*i}")
    b(f"""
    v_max3_f32 v8, v{ob(0)+10}, v{ob(1)+10}, v{ob(2)+10}
    v_mov_b32 v9, 0x53800000
    v_cmp_u_f32 s[52:53], v{ob(0)+10}, v{ob(1)+10}
    s_and_b32 s38, s2, 7
    s_lshl_b32 s38, s38, 7
    s_add_u32 s38, s38, s{SC}
    v_max_f32 v8, v{ob(3)+10}, v8
    v_cmp_u_f32 s[54:55], v{ob(2)+10}, v{ob(3)+10}
    v_cmp_nlt_f32 vcc, v8, v9
    s_add_u32 s38, s38, {C_PREP}
    s_or_b64 s[52:53], s[52:53], s[54:55]
    s_or_b64 vcc, vcc, s[52:53]
    s_cmp_eq_u32 s3, 0
    s_cselect_b64 vcc, vcc, 0
    s_waitcnt lgkmcnt(0)
    s_cbranch_vccnz a_redo
    s_barrier
    """)
    for t in range(2):
        for i in (2, 0, 1):
            b(f"ds_read_b128 {v(sb(t)+4*i,4)}, v{MR} offset:{3072*t+1024*i}")
    for t in range(2):
        P, o0, pk = sb(t), ob(2 + t), QM + 8 * t
        b(f"""
        s_waitcnt lgkmcnt({5 - 3*t})
        v_max_f32 v8, v{MX+2+t}, v{P+11}
        v_sub_f32 v9, v{MX+2+t}, v8
        v_sub_f32 v8, v{P+11}, v8
        v_exp_f32 v9, v9
        v_exp_f32 v8, v8
        v_mul_f32 v12, v9, v{o0+10}
        v_fmac_f32 v12, v8, v{P+10}
        v_rcp_f32 v12, v12
        s_waitcnt lgkmcnt({3 - 3*t})
        v_pk_mul_f32 v[8:9], v[8:9], v[12:13] op_sel_hi:[1:0]
        """)
        for i in (8, 0, 2, 4, 6):
            b(f"v_pk_mul_f32 {v(o0+i,2)}, v[8:9], {v(o0+i,2)} op_sel:[1:0] op_sel_hi:[1:1]")
        for i in (8, 0, 2, 4, 6):
            b(f"v_pk_fma_f32 {v(o0+i,2)}, v[8:9], {v(P+i,2)}, {v(o0+i,2)} op_sel_hi:[0:1:1]")
        for i in (4, 0, 1, 2, 3):
            b(f"v_cvt_pk_bf16_f32 v{pk+i}, v{o0+2*i}, v{o0+2*i+1}")
        b(f"buffer_store_dwordx4 {v(pk,4)}, v{OM}, s[12:15], s43 offen sc1")
        for i in range(1, 4):
            b(f"v_mov_b32 v{pk+4+i}, v{pk+4} quad_perm:[{i}:{i}:{i}:{i}] row_mask:0xf bank_mask:0xf")
        b(f"buffer_store_dwordx4 {v(pk+4,4)}, v{OT}, s[12:15], s42 offen sc1")
        if t == 0:
            b("s_add_u32 s42, s42, 36864\ns_add_u32 s43, s43, 36864")
    stamp(b, 11)
    signal(b, "a", C_O, SI, extra=38)
    stamp(b, 12)
    return side.text()


def res_swap(b):
    for n in range(3):
        for k in range(4):
            b(f"v_permlane16_swap_b32 v{RES+8*n+k}, v{RES+8*n+4+k}")


def tile_base(b, dst, tmp):
    b(f"""
    s_and_b32 s{dst}, s{SJ}, 3
    s_mul_i32 s{dst}, s{dst}, 3
    s_add_u32 s{dst}, s{dst}, s{SW}
    s_mul_i32 s{dst}, s{dst}, 1536
    s_mul_i32 s{tmp}, s{STJ}, 36864
    s_add_u32 s{dst}, s{dst}, s{tmp}
    """)


def phase_o(b):
    PK, OF = 16, 56
    NB = int(OPT.get('nb', 80))
    b(f"""
    s_cmp_eq_u32 s{SW}, 3
    s_cbranch_scc1 o_nowo
    s_lshl_b32 s38, s{SW}, 14
    s_add_u32 s38, s38, {80*1024}
    v_add_u32 v6, s38, v1
    s_mul_i32 s38, s{SW}, {26*1024}
    v_add_u32 v7, s38, v1
    s_cmp_eq_u32 s{SL}, 0
    s_cbranch_scc1 o_first
    """)
    side = B()
    side("o_first:")
    wo_base(side, 36, 26)
    side("\n".join(wo_loads(12, 38)))
    for k in range(12):
        side(f"v_lshlrev_b32 v{RES+2*k}, 16, v{RES+12+k}\nv_and_b32 v{RES+2*k+1}, 0xffff0000, v{RES+12+k}")
    side("s_branch o_rest")
    for n in range(12, 38):
        b(f"ds_read_b128 {a(4*n,4)}, v7 offset:{1024*(n-12)}")
        if n % 8 == 7:
            b("s_waitcnt lgkmcnt(4)")
    b("s_waitcnt lgkmcnt(4)\no_rest:")
    for n in range(38, 54):
        b(f"ds_read_b128 {a(4*n,4)}, v6 offset:{1024*(n-38)}")
        if n == 45:
            b("s_waitcnt lgkmcnt(4)")
    b(f"o_nowo:\ns_mul_i32 s38, s{SJ}, {WFS}\ns_add_u32 s38, s38, {WF}")
    window(b, 16, 38, WFS)
    b(f"s_cmp_eq_u32 s{SL}, 0\ns_cselect_b32 s18, s18, {27*CH}")
    unit_offset(b, 5, 6, 7)
    stats_target(b)
    res_swap(b)
    tile_base(b, 34, 35)
    b(f"""
    s_lshl_b32 s38, s{SW}, 10
    s_add_u32 s37, s35, s38
    s_add_u32 s37, s37, s{SL}
    s_add_u32 s37, s37, {OB}
    s_add_u32 s38, s38, {3*CH}
    v_add_u32 v6, {3*CH}, v1
    s_add_u32 s36, s34, s{SL}
    s_add_u32 s36, s36, {X1}
    v_bfe_u32 v7, v0, 4, 2
    v_and_b32 v8, 15, v0
    v_lshlrev_b32 v7, 9, v7
    v_lshl_add_u32 v7, v8, 2, v7
    v_add_u32 v7, {3*CH+32768}, v7
    v_add_u32 v8, 2048, v7
    s_waitcnt lgkmcnt(0)
    """)
    stamp(b, 13)
    poll(b, "o", C_O, SI, 16, True)
    stamp(b, 14)
    for i in range(9):
        off = 4096 * (i // 2) + 16384 * (i % 2) if i < 8 else 32768
        b(f"s_add_u32 m0, s38, {off}\ns_add_u32 s39, s37, {off}\nbuffer_load_dwordx4 v1, s[12:15], s39 offen sc1 lds")
    b(f"s_waitcnt vmcnt(5)\ns_barrier")
    stamp(b, 15)
    b(f"s_cmp_eq_u32 s{SW}, 3\ns_cbranch_scc1 o_ring")
    of = lambda ks, rt: OF + (ks % 3) * 8 + rt * 4

    def rd(ks):
        if ks < 16:
            return [f"ds_read_b128 {v(of(ks,rt),4)}, v6 offset:{rt*16384+ks*1024}" for rt in range(2)]
        return [f"ds_read2_b32 {v(of(ks,rt)+2*k,2)}, v{7+ks-16} offset0:{16*rt+64*k} offset1:{16*rt+64*k+32}"
                for rt in range(2) for k in range(2)]

    for ks in range(2):
        b("\n".join(rd(ks)))
    for ks in range(18):
        mains = [mf16(v(RES + 8 * n + 4 * rt, 4), a((n * 18 + ks) * 4, 4), v(of(ks, rt), 4), v(RES + 8 * n + 4 * rt, 4))
                 for n in range(3) for rt in range(2)]
        pins = list(enumerate(rd(ks + 2))) if ks + 2 < 18 else []
        if ks == 5:
            pins += [(4, "s_waitcnt vmcnt(0)"), (4, "s_barrier")]
        if ks == 0:
            b("s_waitcnt lgkmcnt(2)")
        if ks < 17:
            pins.append((5, f"s_waitcnt lgkmcnt({len(rd(ks + 2)) if ks < 16 else 0})"))
        b(sched2(mains, pins, [])[0])
    b("s_nop 3")
    for n in range(3):
        for k in range(4):
            b(f"v_permlane16_swap_b32 v{RES+8*n+k}, v{RES+8*n+4+k}")
        pack4(b, PK + 4 * n, RES + 8 * n, RES + 8 * n + 4)
        b(f"buffer_store_dwordx4 {v(PK+4*n,4)}, v5, s[12:15], s36 offen offset:{512*n} sc1")
    stats_publish(b, S1)
    stamp(b, 16)
    signal(b, "o", C_X1, STJ, wave=0)
    stamp(b, 17)
    c = side
    c(f"""
o_ring:
    s_waitcnt vmcnt(0)
    s_barrier
    s_cmp_lg_u32 s{SL}, 0
    s_cbranch_scc1 o_ready
    """)
    if int(OPT.get("pf2", 0)):
        c("""
        s_getpc_b64 s[38:39]
o_pc:
        s_sub_u32 s38, s38, o_pc-o_sig
        s_subb_u32 s39, s39, 0
        s_bfe_u32 s40, s2, 0x50003
        s_lshl_b32 s40, s40, 10
        v_and_b32 v6, 7, v0
        v_lshl_add_u32 v6, v6, 7, s40
        v_min_u32 v6, main_code_end-o_sig-4, v6
        v_mov_b32 v7, s39
        v_add_co_u32 v6, vcc, s38, v6
        s_nop 1
        v_addc_co_u32 v7, vcc, 0, v7, vcc
        global_load_dword v8, v[6:7], off
        """)
    c(f"""
    v_and_b32 v6, 7, v0
    v_lshlrev_b32 v6, 7, v6
    s_add_u32 s60, s{SC}, {C_PREP}
    s_mov_b32 s61, 0x40000
o_prep:
    buffer_load_dword v4, v6, s[12:15], s60 offen sc1
    s_sub_u32 s61, s61, 1
    s_waitcnt vmcnt(0)
    v_cmp_gt_u32 vcc, 32, v4
    s_cbranch_scc1 o_ready
    s_cbranch_vccnz o_prep
o_ready:
    s_mov_b32 m0, 0
    s_mov_b32 s43, 0
o_fill:
    """)
    dma_run(c, 4, 16, 43, " sc1")
    c(f"""
    s_add_u32 m0, m0, 4096
    s_add_u32 s43, s43, 4096
    s_waitcnt vmcnt({int(OPT.get('th', 28))})
    s_cmp_lt_u32 s43, {NB*1024}
    s_cbranch_scc1 o_fill
    s_branch o_bar
    """)
    return c.text()


def phase_f(b):
    VS, NB = int(OPT.get("vs", 66)), int(OPT.get('nb', 80))
    LA, LB, DV, C1, C2, VP, VFL = 5, 6, 7, 10, 12, 14, 15
    ACC1, TMP, STG, FL, VH, ACC2, ST, ONE, UO, LO = 16, 48, 64, 72, 80, 84, 84, 100, 156, 157
    RING, NR, PD, HR = 144, 12, 8, 192
    xb = lambda ks, rt: a((ks * 2 + rt) * 4, 4)
    ring = lambda i: a(RING + 4 * (i % NR), 4)

    def hr(c, m, rt):
        u, o = c - 18, (m * 2 + rt) * 4
        if u in (2, 3):
            return v(160 + 32 * (u - 2) + o, 4)
        return a({0: HR, 1: HR + 32, 8: HR}.get(u, 32 * (u - 4)) + o, 4)

    P0 = int(OPT.get("p0", 11))
    SOFT, SG = int(OPT.get('sb', 1)), 1
    SFL, SFC, SFW, SFR = 224, 228, 229, 230
    b(f"""
    s_mul_i32 s43, s{SW}, {(144-NB)//4*1024}
    s_add_u32 s43, s43, {NB*1024}
    s_mov_b32 m0, s43
    s_mul_i32 s39, s{STW}, 36864
    """)
    pb = B()
    unit_offset(pb, UO, TMP, TMP + 1)
    pb(f"""
    s_mul_i32 s44, s{SW}, 9216
    v_add_u32 v{DV}, s44, v1
    s_lshl_b32 s45, s44, 1
    s_add_u32 s45, s45, {2*CH}
    v_add_u32 v{DV+1}, 4096, v{DV}
    v_add_u32 v{DV+2}, 8192, v{DV}
    s_mul_i32 s46, s{STW}, {16*18432}
    s_add_u32 s46, s46, s{SL}
    s_add_u32 s46, s46, {HB}
    s_and_b32 s35, s{SJ}, 12
    """)
    for m in range(4):
        pb(f"""
        s_add_u32 s34, s{SJ}, {m}
        s_and_b32 s34, s34, 3
        s_add_u32 s34, s34, s35
        s_mul_i32 s34, s34, 18432
        s_add_u32 s34, s34, s46
        v_add_u32 v{VH+m}, s34, v1
        """)
    pb(f"""
    s_mul_i32 s34, s{SJ}, 18432
    s_add_u32 s46, s46, s34
    s_lshl_b32 s41, s{STJ}, 7
    s_add_u32 s41, s41, s{SC}
    s_add_u32 s41, s41, {C_H}
    s_and_b32 s37, s{SJ}, 3
    s_lshl_b32 s34, s37, 2
    v_mov_b32 v{VFL}, s34
    v_mov_b32 v{VP}, {OOB}
    v_cmp_eq_u32 vcc, 0, v0
    s_mov_b32 s47, {P0//2}
    s_lshr_b32 s36, s{SJ}, 2
    v_cndmask_b32 v{VFL}, v{VP}, v{VFL}, vcc
    v_mov_b32 v{VP}, 1
    s_mul_i32 s34, s36, {SZX}
    s_mul_i32 s35, s{STW}, 36864
    s_add_u32 s34, s34, s35
    s_mul_i32 s35, s37, 4608
    s_add_u32 s34, s34, s35
    s_add_u32 s34, s34, s{SL}
    s_add_u32 s34, s34, {PART}
    s_lshl_b32 s35, s{SI}, 2
    s_add_u32 s37, s37, s35
    s_cmp_eq_u32 s36, s{SW}
    s_cselect_b32 s34, {OOB}, s34
    s_add_u32 s35, s34, 4096
    v_add_u32 v{LO}, {4*CH}, v1
    v_mov_b32 v{SFC}, 0
    v_and_b32 v{FL+2}, 3, v0
    v_lshlrev_b32 v{FL+2}, 2, v{FL+2}
    v_add_u32 v{SFR}, {4*CH+12288}, v{FL+2}
    s_lshl_b32 s38, s{SW}, 2
    s_add_u32 s38, s38, {4*CH+12288}
    v_mov_b32 v{SFW}, s38
    ds_write_b32 v{SFW}, v{SFC}
    s_mul_i32 s38, s{STW}, 3072
    s_add_u32 s38, s38, s{SL}
    s_add_u32 s38, s38, {S1}
    v_add_u32 v{LA}, {2*CH}, v1
    v_add_u32 v{LB}, {CH}, v1
    """)
    db = B()
    dma_run(db, (144 - NB) // 4, 16, 43, " sc1")
    dl, sl = [x.strip() for x in db.lines], [x.strip() for x in pb.lines]
    per = -(-len(sl) // ((144 - NB) // 4))
    for x in dl:
        b(x)
        if "buffer" in x:
            n = per + ("s_cmp" in "".join(sl[per-1:per]))
            b("\n".join(sl[:n]))
            sl = sl[n:]
    b("\n".join(sl + [f"s_mov_b32 s43, {4*CH}"]))
    b(f"s_add_u32 s39, s39, s{SL}\ns_add_u32 s39, s39, {X1}\ns_add_u32 s40, s39, 18432")
    rdf = lambda gi, i, base: f"ds_read_b128 {ring(gi)}, v{base} offset:{1024*i}"
    acc1 = lambda st, gu, rt: ACC1 + 16 * st + (gu * 2 + rt) * 4

    def rd01(j):
        if j >= 72:
            return rdf(j, j - 72, LA)
        return rdf(j, 2 * (j // 4) + j % 2, 1 if j % 4 < 2 else LB)

    stamp(b, 18)
    b(f"""
    s_lshl_b32 s60, s{STW}, 7
    s_add_u32 s60, s60, s{SC}
    s_add_u32 s60, s60, {C_X1}
    buffer_load_dword v4, v2, s[12:15], s60 offen sc1
    s_waitcnt vmcnt(1) lgkmcnt(0)
    s_barrier
    """)
    for j in range(PD):
        b(rd01(j))
    b("s_waitcnt vmcnt(0)\nv_cmp_gt_u32 vcc, 4, v4\ns_nop 0\ns_cbranch_vccz f_ok")
    poll(b, "f", C_X1, STW, 4, False)
    stamp(b, 19)

    def xload(ks, rt):
        off = f" offset:{1024*(ks%4)}" if ks % 4 else ""
        t = f"buffer_load_dwordx4 {xb(ks,rt)}, v1, s[12:15], s{39+rt} offen{off} sc1 ;#x{ks}"
        if ks % 4 == 3:
            t += f"\ns_add_u32 s{39+rt}, s{39+rt}, 4096"
        return t

    XA = int(OPT.get("xa", 4))
    for ks in range(XA):
        for rt in range(2):
            b(xload(ks, rt))
    mains, pinned = [], []
    for ks in range(18):
        g0 = 8 * ks
        for st in range(2):
            for gu in range(2):
                for rt in range(2):
                    d = v(acc1(st, gu, rt), 4)
                    mains.append(mf16(d, ring(4 * ks + 2 * st + gu), xb(ks, rt), "0" if ks == 0 else d))
        pinned += [(g0 + 2 * k, rd01(4 * ks + k + PD)) for k in range(4)]
        pinned.append((g0 + 7, f"s_waitcnt vmcnt(@x{ks+1}) lgkmcnt({PD-4})" if ks < 17 else "s_barrier"))
        if ks + XA < 18:
            for rt in range(2):
                for k, x in enumerate(xload(ks + XA, rt).split("\n")):
                    pinned.append((g0 + 1 + 4 * rt + k, x))
        if ks in (1, 3, 5):
            pinned.append((g0 + 3, stats_loads(ST, 38)[ks // 2]))
    NL = fbits(-math.log2(math.e))
    ops = chain(stats_reduce(ST, ST, fbits(1e-5)) + [(f"v_rsq_f32 v{C1}, v{ST}", 1), f"v_rsq_f32 v{C1+1}, v{ST+1}", f"v_mov_b32 v{C2}, v{ST}", f"v_mov_b32 v{C2+1}, v{ST+1}",
                                    f"v_mul_f32 v{C1}, {NL}, v{C1}", f"v_mul_f32 v{C1+1}, {NL}, v{C1+1}"], earliest=8 * (6 + XA))
    b(f"s_waitcnt vmcnt(@x0) lgkmcnt({PD-4})")
    b(sched2(mains, pinned, ops)[0])
    b("s_nop 1")

    def dma(par, others=(), gate=None, sin=False):
        out, others = [], list(others)
        if sin:
            for _ in range(min(2, len(others))):
                out += [(x, 0) for x in others.pop(0)]
        per = len(others) / 9
        for i in range(9):
            if i % 4 == 0:
                out.append((f"s_add_u32 m0, s44, {4096*(i//4) + (0 if par else CH)}", 0))
            ld = f"buffer_load_dwordx4 v{DV+i//4}, s[16:19], s43 offen" + (f" offset:{1024*(i%4)}" if i % 4 else "") + f" sc1 lds ;#d{par}"
            out.append((ld, 1 if i % 4 == 0 else 0))
            take = len(others) if i == 7 else min(len(others), int((i + 1) * per + 0.999) - int(i * per + 0.999))
            for _ in range(take if i < 8 else 0):
                out += [(x, 0) for x in others.pop(0)]
        out.append((f"s_add_u32 s43, s43, {CH}", 0))
        if par == 0:
            out.append(("s_sub_u32 s44, s45, s44", 0))
        ops = chain(out)
        if gate:
            for o in ops:
                if "s[12:15]" in o.text:
                    o.deps.append((gate, 0))
        return ops

    def swiglu(st, half):
        ops, last = [], []
        for k in range(8):
            rt, i = divmod(k, 4)
            g, u = acc1(st, 0, rt) + i, acc1(st, 1, rt) + i
            t, p = TMP + k, TMP + 8 + k
            c = chain([f"v_mul_f32 v{t}, v{C1+rt}, v{g}", f"v_exp_f32 v{t}, v{t}",
                       f"v_fma_f32 v{t}, v{t}, v{C2+rt}, v{C2+rt}", f"v_rcp_f32 v{t}, v{t}"], earliest=3, dist=1)
            m = Op(f"v_mul_f32 v{p}, v{g}, v{u}", earliest=4)
            f = Op(f"v_mul_f32 v{p}, v{p}, v{t}", [(c[-1], 1), (m, 0)])
            ops += c + [m, f]
            for o in c + [m, f]:
                o.bias = 3 * (1 - rt)
            last.append(f)
            if k % 2:
                cv = Op(f"v_cvt_pk_bf16_f32 v{STG+4*rt+2*half+i//2}, v{p-1}, v{p}", [(last[-2], 0), (f, 0)])
                ops.append(cv)
                if half and i == 3:
                    st_ = Op(f"buffer_store_dwordx4 {v(STG+4*rt,4)}, v1, s[12:15], s46 offen" + (" offset:1024" if rt else "") + " sc1",
                             [(cv, 0), (prevcv, 0)])
                    ops.append(st_)
                    if rt:
                        ops.append(Op("s_add_u32 s46, s46, 2048", [(st_, 0), (prevst, 0)]))
                    prevst = st_
                prevcv = cv
        return ops

    stage = [[], [], [], [], [], [], []]
    for k in range(8):
        rt, i = divmod(k, 4)
        g, u, t, p = acc1(0, 0, rt) + i, acc1(0, 1, rt) + i, TMP + k, TMP + 8 + k
        for n, x in enumerate([f"v_mul_f32 v{t}, v{C1+rt}, v{g}", f"v_exp_f32 v{t}, v{t}", f"v_mul_f32 v{p}, v{g}, v{u}",
                               f"v_fma_f32 v{t}, v{t}, v{C2+rt}, v{C2+rt}", f"v_rcp_f32 v{t}, v{t}", f"v_mul_f32 v{p}, v{p}, v{t}"]):
            stage[n].append(x)
        if k % 2:
            stage[6].append(f"v_cvt_pk_bf16_f32 v{STG+4*rt+i//2}, v{p-1}, v{p}")
    flat, dm = [x for st in stage for x in st], [o.text for o in dma(1)]
    for i, x in enumerate(flat):
        if i % 4 == 0 and dm:
            b(dm.pop(0))
        b(x)
    assert not dm
    stamp(b, 20)
    b(f"s_waitcnt lgkmcnt({PD-4})\ns_branch f_p1b")

    progress = lambda: chain([f"v_add_u32 v{VP}, 1, v{VP}", f"buffer_store_dword v{VP}, v{VFL}, s[12:15], s41 offen sc1"])
    slow = []
    flag_load = lambda par: [[f"buffer_load_dword v{FL+par}, v{FL+2}, s[12:15], s41 offen sc1"]]

    def guard(tag, load, wait, cmp, earliest):
        slow.append(f"""
{tag}_spin:
        s_mov_b32 s61, 0x80000
{tag}_again:
        {load}
        s_sub_u32 s61, s61, 1
        s_waitcnt {wait}(0)
        {cmp}
        s_cbranch_scc1 {tag}_back
        s_cbranch_vccnz {tag}_again
        s_branch {tag}_back
        """)
        c = chain([cmp, (f"s_cbranch_vccnz {tag}_spin\n{tag}_back:", 2)], earliest=earliest)
        for o in c:
            o.urgent = True
        return c

    check = lambda par, tag, need: guard(tag, flag_load(par)[0][0], "vmcnt", f"v_cmp_gt_u32 vcc, {need}, v{FL+par}", 0)
    soft_read = f"ds_read_b32 v{SFL}, v{SFR}"
    soft_check = lambda: guard(f"fs{len(slow)}", soft_read, "lgkmcnt", f"v_cmp_gt_u32 vcc, v{SFC}, v{SFL}", SG + 6)

    def chunk(mains, par, extra, pins=(), order=None, nxt_order=None, last=False, endtag='', loads=(), gate=None, prog=False, sin=False, sout=False):
        cur, nxt = (LA, LB) if par == 0 else (LB, LA)
        order = order or list(range(36))
        nxt_order = nxt_order or list(range(36))
        pinned = list(pins)
        for i in range(36):
            j = i + PD
            if j < 36 or not last:
                pinned.append((2 * i, rdf(j, order[j] if j < 36 else nxt_order[j - 36], cur if j < 36 else nxt)))
            if i % 4 == 3 and not (last and i == 35):
                n = PD - 4 if not last else max(0, min(PD - 4, 36 - (i + 5)))
                vm = ""
                if sin and 2 * i + 1 == SG + 6:
                    n = 3
                if sout:
                    if i == 31:
                        vm = f"vmcnt(@d{1-par}) "
                    if i == 35:
                        n += 1
                elif i == 35:
                    vm = f"vmcnt(@d{1-par}{endtag}) "
                pinned.append((2 * i + 1, f"s_waitcnt {vm}lgkmcnt({n})"))
        if not last:
            pinned.append((40, f"v_xor_b32 v{nxt}, {2*CH}, v{nxt}"))
        st = [o for o in extra[1] if 'store' in o.text]
        rest = [o for o in extra[1] if 'store' not in o.text]
        dm, pr, sc = dma(par, loads, gate, sin), (progress() if prog else []), []
        if sin:
            sc = soft_check()
            if gate:
                sc[0].deps.append((gate, 0))
            pinned.append((SG, soft_read))
            for o in dm + pr:
                if " lds" in o.text or "store" in o.text:
                    o.deps.append((sc[-1], 0))
        if sout:
            pinned += [(62, f"v_add_u32 v{SFC}, 1, v{SFC}"), (65, f"ds_write_b32 v{SFW}, v{SFC}")]
        txt, over, lastgap = sched2(mains, pinned, extra[0] + sc + pr + st + dm + rest, vspan=VS, vstart=1)
        b(txt)
        if not last and not sout:
            b("s_barrier")
        return over, lastgap

    def p1_mains(st):
        return [mf16(v(acc1(st, gu, rt), 4), ring(2 * ks + gu), xb(ks, rt), "0" if ks == 0 else v(acc1(st, gu, rt), 4))
                for ks in range(18) for gu in range(2) for rt in range(2)]

    acc2 = lambda tl, rt: ACC2 + (tl * 2 + rt) * 4

    def p2_mains(c, first=False):
        return [mf16(v(acc2(tl, rt), 4), ring(9 * m + tl), hr(c, m, rt), "0" if first and m == 0 else v(acc2(tl, rt), 4))
                for m in range(4) for tl in range(9) for rt in range(2)]

    plan = {c: [] for c in range(P0, 27)}
    early = [(u, m, rt) for u in range(4) for m in range(4) for rt in range(2)]
    quota = {c: 0 for c in range(P0, 18)}
    for _ in early:
        c = min(quota, key=lambda c: (quota[c] + (0 if c % 2 else 1), c))
        quota[c] += 1
    for c in quota:
        plan[c], early = early[:quota[c]], early[quota[c]:]
    late = [(u, m, rt) for u in range(4, 8) for m in range(4) for rt in range(2)]
    L0, L1 = int(OPT.get("l0", 18)), int(OPT.get("l1", 24))
    for k, x in enumerate(late):
        plan[L0 + k * (L1 - L0) // len(late)].append(x)
    plan[24] += [(8, m, rt) for m in range(4) for rt in range(2)]
    need = {c: max([u for u, _, _ in plan[c]], default=-3) + 3 for c in plan}
    checks, seen = {}, 0
    for c in plan:
        if c % 2 == 0 and c - 2 < P0:
            continue
        want = max(need[c], need[c + 1] if c == P0 else 0)
        if want > seen:
            want = max([want] + [need[d] for d in plan if need[d] <= (c - 3) // 2])
            checks[c] = seen = want
    print("h plan", {c: len(x) for c, x in plan.items()}, "checks", checks, file=sys.stderr)

    def hstream(c):
        ld, cur = [], None
        for u, m, rt in plan[c]:
            off = 2048 * (u % 2) + 1024 * rt
            x = [f"buffer_load_dwordx4 {hr(18+u,m,rt)}, v{VH+m}, s[12:15], s47 offen" + (f" offset:{off}" if off else "") + f" sc1 ;#h{u}"]
            if u // 2 != cur:
                cur = u // 2
                x.insert(0, f"s_mov_b32 s47, {4096*cur}")
            ld.append(x)
        return ld

    over = []
    b(".p2align 3\nf_p1:")
    over.append(chunk(p1_mains(1), 1, ([], swiglu(0, 0)), loads=[[], [], [], [], []] + flag_load(1), prog=True, sin=SOFT, sout=SOFT))
    b("f_p1b:")
    over.append(chunk(p1_mains(0), 0, ([], swiglu(1, 1) + [Op("s_sub_u32 s47, s47, 1")]), sin=SOFT, sout=SOFT))
    b("s_cmp_lg_u32 s47, 0\ns_cbranch_scc1 f_p1")
    stamp(b, 21)
    tmaj = [9 * m + tl for tl in range(9) for m in range(4)]
    for c in range(P0, 26):
        ck = check(c % 2, f"f{c}", checks[c]) if c in checks else []
        gate = ck[-1] if ck else None
        front = ck
        loads = hstream(c) + (flag_load(c % 2) if c + 2 in checks else [])
        act = swiglu(1 - c % 2, 1 - c % 2) if c <= 18 else []
        over.append(chunk(p1_mains(c % 2) if c < 18 else p2_mains(c, c == 18), c % 2, (front, act),
                          endtag=f",h{c-17}" if c >= 17 else "", nxt_order=tmaj if c == 25 else None, loads=loads, gate=gate, prog=c % 2 and c <= 21, sin=SOFT and c == P0))
        if c in (17, 18, 24):
            stamp(b, {17: 22, 18: 23, 24: 24}[c])
    mains = [mf16(v(acc2(tl, rt), 4), ring(4 * tl + m), hr(26, m, rt), v(acc2(tl, rt), 4)) for tl in range(9) for m in range(4) for rt in range(2)]

    def out_tile(tl):
        r, p, q = ACC1 + 4 * tl, acc2(tl, 0), acc2(tl, 1)
        return [f"v_cvt_pk_bf16_f32 v{r}, v{p}, v{p+1}", f"v_cvt_pk_bf16_f32 v{r+1}, v{p+2}, v{p+3}",
                f"v_cvt_pk_bf16_f32 v{r+2}, v{q}, v{q+1}", f"v_cvt_pk_bf16_f32 v{r+3}, v{q+2}, v{q+3}",
                (f"v_permlane16_swap_b32 v{r}, v{r+2}", 1), (f"v_permlane16_swap_b32 v{r+1}, v{r+3}", 0),
                f"buffer_store_dwordx4 {v(r,4)}, v{UO}, s[12:15], s{34+tl//8} offen offset:{512*(tl%8)} sc1",
                f"ds_write_b128 v{LO}, {v(r,4)} offset:{1024*tl}"]

    outs, prev = [], None
    for tl in range(7):
        c = chain(out_tile(tl)[:7], earliest=8 * tl + 12, after=prev)
        outs += c
        prev = c[-1]
    over.append(chunk(mains, 0, (outs, []), order=tmaj, last=True))
    for tl in (7, 8):
        for t in out_tile(tl)[:7]:
            if isinstance(t, tuple):
                b(("s_nop 0\n" if t[1] else "") + t[0])
            else:
                b(t)
    b(f"s_cmp_lg_u32 s36, s{SW}\ns_cbranch_scc1 f_nokeep")
    for tl in range(9):
        b(out_tile(tl)[7])
    b("f_nokeep:")
    stamp(b, 25)
    signal(b, "f", C_P, 37)
    stamp(b, 26)
    b(f"s_cmp_lg_u32 s{SL}, 0\ns_cbranch_scc1 f_nowq")
    for o in dma(1):
        b(o.text + ("\ns_nop 0" if "m0," in o.text else ""))
    b("f_nowq:")
    print("ffn (overflow, last gap):", over, file=sys.stderr)
    return "\n".join(slow)


def phase_r(b, name):
    D0, PK, UO = 16, 80, 156
    side = B()
    stats_target(b)
    tile_base(b, 34, 35)
    b(f"""
    s_mul_i32 s35, s{SW}, 3072
    s_add_u32 s35, s35, {4*CH}
    v_add_u32 v6, s35, v1
    s_add_u32 s35, s34, s{SL}
    s_add_u32 s35, s35, {PART}
    """)
    d = lambda src, n: D0 + (src * 3 + n) * 4
    for n in range(3):
        b(f"ds_read_b128 {v(d(0,n),4)}, v6 offset:{1024*n}")
    for k in range(1, 4):
        b(f"s_add_u32 s38, s36, {k}\ns_and_b32 s38, s38, 3\ns_mul_i32 s38, s38, {SZX}\ns_add_u32 s{40+k}, s38, s35")

    def add(src, n):
        for j in range(4):
            for h in range(2):
                r = RES + 8 * n + 2 * j + h
                b(f"v_dot2_f32_bf16 v{r}, v{d(src,n)+j}, s{30+h}, v{r}")

    b(f"""
    s_mov_b32 s16, s12
    s_mov_b32 s17, s13
    s_mov_b32 s18, {SZX}
    s_mov_b32 s19, 0x20000
    v_mov_b32 v7, v{UO}
    s_cmp_eq_u32 s{SL}, 0
    s_cbranch_scc1 r_mid
    """)
    row_tile(b, 7, 34)
    b("s_mov_b32 s16, s6\ns_mov_b32 s17, s7\nr_mid:\ns_waitcnt lgkmcnt(0)")
    for n in range(3):
        add(0, n)
    poll(b, "r", C_P, 37, 4, True)
    stamp(b, 27)
    b(f"s_cmp_eq_u32 s{SW}, 3\ns_cbranch_scc1 r_idle")
    for n in range(3):
        for src in range(1, 4):
            b(f"buffer_load_dwordx4 {v(d(src,n),4)}, v{UO}, s[12:15], s{40+src} offen offset:{512*n} sc1 ;#p{src}{n}")
    b(f"s_cmp_lg_u32 s{SL}, 0")
    for n in range(3):
        for src in range(1, 4):
            b(f"s_waitcnt vmcnt(@p{src}{n})")
            add(src, n)
        pack4(b, PK + 4 * n, RES + 8 * n, RES + 8 * n + 4)
        b(f"""
        s_cbranch_scc1 r_out{n}
        buffer_store_dwordx4 {v(PK+4*n,4)}, v7, s[16:19], s34 offen offset:{512*n} sc1
r_back{n}:
        """)
        side(f"r_out{n}:\nbuffer_store_dwordx4 {v(PK+4*n,4)}, v7, s[16:19], s34 offen offset:{32*n}\ns_branch r_back{n}")
    b("s_cbranch_scc1 r_exit")
    stats_publish(b, S2)
    b(f"r_idle:\ns_cmp_lg_u32 s{SL}, 0\ns_cbranch_scc1 r_exit")
    stamp(b, 28)
    signal(b, "r", C_X2, STJ)
    if DIAG:
        stamp(b, 29)
        stamp_real(b, 31)
        stamp_flush(b, "2")
        stamp_real(b, 30)
        stamp(b, 0)
    b(f"""
    s_mov_b32 s{SL}, {LST}
    s_add_u32 s{SC}, s{SC}, {CL}
    s_branch layer
r_exit:
    """)
    return side.text()


def gen_main(name):
    b = B()
    JB = int(OPT.get("jb", 2))
    head(b, name, 256, [(4, "ws"), (6, "out"), (100, "x")])
    b(f"""
    v_lshrrev_b32 v5, 6, v0
    v_and_b32 v1, 63, v0
    v_lshlrev_b32 v1, 4, v1
    v_readfirstlane_b32 s{SW}, v5
    v_mov_b32 v2, 0
    v_mov_b32 v3, 1
    """)
    if int(OPT.get("role", 1)):
        b(f"""
        s_getreg_b32 s34, hwreg(HW_REG_XCC_ID, 0, 3)
        s_lshl_b32 s34, s34, 2
        s_lshr_b32 s35, s2, 6
        s_add_u32 s34, s34, s35
        v_mov_b32 v6, {4*CH}
        s_mov_b32 s36, 32
        s_waitcnt lgkmcnt(0)
        """)
        srd(b, 12, 4, 0, WS_END)
        b(f"""
        s_cmp_lg_u32 s{SW}, 0
        s_cbranch_scc1 role_wait
role_try:
        s_lshl_b32 s35, s34, 7
        s_add_u32 s35, s35, {CNT+C_ROLE}
        v_mov_b32 v4, 1
        s_mov_b64 exec, 1
        buffer_atomic_add v4, v2, s[12:15], s35 offen sc0 sc1
        s_mov_b64 exec, -1
        s_waitcnt vmcnt(0)
        v_readfirstlane_b32 s37, v4
        s_sub_u32 s36, s36, 1
        s_cbranch_scc1 role_got
        s_cmp_lt_u32 s37, 8
        s_cbranch_scc1 role_got
        s_add_u32 s34, s34, 1
        s_and_b32 s34, s34, 31
        s_branch role_try
role_got:
        s_and_b32 s35, s34, 3
        s_lshl_b32 s35, s35, 3
        s_add_u32 s35, s35, s37
        s_lshl_b32 s35, s35, 3
        s_lshr_b32 s34, s34, 2
        s_add_u32 s35, s35, s34
        v_mov_b32 v4, s35
        ds_write_b32 v6, v4
        s_waitcnt lgkmcnt(0)
role_wait:
        s_barrier
        ds_read_b32 v4, v6
        s_waitcnt lgkmcnt(0)
        v_readfirstlane_b32 s2, v4
        s_nop 0
        s_and_b32 s2, s2, 255
        """)
    b(f"""
    s_bfe_u32 s34, s2, {(4-JB) << 16}
    s_lshl_b32 s34, s34, {JB}
    s_bfe_u32 s35, s2, {(JB << 16) + 3}
    s_add_u32 s{SJ}, s34, s35
    s_bfe_u32 s34, s2, {((JB-1) << 16) + 4 - JB}
    s_lshl_b32 s34, s34, {5-JB}
    s_lshr_b32 s35, s2, {3+JB}
    s_add_u32 s{SI}, s34, s35
    s_lshl_b32 s34, s{SI}, 2
    s_add_u32 s{STW}, s34, s{SW}
    s_lshr_b32 s35, s{SJ}, 2
    s_add_u32 s{STJ}, s34, s35
    s_mov_b32 s{SL}, 0
    s_mov_b32 s{SC}, {CNT}
    s_mov_b32 s30, 0x3f80
    s_mov_b32 s31, 0x3f800000
    s_lshl_b32 s10, s{SW}, 10
    s_mul_i32 s11, s{SJ}, {WQH}
    s_add_u32 s11, s11, s10
    s_add_u32 s11, s11, {WQ}
    s_waitcnt lgkmcnt(0)
    """)
    srd(b, 12, 4, 0, WS_END)
    for i in range(11):
        b("s_mov_b32 m0, s10\ns_add_u32 s10, s10, 4096\nbuffer_load_dwordx4 v1, s[12:15], s11 offen lds\ns_add_u32 s11, s11, 4096")
    raw_setup(b)
    b("layer:")
    phase_q(b)
    slow = phase_a(b)
    slow += phase_o(b)
    slow += phase_f(b)
    slow += "\n" + phase_r(b, name)
    finish(b, name, "3")
    b(slow)
    b("main_code_end:")
    return dict(name=name, text=resolve_waits(b.text()), grid=256, block=256, lds=163840)


def build_all():
    import gen
    gen.OPT.clear()
    ks = [gen_prep("prep_kernel"), gen_main("main_kernel")]
    txt = gen.assemble(ks, [k["name"] for k in ks])
    return re.sub(r"(quad_perm|op_sel|op_sel_hi):\[([\d:]+)\]", lambda m: f"{m.group(1)}:[{m.group(2).replace(':', ',')}]", txt)


if __name__ == "__main__":
    for x in [x for x in sys.argv if "=" in x]:
        k, val = x.split("=")
        OPT[k] = val.replace("_", " ")
        sys.argv.remove(x)
    if "--diag" in sys.argv:
        DIAG = True
        sys.argv.remove("--diag")
    open(sys.argv[1], "w").write(build_all())
```

```python
import math, re, struct, sys
from asmlib import B, Prog, v, a, s, weave, Op, chain, sched, sched2, resolve_waits
from gen import fbits, sdiv, srd, mf16, transpose8, ARG, HEADER

SZX = 2048 * 576 * 2
REC = 2432
KVJ = 128 * REC
X2, OB, X1, PART, HB, KV = 0, SZX, 2 * SZX, 3 * SZX, 7 * SZX, 15 * SZX
S1 = KV + 16 * KVJ
S2 = S1 + 64 * 3072
LST = S2 + 64 * 3072
WQ = 2 * LST
WQH = 126 * 1024
WO = WQ + 16 * WQH
WOS = 164 * 1024
WF = WO + 4 * WOS
CH = 36864
WFS = 31 * CH
CNT = WF + 16 * WFS
WS_END = CNT + 131072
CL = 49152
C_PREP = 32 * 128
C_ROLE = 320 * 128
LOFF = 0x30000
C_KV, C_O, C_X1, C_X2, C_H, C_P = 0, 16 * 128, 64 * 128, 128 * 128, 192 * 128, 256 * 128
RES = 232
OOB = 0x40000000
QX = 131072
STAMPS = 200 << 20
OPT = {}
DIAG = False
SI, SJ, SL, SC, STW, STJ, SW = 24, 25, 26, 27, 28, 29, 33


def bstamp(b, k):
    if DIAG and OPT.get("brk"):
        b("s_memtime s[62:63]\ns_waitcnt lgkmcnt(0)")
        for st in range(4):
            b(f"s_cmp_eq_u32 s32, {st}\ns_cselect_b32 s{74+2*st+k}, s62, s{74+2*st+k}")


def stamp(b, i):
    if OPT.get("brk") and 10 <= i < 29:
        i = {10: 18}.get(i)
    if DIAG and i is not None:
        b(f"s_memtime s[62:63]\ns_waitcnt lgkmcnt(0)\ns_mov_b32 s{64+i}, s62")


def stamp_real(b, i):
    if DIAG:
        b(f"s_memrealtime s[62:63]\ns_waitcnt lgkmcnt(0)\ns_mov_b32 s{64+i}, s62")


def stamp_flush(b, slot):
    if not DIAG:
        return
    b(f"""
    s_lshl_b32 s62, {slot}, 8
    s_add_u32 s62, s62, s2
    s_lshl_b32 s62, s62, 4
    s_add_u32 s62, s62, s{SW}
    s_lshl_b32 s62, s62, 7
    s_add_u32 s96, s4, {STAMPS}
    s_addc_u32 s97, s5, 0
    s_mov_b32 s98, {32 << 20}
    s_mov_b32 s99, 0x20000
    v_mov_b32 v8, 0
    """)
    for q in range(8):
        for j in range(4):
            b(f"v_mov_b32 v{4+j}, s{64+4*q+j}")
        b(f"buffer_store_dwordx4 v[4:7], v8, s[96:99], s62 offen offset:{16*q}\ns_nop 1")


def head(b, name, nwg, loads):
    b(f"s_cmp_ge_u32 s2, {nwg}\ns_cbranch_scc1 {name}_end")
    if DIAG:
        for i in range(32):
            b(f"s_mov_b32 s{64+i}, 0")
        stamp_real(b, 30)
        stamp(b, 0)
    for reg, arg in loads:
        b(f"s_load_dwordx2 s[{reg}:{reg+1}], s[0:1], {ARG[arg]}")


def finish(b, name, slot):
    if DIAG:
        b("s_waitcnt vmcnt(0)")
        stamp(b, 29)
        stamp_real(b, 31)
        stamp_flush(b, slot)
    b(f"{name}_end:\ns_endpgm")


def window(b, d, off, size):
    b(f"s_add_u32 s{d}, s4, s{off}\ns_addc_u32 s{d+1}, s5, 0\ns_mov_b32 s{d+2}, {size}\ns_mov_b32 s{d+3}, 0x20000")


def ln_tail(b, A0, n, mean, rstd, dst):
    for j in range(n):
        b(f"v_sub_f32 v{A0+j}, v{A0+j}, v{mean}")
    for j in range(n):
        b(f"v_mul_f32 v{A0+j}, v{A0+j}, v{rstd}")
    for j in range(n // 2):
        b(f"v_cvt_pk_bf16_f32 v{dst+j}, v{A0+2*j}, v{A0+2*j+1}")


def ln_stats(b, sm, sq):
    b(f"""
    v_mul_f32 v{sm}, {fbits(1/576)}, v{sm}
    v_mul_f32 v{sq}, {fbits(1/576)}, v{sq}
    v_fma_f32 v{sq}, -v{sm}, v{sm}, v{sq}
    v_max_f32 v{sq}, 0, v{sq}
    v_add_f32 v{sq}, {fbits(1e-5)}, v{sq}
    """)


def row_reduce(b, sm, sq):
    b(f"""
    s_nop 1
    v_permlane32_swap_b32 v{sm}, v{sq}
    s_nop 0
    v_add_f32 v{sm}, v{sm}, v{sq}
    v_mov_b32 v{sq}, v{sm}
    s_nop 1
    v_permlane16_swap_b32 v{sm}, v{sq}
    s_nop 0
    v_add_f32 v{sm}, v{sm}, v{sq}
    s_nop 1
    v_add_f32 v{sm}, v{sm}, v{sm} row_ror:8 row_mask:0xf bank_mask:0xf
    """)


def gen_prep(name):
    b = B()
    head(b, name, 288, [(4, "ws"), (8, "x")])
    b(f"""
    v_lshrrev_b32 v5, 6, v0
    v_and_b32 v6, 15, v0
    v_lshrrev_b32 v7, 4, v0
    v_readfirstlane_b32 s33, v5
    s_cmp_ge_u32 s2, 216
    s_cbranch_scc1 {name}_wo
    s_load_dwordx2 s[6:7], s[0:1], {ARG['wqkv']}
    """)
    sdiv(b, 34, 2, 3, 216)
    b(f"""
    s_mul_i32 s35, s34, 3
    s_sub_u32 s35, s2, s35
    s_mul_i32 s38, s34, {8*3456}
    s_mul_i32 s36, s35, 1152
    s_add_u32 s38, s38, s36
    s_lshr_b32 s36, s34, 2
    s_mul_i32 s39, s36, 7168
    s_add_u32 s39, s39, {WQ}
    s_mov_b32 s22, {576*1728*2}
    s_mov_b32 s43, {4*3456}
    s_mov_b32 s44, {2*3456}
    s_mov_b32 s45, 3456
    s_cmp_eq_u32 s33, 8
    s_cbranch_scc1 {name}_qt
    v_lshrrev_b32 v8, 1, v7
    v_and_b32 v9, 1, v7
    v_mul_u32_u24 v10, 72, v8
    v_mul_u32_u24 v11, {WQH}, v8
    v_lshl_add_u32 v11, v9, 10, v11
    v_lshl_add_u32 v11, v6, 4, v11
    s_lshl_b32 s36, s35, 11
    s_add_u32 s39, s39, s36
    s_cmp_eq_u32 s35, 2
    s_cbranch_scc1 {name}_qv
    v_lshl_add_u32 v10, v9, 3, v10
    v_lshrrev_b32 v8, 3, v6
    v_mad_u32_u24 v10, v8, 36, v10
    v_bfe_u32 v8, v6, 2, 1
    v_lshl_add_u32 v10, v8, 4, v10
    v_and_b32 v8, 3, v6
    v_lshl_add_u32 v10, v8, 1, v10
    s_branch {name}_go
{name}_qv:
    v_mad_u32_u24 v10, v9, 36, v10
    v_lshl_add_u32 v10, v6, 1, v10
    s_branch {name}_go
{name}_qt:
    v_bfe_u32 v8, v0, 1, 5
    v_mul_u32_u24 v10, 36, v8
    v_and_b32 v8, 1, v0
    v_lshl_add_u32 v10, v8, 1, v10
    v_add_u32 v10, 32, v10
    v_bfe_u32 v8, v0, 2, 4
    v_mul_u32_u24 v11, {WQH}, v8
    v_and_b32 v8, 3, v0
    v_lshl_add_u32 v11, v8, 4, v11
    s_lshl_b32 s36, s35, 6
    s_add_u32 s39, s39, s36
    s_add_u32 s39, s39, 6144
    s_branch {name}_go
{name}_wo:
    s_load_dwordx2 s[6:7], s[0:1], {ARG['wo']}
    s_sub_u32 s34, s2, 216
    s_mov_b32 s35, 1
    s_mov_b32 s22, {576*576*2}
    s_lshr_b32 s38, s34, 1
    s_mul_i32 s38, s38, {18*1152}
    s_and_b32 s36, s34, 1
    s_mul_i32 s36, s36, {4*1152}
    s_add_u32 s38, s38, s36
    s_mov_b32 s43, {8*1152}
    s_mov_b32 s44, {2*1152}
    s_mov_b32 s45, 1152
    s_cmp_lt_u32 s34, 64
    s_cbranch_scc1 {name}_wo2
    s_sub_u32 s38, s34, 64
    s_mul_i32 s38, s38, {72*1152}
    s_add_u32 s38, s38, {16*1152}
    s_mov_b32 s43, {36*1152}
    s_mov_b32 s44, {18*1152}
{name}_wo2:
    s_mov_b32 s39, {WO}
    s_lshr_b32 s36, s34, 2
    v_lshlrev_b32 v10, 1, v0
    v_mul_u32_u24 v8, 43, v7
    v_lshrrev_b32 v8, 7, v8
    v_mul_u32_u24 v9, 3, v8
    v_sub_u32 v9, v7, v9
    v_mad_u32_u24 v9, v9, 18, s36
    v_mul_u32_u24 v12, 43, v8
    v_lshrrev_b32 v12, 7, v12
    v_mul_u32_u24 v13, 3, v12
    v_sub_u32 v8, v8, v13
    v_mad_u32_u24 v13, v8, 12, v9
    v_mad_u32_u24 v14, v8, 26, v9
    v_add_u32 v14, 24, v14
    v_lshl_add_u32 v15, v8, 4, v9
    v_add_u32 v15, 78, v15
    v_cmp_gt_u32 vcc, 12, v9
    v_cmp_gt_u32 s[40:41], 38, v9
    v_mul_u32_u24 v11, {WOS}, v12
    v_lshl_add_u32 v11, v6, 4, v11
    v_cndmask_b32 v14, v15, v14, s[40:41]
    v_cndmask_b32 v13, v14, v13, vcc
    v_lshl_add_u32 v11, v13, 10, v11
{name}_go:
    s_and_b32 s36, s34, 3
    s_lshl_b32 s36, s36, 8
    s_add_u32 s39, s39, s36
    v_lshrrev_b32 v2, 3, v0
    v_and_b32 v3, 7, v0
    v_mul_u32_u24 v4, 1152, v3
    v_lshl_add_u32 v4, v2, 4, v4
    v_lshlrev_b32 v2, 8, v2
    v_lshl_add_u32 v2, v3, 4, v2
    s_mul_i32 s11, s2, 9216
    s_waitcnt lgkmcnt(0)
    s_mov_b32 s20, s6
    s_mov_b32 s21, s7
    s_mov_b32 s23, 0x20000
    """)
    assert all((t * 43) >> 7 == t // 3 for t in range(36))
    srd(b, 16, 8, 0, SZX)
    b("buffer_load_dwordx4 v[12:15], v4, s[16:19], s11 offen ;#x")
    for j in range(8):
        b("s_mov_b32 s36, s38")
        for bit, r in ((4, 43), (2, 44), (1, 45)):
            if j & bit:
                b(f"s_add_u32 s36, s36, s{r}")
        b(f"buffer_load_ushort v{16+j}, v10, s[20:23], s36 offen ;#w")
    if int(OPT.get("pf", 1)):
        b(f"""
        s_cmp_lg_u32 s33, 8
        s_cbranch_scc1 {name}_nopf
        s_getpc_b64 s[46:47]
{name}_pc:
        s_add_u32 s46, s46, main_kernel-{name}_pc
        s_addc_u32 s47, s47, 0
        s_bfe_u32 s36, s2, 0x50003
        s_lshl_b32 s36, s36, 11
        v_and_b32 v50, 15, v0
        v_lshl_add_u32 v50, v50, 7, s36
        v_min_u32 v50, main_code_end-main_kernel-4, v50
        v_mov_b32 v51, s47
        v_add_co_u32 v50, vcc, s46, v50
        s_nop 1
        v_addc_co_u32 v51, vcc, 0, v51, vcc
        global_load_dword v52, v[50:51], off
{name}_nopf:
        """)
    srd(b, 12, 4, 0, WS_END)
    srd(b, 24, 4, LST + X2, SZX)
    if int(OPT.get("tlb", 1)):
        sh = int(OPT.get("pg", 21))
        b(f"""
        s_cmp_lg_u32 s33, 7
        s_cbranch_scc1 {name}_notlb
        s_bfe_u32 s36, s2, 0x20005
        s_lshl_b32 s36, s36, 3
        s_add_u32 s46, s0, s36
        s_addc_u32 s47, s1, 0
        s_load_dwordx2 s[48:49], s[46:47], {ARG['w1']}
        s_bfe_u32 s37, s2, 0x50003
        s_lshl_b32 s37, s37, 22
        v_and_b32 v50, {(2 << (21 - sh)) - 1}, v0
        v_lshlrev_b32 v50, {sh}, v50
        buffer_load_dword v52, v50, s[12:15], s37 offen
        s_mov_b32 s50, {576*4608*2}
        s_cmp_eq_u32 s36, 24
        s_cselect_b32 s50, {SZX}, s50
        s_mov_b32 s51, 0x20000
        s_bfe_u32 s37, s2, 0x20003
        s_lshl_b32 s37, s37, 21
        s_waitcnt lgkmcnt(0)
        buffer_load_dword v53, v50, s[48:51], s37 offen
{name}_notlb:
        """)
    b(f"""
    s_lshr_b32 s10, s2, 1
    s_mul_i32 s10, s10, 18432
    s_and_b32 s11, s2, 1
    s_lshl_b32 s11, s11, 7
    s_add_u32 s10, s10, s11
    v_lshlrev_b32 v6, 2, v0
    v_mov_b32 v7, {OOB}
    v_cmp_gt_u32 vcc, 128, v0
    v_mov_b32 v8, 0
    s_lshl_b32 s11, s2, 9
    v_cndmask_b32 v6, v7, v6, vcc
    s_add_u32 s11, s11, {CNT}
    buffer_store_dword v8, v6, s[12:15], s11 offen
    v_lshlrev_b32 v3, 3, v3
    v_lshl_add_u32 v4, v5, 6, v3
    s_waitcnt vmcnt(@x)
    """)
    A0 = 32
    for j in range(4):
        b(f"v_lshlrev_b32 v{A0+2*j}, 16, v{12+j}\nv_and_b32 v{A0+2*j+1}, 0xffff0000, v{12+j}")
    b(f"v_add_f32 v6, v{A0}, v{A0+1}\nv_mul_f32 v7, v{A0}, v{A0}")
    for j in range(1, 8):
        if j > 1:
            b(f"v_add_f32 v6, v6, v{A0+j}")
        b(f"v_fmac_f32 v7, v{A0+j}, v{A0+j}")
    row_reduce(b, 6, 7)
    b("v_bfe_u32 v8, v0, 5, 1\nv_lshl_add_u32 v4, v8, 2, v4\nds_write_b32 v4, v6\ns_waitcnt vmcnt(@w)")
    for j in range(4):
        b(f"v_lshl_or_b32 v{24+j}, v{17+2*j}, 16, v{16+2*j}")
    b(f"""
    buffer_store_dwordx4 v[24:27], v11, s[12:15], s39 offen{OPT.get("pst", "")}
    s_lshl_b32 s36, s35, 4
    s_add_u32 s36, s36, s33
    s_cmp_lg_u32 s36, 8
    s_cbranch_scc1 {name}_noone
    """)
    for j in range(4):
        b(f"v_mov_b32 v{28+j}, 0x3f803f80")
    b(f"buffer_store_dwordx4 v[28:31], v11, s[12:15], s39 offen offset:192\n{name}_noone:\ns_waitcnt lgkmcnt(0)\ns_barrier")
    for w in range(9):
        b(f"ds_read_b64 {v(56+2*w,2)}, v3 offset:{64*w}")
    b("s_waitcnt lgkmcnt(0)")
    for w in range(1, 9):
        b(f"v_pk_add_f32 v[56:57], v[56:57], {v(56+2*w,2)}")
    ln_stats(b, 56, 57)
    b("v_rsq_f32 v57, v57")
    ln_tail(b, A0, 8, 56, 57, 12)
    b("buffer_store_dwordx4 v[12:15], v2, s[24:27], s10 offen" + OPT.get("pst", ""))
    if DIAG:
        b(f"s_cmp_ge_u32 s2, 256\ns_cbranch_scc1 {name}_end")
    finish(b, name, "1")
    return dict(name=name, text=resolve_waits(b.text()), grid=288, block=576, lds=1024)


def signal(b, tag, base, idx, wave=3, extra=None):
    b(f"""
    s_lshl_b32 s60, s{idx}, 7
    s_add_u32 s60, s60, s{SC}
    s_add_u32 s60, s60, {base}
    s_waitcnt vmcnt(0) lgkmcnt(0)
{tag}_bar:
    s_barrier
    s_cmp_lg_u32 s{SW}, {wave}
    s_cbranch_scc1 {tag}_sig
    s_mov_b64 exec, 1
    buffer_atomic_add v3, v2, s[12:15], s60 offen sc1
    """)
    if extra:
        b(f"buffer_atomic_add v3, v2, s[12:15], s{extra} offen sc1")
    b(f"s_mov_b64 exec, -1\n{tag}_sig:")


def poll(b, tag, base, idx, target, one_wave):
    b(f"""
    s_lshl_b32 s60, s{idx}, 7
    s_add_u32 s60, s60, s{SC}
    s_add_u32 s60, s60, {base}
    s_mov_b32 s61, 0x40000
    """)
    if one_wave:
        b(f"s_cmp_lg_u32 s{SW}, 3\ns_cbranch_scc1 {tag}_ok")
    b(f"""
{tag}_poll:
    buffer_load_dword v4, v2, s[12:15], s60 offen sc1
    s_sub_u32 s61, s61, 1
    s_waitcnt vmcnt(0)
    v_cmp_gt_u32 vcc, {target}, v4
    s_cbranch_scc1 {tag}_ok
    s_cbranch_vccnz {tag}_poll
{tag}_ok:
    """)
    if one_wave:
        b("s_barrier")


def dma_run(b, n, srdn, soff, flags=""):
    for i in range(n):
        off = f" offset:{1024*(i%4)}" if i % 4 else ""
        b(f"buffer_load_dwordx4 v1, s[{srdn}:{srdn+3}], s{soff} offen{off}{flags} lds")
        if i % 4 == 3 and i < n - 1:
            b(f"s_add_u32 m0, m0, 4096\ns_add_u32 s{soff}, s{soff}, 4096")


def pack4(b, dst, p, q):
    b(f"""
    v_cvt_pk_bf16_f32 v{dst}, v{p}, v{p+1}
    v_cvt_pk_bf16_f32 v{dst+1}, v{p+2}, v{p+3}
    v_cvt_pk_bf16_f32 v{dst+2}, v{q}, v{q+1}
    v_cvt_pk_bf16_f32 v{dst+3}, v{q+2}, v{q+3}
    """)


def unit_offset(b, dst, t0, t1):
    b(f"""
    v_bfe_u32 v{t0}, v0, 4, 1
    v_bfe_u32 v{t1}, v0, 5, 1
    v_mul_u32_u24 v{dst}, 18432, v{t0}
    v_lshl_add_u32 v{dst}, v{t1}, 8, v{dst}
    v_and_b32 v{t0}, 15, v0
    v_lshl_add_u32 v{dst}, v{t0}, 4, v{dst}
    """)


TIM = QX + 18432
VD, TR = 72, 76
QSCALE = fbits(math.log2(math.e) / math.sqrt(18))


def stats_publish(b, base):
    b(f"""
    v_pk_add_f32 v[8:9], {v(RES,2)}, {v(RES+2,2)}
    v_pk_mul_f32 v[10:11], {v(RES,2)}, {v(RES,2)}
    """)
    for k in range(2, 24, 2):
        if k > 2:
            b(f"v_pk_add_f32 v[8:9], v[8:9], {v(RES+k,2)}")
        b(f"v_pk_fma_f32 v[10:11], {v(RES+k,2)}, {v(RES+k,2)}, v[10:11]")
    b(f"""
    v_add_f32 v8, v8, v9
    v_add_f32 v9, v10, v11
    s_add_u32 s38, s62, s{SL}
    s_add_u32 s38, s38, {base}
    v_permlane32_swap_b32 v8, v9
    s_nop 0
    v_add_f32 v8, v8, v9
    buffer_store_dword v8, v13, s[12:15], s38 offen sc1
    """.replace("s62", "s59"))


def stats_target(b):
    b(f"""
    v_and_b32 v13, 15, v0
    v_lshlrev_b32 v13, 4, v13
    v_bfe_u32 v14, v0, 4, 1
    v_lshl_add_u32 v13, v14, 3, v13
    v_bfe_u32 v14, v0, 5, 1
    v_lshl_add_u32 v13, v14, 2, v13
    s_and_b32 s59, s{SJ}, 3
    s_mul_i32 s59, s59, 3
    s_add_u32 s59, s59, s{SW}
    s_lshl_b32 s59, s59, 8
    s_mul_i32 s38, s{STJ}, 3072
    s_add_u32 s59, s59, s38
    """)


def stats_loads(t, so):
    return [f"buffer_load_dwordx4 {v(t+4*n,4)}, v1, s[12:15], s{so} offen offset:{1024*n} sc1 ;#st" for n in range(3)]


def stats_reduce(src, t, eps):
    out = [f"v_add_f32 v{t+k}, v{src+k}, v{src+4+k}" for k in range(4)] + [f"v_add_f32 v{t+k}, v{t+k}, v{src+8+k}" for k in range(4)]
    out += [(f"v_permlane32_swap_b32 v{t}, v{t+1}", 2), f"v_permlane32_swap_b32 v{t+2}, v{t+3}",
            (f"v_add_f32 v{t}, v{t}, v{t+1}", 1), f"v_add_f32 v{t+2}, v{t+2}, v{t+3}",
            (f"v_permlane16_swap_b32 v{t}, v{t+2}", 2), (f"v_add_f32 v{t}, v{t}, v{t+2}", 1), f"v_mul_f32 v{t}, {fbits(1/576)}, v{t}",
            f"v_mov_b32 v{t+1}, v{t}", (f"v_permlane32_swap_b32 v{t}, v{t+1}", 2),
            (f"v_fma_f32 v{t}, -v{t}, v{t}, v{t+1}", 1), f"v_max_f32 v{t}, 0, v{t}", f"v_add_f32 v{t}, {eps}, v{t}",
            f"v_mov_b32 v{t+1}, v{t}", (f"v_permlane16_swap_b32 v{t}, v{t+1}", 2)]
    return out


def emit_chain(b, items):
    for x in items:
        if isinstance(x, tuple):
            b(f"s_nop {x[1]-1}\n{x[0]}")
        else:
            b(x)


def phase_q(b):
    ACC, XQ, TMP, STT, RV, AD = 16, 80, 128, 164, 184, 208
    AQ, GK, GV, AVT, TA, AON, RD, GT = AD, AD + 1, AD + 2, AD + 3, AD + 4, AD + 8, AD + 9, AD + 10
    b(f"""
    s_mul_i32 s34, s{STW}, 36864
    s_add_u32 s34, s34, {LST+X2}
    s_sub_u32 s34, s34, s{SL}
    s_add_u32 s16, s4, s34
    s_addc_u32 s17, s5, 0
    s_mov_b32 s18, 18432
    s_mov_b32 s19, 0x20000
    s_add_u32 s20, s16, 18432
    s_addc_u32 s21, s17, 0
    s_mov_b32 s22, 18432
    s_mov_b32 s23, 0x20000
    v_and_b32 v12, 15, v0
    v_bfe_u32 v4, v0, 4, 2
    v_lshrrev_b32 v13, 1, v4
    v_and_b32 v14, 1, v4
    s_mul_i32 s38, s{SW}, 1152
    s_add_u32 s38, s38, {QX}
    s_mul_i32 s39, s{SW}, 768
    s_add_u32 s39, s39, {TIM}
    v_lshlrev_b32 v15, 4, v12
    v_lshl_add_u32 v15, v14, 9, v15
    v_mul_u32_u24 v{AQ}, 4608, v13
    v_add3_u32 v{AQ}, v{AQ}, v15, s38
    v_mul_u32_u24 v{GK}, {REC}, v13
    v_add_u32 v{GK}, v{GK}, v15
    v_cmp_eq_u32 s[48:49], 0, v4
    v_lshlrev_b32 v6, 4, v4
    v_lshrrev_b32 v13, 2, v12
    v_and_b32 v15, 3, v12
    v_lshlrev_b32 v{AVT}, 5, v13
    v_lshl_add_u32 v{AVT}, v15, 1, v{AVT}
    v_add_u32 v{AVT}, s39, v{AVT}
    s_add_u32 s40, s38, 1024
    s_add_u32 s41, s39, 128
    v_lshl_add_u32 v{TA}, v12, 2, s40
    v_lshl_add_u32 v15, v12, 2, s41
    v_cndmask_b32 v{TA}, v15, v{TA}, s[48:49]
    v_mov_b32 v13, 384
    v_mov_b32 v14, 4608
    v_cndmask_b32 v13, v13, v14, s[48:49]
    v_add_u32 v{TA+1}, v{TA}, v13
    v_and_b32 v14, 3, v0
    v_bfe_u32 v13, v0, 2, 1
    v_mul_u32_u24 v13, 384, v13
    v_lshl_add_u32 v13, v14, 2, v13
    v_add_u32 v{AON}, s39, v13
    v_add_u32 v{RD}, s39, v1
    v_add_u32 v13, {REC-384}, v1
    v_cmp_gt_u32 vcc, 384, v1
    v_mov_b32 v14, {OOB}
    s_mul_i32 s43, s{SJ}, {KVJ}
    v_cndmask_b32 v13, v13, v1, vcc
    v_cmp_gt_u32 vcc, 768, v1
    s_mul_i32 s44, s{STW}, {2*REC}
    s_add_u32 s43, s43, s44
    v_cndmask_b32 v{GT}, v14, v13, vcc
    s_add_u32 s43, s43, s{SL}
    s_add_u32 s43, s43, {KV}
    s_mul_i32 s42, s{STW}, 3072
    s_add_u32 s42, s42, {S2}
    s_mov_b32 s45, {fbits(1e-5)}
    v_mov_b32 v7, 0x3f803f80
    v_mov_b32 v5, v1
    s_mov_b32 s37, 3
    """)
    for i in range(16, 72):
        b(f"v_mov_b32 v{i}, 0")
    b(f"s_cmp_eq_u32 s{SL}, 0\ns_cselect_b32 s42, {OOB}, s42\ns_cselect_b32 s45, 1.0, s45\ns_cbranch_scc1 q_ok")
    poll(b, "q", C_X2 - CL, STW, 4, False)
    stamp(b, 1)
    xq = lambda p, rt: XQ + ((p % 6) * 2 + rt) * 4
    xload = lambda p, rt: f"buffer_load_dwordx4 {v(xq(p, rt),4)}, v1, s[{16+4*rt}:{19+4*rt}], s36 offen sc1 ;#x{p%6}"
    acc = lambda f, rt: ACC + (f * 2 + rt) * 4
    ring = lambda ks, f: a((ks % 2) * 28 + f * 4, 4)
    reads = lambda p: [f"ds_read_b128 {ring(p, f)}, v5 offset:{(p*7+f)*1024}" for f in range(7)]
    b("s_mov_b32 s36, 0\ns_mov_b32 m0, s10")
    for p in range(5):
        b(xload(p, 0) + "\n" + xload(p, 1) + "\ns_add_u32 s36, s36, 1024")
        if p == 1:
            b("s_waitcnt vmcnt(4)\ns_barrier")
            b("\n".join(reads(0) + stats_loads(STT, 42)))
    stamp(b, 2)
    b(f"s_cmp_lg_u32 s{SL}, 0\ns_waitcnt vmcnt(@x0) lgkmcnt(0)\ns_cbranch_scc1 q_loop1")
    for fill in (1, 0):
        mains, pinned = [], []
        for p in range(6):
            for f in (6, 2, 3, 4, 5, 0, 1):
                for rt in range(2):
                    w, x, d = ring(p, f), v(xq(p, rt), 4), v(acc(f, rt), 4)
                    mains.append(mf16(d, x, w, d) if f in (4, 5) else mf16(d, w, x, d))
            rd = reads(p + 1)
            dm = "buffer_load_dwordx4 v1, s[12:15], s11 offen lds ;#wq"
            pin = [(0, xload(p + 5, 0))]
            if p == 5 and fill:
                pin += [(1, "s_waitcnt vmcnt(@wq)"), (1, "s_barrier")]
            pin += [(1, rd[0]), (2, rd[1]), (4, rd[2]), (5, rd[3]), (6, rd[4]), (7, xload(p + 5, 1)), (8, rd[5]), (8, "s_add_u32 s36, s36, 1024"),
                    (9, rd[6])]
            for gq in (3, 10, 11, 12)[:(4, 4, 3, 0, 0, 0)[p] * fill]:
                pin += [(gq, dm), (gq, "s_add_u32 m0, m0, 4096"), (gq, "s_add_u32 s11, s11, 4096")]
            pin += [(13, f"s_waitcnt vmcnt(@x{(p+1)%6}) lgkmcnt(0)")]
            if p == 0:
                pin += [(6, "s_sub_u32 s37, s37, 1")]
            if p == 5:
                pin += [(11, "v_add_u32 v5, 43008, v5"), (13, f"s_cmp_lg_u32 s37, {fill}")]
            pinned += [(14 * p + gp, t) for gp, t in pin]
        ops = [] if fill else chain(stats_reduce(STT, STT + 12, "s45") + [
            (f"v_rsq_f32 v8, v{STT+12}", 1), f"v_rsq_f32 v9, v{STT+13}", (f"v_mul_f32 v12, {QSCALE}, v8", 1), f"v_mul_f32 v13, {QSCALE}, v9",
            "v_cndmask_b32 v14, v8, v12, s[48:49]", "v_cndmask_b32 v15, v9, v13, s[48:49]"], earliest=27)
        txt, over, lastgap = sched2(mains, pinned, ops)
        print("q loop (overflow, last gap):", over, lastgap, file=sys.stderr)
        b(f".p2align 3\nq_loop{1-fill}:\n{txt}\ns_cbranch_scc1 q_loop{1-fill}")
    stamp(b, 3)
    for rt in range(2):
        for i in range(4):
            b(f"ds_bpermute_b32 v{RV+4*rt+i}, v6, v{8+rt} offset:{4*i}")

    def scale(f, rt, by):
        for i in (0, 2):
            d = v(acc(f, rt) + i, 2)
            if isinstance(by, int):
                sel = "op_sel:[1:0] op_sel_hi:[1:1]" if by & 1 else "op_sel_hi:[0:1]"
                b(f"v_pk_mul_f32 {d}, {v(by & ~1, 2)}, {d} {sel}")
            else:
                b(f"v_pk_mul_f32 {d}, {v(by[0]+i,2)}, {d}")

    T = TMP
    for rt in range(2):
        scale(6, rt, 14 + rt)
    pack4(b, T, acc(6, 0), acc(6, 1))
    b(f"ds_write_b32 v{AON}, v7 offset:256\ns_mov_b64 exec, 0xffffffff")
    for k in range(4):
        b(f"ds_write_b32 v{TA+k%2}, v{T+k} offset:{64*(k//2)}")
    b("s_mov_b32 exec_lo, 0\ns_mov_b32 exec_hi, 0xffff\ns_waitcnt lgkmcnt(5)")
    for k in range(4):
        off = 384 * (k % 2) + 8 * (k // 2)
        b(f"ds_write_b16 v{AVT}, v{T+k} offset:{off}\nds_write_b16_d16_hi v{AVT}, v{T+k} offset:{off+16}")
    b(f"s_mov_b64 exec, -1\nds_read_b128 {v(TMP+32,4)}, v{RD}")
    T += 4
    for rt in range(2):
        scale(2, rt, 8 + rt)
        scale(3, rt, 8 + rt)
        pack4(b, T, acc(2, rt), acc(3, rt))
        b(f"buffer_store_dwordx4 {v(T,4)}, v{GK}, s[12:15], s43 offen offset:{256*rt} sc1")
        T += 4
    for f in (4, 5):
        for rt in range(2):
            scale(f, rt, [RV + 4 * rt])
        pack4(b, T, acc(f, 0), acc(f, 1))
        b(f"buffer_store_dwordx4 {v(T,4)}, v1, s[12:15], s43 offen offset:{1024+REC*(f-4)} sc1")
        T += 4
    b(f"s_waitcnt lgkmcnt(0)\nbuffer_store_dwordx4 {v(TMP+32,4)}, v{GT}, s[12:15], s43 offen offset:2048 sc1")
    for rt in range(2):
        b(f"ds_write_b128 v{AQ}, {v(TMP+4+4*rt,4)} offset:{9216+256*rt}")
        scale(0, rt, 12 + rt)
        scale(1, rt, 12 + rt)
        pack4(b, T, acc(0, rt), acc(1, rt))
        b(f"ds_write_b128 v{AQ}, {v(T,4)} offset:{256*rt}")
        T += 4
    stamp(b, 4)


def wo_loads(lo, hi):
    out = []
    for n in range(lo, hi):
        off = f" offset:{1024*((n-lo)%4)}" if (n - lo) % 4 else ""
        t = f"buffer_load_dwordx4 {a(4*n,4)}, v1, s[12:15], s38 offen{off}"
        if (n - lo) % 4 == 3:
            t += "\ns_add_u32 s38, s38, 4096"
        out.append(t)
    return out


def wo_base(b, part, per):
    b(f"""
    s_and_b32 s38, s{SJ}, 3
    s_mul_i32 s38, s38, {WOS}
    s_mul_i32 s39, s{SW}, {1024*per}
    s_add_u32 s38, s38, s39
    s_add_u32 s38, s38, {WO + 1024*part}
    s_cmp_eq_u32 s{SW}, 3
    s_cselect_b32 s38, {OOB}, s38
    """)


def centre(b, fr, n, tmp, mean, after=None):
    for k in range(n):
        for j in range(4):
            for h in range(2):
                b(f"v_dot2_f32_bf16 v{tmp+2*j+h}, v{fr+4*k+j}, s{30+h}, v{mean}")
        for j in range(4):
            b(f"v_cvt_pk_bf16_f32 v{fr+4*k+j}, v{tmp+2*j}, v{tmp+2*j+1}")
        if after:
            b(after(k))


def row_tile(b, vd, sd):
    b(f"""
    v_and_b32 v{vd}, 31, v0
    v_mul_u32_u24 v{vd}, 1152, v{vd}
    v_bfe_u32 v{vd+1}, v0, 5, 1
    v_lshl_add_u32 v{vd}, v{vd+1}, 4, v{vd}
    s_and_b32 s{sd}, s{SJ}, 3
    s_mul_i32 s{sd}, s{sd}, 3
    s_add_u32 s{sd}, s{sd}, s{SW}
    s_mul_i32 s{sd}, s{sd}, 96
    s_mul_i32 s{sd+1}, s{STJ}, 36864
    s_add_u32 s{sd}, s{sd}, s{sd+1}
    """)


def layer0_jobs(b, ONE, SM, PF, PT, AF):
    srd(b, 20, 100, 0, SZX)
    row_tile(b, 8, 38)
    for i in range(4):
        b(f"v_mov_b32 v{ONE+i}, 0x3f803f80")
    for n in range(3):
        b(f"buffer_load_dwordx4 {v(RES+12+4*n,4)}, v8, s[20:23], s38 offen offset:{32*n}")
    sdiv(b, 41, STW, 9, 64)
    b(f"""
    s_mul_i32 s38, s41, 9
    s_sub_u32 s38, s{STW}, s38
    s_lshl_b32 s39, s41, 10
    v_add_u32 v8, s39, v1
    v_add_u32 v9, {9*7168}, v8
    s_mul_i32 s38, s38, 14336
    s_add_u32 s38, s38, s39
    v_add_u32 v12, s38, v1
    """)
    for ks in range(18):
        b(f"ds_read_b128 {a(AF+4*ks,4)}, v{8+ks//9} offset:{7168*(ks%9)}")
        if ks == 11:
            b("s_waitcnt lgkmcnt(6)")
    b(f"ds_read_b128 {v(PF,4)}, v12\nds_read_b128 {v(PF+4,4)}, v12 offset:7168")
    for ks in range(18):
        if ks >= 6:
            b(f"s_waitcnt lgkmcnt({19-ks})")
        b(mf16(v(SM, 4), v(ONE, 4), a(AF + 4 * ks, 4), "0" if ks == 0 else v(SM, 4)))
    b(f"""
    v_and_b32 v8, 12, v0
    v_cmp_eq_u32 vcc, 12, v8
    s_cmp_eq_u32 s41, 6
    s_cselect_b64 vcc, vcc, 0
    s_add_u32 s39, s38, 7168
    s_mul_i32 s41, s{SJ}, {WFS}
    s_add_u32 s41, s41, {WF+28*CH}
    s_cmp_eq_u32 s{STW}, 63
    s_cselect_b32 s41, {OOB}, s41
    """)
    for r in (38, 39):
        b(f"s_cmp_ge_u32 s{r}, {3*CH}\ns_cselect_b32 s44, {4*CH}, 0\ns_sub_u32 s{r}, s{r}, s44\ns_add_u32 s{r}, s{r}, s41")
    b(f"s_waitcnt lgkmcnt(0)\nv_mul_f32 v{SM}, {fbits(-1/576)}, v{SM}\nv_cndmask_b32 v{SM}, v{SM}, v2, vcc")
    centre(b, PF, 2, PT, SM, lambda k: f"buffer_store_dwordx4 {v(PF+4*k,4)}, v1, s[12:15], s{38+k} offen sc1")
    srd(b, 20, 54, 0, 576 * 4608 * 2)
    b("s_mov_b32 s32, 0\ns_mov_b32 s41, s52")


def raw_setup(b):
    b(f"""
    v_bfe_u32 v8, v0, 4, 2
    v_bfe_u32 v9, v0, 2, 2
    v_and_b32 v12, 3, v0
    v_lshlrev_b32 v12, 3, v12
    v_lshl_add_u32 v12, v9, 7, v12
    v_bfe_u32 v13, v0, 3, 2
    v_xor_b32 v13, s{SW}, v13
    s_cmp_ge_u32 s2, 144
    s_cbranch_scc1 a_raw2
    s_and_b32 s38, s2, 1
    s_lshl_b32 s39, s38, 3
    s_add_u32 s44, s0, s39
    s_addc_u32 s45, s1, 0
    s_load_dwordx2 s[54:55], s[44:45], {ARG['w1']}
    s_lshr_b32 s39, s2, 1
    s_lshl_b32 s56, s39, 7
    s_mov_b32 s41, 9216
    s_mov_b32 s8, {fbits(-1/576)}
    s_mov_b32 s59, 2048
    s_mov_b32 s9, 0
    s_lshl_b32 s39, s39, 2
    s_add_u32 s39, s39, s{SW}
    """)
    sdiv(b, 44, 39, 18, 288)
    b(f"""
    s_mul_i32 s44, s44, {WFS-18*CH}
    s_mul_i32 s39, s39, {CH}
    s_add_u32 s58, s39, s44
    s_lshl_b32 s38, s38, 10
    s_add_u32 s58, s58, s38
    s_add_u32 s58, s58, {WF}
    v_lshl_add_u32 v12, v8, 10, v12
    v_lshl_add_u32 v{TR}, v13, 5, v12
    v_xor_b32 v{TR+1}, {512+64}, v{TR}
    s_branch a_raw3
a_raw2:
    s_load_dwordx2 s[54:55], s[0:1], {ARG['w2']}
    s_sub_u32 s38, s2, 144
    """)
    sdiv(b, 39, 38, 9, 112)
    b(f"""
    s_mul_i32 s44, s39, 9
    s_sub_u32 s38, s38, s44
    s_mul_i32 s56, s39, {576*1152}
    s_lshl_b32 s44, s38, 7
    s_add_u32 s56, s56, s44
    s_mov_b32 s41, 1152
    s_mov_b32 s8, 0
    s_mov_b32 s59, {CH}
    s_lshl_b32 s38, s38, 2
    s_add_u32 s38, s38, s{SW}
    """)
    sdiv(b, 44, 38, 9, 36)
    b(f"""
    s_lshl_b32 s45, s39, 1
    s_sub_u32 s45, s45, s44
    s_and_b32 s45, s45, 3
    s_mov_b32 s9, {9216-9*CH}
    s_cmp_eq_u32 s45, 3
    s_cselect_b32 s9, {-3*9216-9*CH}, s9
    s_mul_i32 s45, s45, 9216
    s_mul_i32 s44, s44, {WFS-9216}
    s_lshl_b32 s38, s38, 10
    s_add_u32 s58, s38, s44
    s_add_u32 s58, s58, s45
    s_lshr_b32 s44, s39, 1
    s_mul_i32 s44, s44, {4*WFS}
    s_add_u32 s58, s58, s44
    s_add_u32 s58, s58, {WF+18*CH}
    s_cmp_ge_u32 s2, 216
    s_cselect_b32 s58, {OOB}, s58
    v_lshl_add_u32 v12, v8, 9, v12
    v_and_b32 v8, 2, v8
    v_xor_b32 v13, v13, v8
    v_lshl_add_u32 v{TR}, v13, 5, v12
    v_add_u32 v{TR+1}, 2048, v{TR}
a_raw3:
    v_bfe_u32 v8, v0, 3, 3
    v_mul_lo_u32 v12, v8, s41
    v_and_b32 v8, 6, v8
    v_and_b32 v9, 7, v0
    v_xor_b32 v9, v9, v8
    v_lshl_add_u32 v{VD}, v9, 4, v12
    v_xor_b32 v9, 4, v9
    v_lshl_add_u32 v{VD+1}, v9, 4, v12
    s_lshl_b32 s52, s41, 3
    s_sub_u32 s38, s52, 1024
    v_add_u32 v{VD+1}, s38, v{VD+1}
    s_lshl_b32 s38, s38, 1
    v_add_u32 v{VD+2}, s38, v{VD}
    v_add_u32 v{VD+3}, s38, v{VD+1}
    s_lshl_b32 s57, s52, 4
    s_waitcnt lgkmcnt(0)
    """)


def phase_a(b):
    QM, QT, KM, KT, VF, S, O, MX, IDX = 16, 32, 64, 40, 80, 96, 160, 224, 228
    MEAN, ONE, SM, PF, PT, AF = 78, 80, 84, 48, 88, 112
    AV, AT, AK = 229, 231, 79
    OM, OT, MW, MR = 6, 7, 10, 11
    qm = lambda t: v(QM + 4 * t, 4)
    qt = lambda t: v(QT + 2 * t, 2)
    km = lambda k: a(KM + 4 * (k % 4), 4)
    kt = lambda k: v(KT + 2 * (k % 4), 2)
    vf = lambda k, g: a(VF + 8 * (k % 4) + 4 * g, 4)
    sb = lambda n: S + 16 * (n % 4)
    ob = lambda t: O + 16 * t
    m8 = lambda d, k, t: f"v_mfma_f32_32x32x8_bf16 {v(d,16)}, {kt(k)}, {qt(t)}, 0"
    m16 = lambda d, k, t: f"v_mfma_f32_32x32x16_bf16 {v(d,16)}, {km(k)}, {qm(t)}, {v(d,16)}"
    smf = lambda t, k, g, p: f"v_smfmac_f32_32x32x32_bf16 {v(ob(t),16)}, {vf(k,g)}, {v(p+8*g,8)}, v{IDX}"

    def rec_loads(k):
        tg = f" ;#r{k%4}"
        return [f"buffer_load_dwordx4 {km(k)}, v{AK}, s[16:19], s46 offen sc1{tg} ;#k{k%4}",
                f"buffer_load_dword v{KT+2*(k%4)}, v{AT}, s[16:19], s46 offen offset:2176 sc1{tg} ;#k{k%4}",
                f"buffer_load_dwordx4 {vf(k,0)}, v{AV}, s[16:19], s46 offen sc1{tg}",
                f"buffer_load_dwordx4 {vf(k,1)}, v{AV+1}, s[16:19], s46 offen sc1{tg}"]

    def wo_mode(b, start):
        b(f"""
        s_and_b32 s38, s{SJ}, 3
        s_mul_i32 s38, s38, {WOS}
        s_add_u32 s38, s38, {WO + 36*1024}
        s_lshl_b32 s56, s{SW}, 12
        s_add_u32 s56, s56, {start-16384}
        s_mov_b32 m0, s56
        s_mov_b32 s57, 16384
        """)
        window(b, 20, 38, 128 * 1024)
        for k in range(4):
            b(f"v_mov_b32 v{VD+k}, v1")

    slots_off = f"s_mov_b32 s56, {OOB}\ns_mov_b32 s57, 0\ns_mov_b32 s40, 0\ns_mov_b32 m0, {LOFF}"
    b(f"""
    s_lshr_b32 s37, s{SW}, 1
    s_lshl_b32 s34, s{SJ}, 1
    s_add_u32 s34, s34, s37
    s_and_b32 s35, s{SW}, 1
    s_mul_i32 s38, s37, 4608
    s_add_u32 s38, s38, {QX}
    s_mul_i32 s39, s35, 2304
    s_add_u32 s40, s38, s39
    s_sub_u32 s41, s38, s39
    v_and_b32 v4, 31, v0
    v_bfe_u32 v5, v0, 5, 1
    v_lshlrev_b32 v6, 2, v4
    v_add_u32 v8, s40, v1
    v_add_u32 v9, s41, v1
    v_add_u32 v12, s40, v6
    v_add_u32 v13, s41, v6
    v_cmp_eq_u32 s[50:51], 0, v5
    s_mul_i32 s38, s35, 1536
    s_mul_i32 s39, s37, 384
    s_add_u32 s38, s38, s39
    s_add_u32 s38, s38, {TIM+128}
    v_add_u32 v15, s38, v6
    s_mul_i32 s39, s37, {REC}
    s_waitcnt lgkmcnt(0)
    s_barrier
    ds_read_b128 {km(0)}, v8 offset:9216
    ds_read_b32 v{KT}, v15
    """)
    for t in range(4):
        b(f"ds_read_b128 {qm(t)}, v{8 + t // 2} offset:{1152*t}")
        b(f"ds_read_b32 v{QT+2*t}, v{12 + t // 2} offset:{1152*t+1024}")
    b(f"""
    s_mul_i32 s38, s{SJ}, {KVJ}
    s_add_u32 s38, s38, s39
    s_mul_i32 s39, s35, {64*REC}
    s_add_u32 s38, s38, s39
    s_add_u32 s38, s38, s{SL}
    s_add_u32 s38, s38, {KV}
    s_mov_b32 s49, 0x07060302
    s_mov_b32 s47, 1
    s_mov_b32 s3, 0
    v_mov_b32 v{KT+1}, 0x3f803f80
    s_waitcnt vmcnt(5) lgkmcnt(0)
    """)
    window(b, 16, 38, 63 * REC)
    for t in range(4):
        b(f"v_cndmask_b32 v{QT+2*t}, 0, v{QT+2*t}, s[50:51]")
    b("a_max:")
    for t in range(4):
        b(f"v_mov_b32 v{QT+2*t+1}, 0\nv_mov_b32 v{MX+t}, 0xff800000")
    b("s_mov_b32 s46, 0\ns_cmp_eq_u32 s3, 0\ns_cbranch_scc1 a_maxbody\na_maxloop:")
    b("\n".join(rec_loads(0)[:2]))
    b(f"s_add_u32 s46, s46, {2*REC}\ns_waitcnt vmcnt(0)\na_maxbody:")
    for t in range(4):
        b(m8(sb(t), 0, t))
        b(m16(sb(t), 0, t))
    b("s_cmp_lg_u32 s3, 0\ns_nop 3\ns_cbranch_scc1 q_sig")
    stamp(b, 5)
    signal(b, "q", C_KV, SJ)
    stamp(b, 6)
    for t in range(4):
        for i in range(8):
            b(f"v_max3_f32 v{MX+t}, v{sb(t)+2*i}, v{sb(t)+2*i+1}, v{MX+t}")
    b("s_sub_u32 s47, s47, 1\ns_cmp_lg_u32 s47, 0\ns_cbranch_scc1 a_maxloop")
    for i in range(64):
        b(f"v_mov_b32 v{O+i}, 0")
    b("s_cmp_lg_u32 s3, 0\ns_cbranch_scc1 a_go")
    wo_base(b, 0, 12)
    pb = B()
    pb(f"""
    v_lshlrev_b32 v8, 8, v5
    v_lshl_add_u32 v8, v4, 4, v8
    v_add_u32 v8, 1024, v8
    v_lshlrev_b32 v9, 5, v5
    v_lshl_add_u32 v9, v4, 4, v9
    v_add_u32 v9, {2048-256}, v9
    v_mov_b32 v12, {OOB}
    v_mov_b32 v13, 2304
    v_and_b32 v14, 27, v4
    v_cmp_eq_u32 vcc, 18, v14
    v_cmp_gt_u32 s[60:61], 18, v4
    v_cmp_gt_u32 s[36:37], 16, v4
    v_cndmask_b32 v13, v12, v13, vcc
    v_cndmask_b32 v14, v13, v9, s[60:61]
    v_cndmask_b32 v{AV}, v14, v8, s[36:37]
    v_add_u32 v8, 512, v8
    v_add_u32 v9, 64, v9
    v_cndmask_b32 v14, v13, v9, s[60:61]
    v_cndmask_b32 v{AV+1}, v14, v8, s[36:37]
    v_mov_b32 v{IDX}, 0xdddddddd
    v_bfe_u32 v8, v4, 2, 1
    v_lshrrev_b32 v9, 3, v4
    v_lshlrev_b32 v9, 2, v9
    v_lshl_add_u32 v8, v8, 4, v9
    v_and_b32 v9, 3, v4
    v_add_u32 v8, v8, v9
    v_lshlrev_b32 v{AT}, 2, v8
    v_lshlrev_b32 v8, 4, v8
    v_lshl_add_u32 v{AK}, v5, 9, v8
    v_lshlrev_b32 v13, 2, v4
    v_lshrrev_b32 v{OM}, 4, v4
    v_lshlrev_b32 v{OM}, 14, v{OM}
    v_and_b32 v8, 15, v4
    v_lshl_add_u32 v{OM}, v8, 4, v{OM}
    v_and_b32 v8, 35, v0
    v_cmp_eq_u32 vcc, 0, v8
    v_lshl_add_u32 v{OM}, v5, 8, v{OM}
    s_lshl_b32 s42, s{SI}, 1
    v_cndmask_b32 v{OT}, v12, v13, vcc
    s_add_u32 s42, s42, 1
    s_sub_u32 s42, s42, s35
    s_mul_i32 s42, s42, 73728
    s_add_u32 s42, s42, s{SL}
    s_add_u32 s42, s42, {OB}
    s_lshl_b32 s43, s34, 9
    s_add_u32 s43, s43, s42
    s_lshl_b32 s44, s34, 7
    s_add_u32 s42, s42, s44
    s_add_u32 s42, s42, 32768
    s_mul_i32 s44, s{SW}, 6144
    s_xor_b32 s45, s{SW}, 1
    s_mul_i32 s45, s45, 6144
    s_add_u32 s44, s44, {QX}
    s_add_u32 s45, s45, {QX}
    v_add_u32 v{MW}, s44, v1
    v_add_u32 v{MR}, s45, v1
    """)
    for k in range(1, 4):
        pb(f"v_mov_b32 v{KT+2*k+1}, 0x3f803f80")
    for i in range(8):
        pb(f"v_accvgpr_write_b32 a{VF+24+i}, 0")
    lines, lds = [x.strip() for x in pb.lines], wo_loads(0, 12)
    for i, x in enumerate(lines):
        if i % 5 == 0 and lds:
            b(lds.pop(0))
        b(x)
    assert not lds
    b(f"s_mov_b32 s40, 16384\ns_cmp_eq_u32 s{SL}, 0\ns_cbranch_scc1 a_jobs\ns_mov_b32 s32, 4")
    wo_mode(b, 0)
    b("a_init:")
    side = B()
    side("a_jobs:")
    layer0_jobs(side, ONE, SM, PF, PT, AF)
    side("s_branch a_init")
    stamp(b, 7)
    poll(b, "a", C_KV, SJ, 16, True)
    stamp(b, 8)
    b("a_go:\ns_mov_b32 s46, 0")
    for k in range(3):
        b("\n".join(rec_loads(k)))
        if k < 2:
            b(f"s_add_u32 s46, s46, {2*REC}")
    slot = lambda k: f"buffer_load_dwordx4 v{VD+k}, s[20:23], s56 offen" + (f" offset:{1024*k}" if k else "") + " lds"
    b(f"""
    s_mov_b32 s47, 8
    s_cmp_lg_u32 s32, 0
    s_cbranch_scc1 a_nopre
    s_mov_b32 s47, 4
    s_lshl_b32 s38, s{SW}, 1
    s_add_u32 s38, s38, 64
    s_lshl_b32 m0, s38, 10
    s_mul_i32 s38, s38, s41
    s_add_u32 s38, s38, s56
    buffer_load_dwordx4 v{VD}, s[20:23], s38 offen lds
    buffer_load_dwordx4 v{VD+1}, s[20:23], s38 offen offset:1024 lds
    s_lshl_b32 s38, s{SW}, 2
    s_sub_u32 s38, s38, 16
    s_lshl_b32 m0, s38, 10
    s_mul_i32 s38, s38, s41
    s_add_u32 s56, s56, s38
a_nopre:
    """)
    x0 = sb(2)
    for t in range(4):
        b(f"""
        v_mov_b32 v{x0}, v{MX+t}
        v_mov_b32 v{sb(3)+4*t}, 0
        v_mov_b32 v{sb(3)+4*t+1}, 0
        v_permlane32_swap_b32 v{MX+t}, v{x0}
        v_mov_b32 v{sb(3)+4*t+2}, 0
        v_max_f32 v{MX+t}, v{MX+t}, v{x0}
        v_sub_f32 v{x0}, 0, v{MX+t}
        v_and_b32 v{x0+1}, 0xffff0000, v{x0}
        v_sub_f32 v{x0+2}, v{x0}, v{x0+1}
        v_and_b32 v{x0+3}, 0xffff0000, v{x0+2}
        v_sub_f32 v{x0+2}, v{x0+2}, v{x0+3}
        v_perm_b32 v{x0+1}, v{x0+3}, v{x0+1}, s49
        v_lshrrev_b32 v{x0+2}, 16, v{x0+2}
        v_cndmask_b32 v{QT+2*t+1}, v{x0+2}, v{x0+1}, s[50:51]
        v_mov_b32 v{sb(3)+4*t+3}, 0
        """)
    b("s_waitcnt vmcnt(@k0)")
    for t in range(2):
        b(m8(sb(t), 0, t))
        b(m16(sb(t), 0, t))
    b("s_nop 8")
    stamp(b, 9)
    b(".p2align 3\na_loop:")
    for n in range(16):
        k, t = divmod(n, 4)
        e = [f"v_exp_f32 v{sb(n)+i}, v{sb(n)+i}" for i in range(16)]
        qk, qtile = (n + 2) // 4, (n + 2) % 4
        pk, pt = (n - 1) // 4, (n - 1) % 4
        b(m8(sb(n + 2), qk, qtile))
        b("\n".join(e[0:4]))
        b(m16(sb(n + 2), qk, qtile))
        if t == 1:
            b(f"s_waitcnt vmcnt(@r{k})")
        if t == 0:
            b(f"s_add_u32 s46, s46, {2*REC}")
        if n == 14:
            b("s_sub_u32 s47, s47, 1")
        if n == 15:
            b("s_cmp_lg_u32 s47, 0")
        b("\n".join(e[4:8]))
        b(smf(pt, pk, 0, sb(n - 1)))
        b(rec_loads(k + 3)[t])
        b("\n".join(e[8:12]))
        b(smf(pt, pk, 1, sb(n - 1)))
        if t == 1:
            b(f"s_waitcnt vmcnt(@k{(k+1)%4})")
        if t == 3:
            b(slot(k))
        if n == 0:
            b("s_add_u32 s56, s56, s57\ns_add_u32 m0, m0, s40")
        b("\n".join(e[12:16]))
    b("s_cbranch_scc1 a_loop\ns_cmp_lt_u32 s32, 4\ns_cbranch_scc1 a_break")
    stamp(b, 10)
    c = side
    c("a_break:")
    bstamp(c, 0)
    c("s_cmp_lg_u32 s32, 0\ns_cbranch_scc1 a_brk1")
    wo_mode(c, 80 * 1024)
    c("s_branch a_resume\na_brk1:\ns_cmp_lg_u32 s32, 1\ns_cbranch_scc1 a_brk2\ns_waitcnt lgkmcnt(0)\ns_barrier")
    for i in range(25):
        if i < 18:
            for h in range(2):
                c(f"ds_read_b64_tr_b16 {a(AF+4*i+2*h,2)}, v{TR+h} offset:{4096*(i%9)}")
            if i in (8, 17):
                st = 36864 if i == 8 else -36864
                c(f"v_add_u32 v{TR}, {st}, v{TR}\nv_add_u32 v{TR+1}, {st}, v{TR+1}")
        if 6 <= i < 24:
            k = i - 6
            c(f"s_waitcnt lgkmcnt({2*min(6, 17-k)})")
            c(mf16(v(SM, 4), v(ONE, 4), a(AF + 4 * k, 4), "0" if k == 0 else v(SM, 4)))
    prd = lambda i: "\n".join(f"ds_read_b64_tr_b16 {v(PF+4*i+2*h,2)}, v{TR+h} offset:{4096*i}" for h in range(2))
    for i in range(6):
        c(prd(i))
    c(f"""
    v_mul_f32 v{MEAN}, s8, v{SM}
a_brk2:
    v_add_u32 v{TR}, 24576, v{TR}
    v_add_u32 v{TR+1}, 24576, v{TR+1}
    s_cmp_eq_u32 s32, 2
    s_cselect_b32 s38, s9, 0
    s_waitcnt lgkmcnt(0)
    """)
    centre(c, PF, 6, PT, MEAN, lambda k: f"buffer_store_dwordx4 {v(PF+4*k,4)}, v1, s[12:15], s58 offen sc1\ns_add_u32 s58, s58, s59"
           + ("\ns_add_u32 s58, s58, s38" if k == 2 else "") + ("\n" + prd(k - 1) if k else ""))
    c(prd(5))
    c(f"s_cmp_lg_u32 s32, 3\ns_cbranch_scc1 a_resume\n{slots_off}")
    c("a_resume:")
    bstamp(c, 1)
    c("s_add_u32 s32, s32, 1\ns_mov_b32 s47, 1\ns_branch a_loop")
    c(f"a_redo:\ns_mov_b32 s3, 1\ns_mov_b32 s47, 32\n{slots_off}\ns_waitcnt vmcnt(0)\ns_branch a_max")
    b(smf(3, 3, 0, sb(3)))
    b("s_waitcnt lgkmcnt(0)")
    b(f"v_mov_b32 v{ob(0)+11}, v{MX}\nv_mov_b32 v{ob(1)+11}, v{MX+1}")
    b(smf(3, 3, 1, sb(3)))
    for t in range(2):
        for i in range(3):
            b(f"ds_write_b128 v{MW}, {v(ob(t)+4*i,4)} offset:{3072*t+1024*i}")
    b(f"""
    v_max3_f32 v8, v{ob(0)+10}, v{ob(1)+10}, v{ob(2)+10}
    v_mov_b32 v9, 0x53800000
    v_cmp_u_f32 s[52:53], v{ob(0)+10}, v{ob(1)+10}
    s_and_b32 s38, s2, 7
    s_lshl_b32 s38, s38, 7
    s_add_u32 s38, s38, s{SC}
    v_max_f32 v8, v{ob(3)+10}, v8
    v_cmp_u_f32 s[54:55], v{ob(2)+10}, v{ob(3)+10}
    v_cmp_nlt_f32 vcc, v8, v9
    s_add_u32 s38, s38, {C_PREP}
    s_or_b64 s[52:53], s[52:53], s[54:55]
    s_or_b64 vcc, vcc, s[52:53]
    s_cmp_eq_u32 s3, 0
    s_cselect_b64 vcc, vcc, 0
    s_waitcnt lgkmcnt(0)
    s_cbranch_vccnz a_redo
    s_barrier
    """)
    for t in range(2):
        for i in (2, 0, 1):
            b(f"ds_read_b128 {v(sb(t)+4*i,4)}, v{MR} offset:{3072*t+1024*i}")
    for t in range(2):
        P, o0, pk = sb(t), ob(2 + t), QM + 8 * t
        b(f"""
        s_waitcnt lgkmcnt({5 - 3*t})
        v_max_f32 v8, v{MX+2+t}, v{P+11}
        v_sub_f32 v9, v{MX+2+t}, v8
        v_sub_f32 v8, v{P+11}, v8
        v_exp_f32 v9, v9
        v_exp_f32 v8, v8
        v_mul_f32 v12, v9, v{o0+10}
        v_fmac_f32 v12, v8, v{P+10}
        v_rcp_f32 v12, v12
        s_waitcnt lgkmcnt({3 - 3*t})
        v_pk_mul_f32 v[8:9], v[8:9], v[12:13] op_sel_hi:[1:0]
        """)
        for i in (8, 0, 2, 4, 6):
            b(f"v_pk_mul_f32 {v(o0+i,2)}, v[8:9], {v(o0+i,2)} op_sel:[1:0] op_sel_hi:[1:1]")
        for i in (8, 0, 2, 4, 6):
            b(f"v_pk_fma_f32 {v(o0+i,2)}, v[8:9], {v(P+i,2)}, {v(o0+i,2)} op_sel_hi:[0:1:1]")
        for i in (4, 0, 1, 2, 3):
            b(f"v_cvt_pk_bf16_f32 v{pk+i}, v{o0+2*i}, v{o0+2*i+1}")
        b(f"buffer_store_dwordx4 {v(pk,4)}, v{OM}, s[12:15], s43 offen sc1")
        for i in range(1, 4):
            b(f"v_mov_b32 v{pk+4+i}, v{pk+4} quad_perm:[{i}:{i}:{i}:{i}] row_mask:0xf bank_mask:0xf")
        b(f"buffer_store_dwordx4 {v(pk+4,4)}, v{OT}, s[12:15], s42 offen sc1")
        if t == 0:
            b("s_add_u32 s42, s42, 36864\ns_add_u32 s43, s43, 36864")
    stamp(b, 11)
    signal(b, "a", C_O, SI, extra=38)
    stamp(b, 12)
    return side.text()


def res_swap(b):
    for n in range(3):
        for k in range(4):
            b(f"v_permlane16_swap_b32 v{RES+8*n+k}, v{RES+8*n+4+k}")


def tile_base(b, dst, tmp):
    b(f"""
    s_and_b32 s{dst}, s{SJ}, 3
    s_mul_i32 s{dst}, s{dst}, 3
    s_add_u32 s{dst}, s{dst}, s{SW}
    s_mul_i32 s{dst}, s{dst}, 1536
    s_mul_i32 s{tmp}, s{STJ}, 36864
    s_add_u32 s{dst}, s{dst}, s{tmp}
    """)


def phase_o(b):
    PK, OF = 16, 56
    NB = int(OPT.get('nb', 80))
    b(f"""
    s_cmp_eq_u32 s{SW}, 3
    s_cbranch_scc1 o_nowo
    s_lshl_b32 s38, s{SW}, 14
    s_add_u32 s38, s38, {80*1024}
    v_add_u32 v6, s38, v1
    s_mul_i32 s38, s{SW}, {26*1024}
    v_add_u32 v7, s38, v1
    s_cmp_eq_u32 s{SL}, 0
    s_cbranch_scc1 o_first
    """)
    side = B()
    side("o_first:")
    wo_base(side, 36, 26)
    side("\n".join(wo_loads(12, 38)))
    for k in range(12):
        side(f"v_lshlrev_b32 v{RES+2*k}, 16, v{RES+12+k}\nv_and_b32 v{RES+2*k+1}, 0xffff0000, v{RES+12+k}")
    side("s_branch o_rest")
    for n in range(12, 38):
        b(f"ds_read_b128 {a(4*n,4)}, v7 offset:{1024*(n-12)}")
        if n % 8 == 7:
            b("s_waitcnt lgkmcnt(4)")
    b("s_waitcnt lgkmcnt(4)\no_rest:")
    for n in range(38, 54):
        b(f"ds_read_b128 {a(4*n,4)}, v6 offset:{1024*(n-38)}")
        if n == 45:
            b("s_waitcnt lgkmcnt(4)")
    b(f"o_nowo:\ns_mul_i32 s38, s{SJ}, {WFS}\ns_add_u32 s38, s38, {WF}")
    window(b, 16, 38, WFS)
    b(f"s_cmp_eq_u32 s{SL}, 0\ns_cselect_b32 s18, s18, {27*CH}")
    unit_offset(b, 5, 6, 7)
    stats_target(b)
    res_swap(b)
    tile_base(b, 34, 35)
    b(f"""
    s_lshl_b32 s38, s{SW}, 10
    s_add_u32 s37, s35, s38
    s_add_u32 s37, s37, s{SL}
    s_add_u32 s37, s37, {OB}
    s_add_u32 s38, s38, {3*CH}
    v_add_u32 v6, {3*CH}, v1
    s_add_u32 s36, s34, s{SL}
    s_add_u32 s36, s36, {X1}
    v_bfe_u32 v7, v0, 4, 2
    v_and_b32 v8, 15, v0
    v_lshlrev_b32 v7, 9, v7
    v_lshl_add_u32 v7, v8, 2, v7
    v_add_u32 v7, {3*CH+32768}, v7
    v_add_u32 v8, 2048, v7
    s_waitcnt lgkmcnt(0)
    """)
    stamp(b, 13)
    poll(b, "o", C_O, SI, 16, True)
    stamp(b, 14)
    for i in range(9):
        off = 4096 * (i // 2) + 16384 * (i % 2) if i < 8 else 32768
        b(f"s_add_u32 m0, s38, {off}\ns_add_u32 s39, s37, {off}\nbuffer_load_dwordx4 v1, s[12:15], s39 offen sc1 lds")
    b(f"s_waitcnt vmcnt(5)\ns_barrier")
    stamp(b, 15)
    b(f"s_cmp_eq_u32 s{SW}, 3\ns_cbranch_scc1 o_ring")
    of = lambda ks, rt: OF + (ks % 3) * 8 + rt * 4

    def rd(ks):
        if ks < 16:
            return [f"ds_read_b128 {v(of(ks,rt),4)}, v6 offset:{rt*16384+ks*1024}" for rt in range(2)]
        return [f"ds_read2_b32 {v(of(ks,rt)+2*k,2)}, v{7+ks-16} offset0:{16*rt+64*k} offset1:{16*rt+64*k+32}"
                for rt in range(2) for k in range(2)]

    for ks in range(2):
        b("\n".join(rd(ks)))
    for ks in range(18):
        mains = [mf16(v(RES + 8 * n + 4 * rt, 4), a((n * 18 + ks) * 4, 4), v(of(ks, rt), 4), v(RES + 8 * n + 4 * rt, 4))
                 for n in range(3) for rt in range(2)]
        pins = list(enumerate(rd(ks + 2))) if ks + 2 < 18 else []
        if ks == 5:
            pins += [(4, "s_waitcnt vmcnt(0)"), (4, "s_barrier")]
        if ks == 0:
            b("s_waitcnt lgkmcnt(2)")
        if ks < 17:
            pins.append((5, f"s_waitcnt lgkmcnt({len(rd(ks + 2)) if ks < 16 else 0})"))
        b(sched2(mains, pins, [])[0])
    b("s_nop 3")
    for n in range(3):
        for k in range(4):
            b(f"v_permlane16_swap_b32 v{RES+8*n+k}, v{RES+8*n+4+k}")
        pack4(b, PK + 4 * n, RES + 8 * n, RES + 8 * n + 4)
        b(f"buffer_store_dwordx4 {v(PK+4*n,4)}, v5, s[12:15], s36 offen offset:{512*n} sc1")
    stats_publish(b, S1)
    stamp(b, 16)
    signal(b, "o", C_X1, STJ, wave=0)
    stamp(b, 17)
    c = side
    c(f"""
o_ring:
    s_waitcnt vmcnt(0)
    s_barrier
    s_cmp_lg_u32 s{SL}, 0
    s_cbranch_scc1 o_ready
    """)
    if int(OPT.get("pf2", 0)):
        c("""
        s_getpc_b64 s[38:39]
o_pc:
        s_sub_u32 s38, s38, o_pc-o_sig
        s_subb_u32 s39, s39, 0
        s_bfe_u32 s40, s2, 0x50003
        s_lshl_b32 s40, s40, 10
        v_and_b32 v6, 7, v0
        v_lshl_add_u32 v6, v6, 7, s40
        v_min_u32 v6, main_code_end-o_sig-4, v6
        v_mov_b32 v7, s39
        v_add_co_u32 v6, vcc, s38, v6
        s_nop 1
        v_addc_co_u32 v7, vcc, 0, v7, vcc
        global_load_dword v8, v[6:7], off
        """)
    c(f"""
    v_and_b32 v6, 7, v0
    v_lshlrev_b32 v6, 7, v6
    s_add_u32 s60, s{SC}, {C_PREP}
    s_mov_b32 s61, 0x40000
o_prep:
    buffer_load_dword v4, v6, s[12:15], s60 offen sc1
    s_sub_u32 s61, s61, 1
    s_waitcnt vmcnt(0)
    v_cmp_gt_u32 vcc, 32, v4
    s_cbranch_scc1 o_ready
    s_cbranch_vccnz o_prep
o_ready:
    s_mov_b32 m0, 0
    s_mov_b32 s43, 0
o_fill:
    """)
    dma_run(c, 4, 16, 43, " sc1")
    c(f"""
    s_add_u32 m0, m0, 4096
    s_add_u32 s43, s43, 4096
    s_waitcnt vmcnt({int(OPT.get('th', 28))})
    s_cmp_lt_u32 s43, {NB*1024}
    s_cbranch_scc1 o_fill
    s_branch o_bar
    """)
    return c.text()


def phase_f(b):
    VS, NB = int(OPT.get("vs", 66)), int(OPT.get('nb', 80))
    LA, LB, DV, C1, C2, VP, VFL = 5, 6, 7, 10, 12, 14, 15
    ACC1, TMP, STG, FL, VH, ACC2, ST, ONE, UO, LO = 16, 48, 64, 72, 80, 84, 84, 100, 156, 157
    RING, NR, PD, HR = 144, 12, 8, 192
    xb = lambda ks, rt: a((ks * 2 + rt) * 4, 4)
    ring = lambda i: a(RING + 4 * (i % NR), 4)

    def hr(c, m, rt):
        u, o = c - 18, (m * 2 + rt) * 4
        if u in (2, 3):
            return v(160 + 32 * (u - 2) + o, 4)
        return a({0: HR, 1: HR + 32, 8: HR}.get(u, 32 * (u - 4)) + o, 4)

    P0 = int(OPT.get("p0", 11))
    SOFT, SG = int(OPT.get('sb', 1)), 1
    SFL, SFC, SFW, SFR = 224, 228, 229, 230
    b(f"""
    s_mul_i32 s43, s{SW}, {(144-NB)//4*1024}
    s_add_u32 s43, s43, {NB*1024}
    s_mov_b32 m0, s43
    s_mul_i32 s39, s{STW}, 36864
    """)
    pb = B()
    unit_offset(pb, UO, TMP, TMP + 1)
    pb(f"""
    s_mul_i32 s44, s{SW}, 9216
    v_add_u32 v{DV}, s44, v1
    s_lshl_b32 s45, s44, 1
    s_add_u32 s45, s45, {2*CH}
    v_add_u32 v{DV+1}, 4096, v{DV}
    v_add_u32 v{DV+2}, 8192, v{DV}
    s_mul_i32 s46, s{STW}, {16*18432}
    s_add_u32 s46, s46, s{SL}
    s_add_u32 s46, s46, {HB}
    s_and_b32 s35, s{SJ}, 12
    """)
    for m in range(4):
        pb(f"""
        s_add_u32 s34, s{SJ}, {m}
        s_and_b32 s34, s34, 3
        s_add_u32 s34, s34, s35
        s_mul_i32 s34, s34, 18432
        s_add_u32 s34, s34, s46
        v_add_u32 v{VH+m}, s34, v1
        """)
    pb(f"""
    s_mul_i32 s34, s{SJ}, 18432
    s_add_u32 s46, s46, s34
    s_lshl_b32 s41, s{STJ}, 7
    s_add_u32 s41, s41, s{SC}
    s_add_u32 s41, s41, {C_H}
    s_and_b32 s37, s{SJ}, 3
    s_lshl_b32 s34, s37, 2
    v_mov_b32 v{VFL}, s34
    v_mov_b32 v{VP}, {OOB}
    v_cmp_eq_u32 vcc, 0, v0
    s_mov_b32 s47, {P0//2}
    s_lshr_b32 s36, s{SJ}, 2
    v_cndmask_b32 v{VFL}, v{VP}, v{VFL}, vcc
    v_mov_b32 v{VP}, 1
    s_mul_i32 s34, s36, {SZX}
    s_mul_i32 s35, s{STW}, 36864
    s_add_u32 s34, s34, s35
    s_mul_i32 s35, s37, 4608
    s_add_u32 s34, s34, s35
    s_add_u32 s34, s34, s{SL}
    s_add_u32 s34, s34, {PART}
    s_lshl_b32 s35, s{SI}, 2
    s_add_u32 s37, s37, s35
    s_cmp_eq_u32 s36, s{SW}
    s_cselect_b32 s34, {OOB}, s34
    s_add_u32 s35, s34, 4096
    v_add_u32 v{LO}, {4*CH}, v1
    v_mov_b32 v{SFC}, 0
    v_and_b32 v{FL+2}, 3, v0
    v_lshlrev_b32 v{FL+2}, 2, v{FL+2}
    v_add_u32 v{SFR}, {4*CH+12288}, v{FL+2}
    s_lshl_b32 s38, s{SW}, 2
    s_add_u32 s38, s38, {4*CH+12288}
    v_mov_b32 v{SFW}, s38
    ds_write_b32 v{SFW}, v{SFC}
    s_mul_i32 s38, s{STW}, 3072
    s_add_u32 s38, s38, s{SL}
    s_add_u32 s38, s38, {S1}
    v_add_u32 v{LA}, {2*CH}, v1
    v_add_u32 v{LB}, {CH}, v1
    """)
    db = B()
    dma_run(db, (144 - NB) // 4, 16, 43, " sc1")
    dl, sl = [x.strip() for x in db.lines], [x.strip() for x in pb.lines]
    per = -(-len(sl) // ((144 - NB) // 4))
    for x in dl:
        b(x)
        if "buffer" in x:
            n = per + ("s_cmp" in "".join(sl[per-1:per]))
            b("\n".join(sl[:n]))
            sl = sl[n:]
    b("\n".join(sl + [f"s_mov_b32 s43, {4*CH}"]))
    b(f"s_add_u32 s39, s39, s{SL}\ns_add_u32 s39, s39, {X1}\ns_add_u32 s40, s39, 18432")
    rdf = lambda gi, i, base: f"ds_read_b128 {ring(gi)}, v{base} offset:{1024*i}"
    acc1 = lambda st, gu, rt: ACC1 + 16 * st + (gu * 2 + rt) * 4

    def rd01(j):
        if j >= 72:
            return rdf(j, j - 72, LA)
        return rdf(j, 2 * (j // 4) + j % 2, 1 if j % 4 < 2 else LB)

    stamp(b, 18)
    b(f"""
    s_lshl_b32 s60, s{STW}, 7
    s_add_u32 s60, s60, s{SC}
    s_add_u32 s60, s60, {C_X1}
    buffer_load_dword v4, v2, s[12:15], s60 offen sc1
    s_waitcnt vmcnt(1) lgkmcnt(0)
    s_barrier
    """)
    for j in range(PD):
        b(rd01(j))
    b("s_waitcnt vmcnt(0)\nv_cmp_gt_u32 vcc, 4, v4\ns_nop 0\ns_cbranch_vccz f_ok")
    poll(b, "f", C_X1, STW, 4, False)
    stamp(b, 19)

    def xload(ks, rt):
        off = f" offset:{1024*(ks%4)}" if ks % 4 else ""
        t = f"buffer_load_dwordx4 {xb(ks,rt)}, v1, s[12:15], s{39+rt} offen{off} sc1 ;#x{ks}"
        if ks % 4 == 3:
            t += f"\ns_add_u32 s{39+rt}, s{39+rt}, 4096"
        return t

    XA = int(OPT.get("xa", 4))
    for ks in range(XA):
        for rt in range(2):
            b(xload(ks, rt))
    mains, pinned = [], []
    for ks in range(18):
        g0 = 8 * ks
        for st in range(2):
            for gu in range(2):
                for rt in range(2):
                    d = v(acc1(st, gu, rt), 4)
                    mains.append(mf16(d, ring(4 * ks + 2 * st + gu), xb(ks, rt), "0" if ks == 0 else d))
        pinned += [(g0 + 2 * k, rd01(4 * ks + k + PD)) for k in range(4)]
        pinned.append((g0 + 7, f"s_waitcnt vmcnt(@x{ks+1}) lgkmcnt({PD-4})" if ks < 17 else "s_barrier"))
        if ks + XA < 18:
            for rt in range(2):
                for k, x in enumerate(xload(ks + XA, rt).split("\n")):
                    pinned.append((g0 + 1 + 4 * rt + k, x))
        if ks in (1, 3, 5):
            pinned.append((g0 + 3, stats_loads(ST, 38)[ks // 2]))
    NL = fbits(-math.log2(math.e))
    ops = chain(stats_reduce(ST, ST, fbits(1e-5)) + [(f"v_rsq_f32 v{C1}, v{ST}", 1), f"v_rsq_f32 v{C1+1}, v{ST+1}", f"v_mov_b32 v{C2}, v{ST}", f"v_mov_b32 v{C2+1}, v{ST+1}",
                                    f"v_mul_f32 v{C1}, {NL}, v{C1}", f"v_mul_f32 v{C1+1}, {NL}, v{C1+1}"], earliest=8 * (6 + XA))
    b(f"s_waitcnt vmcnt(@x0) lgkmcnt({PD-4})")
    b(sched2(mains, pinned, ops)[0])
    b("s_nop 1")

    def dma(par, others=(), gate=None, sin=False):
        out, others = [], list(others)
        if sin:
            for _ in range(min(2, len(others))):
                out += [(x, 0) for x in others.pop(0)]
        per = len(others) / 9
        for i in range(9):
            if i % 4 == 0:
                out.append((f"s_add_u32 m0, s44, {4096*(i//4) + (0 if par else CH)}", 0))
            ld = f"buffer_load_dwordx4 v{DV+i//4}, s[16:19], s43 offen" + (f" offset:{1024*(i%4)}" if i % 4 else "") + f" sc1 lds ;#d{par}"
            out.append((ld, 1 if i % 4 == 0 else 0))
            take = len(others) if i == 7 else min(len(others), int((i + 1) * per + 0.999) - int(i * per + 0.999))
            for _ in range(take if i < 8 else 0):
                out += [(x, 0) for x in others.pop(0)]
        out.append((f"s_add_u32 s43, s43, {CH}", 0))
        if par == 0:
            out.append(("s_sub_u32 s44, s45, s44", 0))
        ops = chain(out)
        if gate:
            for o in ops:
                if "s[12:15]" in o.text:
                    o.deps.append((gate, 0))
        return ops

    def swiglu(st, half):
        ops, last = [], []
        for k in range(8):
            rt, i = divmod(k, 4)
            g, u = acc1(st, 0, rt) + i, acc1(st, 1, rt) + i
            t, p = TMP + k, TMP + 8 + k
            c = chain([f"v_mul_f32 v{t}, v{C1+rt}, v{g}", f"v_exp_f32 v{t}, v{t}",
                       f"v_fma_f32 v{t}, v{t}, v{C2+rt}, v{C2+rt}", f"v_rcp_f32 v{t}, v{t}"], earliest=3, dist=1)
            m = Op(f"v_mul_f32 v{p}, v{g}, v{u}", earliest=4)
            f = Op(f"v_mul_f32 v{p}, v{p}, v{t}", [(c[-1], 1), (m, 0)])
            ops += c + [m, f]
            for o in c + [m, f]:
                o.bias = 3 * (1 - rt)
            last.append(f)
            if k % 2:
                cv = Op(f"v_cvt_pk_bf16_f32 v{STG+4*rt+2*half+i//2}, v{p-1}, v{p}", [(last[-2], 0), (f, 0)])
                ops.append(cv)
                if half and i == 3:
                    st_ = Op(f"buffer_store_dwordx4 {v(STG+4*rt,4)}, v1, s[12:15], s46 offen" + (" offset:1024" if rt else "") + " sc1",
                             [(cv, 0), (prevcv, 0)])
                    ops.append(st_)
                    if rt:
                        ops.append(Op("s_add_u32 s46, s46, 2048", [(st_, 0), (prevst, 0)]))
                    prevst = st_
                prevcv = cv
        return ops

    stage = [[], [], [], [], [], [], []]
    for k in range(8):
        rt, i = divmod(k, 4)
        g, u, t, p = acc1(0, 0, rt) + i, acc1(0, 1, rt) + i, TMP + k, TMP + 8 + k
        for n, x in enumerate([f"v_mul_f32 v{t}, v{C1+rt}, v{g}", f"v_exp_f32 v{t}, v{t}", f"v_mul_f32 v{p}, v{g}, v{u}",
                               f"v_fma_f32 v{t}, v{t}, v{C2+rt}, v{C2+rt}", f"v_rcp_f32 v{t}, v{t}", f"v_mul_f32 v{p}, v{p}, v{t}"]):
            stage[n].append(x)
        if k % 2:
            stage[6].append(f"v_cvt_pk_bf16_f32 v{STG+4*rt+i//2}, v{p-1}, v{p}")
    flat, dm = [x for st in stage for x in st], [o.text for o in dma(1)]
    for i, x in enumerate(flat):
        if i % 4 == 0 and dm:
            b(dm.pop(0))
        b(x)
    assert not dm
    stamp(b, 20)
    b(f"s_waitcnt lgkmcnt({PD-4})\ns_branch f_p1b")

    progress = lambda: chain([f"v_add_u32 v{VP}, 1, v{VP}", f"buffer_store_dword v{VP}, v{VFL}, s[12:15], s41 offen sc1"])
    slow = []
    flag_load = lambda par: [[f"buffer_load_dword v{FL+par}, v{FL+2}, s[12:15], s41 offen sc1"]]

    def guard(tag, load, wait, cmp, earliest):
        slow.append(f"""
{tag}_spin:
        s_mov_b32 s61, 0x80000
{tag}_again:
        {load}
        s_sub_u32 s61, s61, 1
        s_waitcnt {wait}(0)
        {cmp}
        s_cbranch_scc1 {tag}_back
        s_cbranch_vccnz {tag}_again
        s_branch {tag}_back
        """)
        c = chain([cmp, (f"s_cbranch_vccnz {tag}_spin\n{tag}_back:", 2)], earliest=earliest)
        for o in c:
            o.urgent = True
        return c

    check = lambda par, tag, need: guard(tag, flag_load(par)[0][0], "vmcnt", f"v_cmp_gt_u32 vcc, {need}, v{FL+par}", 0)
    soft_read = f"ds_read_b32 v{SFL}, v{SFR}"
    soft_check = lambda: guard(f"fs{len(slow)}", soft_read, "lgkmcnt", f"v_cmp_gt_u32 vcc, v{SFC}, v{SFL}", SG + 6)

    def chunk(mains, par, extra, pins=(), order=None, nxt_order=None, last=False, endtag='', loads=(), gate=None, prog=False, sin=False, sout=False):
        cur, nxt = (LA, LB) if par == 0 else (LB, LA)
        order = order or list(range(36))
        nxt_order = nxt_order or list(range(36))
        pinned = list(pins)
        for i in range(36):
            j = i + PD
            if j < 36 or not last:
                pinned.append((2 * i, rdf(j, order[j] if j < 36 else nxt_order[j - 36], cur if j < 36 else nxt)))
            if i % 4 == 3 and not (last and i == 35):
                n = PD - 4 if not last else max(0, min(PD - 4, 36 - (i + 5)))
                vm = ""
                if sin and 2 * i + 1 == SG + 6:
                    n = 3
                if sout:
                    if i == 31:
                        vm = f"vmcnt(@d{1-par}) "
                    if i == 35:
                        n += 1
                elif i == 35:
                    vm = f"vmcnt(@d{1-par}{endtag}) "
                pinned.append((2 * i + 1, f"s_waitcnt {vm}lgkmcnt({n})"))
        if not last:
            pinned.append((40, f"v_xor_b32 v{nxt}, {2*CH}, v{nxt}"))
        st = [o for o in extra[1] if 'store' in o.text]
        rest = [o for o in extra[1] if 'store' not in o.text]
        dm, pr, sc = dma(par, loads, gate, sin), (progress() if prog else []), []
        if sin:
            sc = soft_check()
            if gate:
                sc[0].deps.append((gate, 0))
            pinned.append((SG, soft_read))
            for o in dm + pr:
                if " lds" in o.text or "store" in o.text:
                    o.deps.append((sc[-1], 0))
        if sout:
            pinned += [(62, f"v_add_u32 v{SFC}, 1, v{SFC}"), (65, f"ds_write_b32 v{SFW}, v{SFC}")]
        txt, over, lastgap = sched2(mains, pinned, extra[0] + sc + pr + st + dm + rest, vspan=VS, vstart=1)
        b(txt)
        if not last and not sout:
            b("s_barrier")
        return over, lastgap

    def p1_mains(st):
        return [mf16(v(acc1(st, gu, rt), 4), ring(2 * ks + gu), xb(ks, rt), "0" if ks == 0 else v(acc1(st, gu, rt), 4))
                for ks in range(18) for gu in range(2) for rt in range(2)]

    acc2 = lambda tl, rt: ACC2 + (tl * 2 + rt) * 4

    def p2_mains(c, first=False):
        return [mf16(v(acc2(tl, rt), 4), ring(9 * m + tl), hr(c, m, rt), "0" if first and m == 0 else v(acc2(tl, rt), 4))
                for m in range(4) for tl in range(9) for rt in range(2)]

    plan = {c: [] for c in range(P0, 27)}
    early = [(u, m, rt) for u in range(4) for m in range(4) for rt in range(2)]
    quota = {c: 0 for c in range(P0, 18)}
    for _ in early:
        c = min(quota, key=lambda c: (quota[c] + (0 if c % 2 else 1), c))
        quota[c] += 1
    for c in quota:
        plan[c], early = early[:quota[c]], early[quota[c]:]
    late = [(u, m, rt) for u in range(4, 8) for m in range(4) for rt in range(2)]
    L0, L1 = int(OPT.get("l0", 18)), int(OPT.get("l1", 24))
    for k, x in enumerate(late):
        plan[L0 + k * (L1 - L0) // len(late)].append(x)
    plan[24] += [(8, m, rt) for m in range(4) for rt in range(2)]
    need = {c: max([u for u, _, _ in plan[c]], default=-3) + 3 for c in plan}
    checks, seen = {}, 0
    for c in plan:
        if c % 2 == 0 and c - 2 < P0:
            continue
        want = max(need[c], need[c + 1] if c == P0 else 0)
        if want > seen:
            want = max([want] + [need[d] for d in plan if need[d] <= (c - 3) // 2])
            checks[c] = seen = want
    print("h plan", {c: len(x) for c, x in plan.items()}, "checks", checks, file=sys.stderr)

    def hstream(c):
        ld, cur = [], None
        for u, m, rt in plan[c]:
            off = 2048 * (u % 2) + 1024 * rt
            x = [f"buffer_load_dwordx4 {hr(18+u,m,rt)}, v{VH+m}, s[12:15], s47 offen" + (f" offset:{off}" if off else "") + f" sc1 ;#h{u}"]
            if u // 2 != cur:
                cur = u // 2
                x.insert(0, f"s_mov_b32 s47, {4096*cur}")
            ld.append(x)
        return ld

    over = []
    b(".p2align 3\nf_p1:")
    over.append(chunk(p1_mains(1), 1, ([], swiglu(0, 0)), loads=[[], [], [], [], []] + flag_load(1), prog=True, sin=SOFT, sout=SOFT))
    b("f_p1b:")
    over.append(chunk(p1_mains(0), 0, ([], swiglu(1, 1) + [Op("s_sub_u32 s47, s47, 1")]), sin=SOFT, sout=SOFT))
    b("s_cmp_lg_u32 s47, 0\ns_cbranch_scc1 f_p1")
    stamp(b, 21)
    tmaj = [9 * m + tl for tl in range(9) for m in range(4)]
    for c in range(P0, 26):
        ck = check(c % 2, f"f{c}", checks[c]) if c in checks else []
        gate = ck[-1] if ck else None
        front = ck
        loads = hstream(c) + (flag_load(c % 2) if c + 2 in checks else [])
        act = swiglu(1 - c % 2, 1 - c % 2) if c <= 18 else []
        over.append(chunk(p1_mains(c % 2) if c < 18 else p2_mains(c, c == 18), c % 2, (front, act),
                          endtag=f",h{c-17}" if c >= 17 else "", nxt_order=tmaj if c == 25 else None, loads=loads, gate=gate, prog=c % 2 and c <= 21, sin=SOFT and c == P0))
        if c in (17, 18, 24):
            stamp(b, {17: 22, 18: 23, 24: 24}[c])
    mains = [mf16(v(acc2(tl, rt), 4), ring(4 * tl + m), hr(26, m, rt), v(acc2(tl, rt), 4)) for tl in range(9) for m in range(4) for rt in range(2)]

    def out_tile(tl):
        r, p, q = ACC1 + 4 * tl, acc2(tl, 0), acc2(tl, 1)
        return [f"v_cvt_pk_bf16_f32 v{r}, v{p}, v{p+1}", f"v_cvt_pk_bf16_f32 v{r+1}, v{p+2}, v{p+3}",
                f"v_cvt_pk_bf16_f32 v{r+2}, v{q}, v{q+1}", f"v_cvt_pk_bf16_f32 v{r+3}, v{q+2}, v{q+3}",
                (f"v_permlane16_swap_b32 v{r}, v{r+2}", 1), (f"v_permlane16_swap_b32 v{r+1}, v{r+3}", 0),
                f"buffer_store_dwordx4 {v(r,4)}, v{UO}, s[12:15], s{34+tl//8} offen offset:{512*(tl%8)} sc1",
                f"ds_write_b128 v{LO}, {v(r,4)} offset:{1024*tl}"]

    outs, prev = [], None
    for tl in range(7):
        c = chain(out_tile(tl)[:7], earliest=8 * tl + 12, after=prev)
        outs += c
        prev = c[-1]
    over.append(chunk(mains, 0, (outs, []), order=tmaj, last=True))
    for tl in (7, 8):
        for t in out_tile(tl)[:7]:
            if isinstance(t, tuple):
                b(("s_nop 0\n" if t[1] else "") + t[0])
            else:
                b(t)
    b(f"s_cmp_lg_u32 s36, s{SW}\ns_cbranch_scc1 f_nokeep")
    for tl in range(9):
        b(out_tile(tl)[7])
    b("f_nokeep:")
    stamp(b, 25)
    signal(b, "f", C_P, 37)
    stamp(b, 26)
    b(f"s_cmp_lg_u32 s{SL}, 0\ns_cbranch_scc1 f_nowq")
    for o in dma(1):
        b(o.text + ("\ns_nop 0" if "m0," in o.text else ""))
    b("f_nowq:")
    print("ffn (overflow, last gap):", over, file=sys.stderr)
    return "\n".join(slow)


def phase_r(b, name):
    D0, PK, UO = 16, 80, 156
    side = B()
    stats_target(b)
    tile_base(b, 34, 35)
    b(f"""
    s_mul_i32 s35, s{SW}, 3072
    s_add_u32 s35, s35, {4*CH}
    v_add_u32 v6, s35, v1
    s_add_u32 s35, s34, s{SL}
    s_add_u32 s35, s35, {PART}
    """)
    d = lambda src, n: D0 + (src * 3 + n) * 4
    for n in range(3):
        b(f"ds_read_b128 {v(d(0,n),4)}, v6 offset:{1024*n}")
    for k in range(1, 4):
        b(f"s_add_u32 s38, s36, {k}\ns_and_b32 s38, s38, 3\ns_mul_i32 s38, s38, {SZX}\ns_add_u32 s{40+k}, s38, s35")

    def add(src, n):
        for j in range(4):
            for h in range(2):
                r = RES + 8 * n + 2 * j + h
                b(f"v_dot2_f32_bf16 v{r}, v{d(src,n)+j}, s{30+h}, v{r}")

    b(f"""
    s_mov_b32 s16, s12
    s_mov_b32 s17, s13
    s_mov_b32 s18, {SZX}
    s_mov_b32 s19, 0x20000
    v_mov_b32 v7, v{UO}
    s_cmp_eq_u32 s{SL}, 0
    s_cbranch_scc1 r_mid
    """)
    row_tile(b, 7, 34)
    b("s_mov_b32 s16, s6\ns_mov_b32 s17, s7\nr_mid:\ns_waitcnt lgkmcnt(0)")
    for n in range(3):
        add(0, n)
    poll(b, "r", C_P, 37, 4, True)
    stamp(b, 27)
    b(f"s_cmp_eq_u32 s{SW}, 3\ns_cbranch_scc1 r_idle")
    for n in range(3):
        for src in range(1, 4):
            b(f"buffer_load_dwordx4 {v(d(src,n),4)}, v{UO}, s[12:15], s{40+src} offen offset:{512*n} sc1 ;#p{src}{n}")
    b(f"s_cmp_lg_u32 s{SL}, 0")
    for n in range(3):
        for src in range(1, 4):
            b(f"s_waitcnt vmcnt(@p{src}{n})")
            add(src, n)
        pack4(b, PK + 4 * n, RES + 8 * n, RES + 8 * n + 4)
        b(f"""
        s_cbranch_scc1 r_out{n}
        buffer_store_dwordx4 {v(PK+4*n,4)}, v7, s[16:19], s34 offen offset:{512*n} sc1
r_back{n}:
        """)
        side(f"r_out{n}:\nbuffer_store_dwordx4 {v(PK+4*n,4)}, v7, s[16:19], s34 offen offset:{32*n}\ns_branch r_back{n}")
    b("s_cbranch_scc1 r_exit")
    stats_publish(b, S2)
    b(f"r_idle:\ns_cmp_lg_u32 s{SL}, 0\ns_cbranch_scc1 r_exit")
    stamp(b, 28)
    signal(b, "r", C_X2, STJ)
    if DIAG:
        stamp(b, 29)
        stamp_real(b, 31)
        stamp_flush(b, "2")
        stamp_real(b, 30)
        stamp(b, 0)
    b(f"""
    s_mov_b32 s{SL}, {LST}
    s_add_u32 s{SC}, s{SC}, {CL}
    s_branch layer
r_exit:
    """)
    return side.text()


def gen_main(name):
    b = B()
    JB = int(OPT.get("jb", 2))
    head(b, name, 256, [(4, "ws"), (6, "out"), (100, "x")])
    b(f"""
    v_lshrrev_b32 v5, 6, v0
    v_and_b32 v1, 63, v0
    v_lshlrev_b32 v1, 4, v1
    v_readfirstlane_b32 s{SW}, v5
    v_mov_b32 v2, 0
    v_mov_b32 v3, 1
    """)
    if int(OPT.get("role", 0)):
        b(f"""
        s_getreg_b32 s34, hwreg(HW_REG_XCC_ID, 0, 3)
        s_lshl_b32 s34, s34, 2
        s_lshr_b32 s35, s2, 6
        s_add_u32 s34, s34, s35
        v_mov_b32 v6, {4*CH}
        s_mov_b32 s36, 32
        s_waitcnt lgkmcnt(0)
        """)
        srd(b, 12, 4, 0, WS_END)
        b(f"""
        s_cmp_lg_u32 s{SW}, 0
        s_cbranch_scc1 role_wait
role_try:
        s_lshl_b32 s35, s34, 7
        s_add_u32 s35, s35, {CNT+C_ROLE}
        v_mov_b32 v4, 1
        s_mov_b64 exec, 1
        buffer_atomic_add v4, v2, s[12:15], s35 offen sc0 sc1
        s_mov_b64 exec, -1
        s_waitcnt vmcnt(0)
        v_readfirstlane_b32 s37, v4
        s_sub_u32 s36, s36, 1
        s_cbranch_scc1 role_got
        s_cmp_lt_u32 s37, 8
        s_cbranch_scc1 role_got
        s_add_u32 s34, s34, 1
        s_and_b32 s34, s34, 31
        s_branch role_try
role_got:
        s_and_b32 s35, s34, 3
        s_lshl_b32 s35, s35, 3
        s_add_u32 s35, s35, s37
        s_lshl_b32 s35, s35, 3
        s_lshr_b32 s34, s34, 2
        s_add_u32 s35, s35, s34
        v_mov_b32 v4, s35
        ds_write_b32 v6, v4
        s_waitcnt lgkmcnt(0)
role_wait:
        s_barrier
        ds_read_b32 v4, v6
        s_waitcnt lgkmcnt(0)
        v_readfirstlane_b32 s2, v4
        s_nop 0
        s_and_b32 s2, s2, 255
        """)
    b(f"""
    s_bfe_u32 s34, s2, {(4-JB) << 16}
    s_lshl_b32 s34, s34, {JB}
    s_bfe_u32 s35, s2, {(JB << 16) + 3}
    s_add_u32 s{SJ}, s34, s35
    s_bfe_u32 s34, s2, {((JB-1) << 16) + 4 - JB}
    s_lshl_b32 s34, s34, {5-JB}
    s_lshr_b32 s35, s2, {3+JB}
    s_add_u32 s{SI}, s34, s35
    s_lshl_b32 s34, s{SI}, 2
    s_add_u32 s{STW}, s34, s{SW}
    s_lshr_b32 s35, s{SJ}, 2
    s_add_u32 s{STJ}, s34, s35
    s_mov_b32 s{SL}, 0
    s_mov_b32 s{SC}, {CNT}
    s_mov_b32 s30, 0x3f80
    s_mov_b32 s31, 0x3f800000
    s_lshl_b32 s10, s{SW}, 10
    s_mul_i32 s11, s{SJ}, {WQH}
    s_add_u32 s11, s11, s10
    s_add_u32 s11, s11, {WQ}
    s_waitcnt lgkmcnt(0)
    """)
    srd(b, 12, 4, 0, WS_END)
    for i in range(11):
        b("s_mov_b32 m0, s10\ns_add_u32 s10, s10, 4096\nbuffer_load_dwordx4 v1, s[12:15], s11 offen lds\ns_add_u32 s11, s11, 4096")
    raw_setup(b)
    b("layer:")
    phase_q(b)
    slow = phase_a(b)
    slow += phase_o(b)
    slow += phase_f(b)
    slow += "\n" + phase_r(b, name)
    finish(b, name, "3")
    b(slow)
    b("main_code_end:")
    return dict(name=name, text=resolve_waits(b.text()), grid=256, block=256, lds=163840)


def build_all():
    import gen
    gen.OPT.clear()
    ks = [gen_prep("prep_kernel"), gen_main("main_kernel")]
    txt = gen.assemble(ks, [k["name"] for k in ks])
    return re.sub(r"(quad_perm|op_sel|op_sel_hi):\[([\d:]+)\]", lambda m: f"{m.group(1)}:[{m.group(2).replace(':', ',')}]", txt)


if __name__ == "__main__":
    for x in [x for x in sys.argv if "=" in x]:
        k, val = x.split("=")
        OPT[k] = val.replace("_", " ")
        sys.argv.remove(x)
    if "--diag" in sys.argv:
        DIAG = True
        sys.argv.remove("--diag")
    open(sys.argv[1], "w").write(build_all())
```

```python
import re

TRANS = ("v_exp_", "v_log_", "v_rcp_", "v_rsq_", "v_sqrt_", "v_sin_", "v_cos_")
NO_DST_SALU = ("s_cmp", "s_waitcnt", "s_barrier", "s_nop", "s_branch", "s_cbranch", "s_setprio", "s_sleep",
               "s_endpgm", "s_set_gpr_idx_off", "s_bitcmp", "s_setreg", "s_sethalt")
REG_RE = re.compile(r"^-?\|?(?:abs\()?([vas])(?:\[(\d+):(\d+)\]|(\d+))\)?\|?$")


def regs_of(op):
    op = op.strip()
    if op in ("vcc", "vcc_lo", "vcc_hi"):
        return {"vcc"}
    if op in ("exec", "exec_lo", "exec_hi"):
        return {"exec"}
    if op == "m0":
        return {"m0"}
    m = REG_RE.match(op)
    if not m:
        return set()
    if m.group(4) is not None:
        return {m.group(1) + m.group(4)}
    return {m.group(1) + str(i) for i in range(int(m.group(2)), int(m.group(3)) + 1)}


class Ins:
    def __init__(self, text, idx):
        self.text, self.idx = text, idx
        body = text.split(";")[0].strip()
        parts = body.split(None, 1)
        self.op = parts[0]
        rest = parts[1] if len(parts) > 1 else ""
        ops = [o.strip() for o in rest.split(",")] if rest else []
        self.mods = ""
        if ops:
            last = ops[-1].split(None, 1)
            if len(last) > 1 and not self.op.startswith("s_waitcnt"):
                ops[-1], self.mods = last[0], last[1]
        self.ops = ops
        op = self.op
        R = [regs_of(o) for o in ops]
        u = lambda xs: set().union(*xs) if xs else set()
        self.kind = "other"
        self.w, self.r = set(), set()
        self.passes = 0
        self.srcC = set()
        self.srcAB = set()
        self.store_data = set()
        if op.startswith("v_mfma") or op.startswith("v_smfmac"):
            self.kind = "mfma"
            self.passes = 4 if "16x16" in op else 8
            self.w = R[0]
            if op.startswith("v_smfmac"):
                self.srcC, self.srcAB = R[0], R[1] | R[2] | R[3]
            else:
                self.srcC, self.srcAB = R[3], R[1] | R[2]
            self.r = self.srcC | self.srcAB
        elif op.startswith("v_"):
            self.kind = "valu"
            if op.startswith("v_permlane") and "swap" in op or op.startswith("v_swap"):
                self.w = R[0] | R[1]
                self.r = R[0] | R[1]
            elif op.startswith("v_nop"):
                pass
            elif re.match(r"v_(add|sub|subrev|addc|subb)_co_", op) or op.startswith("v_mad_u64"):
                self.w = R[0] | R[1]
                self.r = u(R[2:])
            else:
                self.w = set(R[0])
                self.r = u(R[1:])
                if op.startswith("v_cmpx"):
                    self.w |= {"exec"}
                if op.startswith(("v_fmac", "v_dot2c", "v_writelane", "v_pk_fmac")) or "row_" in self.mods \
                        or "quad_perm" in self.mods or "UNUSED_PRESERVE" in self.mods:
                    self.r |= R[0]
                if op.startswith("v_cndmask") and len(ops) == 3:
                    self.r |= {"vcc"}
        elif op.startswith("ds_"):
            self.kind = "ds"
            if op.startswith(("ds_read", "ds_bpermute", "ds_permute", "ds_swizzle")):
                self.w = R[0]
                self.r = u(R[1:])
            else:
                self.r = u(R)
        elif op.startswith(("buffer_", "global_")):
            self.kind = "vmem"
            lds = re.search(r"\blds\b", self.mods) is not None or "load_lds" in op
            self.lds = lds
            if op.startswith(("buffer_wbl2", "buffer_inv")):
                pass
            elif "load" in op and not lds:
                self.w = R[0]
                self.r = u(R[1:])
            elif lds:
                self.r = u(R) | {"m0"}
            else:
                self.r = u(R)
                data = R[0] if op.startswith("buffer_") else R[1]
                if op.endswith(("x3", "x4")):
                    self.store_data = data
                if "atomic" in op and "sc0" in self.mods:
                    self.w = data
        elif op.startswith(("s_load", "s_buffer_load", "s_memtime", "s_memrealtime", "s_atomic")):
            self.kind = "smem"
            self.w = R[0]
            self.r = u(R[1:])
        elif op.startswith("s_"):
            self.kind = "salu"
            if op.startswith("s_set_gpr_idx_on"):
                self.w = {"m0"}
                self.r = R[0]
            elif op.startswith(NO_DST_SALU):
                self.r = u(R)
                if "vcc" in op:
                    self.r |= {"vcc"}
                if "exec" in op:
                    self.r |= {"exec"}
            else:
                self.w = set(R[0])
                self.r = u(R[1:])
                if "saveexec" in op:
                    self.w |= {"exec"}
                if op.startswith(("s_addk", "s_mulk", "s_cmov", "s_bitset")):
                    self.r |= R[0]
        self.trans = op.startswith(TRANS)
        self.dot = op.startswith("v_dot")
        self.dpp = "row_" in self.mods or "quad_perm" in self.mods
        self.states = 1
        if op == "s_nop":
            self.states = int(ops[0], 0) + 1


def is_v(r):
    return r[0] in "va" and r != "vcc"


def need_states(p, c):
    n = 0
    pv = {r for r in p.w if is_v(r)}
    ps = p.w - pv
    if p.kind == "valu":
        if c.kind == "mfma" and pv & c.r:
            n = max(n, 3 if p.dot else 2)
        if c.kind == "mfma" and "exec" in p.w:
            n = max(n, 4)
        if c.kind == "valu":
            if p.trans and not c.trans and pv & c.r:
                n = max(n, 1)
            if c.op.startswith(("v_readlane", "v_readfirstlane")) and pv & c.r:
                n = max(n, 1)
            if (c.op.startswith("v_permlane") or c.dpp) and pv & c.r:
                n = max(n, 2)
            if ps & c.r:
                n = max(n, 4 if c.op.startswith(("v_readlane", "v_writelane")) else 2)
            if "exec" in p.w:
                if c.dpp:
                    n = max(n, 5)
                if c.op.startswith(("v_readlane", "v_readfirstlane", "v_writelane", "v_permlane")):
                    n = max(n, 4)
            if ("sdwa" in p.op or "op_sel" in p.mods) and not p.op.startswith("v_pk") and pv & (c.r | c.w):
                n = max(n, 1)
        if p.dot and pv & (c.r | c.w) and c.kind in ("valu", "ds", "vmem"):
            same_c = c.op == p.op and not (pv & (regs_of(c.ops[1]) | regs_of(c.ops[2])))
            if not same_c:
                n = max(n, 3)
        if c.kind == "vmem" and ps & c.r:
            n = max(n, 5)
        if c.kind == "salu" and ps & c.r:
            n = max(n, 1)
    if p.kind == "mfma":
        big = p.passes == 8
        if c.kind == "mfma":
            if p.w & c.srcAB:
                n = max(n, 12 if big else 8)
            if p.w & c.srcC and not (p.w == c.srcC and p.passes == c.passes):
                n = max(n, 10 if big else 6)
            if p.w & c.w and not (p.w & c.srcC) and p.passes > c.passes:
                n = max(n, 10 if big else 6)
        elif c.kind in ("valu", "ds", "vmem"):
            if p.w & (c.r | c.w):
                n = max(n, 12 if big else 8)
            if c.kind == "valu" and p.srcC & c.w:
                n = max(n, 7 if big else 3)
    if p.kind == "vmem" and p.store_data & c.w:
        n = max(n, 2 if c.kind in ("valu", "mfma") else 1)
    if p.kind == "salu" and "m0" in p.w and c.kind == "vmem" and "m0" in c.r:
        n = max(n, 1)
    return n


class Prog:
    def __init__(self, text):
        self.ins, self.labels = [], {}
        for line in text.splitlines():
            s = line.split(";")[0].strip()
            if not s or s.startswith("."):
                continue
            if s.endswith(":"):
                self.labels[s[:-1]] = len(self.ins)
                continue
            self.ins.append(Ins(line.strip(), len(self.ins)))
        n = len(self.ins)
        self.succ = [[] for _ in range(n)]
        self.pred = [[] for _ in range(n)]
        for i, x in enumerate(self.ins):
            if x.op == "s_endpgm":
                continue
            if x.op.startswith(("s_branch", "s_cbranch")):
                t = self.labels[x.ops[0]]
                if t < n:
                    self.succ[i].append(t)
            if x.op != "s_branch" and i + 1 < n:
                self.succ[i].append(i + 1)
        for i, ss in enumerate(self.succ):
            for t in ss:
                self.pred[t].append(i)

    def hazards(self):
        errs = []
        for c in self.ins:
            if c.kind == "other" or c.op in ("s_nop", "s_waitcnt", "s_barrier"):
                continue
            best = {}
            stack = [(p, 0) for p in self.pred[c.idx]]
            while stack:
                i, d = stack.pop()
                if d >= 13 or best.get(i, 99) <= d:
                    continue
                best[i] = d
                p = self.ins[i]
                need = need_states(p, c)
                if need > d:
                    errs.append(f"hazard: need {need} have {d}: [{p.idx}] {p.text}  ->  [{c.idx}] {c.text}")
                stack.extend((q, d + p.states) for q in self.pred[i])
        return errs

    def waits(self, start=0, max_back=2, limit=3_000_000):
        errs, seen, steps = set(), set(), 0
        stack = [(start, (), (), ())]
        while stack:
            i, vm, lg, back = stack.pop()
            vm, lg, back = list(vm), list(lg), dict(back)
            while True:
                steps += 1
                if steps > limit:
                    errs.add("wait walk: step limit reached")
                    return sorted(errs)
                x = self.ins[i]
                if x.op == "s_waitcnt":
                    t = " ".join(x.ops)
                    m = re.search(r"vmcnt\((\d+)\)", t)
                    if m:
                        k = int(m.group(1))
                        vm = vm[len(vm) - k:] if k and len(vm) > k else (vm if k else [])
                    m = re.search(r"lgkmcnt\((\d+)\)", t)
                    if m:
                        k = int(m.group(1))
                        if k == 0:
                            lg = []
                        elif any(self.ins[j].kind == "smem" for j in lg):
                            errs.add(f"counted lgkmcnt with SMEM outstanding at [{i}] {x.text}")
                        elif len(lg) > k:
                            lg = lg[len(lg) - k:]
                else:
                    use = x.r | x.w
                    for j in vm + lg:
                        p = self.ins[j]
                        if p.w & use and not (x.kind == p.kind and x.kind in ("vmem", "ds") and not (p.w & x.r)):
                            errs.add(f"unwaited: [{j}] {p.text}  ->  [{i}] {x.text}")
                    if x.kind == "vmem":
                        vm.append(i)
                        if len(vm) > 63:
                            errs.add(f"more than 63 vmem ops outstanding at [{i}] {x.text}")
                            vm = vm[-63:]
                    elif x.kind in ("ds", "smem"):
                        lg.append(i)
                        if len(lg) > 15 and x.kind == "ds":
                            errs.add(f"more than 15 lgkm ops outstanding at [{i}] {x.text}")
                            lg = lg[-15:]
                nxt = []
                for t in self.succ[i]:
                    if t <= i:
                        if back.get(i, 0) < max_back:
                            b2 = dict(back)
                            b2[i] = b2.get(i, 0) + 1
                            nxt.append((t, b2))
                    else:
                        nxt.append((t, back))
                if not nxt:
                    break
                if len(nxt) > 1:
                    fresh = []
                    for t, b in nxt:
                        key = (t, tuple(vm), tuple(lg))
                        if key not in seen:
                            seen.add(key)
                            fresh.append((t, b))
                    nxt = fresh
                    if not nxt:
                        break
                    for t, b in nxt[1:]:
                        stack.append((t, tuple(vm), tuple(lg), tuple(b.items())))
                i, back = nxt[0]
        return sorted(errs)

    def max_regs(self):
        mx = {"v": -1, "a": -1, "s": -1}
        for x in self.ins:
            for r in x.r | x.w:
                if r[0] in mx and r[1:].isdigit():
                    mx[r[0]] = max(mx[r[0]], int(r[1:]))
        return mx


class B:
    def __init__(self):
        self.lines = []

    def __call__(self, text):
        for ln in text.strip("\n").splitlines():
            s = ln.strip()
            if s:
                self.lines.append(s if s.endswith(":") or s.startswith(".") else "  " + s)

    def text(self):
        return "\n".join(self.lines) + "\n"


def v(a, n=1):
    return f"v{a}" if n == 1 else f"v[{a}:{a + n - 1}]"


def a(i, n=1):
    return f"a{i}" if n == 1 else f"a[{i}:{i + n - 1}]"


def s(i, n=1):
    return f"s{i}" if n == 1 else f"s[{i}:{i + n - 1}]"


def cost(text):
    return sum(2 if ln.strip().startswith(TRANS) else 1 for ln in text.strip().splitlines())


def weave(mains, streams, cap=2):
    n = len(mains)
    gaps = [[] for _ in range(n)]
    used = [0] * n
    for st in streams:
        for e in st:
            if len(e) == 3:
                gaps[e[0]].append(e[1])
                used[e[0]] += cost(e[1])
    for st in streams:
        g = 0
        for e in st:
            if len(e) == 3:
                g = max(g, e[0])
                continue
            g = max(g, e[0])
            c = cost(e[1])
            while g < n - 1 and used[g] + c > cap and not (c > cap and used[g] == 0):
                g += 1
            gaps[g].append(e[1])
            used[g] += c
    out = []
    for m, gp in zip(mains, gaps):
        out.append(m)
        out.extend(gp)
    over = sum(max(0, x - cap) for x in used)
    return "\n".join(out), over


class Op:
    def __init__(self, text, deps=(), earliest=0, deadline=None):
        self.text, self.deps, self.earliest, self.deadline = text, list(deps), earliest, deadline
        self.cost = cost(text)
        self.gap = None


def chain(texts, earliest=0, dist=0, after=None):
    out, prev = [], after
    for t in texts:
        t, d = t if isinstance(t, tuple) else (t, dist)
        o = Op(t, [(prev, d)] if prev else [], earliest)
        out.append(o)
        prev = o
    return out


def sched(mains, pinned, ops, cap=2, vspan=None):
    n = len(mains)
    gaps = [[] for _ in range(n)]
    used = [0] * n
    for g, t in pinned:
        gaps[g].append(t)
        used[g] += cost(t)
    todo = list(ops)
    wide_mem = lambda o: "buffer_" in o.text and "x4" in o.text
    nmem = sum(map(wide_mem, ops))
    step = vspan / max(nmem, 1) if vspan else 0
    nxt_mem = 0.0
    for g in range(n):
        while todo:
            free = cap - used[g]
            ready = [o for o in todo if o.earliest <= g and all(d.gap is not None and d.gap + k <= g for d, k in o.deps)]
            if g == n - 1:
                ready = [o for o in todo if all(d.gap is not None for d, k in o.deps)]
                fit = ready
            else:
                fit = [o for o in ready if o.cost <= free or (o.cost > cap and used[g] == 0)]
                if vspan:
                    fit = [o for o in fit if not wide_mem(o) or g >= int(nxt_mem)]
            if not fit:
                break
            wide = [o for o in fit if o.cost >= cap]
            mem = [o for o in fit if vspan and (wide_mem(o) or "m0," in o.text)]
            o = (wide or mem or fit)[0]
            if any(k and d.gap == g and gaps[g][-1] == d.text for d, k in o.deps):
                gaps[g].append("s_nop 0")
                used[g] += 1
            if vspan and wide_mem(o):
                nxt_mem = max(nxt_mem + step, g + step - 1.5)
            o.gap = g
            gaps[g].append(o.text)
            used[g] += o.cost
            todo.remove(o)
    assert not todo
    for o in ops:
        assert o.deadline is None or o.gap <= o.deadline, f"deadline missed: {o.text} at gap {o.gap}"
    out = []
    for m, gp in zip(mains, gaps):
        out.append(m)
        out.extend(gp)
    return "\n".join(out), sum(max(0, x - cap) for x in used), max((o.gap for o in ops), default=0)


def resolve_waits(text, max_back=2):
    lines = text.splitlines()
    pat = re.compile(r"vmcnt\(@([\w,]+)\)")
    if not any(pat.search(x) for x in lines):
        return text
    prog = Prog(pat.sub("vmcnt(63)", text))
    src = [k for k, ln in enumerate(lines)
           if (lambda t: t and not t.startswith(".") and not t.endswith(":"))(ln.split(";")[0].strip())]
    want = {i: set(pat.search(lines[k]).group(1).split(",")) for i, k in enumerate(src) if pat.search(lines[k])}
    tags = {i: set(re.findall(r";#(\w+)", lines[k])) for i, k in enumerate(src)}
    best = {i: 63 for i in want}
    seen = set()
    stack = [(0, (), ())]
    while stack:
        i, vm, back = stack.pop()
        vm, back = list(vm), dict(back)
        while True:
            x = prog.ins[i]
            if i in want:
                for n, j in enumerate(reversed(vm)):
                    if tags[j] & want[i]:
                        best[i] = min(best[i], n)
                        vm = vm[len(vm) - n:] if n else []
                        break
            elif x.op == "s_waitcnt":
                m = re.search(r"vmcnt\((\d+)\)", " ".join(x.ops))
                if m:
                    k = int(m.group(1))
                    vm = vm[len(vm) - k:] if k and len(vm) > k else (vm if k else [])
            elif x.kind == "vmem":
                vm = (vm + [i])[-63:]
            nxt = []
            for t in prog.succ[i]:
                if t <= i:
                    if back.get(i, 0) < max_back:
                        b2 = dict(back)
                        b2[i] = b2.get(i, 0) + 1
                        nxt.append((t, b2))
                else:
                    nxt.append((t, back))
            if len(nxt) > 1:
                fresh = []
                for t, b in nxt:
                    key = (t, tuple(vm))
                    if key not in seen:
                        seen.add(key)
                        fresh.append((t, b))
                nxt = fresh
            if not nxt:
                break
            for t, b in nxt[1:]:
                stack.append((t, tuple(vm), tuple(b.items())))
            i, back = nxt[0]
    for i, n in best.items():
        lines[src[i]] = pat.sub(f"vmcnt({n})", lines[src[i]]) + " ; " + ",".join(sorted(want[i]))
    return "\n".join(re.sub(r"\s*;#\w+", "", ln) for ln in lines) + "\n"


def klass(text):
    t = text.strip()
    if t.startswith(("buffer_", "global_")):
        return "L"
    if t.startswith("ds_"):
        return "d"
    if t.startswith("v_"):
        return "v"
    return "s"


def gap_units(items):
    lines = [ln for x in items for ln in x.strip().splitlines() if not ln.strip().endswith(":")]
    t = 0
    for ln in lines:
        k = klass(ln)
        if k == "v":
            t = max(t, 1) + cost(ln)
        else:
            t += {"L": 3, "d": 2, "s": 1}[k]
    return t


def _tr(o):
    return 1 + max((_tr_cached(d) for d, k in o.deps), default=0)


def _tr_cached(o):
    if getattr(o, "_tr", None) is None:
        o._tr = _tr(o)
    return o._tr


def sched2(mains, pinned, ops, vspan=None, vstart=0):
    n = len(mains)
    rank = {"L": 0, "d": 0, "s": 1, "v": 2}
    gaps = [[] for _ in range(n)]
    for g, t in pinned:
        gaps[g].append(t)
    npin = [len(x) for x in gaps]

    def placed(g, t):
        x = gaps[g][:]
        i = len(x)
        while i > 0 and rank[klass(x[i - 1])] > rank[klass(t)]:
            i -= 1
        x.insert(i, t)
        return x

    todo = list(ops)
    wide = lambda o: klass(o.text) == "L" and "x4" in o.text
    depth = {}
    for o in reversed(sorted(ops, key=_tr_cached)):
        depth.setdefault(id(o), 0)
        for d, k in o.deps:
            depth[id(d)] = max(depth.get(id(d), 0), depth[id(o)] + 1)
    for o in ops:
        depth[id(o)] += getattr(o, 'bias', 0)
    vend = vstart + (vspan or 0)
    nxt = float(vstart)
    for g in range(n):
        while todo:
            def ok(o):
                for d, k in o.deps:
                    if d.gap is None:
                        return False
                    if rank[klass(d.text)] > rank[klass(o.text)]:
                        k = max(k, 1)
                    if d.gap + k > g:
                        return False
                return o.earliest <= g
            fit = [o for o in todo if ok(o) and (gap_units(placed(g, o.text)) <= 3 or (not gaps[g] and gap_units([o.text]) > 3))
                   and not (wide(o) and g < int(nxt))]
            if not fit:
                break
            has_d = any(klass(x) == "d" for x in gaps[g])
            feeds = lambda o: any(klass(x.text) == "L" and any(d is o for d, k in x.deps) for x in todo) and g + 3 >= int(nxt)
            urgent = [o for o in fit if getattr(o, "urgent", False)]
            mem = [o for o in fit if klass(o.text) == "L"]
            big = [o for o in fit if klass(o.text) == "v" and o.cost == 2]
            sca = [o for o in fit if klass(o.text) in "sd"]
            vec = sorted([o for o in fit if klass(o.text) == "v"], key=lambda o: -depth[id(o)])
            big.sort(key=lambda o: -depth[id(o)])
            if has_d:
                o = (urgent or [x for x in sca if feeds(x)] or vec or sca)[0]
            else:
                free_s = sca if not any(klass(x) == "s" for x in gaps[g]) else []
                o = (mem or urgent or big or free_s or vec or sca)[0]
            if wide(o):
                left = sum(map(wide, todo)) - 1
                nxt = g + max(4, (vend - g) / max(left, 1) - 0.5) if vspan else 0
            o.gap = g
            gaps[g] = placed(g, o.text)
            todo.remove(o)
    tail = []
    while todo:
        prev = tail[-1] if tail else (gaps[-1] or [""])[-1]
        o = min([x for x in todo if all(d.gap is not None for d, k in x.deps)],
                key=lambda x: (any(k and prev == d.text for d, k in x.deps), klass(x.text) != "L", -depth[id(x)]))
        todo.remove(o)
        if any(k and prev == d.text for d, k in o.deps):
            tail.append("s_nop %d" % (max(k for d, k in o.deps) - 1))
        o.gap = n - 1
        tail.append(o.text)
    for o in ops:
        assert o.deadline is None or o.gap <= o.deadline, f"deadline missed: {o.text} at gap {o.gap}"
    out = []
    for m, gp in zip(mains, gaps):
        out.append(m)
        out.extend(gp)
    over = sum(max(0, gap_units(x) - 3) for x in gaps) + gap_units(tail)
    return "\n".join(out + tail), over, max((o.gap for o in ops), default=0)
```

```python
import math, re, struct, sys
from asmlib import B, Prog, v, a, s, weave, Op, chain, sched, sched2, resolve_waits
from gen import fbits, sdiv, srd, mf16, transpose8, ARG, HEADER

SZX = 2048 * 576 * 2
REC = 2432
KVJ = 128 * REC
X2, OB, X1, PART, HB, KV = 0, SZX, 2 * SZX, 3 * SZX, 7 * SZX, 15 * SZX
S1 = KV + 16 * KVJ
S2 = S1 + 64 * 3072
LST = S2 + 64 * 3072
WQ = 2 * LST
WQH = 126 * 1024
WO = WQ + 16 * WQH
WOS = 164 * 1024
WF = WO + 4 * WOS
CH = 36864
WFS = 31 * CH
CNT = WF + 16 * WFS
WS_END = CNT + 393216
CL = 196608
C_PREP = 32 * 128
C_ROLE = CL + 128 * 128
LOFF = 0x30000
C_KV, C_O, C_X1, C_X2, C_H, C_P = 0, 16 * 128, 64 * 128, 128 * 128, 256 * 128, 512 * 128
RES = 232
OOB = 0x40000000
QX = 131072
STAMPS = 200 << 20
OPT = {}
DIAG = False
SI, SJ, SL, SC, STW, STJ, SW = 24, 25, 26, 27, 28, 29, 33


def bstamp(b, k):
    if DIAG and OPT.get("brk"):
        b("s_memtime s[62:63]\ns_waitcnt lgkmcnt(0)")
        for st in range(4):
            b(f"s_cmp_eq_u32 s32, {st}\ns_cselect_b32 s{74+2*st+k}, s62, s{74+2*st+k}")


def stamp(b, i):
    if OPT.get("fch") and 0 < i < 29:
        i = {21: 10, 25: 26, 26: 27, 27: 28}.get(i)
    if OPT.get("fch") and i is not None and i >= 100:
        i -= 100
    if i is not None and i >= 100:
        return
    if OPT.get("brk") and 10 <= i < 29:
        i = {10: 18}.get(i)
    if DIAG and i is not None:
        b(f"{'s_memrealtime' if OPT.get('rt') else 's_memtime'} s[62:63]\ns_waitcnt lgkmcnt(0)\ns_mov_b32 s{64+i}, s62")


def stamp_real(b, i):
    if DIAG:
        b(f"s_memrealtime s[62:63]\ns_waitcnt lgkmcnt(0)\ns_mov_b32 s{64+i}, s62")


def stamp_flush(b, slot):
    if not DIAG:
        return
    b(f"""
    s_lshl_b32 s62, {slot}, 8
    s_add_u32 s62, s62, s2
    s_lshl_b32 s62, s62, 4
    s_add_u32 s62, s62, s{SW}
    s_lshl_b32 s62, s62, 7
    s_add_u32 s96, s4, {STAMPS}
    s_addc_u32 s97, s5, 0
    s_mov_b32 s98, {32 << 20}
    s_mov_b32 s99, 0x20000
    v_mov_b32 v8, 0
    """)
    for q in range(8):
        for j in range(4):
            b(f"v_mov_b32 v{4+j}, s{64+4*q+j}")
        b(f"buffer_store_dwordx4 v[4:7], v8, s[96:99], s62 offen offset:{16*q}\ns_nop 1")


def head(b, name, nwg, loads):
    b(f"s_cmp_ge_u32 s2, {nwg}\ns_cbranch_scc1 {name}_end")
    if DIAG:
        for i in range(32):
            b(f"s_mov_b32 s{64+i}, 0")
        stamp_real(b, 30)
        stamp(b, 0)
    for reg, arg in loads:
        b(f"s_load_dwordx2 s[{reg}:{reg+1}], s[0:1], {ARG[arg]}")


def finish(b, name, slot):
    if DIAG:
        b("s_waitcnt vmcnt(0)")
        stamp(b, 29)
        stamp_real(b, 31)
        stamp_flush(b, slot)
    b(f"{name}_end:\ns_endpgm")


def window(b, d, off, size):
    b(f"s_add_u32 s{d}, s4, s{off}\ns_addc_u32 s{d+1}, s5, 0\ns_mov_b32 s{d+2}, {size}\ns_mov_b32 s{d+3}, 0x20000")


def ln_tail(b, A0, n, mean, rstd, dst):
    for j in range(n):
        b(f"v_sub_f32 v{A0+j}, v{A0+j}, v{mean}")
    for j in range(n):
        b(f"v_mul_f32 v{A0+j}, v{A0+j}, v{rstd}")
    for j in range(n // 2):
        b(f"v_cvt_pk_bf16_f32 v{dst+j}, v{A0+2*j}, v{A0+2*j+1}")


def ln_stats(b, sm, sq):
    b(f"""
    v_mul_f32 v{sm}, {fbits(1/576)}, v{sm}
    v_mul_f32 v{sq}, {fbits(1/576)}, v{sq}
    v_fma_f32 v{sq}, -v{sm}, v{sm}, v{sq}
    v_max_f32 v{sq}, 0, v{sq}
    v_add_f32 v{sq}, {fbits(1e-5)}, v{sq}
    """)


def row_reduce(b, sm, sq):
    b(f"""
    s_nop 1
    v_permlane32_swap_b32 v{sm}, v{sq}
    s_nop 0
    v_add_f32 v{sm}, v{sm}, v{sq}
    v_mov_b32 v{sq}, v{sm}
    s_nop 1
    v_permlane16_swap_b32 v{sm}, v{sq}
    s_nop 0
    v_add_f32 v{sm}, v{sm}, v{sq}
    s_nop 1
    v_add_f32 v{sm}, v{sm}, v{sm} row_ror:8 row_mask:0xf bank_mask:0xf
    """)


def gen_prep(name):
    b = B()
    head(b, name, 288, [(4, "ws"), (8, "x")])
    b(f"""
    v_lshrrev_b32 v5, 6, v0
    v_and_b32 v6, 15, v0
    v_lshrrev_b32 v7, 4, v0
    v_readfirstlane_b32 s33, v5
    s_cmp_ge_u32 s2, 216
    s_cbranch_scc1 {name}_wo
    s_load_dwordx2 s[6:7], s[0:1], {ARG['wqkv']}
    """)
    sdiv(b, 34, 2, 3, 216)
    b(f"""
    s_mul_i32 s35, s34, 3
    s_sub_u32 s35, s2, s35
    s_mul_i32 s38, s34, {8*3456}
    s_mul_i32 s36, s35, 1152
    s_add_u32 s38, s38, s36
    s_lshr_b32 s36, s34, 2
    s_mul_i32 s39, s36, 7168
    s_add_u32 s39, s39, {WQ}
    s_mov_b32 s22, {576*1728*2}
    s_mov_b32 s43, {4*3456}
    s_mov_b32 s44, {2*3456}
    s_mov_b32 s45, 3456
    s_cmp_eq_u32 s33, 8
    s_cbranch_scc1 {name}_qt
    v_lshrrev_b32 v8, 1, v7
    v_and_b32 v9, 1, v7
    v_mul_u32_u24 v10, 72, v8
    v_mul_u32_u24 v11, {WQH}, v8
    v_lshl_add_u32 v11, v9, 10, v11
    v_lshl_add_u32 v11, v6, 4, v11
    s_lshl_b32 s36, s35, 11
    s_add_u32 s39, s39, s36
    s_cmp_eq_u32 s35, 2
    s_cbranch_scc1 {name}_qv
    v_lshl_add_u32 v10, v9, 3, v10
    v_lshrrev_b32 v8, 3, v6
    v_mad_u32_u24 v10, v8, 36, v10
    v_bfe_u32 v8, v6, 2, 1
    v_lshl_add_u32 v10, v8, 4, v10
    v_and_b32 v8, 3, v6
    v_lshl_add_u32 v10, v8, 1, v10
    s_branch {name}_go
{name}_qv:
    v_mad_u32_u24 v10, v9, 36, v10
    v_lshl_add_u32 v10, v6, 1, v10
    s_branch {name}_go
{name}_qt:
    v_bfe_u32 v8, v0, 1, 5
    v_mul_u32_u24 v10, 36, v8
    v_and_b32 v8, 1, v0
    v_lshl_add_u32 v10, v8, 1, v10
    v_add_u32 v10, 32, v10
    v_bfe_u32 v8, v0, 2, 4
    v_mul_u32_u24 v11, {WQH}, v8
    v_and_b32 v8, 3, v0
    v_lshl_add_u32 v11, v8, 4, v11
    s_lshl_b32 s36, s35, 6
    s_add_u32 s39, s39, s36
    s_add_u32 s39, s39, 6144
    s_branch {name}_go
{name}_wo:
    s_load_dwordx2 s[6:7], s[0:1], {ARG['wo']}
    s_sub_u32 s34, s2, 216
    s_mov_b32 s35, 1
    s_mov_b32 s22, {576*576*2}
    s_lshr_b32 s38, s34, 1
    s_mul_i32 s38, s38, {18*1152}
    s_and_b32 s36, s34, 1
    s_mul_i32 s36, s36, {4*1152}
    s_add_u32 s38, s38, s36
    s_mov_b32 s43, {8*1152}
    s_mov_b32 s44, {2*1152}
    s_mov_b32 s45, 1152
    s_cmp_lt_u32 s34, 64
    s_cbranch_scc1 {name}_wo2
    s_sub_u32 s38, s34, 64
    s_mul_i32 s38, s38, {72*1152}
    s_add_u32 s38, s38, {16*1152}
    s_mov_b32 s43, {36*1152}
    s_mov_b32 s44, {18*1152}
{name}_wo2:
    s_mov_b32 s39, {WO}
    s_lshr_b32 s36, s34, 2
    v_lshlrev_b32 v10, 1, v0
    v_mul_u32_u24 v8, 43, v7
    v_lshrrev_b32 v8, 7, v8
    v_mul_u32_u24 v9, 3, v8
    v_sub_u32 v9, v7, v9
    v_mad_u32_u24 v9, v9, 18, s36
    v_mul_u32_u24 v12, 43, v8
    v_lshrrev_b32 v12, 7, v12
    v_mul_u32_u24 v13, 3, v12
    v_sub_u32 v8, v8, v13
    v_mad_u32_u24 v13, v8, 12, v9
    v_mad_u32_u24 v14, v8, 26, v9
    v_add_u32 v14, 24, v14
    v_lshl_add_u32 v15, v8, 4, v9
    v_add_u32 v15, 78, v15
    v_cmp_gt_u32 vcc, 12, v9
    v_cmp_gt_u32 s[40:41], 38, v9
    v_mul_u32_u24 v11, {WOS}, v12
    v_lshl_add_u32 v11, v6, 4, v11
    v_cndmask_b32 v14, v15, v14, s[40:41]
    v_cndmask_b32 v13, v14, v13, vcc
    v_lshl_add_u32 v11, v13, 10, v11
{name}_go:
    s_and_b32 s36, s34, 3
    s_lshl_b32 s36, s36, 8
    s_add_u32 s39, s39, s36
    v_lshrrev_b32 v2, 3, v0
    v_and_b32 v3, 7, v0
    v_mul_u32_u24 v4, 1152, v3
    v_lshl_add_u32 v4, v2, 4, v4
    v_lshlrev_b32 v2, 8, v2
    v_lshl_add_u32 v2, v3, 4, v2
    s_mul_i32 s11, s2, 9216
    s_waitcnt lgkmcnt(0)
    s_mov_b32 s20, s6
    s_mov_b32 s21, s7
    s_mov_b32 s23, 0x20000
    """)
    assert all((t * 43) >> 7 == t // 3 for t in range(36))
    srd(b, 16, 8, 0, SZX)
    b("buffer_load_dwordx4 v[12:15], v4, s[16:19], s11 offen ;#x")
    for j in range(8):
        b("s_mov_b32 s36, s38")
        for bit, r in ((4, 43), (2, 44), (1, 45)):
            if j & bit:
                b(f"s_add_u32 s36, s36, s{r}")
        b(f"buffer_load_ushort v{16+j}, v10, s[20:23], s36 offen ;#w")
    if int(OPT.get("pf", 1)):
        b(f"""
        s_cmp_lg_u32 s33, 8
        s_cbranch_scc1 {name}_nopf
        s_getpc_b64 s[46:47]
{name}_pc:
        s_add_u32 s46, s46, main_kernel-{name}_pc
        s_addc_u32 s47, s47, 0
        s_bfe_u32 s36, s2, 0x50003
        s_lshl_b32 s36, s36, 11
        v_and_b32 v50, 15, v0
        v_lshl_add_u32 v50, v50, 7, s36
        v_min_u32 v50, main_code_end-main_kernel-4, v50
        v_mov_b32 v51, s47
        v_add_co_u32 v50, vcc, s46, v50
        s_nop 1
        v_addc_co_u32 v51, vcc, 0, v51, vcc
        global_load_dword v52, v[50:51], off
{name}_nopf:
        """)
    srd(b, 12, 4, 0, WS_END)
    srd(b, 24, 4, LST + X2, SZX)
    if int(OPT.get("tlb", 0)):
        sh = int(OPT.get("pg", 21))
        b(f"""
        s_cmp_lg_u32 s33, 7
        s_cbranch_scc1 {name}_notlb
        s_bfe_u32 s36, s2, 0x20005
        s_lshl_b32 s36, s36, 3
        s_add_u32 s46, s0, s36
        s_addc_u32 s47, s1, 0
        s_load_dwordx2 s[48:49], s[46:47], {ARG['w1']}
        s_bfe_u32 s37, s2, 0x50003
        s_lshl_b32 s37, s37, 22
        v_and_b32 v50, {(2 << (21 - sh)) - 1}, v0
        v_lshlrev_b32 v50, {sh}, v50
        buffer_load_dword v52, v50, s[12:15], s37 offen
        s_mov_b32 s50, {576*4608*2}
        s_cmp_eq_u32 s36, 24
        s_cselect_b32 s50, {SZX}, s50
        s_mov_b32 s51, 0x20000
        s_bfe_u32 s37, s2, 0x20003
        s_lshl_b32 s37, s37, 21
        s_waitcnt lgkmcnt(0)
        buffer_load_dword v53, v50, s[48:51], s37 offen
{name}_notlb:
        """)
    b(f"""
    s_lshr_b32 s10, s2, 1
    s_mul_i32 s10, s10, 18432
    s_and_b32 s11, s2, 1
    s_lshl_b32 s11, s11, 7
    s_add_u32 s10, s10, s11
    v_lshlrev_b32 v6, 2, v0
    v_mov_b32 v7, {OOB}
    v_cmp_gt_u32 vcc, 384, v0
    v_mov_b32 v8, 0
    s_mul_i32 s11, s2, 1536
    v_cndmask_b32 v6, v7, v6, vcc
    s_add_u32 s11, s11, {CNT}
    buffer_store_dword v8, v6, s[12:15], s11 offen
    v_lshlrev_b32 v3, 3, v3
    v_lshl_add_u32 v4, v5, 6, v3
    s_waitcnt vmcnt(@x)
    """)
    A0 = 32
    for j in range(4):
        b(f"v_lshlrev_b32 v{A0+2*j}, 16, v{12+j}\nv_and_b32 v{A0+2*j+1}, 0xffff0000, v{12+j}")
    b(f"v_add_f32 v6, v{A0}, v{A0+1}\nv_mul_f32 v7, v{A0}, v{A0}")
    for j in range(1, 8):
        if j > 1:
            b(f"v_add_f32 v6, v6, v{A0+j}")
        b(f"v_fmac_f32 v7, v{A0+j}, v{A0+j}")
    row_reduce(b, 6, 7)
    b("v_bfe_u32 v8, v0, 5, 1\nv_lshl_add_u32 v4, v8, 2, v4\nds_write_b32 v4, v6\ns_waitcnt vmcnt(@w)")
    for j in range(4):
        b(f"v_lshl_or_b32 v{24+j}, v{17+2*j}, 16, v{16+2*j}")
    b(f"""
    buffer_store_dwordx4 v[24:27], v11, s[12:15], s39 offen{OPT.get("pst", "")}
    s_lshl_b32 s36, s35, 4
    s_add_u32 s36, s36, s33
    s_cmp_lg_u32 s36, 8
    s_cbranch_scc1 {name}_noone
    """)
    for j in range(4):
        b(f"v_mov_b32 v{28+j}, 0x3f803f80")
    b(f"buffer_store_dwordx4 v[28:31], v11, s[12:15], s39 offen offset:192\n{name}_noone:\ns_waitcnt lgkmcnt(0)\ns_barrier")
    for w in range(9):
        b(f"ds_read_b64 {v(56+2*w,2)}, v3 offset:{64*w}")
    b("s_waitcnt lgkmcnt(0)")
    for w in range(1, 9):
        b(f"v_pk_add_f32 v[56:57], v[56:57], {v(56+2*w,2)}")
    ln_stats(b, 56, 57)
    b("v_rsq_f32 v57, v57")
    ln_tail(b, A0, 8, 56, 57, 12)
    b("buffer_store_dwordx4 v[12:15], v2, s[24:27], s10 offen" + OPT.get("pstx", ""))
    if DIAG:
        b(f"s_cmp_ge_u32 s2, 256\ns_cbranch_scc1 {name}_end")
    finish(b, name, "1")
    return dict(name=name, text=resolve_waits(b.text()), grid=288, block=576, lds=1024)


def signal(b, tag, base, idx, wave=3, extra=None):
    b(f"""
    s_lshl_b32 s60, s{idx}, 7
    s_add_u32 s60, s60, s{SC}
    s_add_u32 s60, s60, {base}
    s_waitcnt vmcnt(0) lgkmcnt(0)
{tag}_bar:
    s_barrier
    s_cmp_lg_u32 s{SW}, {wave}
    s_cbranch_scc1 {tag}_sig
    s_mov_b64 exec, 1
    buffer_atomic_add v3, v2, s[12:15], s60 offen sc1
    """)
    if extra:
        b(f"buffer_atomic_add v3, v2, s[12:15], s{extra} offen sc1")
    b(f"s_mov_b64 exec, -1\n{tag}_sig:")


def poll(b, tag, base, idx, target, one_wave):
    b(f"""
    s_lshl_b32 s60, s{idx}, 7
    s_add_u32 s60, s60, s{SC}
    s_add_u32 s60, s60, {base}
    s_mov_b32 s61, 0x40000
    """)
    if one_wave:
        b(f"s_cmp_lg_u32 s{SW}, 3\ns_cbranch_scc1 {tag}_ok")
    b(f"""
{tag}_poll:
    buffer_load_dword v4, v2, s[12:15], s60 offen sc1
    s_sub_u32 s61, s61, 1
    s_waitcnt vmcnt(0)
    v_cmp_gt_u32 vcc, {target}, v4
    s_cbranch_scc1 {tag}_ok
    s_cbranch_vccnz {tag}_poll
{tag}_ok:
    """)
    if one_wave:
        b("s_barrier")


def dma_run(b, n, srdn, soff, flags=""):
    for i in range(n):
        off = f" offset:{1024*(i%4)}" if i % 4 else ""
        b(f"buffer_load_dwordx4 v1, s[{srdn}:{srdn+3}], s{soff} offen{off}{flags} lds")
        if i % 4 == 3 and i < n - 1:
            b(f"s_add_u32 m0, m0, 4096\ns_add_u32 s{soff}, s{soff}, 4096")


def pack4(b, dst, p, q):
    b(f"""
    v_cvt_pk_bf16_f32 v{dst}, v{p}, v{p+1}
    v_cvt_pk_bf16_f32 v{dst+1}, v{p+2}, v{p+3}
    v_cvt_pk_bf16_f32 v{dst+2}, v{q}, v{q+1}
    v_cvt_pk_bf16_f32 v{dst+3}, v{q+2}, v{q+3}
    """)


def unit_offset(b, dst, t0, t1):
    b(f"""
    v_bfe_u32 v{t0}, v0, 4, 1
    v_bfe_u32 v{t1}, v0, 5, 1
    v_mul_u32_u24 v{dst}, 18432, v{t0}
    v_lshl_add_u32 v{dst}, v{t1}, 8, v{dst}
    v_and_b32 v{t0}, 15, v0
    v_lshl_add_u32 v{dst}, v{t0}, 4, v{dst}
    """)


TIM = QX + 18432
VD, TR = 72, 76
QSCALE = fbits(math.log2(math.e) / math.sqrt(18))


def stats_publish(b, base):
    b(f"""
    v_pk_add_f32 v[8:9], {v(RES,2)}, {v(RES+2,2)}
    v_pk_mul_f32 v[10:11], {v(RES,2)}, {v(RES,2)}
    """)
    for k in range(2, 24, 2):
        if k > 2:
            b(f"v_pk_add_f32 v[8:9], v[8:9], {v(RES+k,2)}")
        b(f"v_pk_fma_f32 v[10:11], {v(RES+k,2)}, {v(RES+k,2)}, v[10:11]")
    b(f"""
    v_add_f32 v8, v8, v9
    v_add_f32 v9, v10, v11
    s_add_u32 s38, s62, s{SL}
    s_add_u32 s38, s38, {base}
    v_permlane32_swap_b32 v8, v9
    s_nop 0
    v_add_f32 v8, v8, v9
    buffer_store_dword v8, v13, s[12:15], s38 offen sc1
    """.replace("s62", "s59"))


def stats_target(b):
    b(f"""
    v_and_b32 v13, 15, v0
    v_lshlrev_b32 v13, 4, v13
    v_bfe_u32 v14, v0, 4, 1
    v_lshl_add_u32 v13, v14, 3, v13
    v_bfe_u32 v14, v0, 5, 1
    v_lshl_add_u32 v13, v14, 2, v13
    s_and_b32 s59, s{SJ}, 3
    s_mul_i32 s59, s59, 3
    s_add_u32 s59, s59, s{SW}
    s_lshl_b32 s59, s59, 8
    s_mul_i32 s38, s{STJ}, 3072
    s_add_u32 s59, s59, s38
    """)


def stats_loads(t, so):
    return [f"buffer_load_dwordx4 {v(t+4*n,4)}, v1, s[12:15], s{so} offen offset:{1024*n} sc1 ;#st" for n in range(3)]


def stats_reduce(src, t, eps):
    out = [f"v_add_f32 v{t+k}, v{src+k}, v{src+4+k}" for k in range(4)] + [f"v_add_f32 v{t+k}, v{t+k}, v{src+8+k}" for k in range(4)]
    out += [(f"v_permlane32_swap_b32 v{t}, v{t+1}", 2), f"v_permlane32_swap_b32 v{t+2}, v{t+3}",
            (f"v_add_f32 v{t}, v{t}, v{t+1}", 1), f"v_add_f32 v{t+2}, v{t+2}, v{t+3}",
            (f"v_permlane16_swap_b32 v{t}, v{t+2}", 2), (f"v_add_f32 v{t}, v{t}, v{t+2}", 1), f"v_mul_f32 v{t}, {fbits(1/576)}, v{t}",
            f"v_mov_b32 v{t+1}, v{t}", (f"v_permlane32_swap_b32 v{t}, v{t+1}", 2),
            (f"v_fma_f32 v{t}, -v{t}, v{t}, v{t+1}", 1), f"v_max_f32 v{t}, 0, v{t}", f"v_add_f32 v{t}, {eps}, v{t}",
            f"v_mov_b32 v{t+1}, v{t}", (f"v_permlane16_swap_b32 v{t}, v{t+1}", 2)]
    return out


def emit_chain(b, items):
    for x in items:
        if isinstance(x, tuple):
            b(f"s_nop {x[1]-1}\n{x[0]}")
        else:
            b(x)


def phase_q(b):
    ACC, XQ, TMP, STT, RV, AD = 16, 80, 128, 164, 184, 208
    AQ, GK, GV, AVT, TA, AON, RD, GT = AD, AD + 1, AD + 2, AD + 3, AD + 4, AD + 8, AD + 9, AD + 10
    b(f"""
    s_mul_i32 s34, s{STW}, 36864
    s_add_u32 s34, s34, {LST+X2}
    s_sub_u32 s34, s34, s{SL}
    s_add_u32 s16, s4, s34
    s_addc_u32 s17, s5, 0
    s_mov_b32 s18, 18432
    s_mov_b32 s19, 0x20000
    s_add_u32 s20, s16, 18432
    s_addc_u32 s21, s17, 0
    s_mov_b32 s22, 18432
    s_mov_b32 s23, 0x20000
    v_and_b32 v12, 15, v0
    v_bfe_u32 v4, v0, 4, 2
    v_lshrrev_b32 v13, 1, v4
    v_and_b32 v14, 1, v4
    s_mul_i32 s38, s{SW}, 1152
    s_add_u32 s38, s38, {QX}
    s_mul_i32 s39, s{SW}, 768
    s_add_u32 s39, s39, {TIM}
    v_lshlrev_b32 v15, 4, v12
    v_lshl_add_u32 v15, v14, 9, v15
    v_mul_u32_u24 v{AQ}, 4608, v13
    v_add3_u32 v{AQ}, v{AQ}, v15, s38
    v_mul_u32_u24 v{GK}, {REC}, v13
    v_add_u32 v{GK}, v{GK}, v15
    v_cmp_eq_u32 s[48:49], 0, v4
    v_lshlrev_b32 v6, 4, v4
    v_lshrrev_b32 v13, 2, v12
    v_and_b32 v15, 3, v12
    v_lshlrev_b32 v{AVT}, 5, v13
    v_lshl_add_u32 v{AVT}, v15, 1, v{AVT}
    v_add_u32 v{AVT}, s39, v{AVT}
    s_add_u32 s40, s38, 1024
    s_add_u32 s41, s39, 128
    v_lshl_add_u32 v{TA}, v12, 2, s40
    v_lshl_add_u32 v15, v12, 2, s41
    v_cndmask_b32 v{TA}, v15, v{TA}, s[48:49]
    v_mov_b32 v13, 384
    v_mov_b32 v14, 4608
    v_cndmask_b32 v13, v13, v14, s[48:49]
    v_add_u32 v{TA+1}, v{TA}, v13
    v_and_b32 v14, 3, v0
    v_bfe_u32 v13, v0, 2, 1
    v_mul_u32_u24 v13, 384, v13
    v_lshl_add_u32 v13, v14, 2, v13
    v_add_u32 v{AON}, s39, v13
    v_add_u32 v{RD}, s39, v1
    v_add_u32 v13, {REC-384}, v1
    v_cmp_gt_u32 vcc, 384, v1
    v_mov_b32 v14, {OOB}
    s_mul_i32 s43, s{SJ}, {KVJ}
    v_cndmask_b32 v13, v13, v1, vcc
    v_cmp_gt_u32 vcc, 768, v1
    s_mul_i32 s44, s{STW}, {2*REC}
    s_add_u32 s43, s43, s44
    v_cndmask_b32 v{GT}, v14, v13, vcc
    s_add_u32 s43, s43, s{SL}
    s_add_u32 s43, s43, {KV}
    s_mul_i32 s42, s{STW}, 3072
    s_add_u32 s42, s42, {S2}
    s_mov_b32 s45, {fbits(1e-5)}
    v_mov_b32 v7, 0x3f803f80
    v_mov_b32 v5, v1
    s_mov_b32 s37, 3
    """)
    for i in range(16, 72):
        b(f"v_mov_b32 v{i}, 0")
    b(f"s_cmp_eq_u32 s{SL}, 0\ns_cselect_b32 s42, {OOB}, s42\ns_cselect_b32 s45, 1.0, s45\ns_cbranch_scc1 q_ok")
    poll(b, "q", C_X2 - CL, STW, 4, False)
    stamp(b, 1)
    xq = lambda p, rt: XQ + ((p % 6) * 2 + rt) * 4
    xload = lambda p, rt: f"buffer_load_dwordx4 {v(xq(p, rt),4)}, v1, s[{16+4*rt}:{19+4*rt}], s36 offen sc1 ;#x{p%6}"
    acc = lambda f, rt: ACC + (f * 2 + rt) * 4
    ring = lambda ks, f: a((ks % 2) * 28 + f * 4, 4)
    reads = lambda p: [f"ds_read_b128 {ring(p, f)}, v5 offset:{(p*7+f)*1024}" for f in range(7)]
    b("s_mov_b32 s36, 0\ns_mov_b32 m0, s10")
    for p in range(5):
        b(xload(p, 0) + "\n" + xload(p, 1) + "\ns_add_u32 s36, s36, 1024")
        if p == 1:
            b("s_waitcnt vmcnt(4)\ns_barrier")
            b("\n".join(reads(0) + stats_loads(STT, 42)))
    stamp(b, 2)
    b(f"s_cmp_lg_u32 s{SL}, 0\ns_waitcnt vmcnt(@x0) lgkmcnt(0)\ns_cbranch_scc1 q_loop1")
    for fill in (1, 0):
        mains, pinned = [], []
        for p in range(6):
            for f in (6, 2, 3, 4, 5, 0, 1):
                for rt in range(2):
                    w, x, d = ring(p, f), v(xq(p, rt), 4), v(acc(f, rt), 4)
                    mains.append(mf16(d, x, w, d) if f in (4, 5) else mf16(d, w, x, d))
            rd = reads(p + 1)
            dm = "buffer_load_dwordx4 v1, s[12:15], s11 offen lds ;#wq"
            pin = [(0, xload(p + 5, 0))]
            if p == 5 and fill:
                pin += [(1, "s_waitcnt vmcnt(@wq)"), (1, "s_barrier")]
            pin += [(1, rd[0]), (2, rd[1]), (4, rd[2]), (5, rd[3]), (6, rd[4]), (7, xload(p + 5, 1)), (8, rd[5]), (8, "s_add_u32 s36, s36, 1024"),
                    (9, rd[6])]
            for gq in (3, 10, 11, 12)[:(4, 4, 3, 0, 0, 0)[p] * fill]:
                pin += [(gq, dm), (gq, "s_add_u32 m0, m0, 4096"), (gq, "s_add_u32 s11, s11, 4096")]
            pin += [(13, f"s_waitcnt vmcnt(@x{(p+1)%6}) lgkmcnt(0)")]
            if p == 0:
                pin += [(6, "s_sub_u32 s37, s37, 1")]
            if p == 5:
                pin += [(11, "v_add_u32 v5, 43008, v5"), (13, f"s_cmp_lg_u32 s37, {fill}")]
            pinned += [(14 * p + gp, t) for gp, t in pin]
        ops = [] if fill else chain(stats_reduce(STT, STT + 12, "s45") + [
            (f"v_rsq_f32 v8, v{STT+12}", 1), f"v_rsq_f32 v9, v{STT+13}", (f"v_mul_f32 v12, {QSCALE}, v8", 1), f"v_mul_f32 v13, {QSCALE}, v9",
            "v_cndmask_b32 v14, v8, v12, s[48:49]", "v_cndmask_b32 v15, v9, v13, s[48:49]"], earliest=27)
        txt, over, lastgap = sched2(mains, pinned, ops)
        print("q loop (overflow, last gap):", over, lastgap, file=sys.stderr)
        b(f".p2align 3\nq_loop{1-fill}:\n{txt}\ns_cbranch_scc1 q_loop{1-fill}")
    stamp(b, 3)
    for rt in range(2):
        for i in range(4):
            b(f"ds_bpermute_b32 v{RV+4*rt+i}, v6, v{8+rt} offset:{4*i}")

    def scale(f, rt, by):
        for i in (0, 2):
            d = v(acc(f, rt) + i, 2)
            if isinstance(by, int):
                sel = "op_sel:[1:0] op_sel_hi:[1:1]" if by & 1 else "op_sel_hi:[0:1]"
                b(f"v_pk_mul_f32 {d}, {v(by & ~1, 2)}, {d} {sel}")
            else:
                b(f"v_pk_mul_f32 {d}, {v(by[0]+i,2)}, {d}")

    T = TMP
    for rt in range(2):
        scale(6, rt, 14 + rt)
    pack4(b, T, acc(6, 0), acc(6, 1))
    b(f"ds_write_b32 v{AON}, v7 offset:256\ns_mov_b64 exec, 0xffffffff")
    for k in range(4):
        b(f"ds_write_b32 v{TA+k%2}, v{T+k} offset:{64*(k//2)}")
    b("s_mov_b32 exec_lo, 0\ns_mov_b32 exec_hi, 0xffff\ns_waitcnt lgkmcnt(5)")
    for k in range(4):
        off = 384 * (k % 2) + 8 * (k // 2)
        b(f"ds_write_b16 v{AVT}, v{T+k} offset:{off}\nds_write_b16_d16_hi v{AVT}, v{T+k} offset:{off+16}")
    b(f"s_mov_b64 exec, -1\nds_read_b128 {v(TMP+32,4)}, v{RD}")
    T += 4
    for rt in range(2):
        scale(2, rt, 8 + rt)
        scale(3, rt, 8 + rt)
        pack4(b, T, acc(2, rt), acc(3, rt))
        b(f"buffer_store_dwordx4 {v(T,4)}, v{GK}, s[12:15], s43 offen offset:{256*rt} sc1")
        T += 4
    for f in (4, 5):
        for rt in range(2):
            scale(f, rt, [RV + 4 * rt])
        pack4(b, T, acc(f, 0), acc(f, 1))
        b(f"buffer_store_dwordx4 {v(T,4)}, v1, s[12:15], s43 offen offset:{1024+REC*(f-4)} sc1")
        T += 4
    b(f"s_waitcnt lgkmcnt(0)\nbuffer_store_dwordx4 {v(TMP+32,4)}, v{GT}, s[12:15], s43 offen offset:2048 sc1")
    for rt in range(2):
        b(f"ds_write_b128 v{AQ}, {v(TMP+4+4*rt,4)} offset:{9216+256*rt}")
        scale(0, rt, 12 + rt)
        scale(1, rt, 12 + rt)
        pack4(b, T, acc(0, rt), acc(1, rt))
        b(f"ds_write_b128 v{AQ}, {v(T,4)} offset:{256*rt}")
        T += 4
    stamp(b, 4)


def wo_loads(lo, hi):
    out = []
    for n in range(lo, hi):
        off = f" offset:{1024*((n-lo)%4)}" if (n - lo) % 4 else ""
        t = f"buffer_load_dwordx4 {a(4*n,4)}, v1, s[12:15], s38 offen{off}"
        if (n - lo) % 4 == 3:
            t += "\ns_add_u32 s38, s38, 4096"
        out.append(t)
    return out


def wo_base(b, part, per):
    b(f"""
    s_and_b32 s38, s{SJ}, 3
    s_mul_i32 s38, s38, {WOS}
    s_mul_i32 s39, s{SW}, {1024*per}
    s_add_u32 s38, s38, s39
    s_add_u32 s38, s38, {WO + 1024*part}
    s_cmp_eq_u32 s{SW}, 3
    s_cselect_b32 s38, {OOB}, s38
    """)


def centre(b, fr, n, tmp, mean, after=None):
    for k in range(n):
        for j in range(4):
            for h in range(2):
                b(f"v_dot2_f32_bf16 v{tmp+2*j+h}, v{fr+4*k+j}, s{30+h}, v{mean}")
        for j in range(4):
            b(f"v_cvt_pk_bf16_f32 v{fr+4*k+j}, v{tmp+2*j}, v{tmp+2*j+1}")
        if after:
            b(after(k))


def row_tile(b, vd, sd):
    b(f"""
    v_and_b32 v{vd}, 31, v0
    v_mul_u32_u24 v{vd}, 1152, v{vd}
    v_bfe_u32 v{vd+1}, v0, 5, 1
    v_lshl_add_u32 v{vd}, v{vd+1}, 4, v{vd}
    s_and_b32 s{sd}, s{SJ}, 3
    s_mul_i32 s{sd}, s{sd}, 3
    s_add_u32 s{sd}, s{sd}, s{SW}
    s_mul_i32 s{sd}, s{sd}, 96
    s_mul_i32 s{sd+1}, s{STJ}, 36864
    s_add_u32 s{sd}, s{sd}, s{sd+1}
    """)


def layer0_jobs(b, ONE, SM, PF, PT, AF):
    srd(b, 20, 100, 0, SZX)
    row_tile(b, 8, 38)
    for i in range(4):
        b(f"v_mov_b32 v{ONE+i}, 0x3f803f80")
    for n in range(3):
        b(f"buffer_load_dwordx4 {v(RES+12+4*n,4)}, v8, s[20:23], s38 offen offset:{32*n}")
    sdiv(b, 41, STW, 9, 64)
    b(f"""
    s_mul_i32 s38, s41, 9
    s_sub_u32 s38, s{STW}, s38
    s_lshl_b32 s39, s41, 10
    v_add_u32 v8, s39, v1
    v_add_u32 v9, {9*7168}, v8
    s_mul_i32 s38, s38, 14336
    s_add_u32 s38, s38, s39
    v_add_u32 v12, s38, v1
    """)
    for ks in range(18):
        b(f"ds_read_b128 {a(AF+4*ks,4)}, v{8+ks//9} offset:{7168*(ks%9)}")
        if ks == 11:
            b("s_waitcnt lgkmcnt(6)")
    b(f"ds_read_b128 {v(PF,4)}, v12\nds_read_b128 {v(PF+4,4)}, v12 offset:7168")
    for ks in range(18):
        if ks >= 6:
            b(f"s_waitcnt lgkmcnt({19-ks})")
        b(mf16(v(SM, 4), v(ONE, 4), a(AF + 4 * ks, 4), "0" if ks == 0 else v(SM, 4)))
    b(f"""
    v_and_b32 v8, 12, v0
    v_cmp_eq_u32 vcc, 12, v8
    s_cmp_eq_u32 s41, 6
    s_cselect_b64 vcc, vcc, 0
    s_add_u32 s39, s38, 7168
    s_mul_i32 s41, s{SJ}, {WFS}
    s_add_u32 s41, s41, {WF+27*CH+CH//2}
    s_cmp_eq_u32 s{STW}, 63
    s_cselect_b32 s41, {OOB}, s41
    """)
    for r in (38, 39):
        b(f"s_cmp_ge_u32 s{r}, {3*CH}\ns_cselect_b32 s44, {WQH}, 0\ns_sub_u32 s{r}, s{r}, s44\ns_add_u32 s{r}, s{r}, s41")
    b(f"s_waitcnt lgkmcnt(0)\nv_mul_f32 v{SM}, {fbits(-1/576)}, v{SM}\nv_cndmask_b32 v{SM}, v{SM}, v2, vcc")
    centre(b, PF, 2, PT, SM, lambda k: f"buffer_store_dwordx4 {v(PF+4*k,4)}, v1, s[12:15], s{38+k} offen sc1")
    srd(b, 20, 54, 0, 576 * 4608 * 2)
    b("s_mov_b32 s32, 0\ns_mov_b32 s41, s52")


def raw_setup(b):
    b(f"""
    v_bfe_u32 v8, v0, 4, 2
    v_bfe_u32 v9, v0, 2, 2
    v_and_b32 v12, 3, v0
    v_lshlrev_b32 v12, 3, v12
    v_lshl_add_u32 v12, v9, 7, v12
    v_bfe_u32 v13, v0, 3, 2
    v_xor_b32 v13, s{SW}, v13
    s_cmp_ge_u32 s2, 144
    s_cbranch_scc1 a_raw2
    s_and_b32 s38, s2, 1
    s_lshl_b32 s39, s38, 3
    s_add_u32 s44, s0, s39
    s_addc_u32 s45, s1, 0
    s_load_dwordx2 s[54:55], s[44:45], {ARG['w1']}
    s_lshr_b32 s39, s2, 1
    s_lshl_b32 s56, s39, 7
    s_mov_b32 s41, 9216
    s_mov_b32 s8, {fbits(-1/576)}
    s_mov_b32 s59, 2048
    s_mov_b32 s9, 0
    s_lshl_b32 s39, s39, 2
    s_add_u32 s39, s39, s{SW}
    """)
    sdiv(b, 44, 39, 18, 288)
    b(f"""
    s_mul_i32 s44, s44, {WFS-18*CH}
    s_mul_i32 s39, s39, {CH}
    s_add_u32 s58, s39, s44
    s_lshl_b32 s38, s38, 10
    s_add_u32 s58, s58, s38
    s_add_u32 s58, s58, {WF}
    v_lshl_add_u32 v12, v8, 10, v12
    v_lshl_add_u32 v{TR}, v13, 5, v12
    v_xor_b32 v{TR+1}, {512+64}, v{TR}
    s_branch a_raw3
a_raw2:
    s_load_dwordx2 s[54:55], s[0:1], {ARG['w2']}
    s_sub_u32 s38, s2, 144
    """)
    sdiv(b, 39, 38, 9, 112)
    b(f"""
    s_mul_i32 s44, s39, 9
    s_sub_u32 s38, s38, s44
    s_mul_i32 s56, s39, {576*1152}
    s_lshl_b32 s44, s38, 7
    s_add_u32 s56, s56, s44
    s_mov_b32 s41, 1152
    s_mov_b32 s8, 0
    s_mov_b32 s59, {CH}
    s_lshl_b32 s38, s38, 2
    s_add_u32 s38, s38, s{SW}
    """)
    sdiv(b, 44, 38, 9, 36)
    b(f"""
    s_lshl_b32 s45, s39, 1
    s_sub_u32 s45, s45, s44
    s_and_b32 s45, s45, 3
    s_mov_b32 s9, {9216-9*CH}
    s_cmp_eq_u32 s45, 3
    s_cselect_b32 s9, {-3*9216-9*CH}, s9
    s_mul_i32 s45, s45, 9216
    s_mul_i32 s44, s44, {WFS-9216}
    s_lshl_b32 s38, s38, 10
    s_add_u32 s58, s38, s44
    s_add_u32 s58, s58, s45
    s_lshr_b32 s44, s39, 1
    s_mul_i32 s44, s44, {4*WFS}
    s_add_u32 s58, s58, s44
    s_add_u32 s58, s58, {WF+18*CH}
    s_cmp_ge_u32 s2, 216
    s_cselect_b32 s58, {OOB}, s58
    v_lshl_add_u32 v12, v8, 9, v12
    v_and_b32 v8, 2, v8
    v_xor_b32 v13, v13, v8
    v_lshl_add_u32 v{TR}, v13, 5, v12
    v_add_u32 v{TR+1}, 2048, v{TR}
a_raw3:
    v_bfe_u32 v8, v0, 3, 3
    v_mul_lo_u32 v12, v8, s41
    v_and_b32 v8, 6, v8
    v_and_b32 v9, 7, v0
    v_xor_b32 v9, v9, v8
    v_lshl_add_u32 v{VD}, v9, 4, v12
    v_xor_b32 v9, 4, v9
    v_lshl_add_u32 v{VD+1}, v9, 4, v12
    s_lshl_b32 s52, s41, 3
    s_sub_u32 s38, s52, 1024
    v_add_u32 v{VD+1}, s38, v{VD+1}
    s_lshl_b32 s38, s38, 1
    v_add_u32 v{VD+2}, s38, v{VD}
    v_add_u32 v{VD+3}, s38, v{VD+1}
    s_lshl_b32 s57, s52, 4
    s_waitcnt lgkmcnt(0)
    """)


def phase_a(b):
    QM, QT, KM, KT, VF, S, O, MX, IDX = 16, 32, 64, 40, 80, 96, 160, 224, 228
    MEAN, ONE, SM, PF, PT, AF = 78, 80, 84, 48, 88, 112
    AV, AT, AK = 229, 231, 79
    OM, OT, MW, MR = 6, 7, 10, 11
    qm = lambda t: v(QM + 4 * t, 4)
    qt = lambda t: v(QT + 2 * t, 2)
    km = lambda k: a(KM + 4 * (k % 4), 4)
    kt = lambda k: v(KT + 2 * (k % 4), 2)
    vf = lambda k, g: a(VF + 8 * (k % 4) + 4 * g, 4)
    sb = lambda n: S + 16 * (n % 4)
    ob = lambda t: O + 16 * t
    m8 = lambda d, k, t: f"v_mfma_f32_32x32x8_bf16 {v(d,16)}, {kt(k)}, {qt(t)}, 0"
    m16 = lambda d, k, t: f"v_mfma_f32_32x32x16_bf16 {v(d,16)}, {km(k)}, {qm(t)}, {v(d,16)}"
    smf = lambda t, k, g, p: f"v_smfmac_f32_32x32x32_bf16 {v(ob(t),16)}, {vf(k,g)}, {v(p+8*g,8)}, v{IDX}"

    def rec_loads(k):
        tg = f" ;#r{k%4}"
        return [f"buffer_load_dwordx4 {km(k)}, v{AK}, s[16:19], s46 offen sc1{tg} ;#k{k%4}",
                f"buffer_load_dword v{KT+2*(k%4)}, v{AT}, s[16:19], s46 offen offset:2176 sc1{tg} ;#k{k%4}",
                f"buffer_load_dwordx4 {vf(k,0)}, v{AV}, s[16:19], s46 offen sc1{tg}",
                f"buffer_load_dwordx4 {vf(k,1)}, v{AV+1}, s[16:19], s46 offen sc1{tg}"]

    def wo_mode(b, start):
        b(f"""
        s_and_b32 s38, s{SJ}, 3
        s_mul_i32 s38, s38, {WOS}
        s_add_u32 s38, s38, {WO + 36*1024}
        s_lshl_b32 s56, s{SW}, 12
        s_add_u32 s56, s56, {start-16384}
        s_mov_b32 m0, s56
        s_mov_b32 s57, 16384
        """)
        window(b, 20, 38, 128 * 1024)
        for k in range(4):
            b(f"v_mov_b32 v{VD+k}, v1")

    slots_off = f"s_mov_b32 s56, {OOB}\ns_mov_b32 s57, 0\ns_mov_b32 s40, 0\ns_mov_b32 m0, {LOFF}"
    b(f"""
    s_lshr_b32 s37, s{SW}, 1
    s_lshl_b32 s34, s{SJ}, 1
    s_add_u32 s34, s34, s37
    s_and_b32 s35, s{SW}, 1
    s_mul_i32 s38, s37, 4608
    s_add_u32 s38, s38, {QX}
    s_mul_i32 s39, s35, 2304
    s_add_u32 s40, s38, s39
    s_sub_u32 s41, s38, s39
    v_and_b32 v4, 31, v0
    v_bfe_u32 v5, v0, 5, 1
    v_lshlrev_b32 v6, 2, v4
    v_add_u32 v8, s40, v1
    v_add_u32 v9, s41, v1
    v_add_u32 v12, s40, v6
    v_add_u32 v13, s41, v6
    v_cmp_eq_u32 s[50:51], 0, v5
    s_mul_i32 s38, s35, 1536
    s_mul_i32 s39, s37, 384
    s_add_u32 s38, s38, s39
    s_add_u32 s38, s38, {TIM+128}
    v_add_u32 v15, s38, v6
    s_mul_i32 s39, s37, {REC}
    s_waitcnt lgkmcnt(0)
    s_barrier
    ds_read_b128 {km(0)}, v8 offset:9216
    ds_read_b32 v{KT}, v15
    """)
    for t in range(4):
        b(f"ds_read_b128 {qm(t)}, v{8 + t // 2} offset:{1152*t}")
        b(f"ds_read_b32 v{QT+2*t}, v{12 + t // 2} offset:{1152*t+1024}")
    b(f"""
    s_mul_i32 s38, s{SJ}, {KVJ}
    s_add_u32 s38, s38, s39
    s_mul_i32 s39, s35, {64*REC}
    s_add_u32 s38, s38, s39
    s_add_u32 s38, s38, s{SL}
    s_add_u32 s38, s38, {KV}
    s_mov_b32 s49, 0x07060302
    s_mov_b32 s47, 1
    s_mov_b32 s3, 0
    v_mov_b32 v{KT+1}, 0x3f803f80
    s_waitcnt vmcnt(5) lgkmcnt(0)
    """)
    window(b, 16, 38, 63 * REC)
    for t in range(4):
        b(f"v_cndmask_b32 v{QT+2*t}, 0, v{QT+2*t}, s[50:51]")
    b("a_max:")
    for t in range(4):
        b(f"v_mov_b32 v{QT+2*t+1}, 0\nv_mov_b32 v{MX+t}, 0xff800000")
    b("s_mov_b32 s46, 0\ns_cmp_eq_u32 s3, 0\ns_cbranch_scc1 a_maxbody\na_maxloop:")
    b("\n".join(rec_loads(0)[:2]))
    b(f"s_add_u32 s46, s46, {2*REC}\ns_waitcnt vmcnt(0)\na_maxbody:")
    for t in range(4):
        b(m8(sb(t), 0, t))
        b(m16(sb(t), 0, t))
    b("s_cmp_lg_u32 s3, 0\ns_nop 3\ns_cbranch_scc1 q_sig")
    stamp(b, 5)
    signal(b, "q", C_KV, SJ)
    stamp(b, 6)
    for t in range(4):
        for i in range(8):
            b(f"v_max3_f32 v{MX+t}, v{sb(t)+2*i}, v{sb(t)+2*i+1}, v{MX+t}")
    b("s_sub_u32 s47, s47, 1\ns_cmp_lg_u32 s47, 0\ns_cbranch_scc1 a_maxloop")
    for i in range(64):
        b(f"v_mov_b32 v{O+i}, 0")
    b("s_cmp_lg_u32 s3, 0\ns_cbranch_scc1 a_go")
    wo_base(b, 0, 12)
    pb = B()
    pb(f"""
    v_lshlrev_b32 v8, 8, v5
    v_lshl_add_u32 v8, v4, 4, v8
    v_add_u32 v8, 1024, v8
    v_lshlrev_b32 v9, 5, v5
    v_lshl_add_u32 v9, v4, 4, v9
    v_add_u32 v9, {2048-256}, v9
    v_mov_b32 v12, {OOB}
    v_mov_b32 v13, 2304
    v_and_b32 v14, 27, v4
    v_cmp_eq_u32 vcc, 18, v14
    v_cmp_gt_u32 s[60:61], 18, v4
    v_cmp_gt_u32 s[36:37], 16, v4
    v_cndmask_b32 v13, v12, v13, vcc
    v_cndmask_b32 v14, v13, v9, s[60:61]
    v_cndmask_b32 v{AV}, v14, v8, s[36:37]
    v_add_u32 v8, 512, v8
    v_add_u32 v9, 64, v9
    v_cndmask_b32 v14, v13, v9, s[60:61]
    v_cndmask_b32 v{AV+1}, v14, v8, s[36:37]
    v_mov_b32 v{IDX}, 0xdddddddd
    v_bfe_u32 v8, v4, 2, 1
    v_lshrrev_b32 v9, 3, v4
    v_lshlrev_b32 v9, 2, v9
    v_lshl_add_u32 v8, v8, 4, v9
    v_and_b32 v9, 3, v4
    v_add_u32 v8, v8, v9
    v_lshlrev_b32 v{AT}, 2, v8
    v_lshlrev_b32 v8, 4, v8
    v_lshl_add_u32 v{AK}, v5, 9, v8
    v_lshlrev_b32 v13, 2, v4
    v_lshrrev_b32 v{OM}, 4, v4
    v_lshlrev_b32 v{OM}, 14, v{OM}
    v_and_b32 v8, 15, v4
    v_lshl_add_u32 v{OM}, v8, 4, v{OM}
    v_and_b32 v8, 35, v0
    v_cmp_eq_u32 vcc, 0, v8
    v_lshl_add_u32 v{OM}, v5, 8, v{OM}
    s_lshl_b32 s42, s{SI}, 1
    v_cndmask_b32 v{OT}, v12, v13, vcc
    s_add_u32 s42, s42, 1
    s_sub_u32 s42, s42, s35
    s_mul_i32 s42, s42, 73728
    s_add_u32 s42, s42, s{SL}
    s_add_u32 s42, s42, {OB}
    s_lshl_b32 s43, s34, 9
    s_add_u32 s43, s43, s42
    s_lshl_b32 s44, s34, 7
    s_add_u32 s42, s42, s44
    s_add_u32 s42, s42, 32768
    s_mul_i32 s44, s{SW}, 6144
    s_xor_b32 s45, s{SW}, 1
    s_mul_i32 s45, s45, 6144
    s_add_u32 s44, s44, {QX}
    s_add_u32 s45, s45, {QX}
    v_add_u32 v{MW}, s44, v1
    v_add_u32 v{MR}, s45, v1
    """)
    for k in range(1, 4):
        pb(f"v_mov_b32 v{KT+2*k+1}, 0x3f803f80")
    for i in range(8):
        pb(f"v_accvgpr_write_b32 a{VF+24+i}, 0")
    lines, lds = [x.strip() for x in pb.lines], wo_loads(0, 12)
    for i, x in enumerate(lines):
        if i % 5 == 0 and lds:
            b(lds.pop(0))
        b(x)
    assert not lds
    b(f"s_mov_b32 s40, 16384\ns_cmp_eq_u32 s{SL}, 0\ns_cbranch_scc1 a_jobs\ns_mov_b32 s32, 4")
    wo_mode(b, 0)
    b("a_init:")
    side = B()
    side("a_jobs:")
    layer0_jobs(side, ONE, SM, PF, PT, AF)
    side("s_branch a_init")
    stamp(b, 7)
    poll(b, "a", C_KV, SJ, 16, True)
    stamp(b, 8)
    b("a_go:\ns_mov_b32 s46, 0")
    for k in range(3):
        b("\n".join(rec_loads(k)))
        if k < 2:
            b(f"s_add_u32 s46, s46, {2*REC}")
    slot = lambda k: f"buffer_load_dwordx4 v{VD+k}, s[20:23], s56 offen" + (f" offset:{1024*k}" if k else "") + " lds"
    b(f"""
    s_mov_b32 s47, 8
    s_cmp_lg_u32 s32, 0
    s_cbranch_scc1 a_nopre
    s_mov_b32 s47, 4
    s_lshl_b32 s38, s{SW}, 1
    s_add_u32 s38, s38, 64
    s_lshl_b32 m0, s38, 10
    s_mul_i32 s38, s38, s41
    s_add_u32 s38, s38, s56
    buffer_load_dwordx4 v{VD}, s[20:23], s38 offen lds
    buffer_load_dwordx4 v{VD+1}, s[20:23], s38 offen offset:1024 lds
    s_lshl_b32 s38, s{SW}, 2
    s_sub_u32 s38, s38, 16
    s_lshl_b32 m0, s38, 10
    s_mul_i32 s38, s38, s41
    s_add_u32 s56, s56, s38
a_nopre:
    """)
    x0 = sb(2)
    for t in range(4):
        b(f"""
        v_mov_b32 v{x0}, v{MX+t}
        v_mov_b32 v{sb(3)+4*t}, 0
        v_mov_b32 v{sb(3)+4*t+1}, 0
        v_permlane32_swap_b32 v{MX+t}, v{x0}
        v_mov_b32 v{sb(3)+4*t+2}, 0
        v_max_f32 v{MX+t}, v{MX+t}, v{x0}
        v_sub_f32 v{x0}, 0, v{MX+t}
        v_and_b32 v{x0+1}, 0xffff0000, v{x0}
        v_sub_f32 v{x0+2}, v{x0}, v{x0+1}
        v_and_b32 v{x0+3}, 0xffff0000, v{x0+2}
        v_sub_f32 v{x0+2}, v{x0+2}, v{x0+3}
        v_perm_b32 v{x0+1}, v{x0+3}, v{x0+1}, s49
        v_lshrrev_b32 v{x0+2}, 16, v{x0+2}
        v_cndmask_b32 v{QT+2*t+1}, v{x0+2}, v{x0+1}, s[50:51]
        v_mov_b32 v{sb(3)+4*t+3}, 0
        """)
    b("s_waitcnt vmcnt(@k0)")
    for t in range(2):
        b(m8(sb(t), 0, t))
        b(m16(sb(t), 0, t))
    b("s_nop 8")
    stamp(b, 9)
    b(".p2align 3\na_loop:")
    for n in range(16):
        k, t = divmod(n, 4)
        e = [f"v_exp_f32 v{sb(n)+i}, v{sb(n)+i}" for i in range(16)]
        qk, qtile = (n + 2) // 4, (n + 2) % 4
        pk, pt = (n - 1) // 4, (n - 1) % 4
        b(m8(sb(n + 2), qk, qtile))
        b("\n".join(e[0:4]))
        b(m16(sb(n + 2), qk, qtile))
        if t == 1:
            b(f"s_waitcnt vmcnt(@r{k})")
        if t == 0:
            b(f"s_add_u32 s46, s46, {2*REC}")
        if n == 14:
            b("s_sub_u32 s47, s47, 1")
        if n == 15:
            b("s_cmp_lg_u32 s47, 0")
        b("\n".join(e[4:8]))
        b(smf(pt, pk, 0, sb(n - 1)))
        b(rec_loads(k + 3)[t])
        b("\n".join(e[8:12]))
        b(smf(pt, pk, 1, sb(n - 1)))
        if t == 1:
            b(f"s_waitcnt vmcnt(@k{(k+1)%4})")
        if t == 3:
            b(slot(k))
        if n == 0:
            b("s_add_u32 s56, s56, s57\ns_add_u32 m0, m0, s40")
        b("\n".join(e[12:16]))
    b("s_cbranch_scc1 a_loop\ns_cmp_lt_u32 s32, 4\ns_cbranch_scc1 a_break")
    stamp(b, 10)
    c = side
    c("a_break:")
    bstamp(c, 0)
    c("s_cmp_lg_u32 s32, 0\ns_cbranch_scc1 a_brk1")
    wo_mode(c, 80 * 1024)
    c("s_branch a_resume\na_brk1:\ns_cmp_lg_u32 s32, 1\ns_cbranch_scc1 a_brk2\ns_waitcnt lgkmcnt(0)\ns_barrier")
    for i in range(25):
        if i < 18:
            for h in range(2):
                c(f"ds_read_b64_tr_b16 {a(AF+4*i+2*h,2)}, v{TR+h} offset:{4096*(i%9)}")
            if i in (8, 17):
                st = 36864 if i == 8 else -36864
                c(f"v_add_u32 v{TR}, {st}, v{TR}\nv_add_u32 v{TR+1}, {st}, v{TR+1}")
        if 6 <= i < 24:
            k = i - 6
            c(f"s_waitcnt lgkmcnt({2*min(6, 17-k)})")
            c(mf16(v(SM, 4), v(ONE, 4), a(AF + 4 * k, 4), "0" if k == 0 else v(SM, 4)))
    prd = lambda i: "\n".join(f"ds_read_b64_tr_b16 {v(PF+4*i+2*h,2)}, v{TR+h} offset:{4096*i}" for h in range(2))
    for i in range(6):
        c(prd(i))
    c(f"""
    v_mul_f32 v{MEAN}, s8, v{SM}
a_brk2:
    v_add_u32 v{TR}, 24576, v{TR}
    v_add_u32 v{TR+1}, 24576, v{TR+1}
    s_cmp_eq_u32 s32, 2
    s_cselect_b32 s38, s9, 0
    s_waitcnt lgkmcnt(0)
    """)
    centre(c, PF, 6, PT, MEAN, lambda k: f"buffer_store_dwordx4 {v(PF+4*k,4)}, v1, s[12:15], s58 offen sc1\ns_add_u32 s58, s58, s59"
           + ("\ns_add_u32 s58, s58, s38" if k == 2 else "") + ("\n" + prd(k - 1) if k else ""))
    c(prd(5))
    c(f"s_cmp_lg_u32 s32, 3\ns_cbranch_scc1 a_resume\n{slots_off}")
    c("a_resume:")
    bstamp(c, 1)
    c("s_add_u32 s32, s32, 1\ns_mov_b32 s47, 1\ns_branch a_loop")
    c(f"a_redo:\ns_mov_b32 s3, 1\ns_mov_b32 s47, 32\n{slots_off}\ns_waitcnt vmcnt(0)\ns_branch a_max")
    b(smf(3, 3, 0, sb(3)))
    b("s_waitcnt lgkmcnt(0)")
    b(f"v_mov_b32 v{ob(0)+11}, v{MX}\nv_mov_b32 v{ob(1)+11}, v{MX+1}")
    b(smf(3, 3, 1, sb(3)))
    for t in range(2):
        for i in range(3):
            b(f"ds_write_b128 v{MW}, {v(ob(t)+4*i,4)} offset:{3072*t+1024*i}")
    b(f"""
    v_max3_f32 v8, v{ob(0)+10}, v{ob(1)+10}, v{ob(2)+10}
    v_mov_b32 v9, 0x53800000
    v_cmp_u_f32 s[52:53], v{ob(0)+10}, v{ob(1)+10}
    s_and_b32 s38, s2, 7
    s_lshl_b32 s38, s38, 7
    s_add_u32 s38, s38, s{SC}
    v_max_f32 v8, v{ob(3)+10}, v8
    v_cmp_u_f32 s[54:55], v{ob(2)+10}, v{ob(3)+10}
    v_cmp_nlt_f32 vcc, v8, v9
    s_add_u32 s38, s38, {C_PREP}
    s_or_b64 s[52:53], s[52:53], s[54:55]
    s_or_b64 vcc, vcc, s[52:53]
    s_cmp_eq_u32 s3, 0
    s_cselect_b64 vcc, vcc, 0
    s_waitcnt lgkmcnt(0)
    s_cbranch_vccnz a_redo
    s_barrier
    """)
    for t in range(2):
        for i in (2, 0, 1):
            b(f"ds_read_b128 {v(sb(t)+4*i,4)}, v{MR} offset:{3072*t+1024*i}")
    for t in range(2):
        P, o0, pk = sb(t), ob(2 + t), QM + 8 * t
        b(f"""
        s_waitcnt lgkmcnt({5 - 3*t})
        v_max_f32 v8, v{MX+2+t}, v{P+11}
        v_sub_f32 v9, v{MX+2+t}, v8
        v_sub_f32 v8, v{P+11}, v8
        v_exp_f32 v9, v9
        v_exp_f32 v8, v8
        v_mul_f32 v12, v9, v{o0+10}
        v_fmac_f32 v12, v8, v{P+10}
        v_rcp_f32 v12, v12
        s_waitcnt lgkmcnt({3 - 3*t})
        v_pk_mul_f32 v[8:9], v[8:9], v[12:13] op_sel_hi:[1:0]
        """)
        for i in (8, 0, 2, 4, 6):
            b(f"v_pk_mul_f32 {v(o0+i,2)}, v[8:9], {v(o0+i,2)} op_sel:[1:0] op_sel_hi:[1:1]")
        for i in (8, 0, 2, 4, 6):
            b(f"v_pk_fma_f32 {v(o0+i,2)}, v[8:9], {v(P+i,2)}, {v(o0+i,2)} op_sel_hi:[0:1:1]")
        for i in (4, 0, 1, 2, 3):
            b(f"v_cvt_pk_bf16_f32 v{pk+i}, v{o0+2*i}, v{o0+2*i+1}")
        b(f"buffer_store_dwordx4 {v(pk,4)}, v{OM}, s[12:15], s43 offen sc1")
        for i in range(1, 4):
            b(f"v_mov_b32 v{pk+4+i}, v{pk+4} quad_perm:[{i}:{i}:{i}:{i}] row_mask:0xf bank_mask:0xf")
        b(f"buffer_store_dwordx4 {v(pk+4,4)}, v{OT}, s[12:15], s42 offen sc1")
        if t == 0:
            b("s_add_u32 s42, s42, 36864\ns_add_u32 s43, s43, 36864")
    stamp(b, 11)
    signal(b, "a", C_O, SI, extra=38)
    stamp(b, 12)
    return side.text()


def res_swap(b):
    for n in range(3):
        for k in range(4):
            b(f"v_permlane16_swap_b32 v{RES+8*n+k}, v{RES+8*n+4+k}")


def tile_base(b, dst, tmp):
    b(f"""
    s_and_b32 s{dst}, s{SJ}, 3
    s_mul_i32 s{dst}, s{dst}, 3
    s_add_u32 s{dst}, s{dst}, s{SW}
    s_mul_i32 s{dst}, s{dst}, 1536
    s_mul_i32 s{tmp}, s{STJ}, 36864
    s_add_u32 s{dst}, s{dst}, s{tmp}
    """)


def phase_o(b):
    PK, OF = 16, 56
    NB = int(OPT.get('nb', 108))
    b(f"""
    s_cmp_eq_u32 s{SW}, 3
    s_cbranch_scc1 o_nowo
    s_lshl_b32 s38, s{SW}, 14
    s_add_u32 s38, s38, {80*1024}
    v_add_u32 v6, s38, v1
    s_mul_i32 s38, s{SW}, {26*1024}
    v_add_u32 v7, s38, v1
    s_cmp_eq_u32 s{SL}, 0
    s_cbranch_scc1 o_first
    """)
    side = B()
    side("o_first:")
    wo_base(side, 36, 26)
    side("\n".join(wo_loads(12, 38)))
    for k in range(12):
        side(f"v_lshlrev_b32 v{RES+2*k}, 16, v{RES+12+k}\nv_and_b32 v{RES+2*k+1}, 0xffff0000, v{RES+12+k}")
    side("s_branch o_rest")
    for n in range(12, 38):
        b(f"ds_read_b128 {a(4*n,4)}, v7 offset:{1024*(n-12)}")
        if n % 8 == 7:
            b("s_waitcnt lgkmcnt(4)")
    b("s_waitcnt lgkmcnt(4)\no_rest:")
    for n in range(38, 54):
        b(f"ds_read_b128 {a(4*n,4)}, v6 offset:{1024*(n-38)}")
        if n == 45:
            b("s_waitcnt lgkmcnt(4)")
    b(f"o_nowo:\ns_mul_i32 s38, s{SJ}, {WFS}\ns_add_u32 s38, s38, {WF}")
    window(b, 16, 38, WFS)
    b(f"s_cmp_eq_u32 s{SL}, 0\ns_cselect_b32 s18, s18, {27*CH}")
    unit_offset(b, 5, 6, 7)
    stats_target(b)
    res_swap(b)
    tile_base(b, 34, 35)
    b(f"""
    s_lshl_b32 s38, s{SW}, 10
    s_add_u32 s37, s35, s38
    s_add_u32 s37, s37, s{SL}
    s_add_u32 s37, s37, {OB}
    s_add_u32 s38, s38, {3*CH}
    v_add_u32 v6, {3*CH}, v1
    s_add_u32 s36, s34, s{SL}
    s_add_u32 s36, s36, {X1}
    v_bfe_u32 v7, v0, 4, 2
    v_and_b32 v8, 15, v0
    v_lshlrev_b32 v7, 9, v7
    v_lshl_add_u32 v7, v8, 2, v7
    v_add_u32 v7, {3*CH+32768}, v7
    v_add_u32 v8, 2048, v7
    v_and_b32 v11, 7, v0
    v_lshlrev_b32 v11, 7, v11
    s_lshl_b32 s41, s{SL}, 2
    s_add_u32 s41, s41, s{SW}
    s_mov_b32 s40, {CNT+C_PREP}
    s_cmp_eq_u32 s41, 3
    s_cselect_b32 s40, s40, {OOB}
    s_cselect_b32 s41, 32, 0
    s_waitcnt lgkmcnt(0)
    """)
    if int(OPT.get("w3", 1)):
        walk(b, "wk3", "a_sig", "f_p1")
    stamp(b, 13)
    poll(b, "o", C_O, SI, 16, True)
    stamp(b, 14)
    b("buffer_load_dword v4, v11, s[12:15], s40 offen sc1")
    for i in range(9):
        off = 4096 * (i // 2) + 16384 * (i % 2) if i < 8 else 32768
        b(f"s_add_u32 m0, s38, {off}\ns_add_u32 s39, s37, {off}\nbuffer_load_dwordx4 v1, s[12:15], s39 offen sc1 lds")
    b(f"s_waitcnt vmcnt(5)\ns_barrier")
    stamp(b, 15)
    b(f"s_cmp_eq_u32 s{SW}, 3\ns_cbranch_scc1 o_ring")
    of = lambda ks, rt: OF + ks * 8 + rt * 4

    def rd(ks):
        if ks < 16:
            return [f"ds_read_b128 {v(of(ks,rt),4)}, v6 offset:{rt*16384+ks*1024}" for rt in range(2)]
        return [f"ds_read2_b32 {v(of(ks,rt)+2*k,2)}, v{7+ks-16} offset0:{16*rt+64*k} offset1:{16*rt+64*k+32}"
                for rt in range(2) for k in range(2)]

    mf = lambda n, ks, rt: mf16(v(RES + 8 * n + 4 * rt, 4), a((n * 18 + ks) * 4, 4), v(of(ks, rt), 4), v(RES + 8 * n + 4 * rt, 4))
    KS = 12
    mains = [mf(n, ks, rt) for ks in range(KS) for n in range(3) for rt in range(2)]
    mains += [mf(n, ks, rt) for n in range(3) for ks in range(KS, 18) for rt in range(2)]
    b("\n".join(rd(0) + rd(1)) + "\ns_waitcnt lgkmcnt(2)")
    pins, late = [], [x for ks in range(8, 18) for x in rd(ks)]
    for ks in range(KS):
        now = rd(ks + 2) if ks < 6 else late[4 * (ks - 6):4 * (ks - 5)]
        pins += [(6 * ks + k, x) for k, x in enumerate(now)]
        if ks == 5:
            pins += [(6 * ks + 4, "s_waitcnt vmcnt(0)"), (6 * ks + 4, "s_barrier")]
        pins.append((6 * ks + 5, f"s_waitcnt lgkmcnt({len(now)})"))
    pins.append((6 * KS + 5, "s_waitcnt lgkmcnt(0)"))

    def fin(n):
        r, p = RES + 8 * n, PK + 4 * n
        out = [f"v_permlane16_swap_b32 v{r+k}, v{r+4+k}" for k in range(4)]
        out += [f"v_cvt_pk_bf16_f32 v{p+k}, v{r+2*k}, v{r+2*k+1}" for k in range(4)]
        out += [f"buffer_store_dwordx4 {v(p,4)}, v5, s[12:15], s36 offen offset:{512*n} sc1"]
        return out

    def sums(n):
        r = RES + 8 * n
        return [x for k in range(8) for x in (f"v_add_f32 v9, v9, v{r+k}", f"v_fmac_f32 v10, v{r+k}, v{r+k}")]

    f0 = chain(fin(0), earliest=6 * KS + 12 + 7)
    f1 = chain(fin(1), earliest=6 * KS + 24 + 5, after=f0[-1])
    for o in f1:
        o.urgent = True
    txt, over, _ = sched2(mains, pins, f0 + f1 + chain(sums(0), after=f0[3]))
    b("v_mov_b32 v9, 0\nv_mov_b32 v10, 0\n" + txt)
    b("\n".join(sums(1)[:8] + fin(2) + sums(1)[8:] + sums(2)))
    b(f"""
    s_add_u32 s38, s59, s{SL}
    s_add_u32 s38, s38, {S1}
    v_permlane32_swap_b32 v9, v10
    s_nop 0
    v_add_f32 v9, v9, v10
    buffer_store_dword v9, v13, s[12:15], s38 offen sc1
    """)
    stamp(b, 16)
    signal(b, "o", C_X1, STJ, wave=0)
    stamp(b, 17)
    c = side
    ROT = int(OPT.get("rot", 1))

    def four():
        dma_run(c, 4, 16, 43, " sc1")
        c(f"s_add_u32 s43, s43, 4096\ns_cmp_eq_u32 s43, {NB*1024}\ns_cselect_b32 s43, 0, s43\ns_mov_b32 m0, s43\ns_sub_u32 s42, s42, 1")

    c(f"""
o_ring:
    s_and_b32 s43, s{SI}, 7
    s_mul_i32 s43, s43, {NB//4*ROT}
    s_lshr_b32 s43, s43, 3
    s_lshl_b32 s43, s43, 12
    s_mov_b32 m0, s43
    v_cmp_gt_u32 vcc, s41, v4
    s_mov_b32 s42, {NB//4}
    s_cbranch_vccnz o_late
    """)
    for _ in range(4):
        four()
    c(f"""
    s_waitcnt vmcnt(16)
    s_barrier
    s_branch o_fill
o_late:
    s_waitcnt vmcnt(0)
    s_barrier
    s_mov_b32 s61, 0x40000
o_prep:
    buffer_load_dword v4, v11, s[12:15], s40 offen sc1
    s_sub_u32 s61, s61, 1
    s_waitcnt vmcnt(0)
    v_cmp_gt_u32 vcc, s41, v4
    s_cbranch_scc1 o_fill
    s_cbranch_vccnz o_prep
o_fill:
    """)
    four()
    c(f"""
    s_cmp_lg_u32 s42, 0
    s_waitcnt vmcnt({int(OPT.get('th', 28))})
    s_cbranch_scc1 o_fill
    s_branch o_bar
    """)
    return c.text()


def phase_f(b):
    VS, NB = int(OPT.get("vs", 66)), int(OPT.get('nb', 108))
    LA, LB, DV, C1, C2, VP, VFL = 5, 6, 7, 10, 12, 14, 15
    ACC1, TMP, STG, FL, VH, ACC2, ST, ONE, UO, LO = 16, 48, 64, 72, 80, 84, 84, 100, 156, 157
    RING, NR, PD, HR = 144, 12, 8, 192
    xb = lambda ks, rt: a((ks * 2 + rt) * 4, 4)
    ring = lambda i: a(RING + 4 * (i % NR), 4)

    def hr(c, m, rt):
        u, o = c - 18, (m * 2 + rt) * 4
        if u in (2, 3):
            return v(160 + 32 * (u - 2) + o, 4)
        return a({0: HR, 1: HR + 32, 8: HR}.get(u, 32 * (u - 4)) + o, 4)

    P0 = int(OPT.get("p0", 11))
    SOFT, SG = int(OPT.get('sb', 1)), int(OPT.get('sg', 1))
    SFL, SFC, SFW, SFR, LC = 224, 228, 229, 230, 231
    b(f"""
    s_mul_i32 s43, s{SW}, {(144-NB)//4*1024}
    s_add_u32 s43, s43, {NB*1024}
    s_mov_b32 m0, s43
    s_mul_i32 s39, s{STW}, 36864
    """)
    pb = B()
    unit_offset(pb, UO, TMP, TMP + 1)
    pb(f"""
    s_mul_i32 s45, s{SW}, 9216
    s_mov_b32 s44, 0
    """)
    for k in range(3):
        pb(f"""
        s_mul_i32 s34, s{SI}, {int(OPT.get("rot2", 0))}
        s_add_u32 s34, s34, {k}
        s_mul_i32 s35, s34, 43
        s_lshr_b32 s35, s35, 7
        s_mul_i32 s35, s35, 3
        s_sub_u32 s34, s34, s35
        s_mul_i32 s34, s34, 3072
        s_add_u32 s{48+k}, s34, s45
        s_add_u32 s{51+k}, s{48+k}, {CH}
        v_add_u32 v{DV+k}, s{48+k}, v1
        """)
    pb(f"""
    s_mul_i32 s46, s{STW}, {16*18432}
    s_add_u32 s46, s46, s{SL}
    s_add_u32 s46, s46, {HB}
    s_and_b32 s35, s{SJ}, 12
    """)
    for m in range(4):
        pb(f"""
        s_add_u32 s34, s{SJ}, {m}
        s_and_b32 s34, s34, 3
        s_add_u32 s34, s34, s35
        s_mul_i32 s34, s34, 18432
        s_add_u32 s34, s34, s46
        v_add_u32 v{VH+m}, s34, v1
        """)
    pb(f"""
    s_mul_i32 s34, s{SJ}, 18432
    s_add_u32 s46, s46, s34
    s_lshl_b32 s41, s{STJ}, 9
    s_add_u32 s41, s41, s{SC}
    s_add_u32 s41, s41, {C_H}
    s_and_b32 s37, s{SJ}, 3
    s_lshl_b32 s34, s37, 7
    v_mov_b32 v{VFL}, s34
    v_mov_b32 v{VP}, {OOB}
    v_cmp_eq_u32 vcc, 0, v0
    s_mov_b32 s47, {(P0-5)//2}
    s_lshr_b32 s36, s{SJ}, 2
    v_cndmask_b32 v{VFL}, v{VP}, v{VFL}, vcc
    v_mov_b32 v{VP}, 2
    s_mul_i32 s34, s36, {SZX}
    s_mul_i32 s35, s{STW}, 36864
    s_add_u32 s34, s34, s35
    s_mul_i32 s35, s37, 4608
    s_add_u32 s34, s34, s35
    s_add_u32 s34, s34, s{SL}
    s_add_u32 s34, s34, {PART}
    s_lshl_b32 s35, s{STW}, 2
    s_add_u32 s37, s37, s35
    s_lshl_b32 s37, s37, 9
    s_add_u32 s37, s37, s{SC}
    s_add_u32 s37, s37, {C_P}
    s_cmp_eq_u32 s36, s{SW}
    s_cselect_b32 s34, {OOB}, s34
    s_cmp_eq_u32 s36, s{SW}
    s_cselect_b32 s37, {OOB}, s37
    s_add_u32 s35, s34, 4096
    v_add_u32 v{LO}, {4*CH}, v1
    v_mov_b32 v{SFC}, 0
    v_and_b32 v{FL+2}, 3, v0
    v_lshlrev_b32 v{FL+2}, 2, v{FL+2}
    v_add_u32 v{SFR}, {4*CH+12288}, v{FL+2}
    v_lshlrev_b32 v{FL+2}, 5, v{FL+2}
    s_lshl_b32 s38, s{SW}, 2
    s_add_u32 s38, s38, {4*CH+12288}
    v_mov_b32 v{SFW}, s38
    ds_write_b32 v{SFW}, v{SFC}
    s_mul_i32 s38, s{STW}, 3072
    s_add_u32 s38, s38, s{SL}
    s_add_u32 s38, s38, {S1}
    v_add_u32 v{LA}, {2*CH}, v1
    v_add_u32 v{LB}, {3*CH}, v1
    v_add_u32 v{LC}, {CH}, v1
    """)
    db = B()
    dma_run(db, (144 - NB) // 4, 16, 43, " sc1")
    dl, sl = [x.strip() for x in db.lines], [x.strip() for x in pb.lines]
    per = -(-len(sl) // ((144 - NB) // 4))
    for x in dl:
        b(x)
        if "buffer" in x:
            n = per + ("s_cmp" in "".join(sl[per-1:per]))
            b("\n".join(sl[:n]))
            sl = sl[n:]
    b("\n".join(sl + [f"s_mov_b32 s43, {4*CH}"]))
    b(f"s_add_u32 s39, s39, s{SL}\ns_add_u32 s39, s39, {X1}\ns_add_u32 s40, s39, 18432")
    rdf = lambda gi, i, base: f"ds_read_b128 {ring(gi)}, v{base} offset:{1024*i}"
    acc1 = lambda st, gu, rt: (ACC1 + 16 * st if st < 2 else 160 + 16 * st) + (gu * 2 + rt) * 4

    def rd01(j):
        if j >= 108:
            return rdf(j, j - 108, LB)
        return rdf(j, 2 * (j // 6) + j % 2, (1, LC, LA)[j % 6 // 2])

    stamp(b, 18)
    b(f"""
    s_lshl_b32 s60, s{STW}, 7
    s_add_u32 s60, s60, s{SC}
    s_add_u32 s60, s60, {C_X1}
    buffer_load_dword v4, v2, s[12:15], s60 offen sc1
    s_waitcnt vmcnt(1) lgkmcnt(0)
    s_barrier
    """)
    for j in range(6):
        b(rd01(j))
    if int(OPT.get("w2", 1)):
        walk(b, "wk2", "f_p1", "r_exit")
    b("s_waitcnt vmcnt(0)\nv_cmp_gt_u32 vcc, 4, v4\ns_nop 0\ns_cbranch_vccz f_ok")
    poll(b, "f", C_X1, STW, 4, False)
    stamp(b, 19)

    def xload(ks, rt):
        off = f" offset:{1024*(ks%4)}" if ks % 4 else ""
        t = f"buffer_load_dwordx4 {xb(ks,rt)}, v1, s[12:15], s{39+rt} offen{off} sc1 ;#x{ks}"
        if ks % 4 == 3:
            t += f"\ns_add_u32 s{39+rt}, s{39+rt}, 4096"
        return t

    XA = int(OPT.get("xa", 4))
    for ks in range(XA):
        for rt in range(2):
            b(xload(ks, rt))
    mains, pinned = [], []
    for ks in range(18):
        g0 = 12 * ks
        for st in range(3):
            for gu in range(2):
                for rt in range(2):
                    d = v(acc1(st, gu, rt), 4)
                    mains.append(mf16(d, ring(6 * ks + 2 * st + gu), xb(ks, rt), "0" if ks == 0 else d))
        pinned += [(g0 + 2 * k, rd01(6 * ks + 6 + k)) for k in range(6)]
        pinned.append((g0 + 5, "s_waitcnt lgkmcnt(3)"))
        pinned.append((g0 + 11, f"s_waitcnt vmcnt(@x{ks+1}) lgkmcnt(3)" if ks < 17 else "s_barrier"))
        if ks + XA < 18:
            for rt in range(2):
                for k, x in enumerate(xload(ks + XA, rt).split("\n")):
                    pinned.append((g0 + 1 + 6 * rt + k, x))
        if ks in (1, 3, 5):
            pinned.append((g0 + 3, stats_loads(ST, 38)[ks // 2]))
    pinned += [(12 * 17 + 7, rd01(114)), (12 * 17 + 9, rd01(115))]
    early4 = lambda i: [f"s_add_u32 m0, s45, {4096*i}", f"s_add_u32 s42, s45, {4*CH+4096*i}",
                        "buffer_load_dwordx4 v1, s[16:19], s42 offen sc1 lds ;#da"]
    pinned += [(12 * 13 + 9, f"s_lshl_b32 s45, s{SW}, 10"), (12 * 13 + 9, "s_barrier")]
    for i in range(6):
        gp = 12 * (14 + i // 2) + 1 + 6 * (i % 2)
        pinned += [(gp - 3, early4(i)[0]), (gp - 1, early4(i)[1]), (gp, early4(i)[2])]
    NL = fbits(-math.log2(math.e))
    ops = chain(stats_reduce(ST, ST, fbits(1e-5)) + [(f"v_rsq_f32 v{C1}, v{ST}", 1), f"v_rsq_f32 v{C1+1}, v{ST+1}", f"v_mov_b32 v{C2}, v{ST}", f"v_mov_b32 v{C2+1}, v{ST+1}",
                                    f"v_mul_f32 v{C1}, {NL}, v{C1}", f"v_mul_f32 v{C1+1}, {NL}, v{C1+1}"], earliest=12 * (6 + XA))
    b("s_waitcnt vmcnt(@x0) lgkmcnt(3)")
    b(sched2(mains, pinned, ops)[0])
    b("s_waitcnt lgkmcnt(0)")
    stamp(b, 20)

    def dma(par, others=(), gate=None, sin=False, step=CH, tag=None):
        out, others = [], list(others)
        if sin:
            for _ in range(min(2, len(others))):
                out += [(x, 0) for x in others.pop(0)]
        per = len(others) / 9
        for i in range(9):
            if i % 3 == 0:
                out.append((f"s_add_u32 m0, s44, s{48+i//3+(0 if par else 3)}", 0))
            ld = f"buffer_load_dwordx4 v{DV+i//3}, s[16:19], s43 offen" + (f" offset:{1024*(i%3)}" if i % 3 else "") + f"{OPT.get('wf', ' sc1')} lds ;#{tag or 'd%d' % par}"
            out.append((ld, 1 if i % 3 == 0 else 0))
            take = len(others) if i == 7 else min(len(others), int((i + 1) * per + 0.999) - int(i * per + 0.999))
            for _ in range(take if i < 8 else 0):
                out += [(x, 0) for x in others.pop(0)]
        out.append((f"s_add_u32 s43, s43, {step}", 0))
        if par == 0:
            out.append((f"s_xor_b32 s44, s44, {2*CH}", 0))
        ops = chain(out)
        if gate:
            for o in ops:
                if "s[12:15]" in o.text:
                    o.deps.append((gate, 0))
        return ops

    def swiglu(st, half, TMP=TMP):
        ops, last = [], []
        for k in range(8):
            rt, i = divmod(k, 4)
            g, u = acc1(st, 0, rt) + i, acc1(st, 1, rt) + i
            t, p = TMP + k, TMP + 8 + k
            c = chain([f"v_mul_f32 v{t}, v{C1+rt}, v{g}", f"v_exp_f32 v{t}, v{t}",
                       f"v_fma_f32 v{t}, v{t}, v{C2+rt}, v{C2+rt}", f"v_rcp_f32 v{t}, v{t}"], earliest=3, dist=1)
            m = Op(f"v_mul_f32 v{p}, v{g}, v{u}", earliest=4)
            f = Op(f"v_mul_f32 v{p}, v{p}, v{t}", [(c[-1], 1), (m, 0)])
            ops += c + [m, f]
            for o in c + [m, f]:
                o.bias = 3 * (1 - rt)
            last.append(f)
            if k % 2:
                cv = Op(f"v_cvt_pk_bf16_f32 v{STG+4*rt+2*half+i//2}, v{p-1}, v{p}", [(last[-2], 0), (f, 0)])
                ops.append(cv)
                if half and i == 3:
                    st_ = Op(f"buffer_store_dwordx4 {v(STG+4*rt,4)}, v1, s[12:15], s46 offen" + (" offset:1024" if rt else "") + " sc1",
                             [(cv, 0), (prevcv, 0)])
                    ops.append(st_)
                    if rt:
                        ops.append(Op("s_add_u32 s46, s46, 2048", [(st_, 0), (prevst, 0)]))
                    prevst = st_
                prevcv = cv
        return ops

    def progress(val):
        c = chain([f"v_add_u32 v{VP}, 1, v{VP}" if val is True else f"v_mov_b32 v{VP}, {val}",
                   f"buffer_store_dword v{VP}, v{VFL}, s[12:15], s41 offen sc1"])
        c[0].urgent = True
        return c

    slow = []
    flag_ld = f"buffer_load_dword v{FL}, v{FL+2}, s[12:15], s41 offen sc1"

    def guard(tag, load, wait, cmp, earliest):
        slow.append(f"""
{tag}_spin:
        s_mov_b32 s61, 0x80000
{tag}_again:
        {load}
        s_sub_u32 s61, s61, 1
        s_waitcnt {wait}(0)
        {cmp}
        s_cbranch_scc1 {tag}_back
        s_cbranch_vccnz {tag}_again
        s_branch {tag}_back
        """)
        c = chain([cmp, (f"s_cbranch_vccnz {tag}_spin\n{tag}_back:", 2)], earliest=earliest)
        for o in c:
            o.urgent = True
        return c

    check = lambda tag, need: guard(tag, flag_ld, "vmcnt", f"v_cmp_gt_u32 vcc, {need}, v{FL}", 0)
    flag_pin = [(int(OPT.get("fg", 21)), flag_ld + " ;#fl")]
    soft_read = f"ds_read_b32 v{SFL}, v{SFR}"
    soft_check = lambda: guard(f"fs{len(slow)}", soft_read, "lgkmcnt", f"v_cmp_gt_u32 vcc, v{SFC}, v{SFL}", SG + 6)

    def chunk(mains, par, extra, pins=(), order=None, nxt_order=None, last=False, endtag='', loads=(), gate=None, prog=False, sin=False, sout=False, step=CH, double=None):
        cur, nxt = (LA, LB) if par == 0 else (LB, LA)
        order = order or list(range(36))
        nxt_order = nxt_order or list(range(36))
        pinned = list(pins)
        for i in range(36):
            j = i + PD
            if j < 36 or not last:
                pinned.append((2 * i, rdf(j, order[j] if j < 36 else nxt_order[j - 36], cur if j < 36 else nxt)))
            if i % 4 == 3 and not (last and i == 35):
                n = PD - 4 if not last else max(0, min(PD - 4, 36 - (i + 5)))
                vm = ""
                if sin and 2 * i + 1 == SG + 6:
                    n = 3
                if sout:
                    if i == 31:
                        vm = f"vmcnt(@d{1-par}) "
                    if i == 35:
                        n, vm = n + 1, (f"vmcnt(@{endtag[1:]}) " if endtag else "")
                elif i == 35:
                    vm = f"vmcnt(@d{1-par}{endtag}) " if not (double and par) else ""
                pinned.append((2 * i + 1, f"s_waitcnt {vm}lgkmcnt({n})"))
        if not last:
            pinned.append((40, f"v_xor_b32 v{nxt}, {2*CH}, v{nxt}"))
        st = [o for o in extra[1] if 'store' in o.text]
        rest = [o for o in extra[1] if 'store' not in o.text]
        dm, pr, sc = dma(par, loads, gate, sin, step), (progress(prog) if prog else []), []
        if double:
            dm, second = dma(1, tag=double[0]), dma(0, tag=double[1])
            if par:
                dm = chain([(x, int("buffer" in x)) for i in range(6, 9) for x in early4(i)] + [f"s_add_u32 s43, s43, {CH}"])
            second[0].deps.append((dm[-1], 0))
            dm += second
        if sin:
            sc = soft_check()
            if gate:
                sc[0].deps.append((gate, 0))
            pinned.append((SG, soft_read))
            for o in dm + pr:
                if " lds" in o.text or "store" in o.text:
                    o.deps.append((sc[-1], 0))
        if sout:
            pinned += [(62, f"v_add_u32 v{SFC}, 1, v{SFC}"), (65, f"ds_write_b32 v{SFW}, v{SFC}")]
        txt, over, lastgap = sched2(mains, pinned, extra[0] + sc + pr + st + dm + rest, vspan=VS, vstart=1)
        ab = OPT.get("ab", "")
        if ab:
            keep, nd = [], 0
            for ln in txt.splitlines():
                if ln.startswith("ds_read_b128"):
                    nd += 1
                    if "r" in ab and (nd // 2) % 2:
                        ln = "ds_read_b32 v4, v2"
                if "d" in ab and " lds" in ln or "h" in ab and ";#h" in ln:
                    continue
                if "v" in ab and ln.startswith(("v_exp", "v_rcp", "v_fma")):
                    continue
                keep.append(ln)
            txt = "\n".join(keep)
        b(txt)
        if not last and not sout:
            b("s_barrier")
        return over, lastgap

    def p1_mains(st):
        return [mf16(v(acc1(st, gu, rt), 4), ring(2 * ks + gu), xb(ks, rt), "0" if ks == 0 else v(acc1(st, gu, rt), 4))
                for ks in range(18) for gu in range(2) for rt in range(2)]

    acc2 = lambda tl, rt: ACC2 + (tl * 2 + rt) * 4

    def p2_mains(c, first=False):
        return [mf16(v(acc2(tl, rt), 4), ring(9 * m + tl), hr(c, m, rt), "0" if first and m == 0 else v(acc2(tl, rt), 4))
                for m in range(4) for tl in range(9) for rt in range(2)]

    plan = {c: [] for c in range(P0, 27)}
    early = [(u, m, rt) for u in range(4) for m in range(4) for rt in range(2)]
    quota = {c: 0 for c in range(P0 + 1, 18)}
    for _ in early:
        c = min(quota, key=lambda c: (quota[c] + (0 if c % 2 else 1), c))
        quota[c] += 1
    for c in quota:
        plan[c], early = early[:quota[c]], early[quota[c]:]
    late = [(u, m, rt) for u in range(4, 8) for m in range(4) for rt in range(2)]
    L0, L1 = int(OPT.get("l0", 18)), int(OPT.get("l1", 24))
    for k, x in enumerate(late):
        plan[L0 + k * (L1 - L0) // len(late)].append(x)
    plan[24] += [(8, m, rt) for m in range(4) for rt in range(2)]
    need = {c: max([u for u, _, _ in plan[c]], default=-3) + 3 for c in plan}
    checks, seen = {P0 + 1: (P0 - 1) // 2}, (P0 - 1) // 2
    assert need[P0 + 1] <= seen and XA >= 4
    for c in range(P0 + 2, 26, 2):
        want = max(need[c], need[c + 1])
        if want > seen:
            assert want <= (c - 1) // 2 and c > P0 + 2
            checks[c] = seen = max(x for x in need.values() if x <= (c - 1) // 2)
    if OPT.get("nock"):
        checks = {c: 0 for c in checks}
    print("h plan", {c: len(x) for c, x in plan.items()}, "checks", checks, file=sys.stderr)

    def hstream(c):
        ld, cur = [], None
        for u, m, rt in plan[c]:
            off = 2048 * (u % 2) + 1024 * rt
            x = [f"buffer_load_dwordx4 {hr(18+u,m,rt)}, v{VH+m}, s[12:15], s47 offen" + (f" offset:{off}" if off else "") + f"{OPT.get('hf', ' sc1')} ;#h{u}"]
            if u // 2 != cur:
                cur = u // 2
                x.insert(0, f"s_mov_b32 s47, {4096*(cur % int(OPT.get('hmod', 9)))}")
            ld.append(x)
        return ld

    over = []
    for c in (3, 4):
        lo, hi = swiglu(2 * (c - 3), 0), swiglu(2 * (c - 3) + 1, 1, 160)
        for o in lo:
            o.bias = getattr(o, "bias", 0) + 2
        for o in hi:
            if "store" in o.text:
                o.deps += [(x, 0) for x in lo if "cvt" in x.text]
        over.append(chunk(p1_mains(3 if c == 3 else 0), c % 2, ([], lo + hi), double=("da", "db") if c == 3 else ("d1", "d0"),
                          pins=[(55, f"s_waitcnt vmcnt(@{'da' if c == 3 else 'db'})"), (55, "s_barrier")]))
    b(".p2align 3\nf_p1:")
    over.append(chunk(p1_mains(1), 1, ([], swiglu(0, 0)), prog=not OPT.get('nolp'), sin=SOFT, sout=SOFT))
    b("f_p1b:")
    over.append(chunk(p1_mains(0), 0, ([], swiglu(1, 1) + [Op("s_sub_u32 s47, s47, 1")]), sin=SOFT, sout=SOFT))
    b("s_cmp_lg_u32 s47, 0\ns_cbranch_scc1 f_p1")
    stamp(b, 21)
    tmaj = [9 * m + tl for tl in range(9) for m in range(4)]
    H0, H1 = int(OPT.get("h0", 12)), int(OPT.get("h1", 20))
    soft_edge = lambda c: SOFT and (c == P0 or not H0 <= c < H1)
    for c in range(P0, 26):
        ck = check(f"f{c}", checks[c]) if c in checks else []
        gate = ck[-1] if ck else None
        front = ck
        loads = hstream(c)
        act = swiglu(1 - c % 2, 1 - c % 2) if c <= 18 else []
        over.append(chunk(p1_mains(c % 2) if c < 18 else p2_mains(c, c == 18), c % 2, (front, act),
                          endtag=(f",h{c-17}" if c >= 17 else "") + (",fl" if c + 1 in checks else ""), pins=flag_pin if c + 1 in checks else [], nxt_order=tmaj if c == 25 else None, loads=loads, gate=gate, prog=(c + 1) // 2 if c % 2 and (c + 1) // 2 in checks.values() else False, sin=soft_edge(c), sout=soft_edge(c + 1), step=CH // 2 if c == 24 else CH))
        stamp(b, 100 + c)
        if c in (17, 18, 24):
            stamp(b, {17: 22, 18: 23, 24: 24}[c])
    mains = [mf16(v(acc2(tl, rt), 4), ring(4 * tl + m), hr(26, m, rt), v(acc2(tl, rt), 4)) for tl in range(9) for m in range(4) for rt in range(2)]

    def out_tile(tl):
        r, p, q = ACC1 + 4 * tl, acc2(tl, 0), acc2(tl, 1)
        return [f"v_cvt_pk_bf16_f32 v{r}, v{p}, v{p+1}", f"v_cvt_pk_bf16_f32 v{r+1}, v{p+2}, v{p+3}",
                f"v_cvt_pk_bf16_f32 v{r+2}, v{q}, v{q+1}", f"v_cvt_pk_bf16_f32 v{r+3}, v{q+2}, v{q+3}",
                (f"v_permlane16_swap_b32 v{r}, v{r+2}", 1), (f"v_permlane16_swap_b32 v{r+1}, v{r+3}", 0),
                f"buffer_store_dwordx4 {v(r,4)}, v{UO}, s[12:15], s{34+tl//8} offen offset:{512*(tl%8)} sc1 ;#o{tl//3}",
                f"ds_write_b128 v{LO}, {v(r,4)} offset:{1024*tl}"]

    outs, prev = [], None
    for tl in range(7):
        c = chain(out_tile(tl)[:7], earliest=8 * tl + 12, after=prev)
        outs += c
        prev = c[-1]
    over.append(chunk(mains, 0, (outs, []), order=tmaj, last=True, sin=soft_edge(26)))
    for tl in (7, 8):
        for t in out_tile(tl)[:7]:
            if isinstance(t, tuple):
                b(("s_nop 0\n" if t[1] else "") + t[0])
            else:
                b(t)
    b(f"s_cmp_lg_u32 s36, s{SW}\ns_cbranch_scc1 f_nokeep")
    for tl in range(9):
        b(out_tile(tl)[7])
    b("f_nokeep:")
    stamp(b, 25)
    print("ffn (overflow, last gap):", over, file=sys.stderr)
    return "\n".join(slow)


def phase_r(b, name):
    D0, PK, UO = 96, 80, 156
    side = B()
    d = lambda src, n: D0 + (src * 3 + n) * 4

    def add(src, n):
        for j in range(4):
            for h in range(2):
                r = RES + 8 * n + 2 * j + h
                b(f"v_dot2_f32_bf16 v{r}, v{d(src,n)+j}, s{30+h}, v{r}")

    def announce(n):
        b(f"s_waitcnt vmcnt(@o{n})\ns_mov_b64 exec, 1\nbuffer_atomic_add v3, v2, s[12:15], s37 offen offset:{128*n} sc1\ns_mov_b64 exec, -1")

    b(f"""
    s_mul_i32 s35, s{SW}, 3072
    s_add_u32 s35, s35, {4*CH}
    v_add_u32 v6, s35, v1
    """)
    announce(0)
    b("s_waitcnt lgkmcnt(0)\ns_barrier")
    for n in range(3):
        b(f"ds_read_b128 {v(d(0,n),4)}, v6 offset:{1024*n}")
    stats_target(b)
    tile_base(b, 34, 35)
    b(f"s_add_u32 s35, s34, s{SL}\ns_add_u32 s35, s35, {PART}")
    for k in range(1, 4):
        b(f"s_add_u32 s38, s36, {k}\ns_and_b32 s38, s38, 3\ns_mul_i32 s38, s38, {SZX}\ns_add_u32 s{39+k}, s38, s35")
    announce(1)
    b(f"""
    s_mov_b32 s20, s12
    s_mov_b32 s21, s13
    s_mov_b32 s22, {SZX}
    s_mov_b32 s23, 0x20000
    v_mov_b32 v10, v{UO}
    s_cmp_eq_u32 s{SL}, 0
    s_cbranch_scc1 r_mid
    """)
    row_tile(b, 10, 34)
    b(f"""
    s_mov_b32 s20, s6
    s_mov_b32 s21, s7
r_mid:
    s_lshl_b32 s39, s{SI}, 4
    s_add_u32 s39, s39, s{SJ}
    s_lshl_b32 s39, s39, 2
    s_add_u32 s39, s39, s{SW}
    s_waitcnt lgkmcnt(0)
    """)
    for n in range(3):
        add(0, n)
    b(f"""
    s_lshl_b32 s60, s39, 7
    s_add_u32 s60, s60, s{SC}
    s_add_u32 s60, s60, {C_P}
    s_cmp_eq_u32 s{SW}, 0
    s_cselect_b32 s60, s60, {OOB}
    buffer_load_dword v4, v2, s[12:15], s60 offen sc1
    """)
    announce(2)
    stamp(b, 26)
    b(f"s_cmp_eq_u32 s{SW}, 3\ns_cbranch_scc1 r_wq\ns_waitcnt vmcnt(1)\nv_cmp_gt_u32 vcc, 3, v4\ns_nop 0\ns_cbranch_vccz r_ok")
    poll(b, "r", C_P, 39, 3, False)
    stamp(b, 27)
    side(f"r_wq:\ns_cmp_lg_u32 s{SL}, 0\ns_cbranch_scc1 r_exit\ns_mov_b32 m0, {2*CH}\ns_nop 0")
    dma_run(side, 36, 16, 43, " sc1")
    side("s_waitcnt vmcnt(36)\ns_branch r_bar")
    for n in range(3):
        for src in range(1, 4):
            b(f"buffer_load_dwordx4 {v(d(src,n),4)}, v{UO}, s[12:15], s{39+src} offen offset:{512*n} sc1 ;#p{src}{n}")
    b(f"s_cmp_lg_u32 s{SL}, 0")
    for n in range(3):
        for src in range(1, 4):
            b(f"s_waitcnt vmcnt(@p{src}{n})")
            add(src, n)
        pack4(b, PK + 4 * n, RES + 8 * n, RES + 8 * n + 4)
        b(f"""
        s_cbranch_scc1 r_out{n}
        buffer_store_dwordx4 {v(PK+4*n,4)}, v10, s[20:23], s34 offen offset:{512*n} sc1
r_back{n}:
        """)
        side(f"r_out{n}:\nbuffer_store_dwordx4 {v(PK+4*n,4)}, v10, s[20:23], s34 offen offset:{32*n}\ns_branch r_back{n}")
    b("s_cbranch_scc1 r_exit")
    stats_publish(b, S2)
    stamp(b, 28)
    signal(b, "r", C_X2, STJ, wave=2)
    if DIAG:
        stamp(b, 29)
        stamp_real(b, 31)
        stamp_flush(b, "2")
        stamp_real(b, 30)
        stamp(b, 0)
    b(f"""
    s_mov_b32 s{SL}, {LST}
    s_add_u32 s{SC}, s{SC}, {CL}
    s_branch layer
r_exit:
    """)
    return side.text()


def walk(b, tag, lo, hi):
    if int(OPT.get("pad", 0)):
        b(f"s_nop 0 ;@walk {tag} {lo} {hi}")


def add_pads(txt):
    import subprocess
    sys.path.insert(0, "cdna_kernels")
    from cdna_launch import with_harness_metadata
    lines = txt.replace(".text\n", ".text\n.p2align 12\n", 1).splitlines()
    is_ins = lambda x: (lambda t: t and not t.startswith(".") and not t.endswith(":"))(x.split(";")[0].strip())

    def expand(pads, mark):
        out = []
        for i, x in enumerate(lines):
            if i in pads:
                out += [f"pad{pads.index(i)}:", "  s_cbranch_execz pad_end"]
            if ";@walk" in x:
                tag, lo, hi = x.split()[-3:]
                mine = [k for k, p in enumerate(pads) for a_, b_ in zip(lo.split(","), hi.split(",")) if lines.index(a_ + ":") <= p < lines.index(b_ + ":")]
                assert len(mine) <= 8
                out.append("  s_mov_b64 exec, 0")
                for w in range(4):
                    out += [f"  s_cmp_lg_u32 s{SW}, {w}", f"  s_cbranch_scc1 {tag}_w{w}"]
                    out += [f"  s_call_b64 s[60:61], pad{mine[k]}" if k < len(mine) else "  s_nop 0" for k in (w, w + 4)]
                    out.append(f"{tag}_w{w}:")
                out.append("  s_mov_b64 exec, -1")
            elif x.startswith("layer:"):
                out += ["  s_branch layer", "pad_end:", "  s_setpc_b64 s[60:61]", x]
            else:
                out.append(x + (f"\nmark{i}:" if mark and start < i < stop - 1 and is_ins(x) else ""))
        return "\n".join(out) + "\n"

    start, stop = lines.index("main_kernel:"), lines.index("main_code_end:")
    pads = []
    while True:
        open("pads.s", "w").write(with_harness_metadata(expand(pads, True), None, 10, launch_lists=True))
        subprocess.run(["clang", "-x", "assembler", "-target", "amdgcn-amd-amdhsa", "-mcpu=gfx950", "-c", "pads.s", "-o", "pads.o"], check=True)
        sym = subprocess.run(["llvm-objdump", "-t", "pads.o"], capture_output=True, text=True).stdout
        adr = {m.group(2): int(m.group(1), 16) for m in re.finditer(r"^([0-9a-f]+) .* (\w+)$", sym, re.M)}
        want = (adr["main_kernel"] // 4096 + len(pads) + 1) * 4096
        cand = [i for i in range(start, stop) if adr.get(f"mark{i}", -1) >= want and is_ins(lines[i + 1])
                and "exec" not in lines[i] and "exec" not in lines[i-1] and not lines[i].strip().startswith(("s_branch", "s_endpgm", "ds_write", "buffer_atomic"))]
        if not cand:
            break
        pads.append(cand[0] + 1)
    print("pads:", len(pads), file=sys.stderr)
    return expand(pads, False)


def gen_main(name):
    b = B()
    JB = int(OPT.get("jb", 2))
    head(b, name, 256, [(4, "ws"), (6, "out"), (100, "x")])
    b(f"""
    v_lshrrev_b32 v5, 6, v0
    v_and_b32 v1, 63, v0
    v_lshlrev_b32 v1, 4, v1
    v_readfirstlane_b32 s{SW}, v5
    v_mov_b32 v2, 0
    v_mov_b32 v3, 1
    """)
    if int(OPT.get("role", 0)):
        b(f"""
        s_getreg_b32 s34, hwreg(HW_REG_XCC_ID, 0, 3)
        s_lshl_b32 s34, s34, 2
        s_lshr_b32 s35, s2, 6
        s_add_u32 s34, s34, s35
        v_mov_b32 v6, {4*CH}
        s_mov_b32 s36, 32
        s_waitcnt lgkmcnt(0)
        """)
        srd(b, 12, 4, 0, WS_END)
        b(f"""
        s_cmp_lg_u32 s{SW}, 0
        s_cbranch_scc1 role_wait
role_try:
        s_lshl_b32 s35, s34, 7
        s_add_u32 s35, s35, {CNT+C_ROLE}
        v_mov_b32 v4, 1
        s_mov_b64 exec, 1
        buffer_atomic_add v4, v2, s[12:15], s35 offen sc0 sc1
        s_mov_b64 exec, -1
        s_waitcnt vmcnt(0)
        v_readfirstlane_b32 s37, v4
        s_sub_u32 s36, s36, 1
        s_cbranch_scc1 role_got
        s_cmp_lt_u32 s37, 8
        s_cbranch_scc1 role_got
        s_add_u32 s34, s34, 1
        s_and_b32 s34, s34, 31
        s_branch role_try
role_got:
        s_and_b32 s35, s34, 3
        s_lshl_b32 s35, s35, 3
        s_add_u32 s35, s35, s37
        s_lshl_b32 s35, s35, 3
        s_lshr_b32 s34, s34, 2
        s_add_u32 s35, s35, s34
        v_mov_b32 v4, s35
        ds_write_b32 v6, v4
        s_waitcnt lgkmcnt(0)
role_wait:
        s_barrier
        ds_read_b32 v4, v6
        s_waitcnt lgkmcnt(0)
        v_readfirstlane_b32 s2, v4
        s_nop 0
        s_and_b32 s2, s2, 255
        """)
    b(f"""
    s_bfe_u32 s34, s2, {(4-JB) << 16}
    s_lshl_b32 s34, s34, {JB}
    s_bfe_u32 s35, s2, {(JB << 16) + 3}
    s_add_u32 s{SJ}, s34, s35
    s_bfe_u32 s34, s2, {((JB-1) << 16) + 4 - JB}
    s_lshl_b32 s34, s34, {5-JB}
    s_lshr_b32 s35, s2, {3+JB}
    s_add_u32 s{SI}, s34, s35
    s_lshl_b32 s34, s{SI}, 2
    s_add_u32 s{STW}, s34, s{SW}
    s_lshr_b32 s35, s{SJ}, 2
    s_add_u32 s{STJ}, s34, s35
    s_mov_b32 s{SL}, 0
    s_mov_b32 s{SC}, {CNT}
    s_mov_b32 s30, 0x3f80
    s_mov_b32 s31, 0x3f800000
    s_lshl_b32 s10, s{SW}, 10
    s_mul_i32 s11, s{SJ}, {WQH}
    s_add_u32 s11, s11, s10
    s_add_u32 s11, s11, {WQ}
    s_waitcnt lgkmcnt(0)
    """)
    srd(b, 12, 4, 0, WS_END)
    for i in range(11):
        b("s_mov_b32 m0, s10\ns_add_u32 s10, s10, 4096\nbuffer_load_dwordx4 v1, s[12:15], s11 offen lds\ns_add_u32 s11, s11, 4096")
    raw_setup(b)
    if int(OPT.get("w1", 1)):
        walk(b, "wk1", "layer,r_exit", "a_sig,main_code_end")
    b("layer:")
    phase_q(b)
    slow = phase_a(b)
    slow += phase_o(b)
    slow += phase_f(b)
    slow += "\n" + phase_r(b, name)
    finish(b, name, "3")
    b(slow)
    b("main_code_end:")
    return dict(name=name, text=resolve_waits(b.text()), grid=256, block=256, lds=163840)


def build_all():
    import gen
    gen.OPT.clear()
    gen.OPT.update(ab=OPT.get('ab', ''))
    ks = [gen_prep("prep_kernel"), gen_main("main_kernel")]
    txt = gen.assemble(ks, [k["name"] for k in ks])
    txt = re.sub(r"(quad_perm|op_sel|op_sel_hi):\[([\d:]+)\]", lambda m: f"{m.group(1)}:[{m.group(2).replace(':', ',')}]", txt)
    return add_pads(txt) if int(OPT.get("pad", 0)) else txt


if __name__ == "__main__":
    for x in [x for x in sys.argv if "=" in x]:
        k, val = x.split("=")
        OPT[k] = val.replace("_", " ")
        sys.argv.remove(x)
    if "--diag" in sys.argv:
        DIAG = True
        sys.argv.remove("--diag")
    open(sys.argv[1], "w").write(build_all())
```

```python
import math, re, struct, sys
from asmlib import B, Prog, v, a, s, weave, Op, chain, sched, sched2, resolve_waits
from gen import fbits, sdiv, srd, mf16, transpose8, ARG, HEADER

SZX = 2048 * 576 * 2
REC = 2432
KVJ = 128 * REC
X2, OB, X1, PART, HB, KV = 0, SZX, 2 * SZX, 3 * SZX, 7 * SZX, 15 * SZX
S1 = KV + 16 * KVJ
S2 = S1 + 64 * 3072
LST = S2 + 64 * 3072
WQ = 2 * LST
WQH = 126 * 1024
WO = WQ + 16 * WQH
WOS = 164 * 1024
WF = WO + 4 * WOS
CH = 36864
WFS = 31 * CH
CNT = WF + 16 * WFS
BAR = CNT + 393216
WS_END = BAR + 4096
CL = 196608
C_PREP = 32 * 128
C_ROLE = CL + 128 * 128
LOFF = 0x30000
C_KV, C_O, C_X1, C_X2, C_H, C_P = 0, 16 * 128, 64 * 128, 128 * 128, 256 * 128, 512 * 128
RES = 232
OOB = 0x40000000
QX = 131072
STAMPS = 200 << 20
OPT = {}
DIAG = False
SI, SJ, SL, SC, STW, STJ, SW = 24, 25, 26, 27, 28, 29, 33


def bstamp(b, k):
    if DIAG and OPT.get("brk"):
        b("s_memtime s[62:63]\ns_waitcnt lgkmcnt(0)")
        for st in range(4):
            b(f"s_cmp_eq_u32 s32, {st}\ns_cselect_b32 s{74+2*st+k}, s62, s{74+2*st+k}")


def stamp(b, i):
    if OPT.get("pst0"):
        i = i - 200 if i >= 200 else {0: 0, 1: 10, 2: 11, 3: 12, 29: 29}.get(i)
    elif i >= 200:
        return
    if OPT.get("fch") and 0 < i < 29:
        i = {21: 10, 25: 26, 26: 27, 27: 28}.get(i)
    if OPT.get("fch") and i is not None and i >= 100:
        i -= 100
    if i is not None and i >= 100:
        return
    if OPT.get("brk") and 10 <= i < 29:
        i = {10: 18}.get(i)
    if DIAG and i is not None:
        b(f"{'s_memrealtime' if OPT.get('rt') else 's_memtime'} s[62:63]\ns_waitcnt lgkmcnt(0)\ns_mov_b32 s{64+i}, s62")


def stamp_real(b, i):
    if DIAG:
        b(f"s_memrealtime s[62:63]\ns_waitcnt lgkmcnt(0)\ns_mov_b32 s{64+i}, s62")


def stamp_flush(b, slot):
    if not DIAG:
        return
    b(f"""
    s_lshl_b32 s62, {slot}, 8
    s_add_u32 s62, s62, s2
    s_lshl_b32 s62, s62, 4
    s_add_u32 s62, s62, s{SW}
    s_lshl_b32 s62, s62, 7
    s_add_u32 s96, s4, {STAMPS}
    s_addc_u32 s97, s5, 0
    s_mov_b32 s98, {32 << 20}
    s_mov_b32 s99, 0x20000
    v_mov_b32 v8, 0
    """)
    for q in range(8):
        for j in range(4):
            b(f"v_mov_b32 v{4+j}, s{64+4*q+j}")
        b(f"buffer_store_dwordx4 v[4:7], v8, s[96:99], s62 offen offset:{16*q}\ns_nop 1")


def head(b, name, nwg, loads):
    b(f"s_cmp_ge_u32 s2, {nwg}\ns_cbranch_scc1 {name}_end")
    if DIAG:
        for i in range(32):
            b(f"s_mov_b32 s{64+i}, 0")
        stamp_real(b, 30)
        stamp(b, 0)
    for reg, arg in loads:
        b(f"s_load_dwordx2 s[{reg}:{reg+1}], s[0:1], {ARG[arg]}")


def finish(b, name, slot):
    if DIAG:
        b("s_waitcnt vmcnt(0)")
        stamp(b, 29)
        stamp_real(b, 31)
        stamp_flush(b, slot)
    b(f"{name}_end:\ns_endpgm")


def window(b, d, off, size):
    b(f"s_add_u32 s{d}, s4, s{off}\ns_addc_u32 s{d+1}, s5, 0\ns_mov_b32 s{d+2}, {size}\ns_mov_b32 s{d+3}, 0x20000")


def ln_tail(b, A0, n, mean, rstd, dst):
    for j in range(n):
        b(f"v_sub_f32 v{A0+j}, v{A0+j}, v{mean}")
    for j in range(n):
        b(f"v_mul_f32 v{A0+j}, v{A0+j}, v{rstd}")
    for j in range(n // 2):
        b(f"v_cvt_pk_bf16_f32 v{dst+j}, v{A0+2*j}, v{A0+2*j+1}")


def ln_stats(b, sm, sq):
    b(f"""
    v_mul_f32 v{sm}, {fbits(1/576)}, v{sm}
    v_mul_f32 v{sq}, {fbits(1/576)}, v{sq}
    v_fma_f32 v{sq}, -v{sm}, v{sm}, v{sq}
    v_max_f32 v{sq}, 0, v{sq}
    v_add_f32 v{sq}, {fbits(1e-5)}, v{sq}
    """)


def row_reduce(b, sm, sq):
    b(f"""
    s_nop 1
    v_permlane32_swap_b32 v{sm}, v{sq}
    s_nop 0
    v_add_f32 v{sm}, v{sm}, v{sq}
    v_mov_b32 v{sq}, v{sm}
    s_nop 1
    v_permlane16_swap_b32 v{sm}, v{sq}
    s_nop 0
    v_add_f32 v{sm}, v{sm}, v{sq}
    s_nop 1
    v_add_f32 v{sm}, v{sm}, v{sm} row_ror:8 row_mask:0xf bank_mask:0xf
    """)


def phase_p(b):
    XD, A0, WQD, WOD, PKD = 16, 32, 64, 80, 88
    b(f"""
    s_load_dwordx4 s[40:43], s[0:1], {ARG['wqkv']}
    s_load_dwordx2 s[44:45], s[0:1], {ARG['dbg']}
    v_and_b32 v4, 63, v0
    v_and_b32 v5, 7, v0
    v_lshrrev_b32 v6, 3, v0
    v_mul_u32_u24 v7, 1152, v5
    v_lshl_add_u32 v7, v6, 4, v7
    v_mov_b32 v9, {OOB}
    v_cmp_gt_u32 vcc, 64, v0
    s_mul_i32 s34, s2, 9216
    s_lshl_b32 s35, s2, 2
    v_cndmask_b32 v8, v9, v7, vcc
    s_add_u32 s35, s35, s{SW}
    s_waitcnt lgkmcnt(0)
    """)
    srd(b, 12, 4, 0, WS_END)
    srd(b, 16, 100, 0, SZX)
    for i in range(4):
        b(f"v_mov_b32 v{12+i}, 0")
    b(f"s_cmp_lg_u32 s35, 1023\ns_cbranch_scc1 p_x\ns_mov_b32 s36, {BAR}")
    for i in range(4):
        b(f"buffer_store_dwordx4 v[12:15], v1, s[12:15], s36 offen offset:{1024*i} sc1")
    b(f"""
p_x:
    buffer_load_dwordx4 {v(XD,4)}, v7, s[16:19], s34 offen ;#x
    buffer_load_dwordx4 {v(XD+4,4)}, v7, s[16:19], s34 offen offset:512 ;#x
    buffer_load_dwordx4 {v(XD+8,4)}, v8, s[16:19], s34 offen offset:1024 ;#x
    s_cbranch_scc1 p_noboot
    """)
    srd(b, 20, 44, 0, 256)
    b("s_waitcnt vmcnt(3)\ns_mov_b64 exec, 1\nbuffer_store_dword v3, v2, s[20:23], 0 offen sc1\ns_mov_b64 exec, -1\np_noboot:")
    stamp(b, 201)
    sdiv(b, 36, 35, 27, 1024)
    b("s_mul_i32 s37, s36, 27\ns_sub_u32 s37, s35, s37")
    sdiv(b, 38, 37, 9, 27)
    b(f"""
    s_mul_i32 s39, s38, 9
    s_sub_u32 s37, s37, s39
    s_mul_i32 s46, s36, {16*3456}
    s_mul_i32 s39, s38, 1152
    s_add_u32 s46, s46, s39
    s_lshr_b32 s47, s36, 1
    s_mul_i32 s47, s47, 7168
    s_and_b32 s39, s36, 1
    s_lshl_b32 s39, s39, 9
    s_add_u32 s47, s47, s39
    s_add_u32 s47, s47, {WQ}
    s_cmp_ge_u32 s36, 36
    s_cselect_b32 s47, {OOB}, s47
    v_and_b32 v56, 15, v0
    s_cmp_eq_u32 s37, 8
    s_cbranch_scc1 p_qt
    s_mul_i32 s39, s37, 144
    s_add_u32 s46, s46, s39
    s_mul_i32 s39, s37, {2*WQH}
    s_add_u32 s47, s47, s39
    s_lshl_b32 s39, s38, 11
    s_add_u32 s47, s47, s39
    v_lshrrev_b32 v57, 5, v4
    v_bfe_u32 v58, v0, 4, 1
    v_mul_u32_u24 v10, 72, v57
    v_mul_u32_u24 v11, {WQH}, v57
    v_lshl_add_u32 v11, v58, 10, v11
    v_lshl_add_u32 v11, v56, 4, v11
    s_cmp_eq_u32 s38, 2
    s_cbranch_scc1 p_qv
    v_lshl_add_u32 v10, v58, 3, v10
    v_lshrrev_b32 v57, 3, v56
    v_mad_u32_u24 v10, v57, 36, v10
    v_bfe_u32 v57, v56, 2, 1
    v_lshl_add_u32 v10, v57, 4, v10
    v_and_b32 v57, 3, v56
    v_lshl_add_u32 v10, v57, 1, v10
    s_branch p_qgo
p_qv:
    v_mad_u32_u24 v10, v58, 36, v10
    v_lshl_add_u32 v10, v56, 1, v10
    s_branch p_qgo
p_qt:
    v_lshrrev_b32 v57, 1, v4
    v_mul_u32_u24 v10, 36, v57
    v_and_b32 v57, 1, v0
    v_lshl_add_u32 v10, v57, 1, v10
    v_add_u32 v10, 32, v10
    v_lshrrev_b32 v57, 2, v4
    v_mul_u32_u24 v11, {WQH}, v57
    v_and_b32 v57, 3, v0
    v_lshl_add_u32 v11, v57, 4, v11
    s_lshl_b32 s39, s38, 6
    s_add_u32 s47, s47, s39
    s_add_u32 s47, s47, 6144
p_qgo:
    s_lshl_b32 s48, s38, 4
    s_add_u32 s48, s48, s37
    """)
    srd(b, 20, 40, 0, 576 * 1728 * 2)
    for j in range(16):
        b(f"buffer_load_ushort v{WQD+j}, v10, s[20:23], s46 offen" + (" offset:3456" if j % 2 else "") + " ;#q")
        if j % 2:
            b("s_add_u32 s46, s46, 6912")
    b("s_sub_u32 s35, 1022, s35")
    sdiv(b, 36, 35, 9, 1024)
    b(f"""
    s_mul_i32 s37, s36, 9
    s_sub_u32 s37, s35, s37
    s_lshr_b32 s46, s36, 1
    s_mul_i32 s46, s46, {18*1152}
    s_and_b32 s39, s36, 1
    s_mul_i32 s39, s39, {4*1152}
    s_add_u32 s46, s46, s39
    s_mov_b32 s50, {8*1152}
    s_mov_b32 s51, {2*1152}
    s_cmp_lt_u32 s36, 64
    s_cbranch_scc1 p_wo2
    s_sub_u32 s46, s36, 64
    s_mul_i32 s46, s46, {72*1152}
    s_add_u32 s46, s46, {16*1152}
    s_mov_b32 s50, {36*1152}
    s_mov_b32 s51, {18*1152}
p_wo2:
    s_lshl_b32 s39, s37, 7
    s_add_u32 s46, s46, s39
    s_and_b32 s49, s36, 3
    s_lshl_b32 s49, s49, 8
    s_add_u32 s49, s49, {WO}
    s_cmp_lt_u32 s35, 648
    s_cselect_b32 s46, s46, {OOB}
    s_cmp_lt_u32 s35, 648
    s_cselect_b32 s49, s49, {OOB}
    v_lshlrev_b32 v59, 1, v4
    """)
    srd(b, 20, 42, 0, 576 * 576 * 2)
    for j in range(8):
        if j % 2 == 0:
            b("s_mov_b32 s39, s46" + ("\ns_add_u32 s39, s39, s50" if j & 4 else "") + ("\ns_add_u32 s39, s39, s51" if j & 2 else ""))
        b(f"buffer_load_ushort v{WOD+j}, v59, s[20:23], s39 offen" + (" offset:1152" if j % 2 else "") + " ;#o")
    if int(OPT.get("pf", 1)):
        b(f"""
        s_getpc_b64 s[40:41]
p_pc:
        s_bfe_u32 s39, s2, 0x50003
        s_lshl_b32 s39, s39, 2
        s_add_u32 s39, s39, s{SW}
        s_lshl_b32 s39, s39, 9
        v_and_b32 v60, 3, v0
        v_lshl_add_u32 v60, v60, 7, s39
        v_min_u32 v60, main_code_end-p_pc-4, v60
        v_mov_b32 v61, s41
        v_add_co_u32 v60, vcc, s40, v60
        s_nop 1
        v_addc_co_u32 v61, vcc, 0, v61, vcc
        global_load_dword v62, v[60:61], off
        """)
    b(f"""
    s_lshr_b32 s36, s36, 2
    s_lshl_b32 s37, s37, 2
    v_lshrrev_b32 v57, 4, v4
    v_add_u32 v57, s37, v57
    v_mul_u32_u24 v58, 43, v57
    v_lshrrev_b32 v58, 7, v58
    v_mul_u32_u24 v59, 3, v58
    v_sub_u32 v59, v57, v59
    v_mad_u32_u24 v59, v59, 18, s36
    v_mul_u32_u24 v57, 43, v58
    v_lshrrev_b32 v57, 7, v57
    v_mul_u32_u24 v60, 3, v57
    v_sub_u32 v58, v58, v60
    v_mad_u32_u24 v60, v58, 12, v59
    v_mad_u32_u24 v61, v58, 26, v59
    v_add_u32 v61, 24, v61
    v_lshl_add_u32 v63, v58, 4, v59
    v_add_u32 v63, 78, v63
    v_cmp_gt_u32 vcc, 12, v59
    v_cmp_gt_u32 s[40:41], 38, v59
    v_mul_u32_u24 v57, {WOS}, v57
    v_lshl_add_u32 v57, v56, 4, v57
    v_cndmask_b32 v61, v63, v61, s[40:41]
    v_cndmask_b32 v60, v61, v60, vcc
    v_lshl_add_u32 v57, v60, 10, v57
    v_lshlrev_b32 v58, 4, v0
    v_cmp_gt_u32 vcc, 96, v0
    s_mul_i32 s36, s2, 1536
    s_add_u32 s36, s36, {CNT}
    v_cndmask_b32 v58, v9, v58, vcc
    v_cmp_gt_u32 vcc, 64, v0
    buffer_store_dwordx4 v[12:15], v58, s[12:15], s36 offen sc1
    v_lshlrev_b32 v7, 8, v6
    v_lshl_add_u32 v7, v5, 4, v7
    v_cndmask_b32 v8, v9, v7, vcc
    s_lshr_b32 s34, s2, 1
    s_mul_i32 s34, s34, 18432
    s_and_b32 s36, s2, 1
    s_lshl_b32 s36, s36, 7
    s_add_u32 s34, s34, s36
    s_add_u32 s34, s34, {LST+X2}
    v_lshlrev_b32 v5, 3, v5
    v_add_u32 v5, {4*CH}, v5
    v_bfe_u32 v6, v0, 5, 1
    v_lshl_add_u32 v6, v6, 2, v5
    v_and_b32 v58, 0xc0, v0
    v_add_u32 v6, v6, v58
    """)
    stamp(b, 202)
    b("s_waitcnt vmcnt(@x)")
    stamp(b, 203)
    for j in range(12):
        b(f"v_lshlrev_b32 v{A0+2*j}, 16, v{XD+j}\nv_and_b32 v{A0+2*j+1}, 0xffff0000, v{XD+j}")
    b(f"v_pk_add_f32 v[28:29], {v(A0,2)}, {v(A0+2,2)}\nv_pk_mul_f32 v[30:31], {v(A0,2)}, {v(A0,2)}")
    for k in range(2, 24, 2):
        if k > 2:
            b(f"v_pk_add_f32 v[28:29], v[28:29], {v(A0+k,2)}")
        b(f"v_pk_fma_f32 v[30:31], {v(A0+k,2)}, {v(A0+k,2)}, v[30:31]")
    b("v_add_f32 v28, v28, v29\nv_add_f32 v29, v30, v31")
    row_reduce(b, 28, 29)
    b("ds_write_b32 v6, v28\ns_waitcnt lgkmcnt(0)\ns_barrier")
    for w in range(4):
        b(f"ds_read_b64 {v(XD+2*w,2)}, v5 offset:{64*w}")
    b("s_waitcnt lgkmcnt(0)")
    for w in range(1, 4):
        b(f"v_pk_add_f32 {v(XD,2)}, {v(XD,2)}, {v(XD+2*w,2)}")
    ln_stats(b, XD, XD + 1)
    b(f"v_rsq_f32 v{XD+1}, v{XD+1}\ns_add_u32 s36, s34, 8192\nv_mul_f32 v{XD}, v{XD}, v{XD+1}\ns_add_u32 s37, s34, 16384")
    for n in range(3):
        for k in range(0, 8, 2):
            r = v(A0 + 8 * n + k, 2)
            b(f"v_pk_fma_f32 {r}, {r}, {v(XD,2)}, {v(XD,2)} op_sel:[0:1:0] op_sel_hi:[1:1:0] neg_lo:[0:0:1] neg_hi:[0:0:1]")
        pack4(b, PKD + 4 * n, A0 + 8 * n, A0 + 8 * n + 4)
        b(f"buffer_store_dwordx4 {v(PKD+4*n,4)}, v{7 if n < 2 else 8}, s[12:15], s{(34, 36, 37)[n]} offen sc1")
    stamp(b, 204)
    b("s_waitcnt vmcnt(@q)")
    stamp(b, 205)
    for k in range(2):
        for j in range(4):
            b(f"v_lshl_or_b32 v{PKD+12+4*k+j}, v{WQD+8*k+2*j+1}, 16, v{WQD+8*k+2*j}")
        b(f"buffer_store_dwordx4 {v(PKD+12+4*k,4)}, v11, s[12:15], s47 offen offset:{256*k} sc1")
    b(f"""
    s_cmp_lg_u32 s48, 8
    s_cselect_b32 s47, {OOB}, s47
    buffer_store_dwordx4 v[12:15], v11, s[12:15], s47 offen offset:192 sc1
    buffer_store_dwordx4 v[12:15], v11, s[12:15], s47 offen offset:448 sc1
    s_waitcnt vmcnt(@o)
    """)
    for j in range(4):
        b(f"v_lshl_or_b32 v{PKD+20+j}, v{WOD+2*j+1}, 16, v{WOD+2*j}")
    b(f"buffer_store_dwordx4 {v(PKD+20,4)}, v57, s[12:15], s49 offen sc1")
    stamp(b, 206)
    srd(b, 20, 44, 0, 256)
    b(f"""
    s_mov_b32 s61, 0x40000
    s_cmp_lg_u32 s{SW}, 3
    s_cbranch_scc1 p_boot
p_wait:
    buffer_load_dword v4, v2, s[20:23], 0 offen sc1
    s_sub_u32 s61, s61, 1
    s_waitcnt vmcnt(0)
    v_cmp_eq_u32 vcc, 0, v4
    s_cbranch_scc1 p_boot
    s_cbranch_vccnz p_wait
p_boot:
    s_lshr_b32 s34, s2, 3
    """)
    signal(b, "p", BAR - CNT, 34)


def grid_wait(b):
    stamp(b, 208)
    b(f"""
    s_cmp_lg_u32 s{SW}, 3
    s_cbranch_scc1 g_ok
    v_and_b32 v8, 31, v0
    v_lshlrev_b32 v8, 7, v8
    s_mov_b32 s60, {BAR}
    s_mov_b32 s61, 0x40000
g_poll:
    buffer_load_dword v4, v8, s[12:15], s60 offen sc1
    s_sub_u32 s61, s61, 1
    s_waitcnt vmcnt(0)
    v_cmp_gt_u32 vcc, 8, v4
    s_cbranch_scc1 g_ok
    s_cbranch_vccz g_ok
    s_sleep {int(OPT.get("gs", 4))}
    s_branch g_poll
g_ok:
    s_barrier
    """)
    stamp(b, 209)
    for i in range(11):
        b("s_mov_b32 m0, s10\ns_add_u32 s10, s10, 4096\nbuffer_load_dwordx4 v1, s[12:15], s11 offen sc1 lds\ns_add_u32 s11, s11, 4096")


def signal(b, tag, base, idx, wave=3, extra=None):
    b(f"""
    s_lshl_b32 s60, s{idx}, 7
    s_add_u32 s60, s60, s{SC}
    s_add_u32 s60, s60, {base}
    s_waitcnt vmcnt(0) lgkmcnt(0)
{tag}_bar:
    s_barrier
    s_cmp_lg_u32 s{SW}, {wave}
    s_cbranch_scc1 {tag}_sig
    s_mov_b64 exec, 1
    buffer_atomic_add v3, v2, s[12:15], s60 offen sc1
    """)
    if extra:
        b(f"buffer_atomic_add v3, v2, s[12:15], s{extra} offen sc1")
    b(f"s_mov_b64 exec, -1\n{tag}_sig:")


def poll(b, tag, base, idx, target, one_wave):
    b(f"""
    s_lshl_b32 s60, s{idx}, 7
    s_add_u32 s60, s60, s{SC}
    s_add_u32 s60, s60, {base}
    s_mov_b32 s61, 0x40000
    """)
    if one_wave:
        b(f"s_cmp_lg_u32 s{SW}, 3\ns_cbranch_scc1 {tag}_ok")
    b(f"""
{tag}_poll:
    buffer_load_dword v4, v2, s[12:15], s60 offen sc1
    s_sub_u32 s61, s61, 1
    s_waitcnt vmcnt(0)
    v_cmp_gt_u32 vcc, {target}, v4
    s_cbranch_scc1 {tag}_ok
    s_cbranch_vccnz {tag}_poll
{tag}_ok:
    """)
    if one_wave:
        b("s_barrier")


def dma_run(b, n, srdn, soff, flags=""):
    for i in range(n):
        off = f" offset:{1024*(i%4)}" if i % 4 else ""
        b(f"buffer_load_dwordx4 v1, s[{srdn}:{srdn+3}], s{soff} offen{off}{flags} lds")
        if i % 4 == 3 and i < n - 1:
            b(f"s_add_u32 m0, m0, 4096\ns_add_u32 s{soff}, s{soff}, 4096")


def pack4(b, dst, p, q):
    b(f"""
    v_cvt_pk_bf16_f32 v{dst}, v{p}, v{p+1}
    v_cvt_pk_bf16_f32 v{dst+1}, v{p+2}, v{p+3}
    v_cvt_pk_bf16_f32 v{dst+2}, v{q}, v{q+1}
    v_cvt_pk_bf16_f32 v{dst+3}, v{q+2}, v{q+3}
    """)


def unit_offset(b, dst, t0, t1):
    b(f"""
    v_bfe_u32 v{t0}, v0, 4, 1
    v_bfe_u32 v{t1}, v0, 5, 1
    v_mul_u32_u24 v{dst}, 18432, v{t0}
    v_lshl_add_u32 v{dst}, v{t1}, 8, v{dst}
    v_and_b32 v{t0}, 15, v0
    v_lshl_add_u32 v{dst}, v{t0}, 4, v{dst}
    """)


TIM = QX + 18432
VD, TR = 72, 76
QSCALE = fbits(math.log2(math.e) / math.sqrt(18))


def stats_publish(b, base):
    b(f"""
    v_pk_add_f32 v[8:9], {v(RES,2)}, {v(RES+2,2)}
    v_pk_mul_f32 v[10:11], {v(RES,2)}, {v(RES,2)}
    """)
    for k in range(2, 24, 2):
        if k > 2:
            b(f"v_pk_add_f32 v[8:9], v[8:9], {v(RES+k,2)}")
        b(f"v_pk_fma_f32 v[10:11], {v(RES+k,2)}, {v(RES+k,2)}, v[10:11]")
    b(f"""
    v_add_f32 v8, v8, v9
    v_add_f32 v9, v10, v11
    s_add_u32 s38, s62, s{SL}
    s_add_u32 s38, s38, {base}
    v_permlane32_swap_b32 v8, v9
    s_nop 0
    v_add_f32 v8, v8, v9
    buffer_store_dword v8, v13, s[12:15], s38 offen sc1
    """.replace("s62", "s59"))


def stats_target(b):
    b(f"""
    v_and_b32 v13, 15, v0
    v_lshlrev_b32 v13, 4, v13
    v_bfe_u32 v14, v0, 4, 1
    v_lshl_add_u32 v13, v14, 3, v13
    v_bfe_u32 v14, v0, 5, 1
    v_lshl_add_u32 v13, v14, 2, v13
    s_and_b32 s59, s{SJ}, 3
    s_mul_i32 s59, s59, 3
    s_add_u32 s59, s59, s{SW}
    s_lshl_b32 s59, s59, 8
    s_mul_i32 s38, s{STJ}, 3072
    s_add_u32 s59, s59, s38
    """)


def stats_loads(t, so):
    return [f"buffer_load_dwordx4 {v(t+4*n,4)}, v1, s[12:15], s{so} offen offset:{1024*n} sc1 ;#st" for n in range(3)]


def stats_reduce(src, t, eps):
    out = [f"v_add_f32 v{t+k}, v{src+k}, v{src+4+k}" for k in range(4)] + [f"v_add_f32 v{t+k}, v{t+k}, v{src+8+k}" for k in range(4)]
    out += [(f"v_permlane32_swap_b32 v{t}, v{t+1}", 2), f"v_permlane32_swap_b32 v{t+2}, v{t+3}",
            (f"v_add_f32 v{t}, v{t}, v{t+1}", 1), f"v_add_f32 v{t+2}, v{t+2}, v{t+3}",
            (f"v_permlane16_swap_b32 v{t}, v{t+2}", 2), (f"v_add_f32 v{t}, v{t}, v{t+2}", 1), f"v_mul_f32 v{t}, {fbits(1/576)}, v{t}",
            f"v_mov_b32 v{t+1}, v{t}", (f"v_permlane32_swap_b32 v{t}, v{t+1}", 2),
            (f"v_fma_f32 v{t}, -v{t}, v{t}, v{t+1}", 1), f"v_max_f32 v{t}, 0, v{t}", f"v_add_f32 v{t}, {eps}, v{t}",
            f"v_mov_b32 v{t+1}, v{t}", (f"v_permlane16_swap_b32 v{t}, v{t+1}", 2)]
    return out


def emit_chain(b, items):
    for x in items:
        if isinstance(x, tuple):
            b(f"s_nop {x[1]-1}\n{x[0]}")
        else:
            b(x)


def phase_q(b):
    ACC, XQ, TMP, STT, RV, AD = 16, 80, 128, 164, 184, 208
    AQ, GK, GV, AVT, TA, AON, RD, GT = AD, AD + 1, AD + 2, AD + 3, AD + 4, AD + 8, AD + 9, AD + 10
    b(f"""
    s_mul_i32 s34, s{STW}, 36864
    s_add_u32 s34, s34, {LST+X2}
    s_sub_u32 s34, s34, s{SL}
    s_add_u32 s16, s4, s34
    s_addc_u32 s17, s5, 0
    s_mov_b32 s18, 18432
    s_mov_b32 s19, 0x20000
    s_add_u32 s20, s16, 18432
    s_addc_u32 s21, s17, 0
    s_mov_b32 s22, 18432
    s_mov_b32 s23, 0x20000
    v_and_b32 v12, 15, v0
    v_bfe_u32 v4, v0, 4, 2
    v_lshrrev_b32 v13, 1, v4
    v_and_b32 v14, 1, v4
    s_mul_i32 s38, s{SW}, 1152
    s_add_u32 s38, s38, {QX}
    s_mul_i32 s39, s{SW}, 768
    s_add_u32 s39, s39, {TIM}
    v_lshlrev_b32 v15, 4, v12
    v_lshl_add_u32 v15, v14, 9, v15
    v_mul_u32_u24 v{AQ}, 4608, v13
    v_add3_u32 v{AQ}, v{AQ}, v15, s38
    v_mul_u32_u24 v{GK}, {REC}, v13
    v_add_u32 v{GK}, v{GK}, v15
    v_cmp_eq_u32 s[48:49], 0, v4
    v_lshlrev_b32 v6, 4, v4
    v_lshrrev_b32 v13, 2, v12
    v_and_b32 v15, 3, v12
    v_lshlrev_b32 v{AVT}, 5, v13
    v_lshl_add_u32 v{AVT}, v15, 1, v{AVT}
    v_add_u32 v{AVT}, s39, v{AVT}
    s_add_u32 s40, s38, 1024
    s_add_u32 s41, s39, 128
    v_lshl_add_u32 v{TA}, v12, 2, s40
    v_lshl_add_u32 v15, v12, 2, s41
    v_cndmask_b32 v{TA}, v15, v{TA}, s[48:49]
    v_mov_b32 v13, 384
    v_mov_b32 v14, 4608
    v_cndmask_b32 v13, v13, v14, s[48:49]
    v_add_u32 v{TA+1}, v{TA}, v13
    v_and_b32 v14, 3, v0
    v_bfe_u32 v13, v0, 2, 1
    v_mul_u32_u24 v13, 384, v13
    v_lshl_add_u32 v13, v14, 2, v13
    v_add_u32 v{AON}, s39, v13
    v_add_u32 v{RD}, s39, v1
    v_add_u32 v13, {REC-384}, v1
    v_cmp_gt_u32 vcc, 384, v1
    v_mov_b32 v14, {OOB}
    s_mul_i32 s43, s{SJ}, {KVJ}
    v_cndmask_b32 v13, v13, v1, vcc
    v_cmp_gt_u32 vcc, 768, v1
    s_mul_i32 s44, s{STW}, {2*REC}
    s_add_u32 s43, s43, s44
    v_cndmask_b32 v{GT}, v14, v13, vcc
    s_add_u32 s43, s43, s{SL}
    s_add_u32 s43, s43, {KV}
    s_mul_i32 s42, s{STW}, 3072
    s_add_u32 s42, s42, {S2}
    s_mov_b32 s45, {fbits(1e-5)}
    v_mov_b32 v7, 0x3f803f80
    v_mov_b32 v5, v1
    s_mov_b32 s37, 3
    """)
    for i in range(16, 72):
        b(f"v_mov_b32 v{i}, 0")
    b(f"s_cmp_eq_u32 s{SL}, 0\ns_cselect_b32 s42, {OOB}, s42\ns_cselect_b32 s45, 1.0, s45\ns_cbranch_scc0 q_next")
    grid_wait(b)
    b("s_branch q_ok\nq_next:")
    poll(b, "q", C_X2 - CL, STW, 4, False)
    stamp(b, 1)
    xq = lambda p, rt: XQ + ((p % 6) * 2 + rt) * 4
    xload = lambda p, rt: f"buffer_load_dwordx4 {v(xq(p, rt),4)}, v1, s[{16+4*rt}:{19+4*rt}], s36 offen sc1 ;#x{p%6}"
    acc = lambda f, rt: ACC + (f * 2 + rt) * 4
    ring = lambda ks, f: a((ks % 2) * 28 + f * 4, 4)
    reads = lambda p: [f"ds_read_b128 {ring(p, f)}, v5 offset:{(p*7+f)*1024}" for f in range(7)]
    b("s_mov_b32 s36, 0\ns_mov_b32 m0, s10")
    for p in range(5):
        b(xload(p, 0) + "\n" + xload(p, 1) + "\ns_add_u32 s36, s36, 1024")
        if p == 1:
            b("s_waitcnt vmcnt(4)\ns_barrier")
            b("\n".join(reads(0) + stats_loads(STT, 42)))
    stamp(b, 2)
    b(f"s_cmp_lg_u32 s{SL}, 0\ns_waitcnt vmcnt(@x0) lgkmcnt(0)\ns_cbranch_scc1 q_loop1")
    for fill in (1, 0):
        mains, pinned = [], []
        for p in range(6):
            for f in (6, 2, 3, 4, 5, 0, 1):
                for rt in range(2):
                    w, x, d = ring(p, f), v(xq(p, rt), 4), v(acc(f, rt), 4)
                    mains.append(mf16(d, x, w, d) if f in (4, 5) else mf16(d, w, x, d))
            rd = reads(p + 1)
            dm = "buffer_load_dwordx4 v1, s[12:15], s11 offen sc1 lds ;#wq"
            pin = [(0, xload(p + 5, 0))]
            if p == 5 and fill:
                pin += [(1, "s_waitcnt vmcnt(@wq)"), (1, "s_barrier")]
            pin += [(1, rd[0]), (2, rd[1]), (4, rd[2]), (5, rd[3]), (6, rd[4]), (7, xload(p + 5, 1)), (8, rd[5]), (8, "s_add_u32 s36, s36, 1024"),
                    (9, rd[6])]
            for gq in (3, 10, 11, 12)[:(4, 4, 3, 0, 0, 0)[p] * fill]:
                pin += [(gq, dm), (gq, "s_add_u32 m0, m0, 4096"), (gq, "s_add_u32 s11, s11, 4096")]
            pin += [(13, f"s_waitcnt vmcnt(@x{(p+1)%6}) lgkmcnt(0)")]
            if p == 0:
                pin += [(6, "s_sub_u32 s37, s37, 1")]
            if p == 5:
                pin += [(11, "v_add_u32 v5, 43008, v5"), (13, f"s_cmp_lg_u32 s37, {fill}")]
            pinned += [(14 * p + gp, t) for gp, t in pin]
        ops = [] if fill else chain(stats_reduce(STT, STT + 12, "s45") + [
            (f"v_rsq_f32 v8, v{STT+12}", 1), f"v_rsq_f32 v9, v{STT+13}", (f"v_mul_f32 v12, {QSCALE}, v8", 1), f"v_mul_f32 v13, {QSCALE}, v9",
            "v_cndmask_b32 v14, v8, v12, s[48:49]", "v_cndmask_b32 v15, v9, v13, s[48:49]"], earliest=27)
        txt, over, lastgap = sched2(mains, pinned, ops)
        print("q loop (overflow, last gap):", over, lastgap, file=sys.stderr)
        b(f".p2align 3\nq_loop{1-fill}:\n{txt}\ns_cbranch_scc1 q_loop{1-fill}")
    stamp(b, 3)
    for rt in range(2):
        for i in range(4):
            b(f"ds_bpermute_b32 v{RV+4*rt+i}, v6, v{8+rt} offset:{4*i}")

    def scale(f, rt, by):
        for i in (0, 2):
            d = v(acc(f, rt) + i, 2)
            if isinstance(by, int):
                sel = "op_sel:[1:0] op_sel_hi:[1:1]" if by & 1 else "op_sel_hi:[0:1]"
                b(f"v_pk_mul_f32 {d}, {v(by & ~1, 2)}, {d} {sel}")
            else:
                b(f"v_pk_mul_f32 {d}, {v(by[0]+i,2)}, {d}")

    T = TMP
    for rt in range(2):
        scale(6, rt, 14 + rt)
    pack4(b, T, acc(6, 0), acc(6, 1))
    b(f"ds_write_b32 v{AON}, v7 offset:256\ns_mov_b64 exec, 0xffffffff")
    for k in range(4):
        b(f"ds_write_b32 v{TA+k%2}, v{T+k} offset:{64*(k//2)}")
    b("s_mov_b32 exec_lo, 0\ns_mov_b32 exec_hi, 0xffff\ns_waitcnt lgkmcnt(5)")
    for k in range(4):
        off = 384 * (k % 2) + 8 * (k // 2)
        b(f"ds_write_b16 v{AVT}, v{T+k} offset:{off}\nds_write_b16_d16_hi v{AVT}, v{T+k} offset:{off+16}")
    b(f"s_mov_b64 exec, -1\nds_read_b128 {v(TMP+32,4)}, v{RD}")
    T += 4
    for rt in range(2):
        scale(2, rt, 8 + rt)
        scale(3, rt, 8 + rt)
        pack4(b, T, acc(2, rt), acc(3, rt))
        b(f"buffer_store_dwordx4 {v(T,4)}, v{GK}, s[12:15], s43 offen offset:{256*rt} sc1")
        T += 4
    for f in (4, 5):
        for rt in range(2):
            scale(f, rt, [RV + 4 * rt])
        pack4(b, T, acc(f, 0), acc(f, 1))
        b(f"buffer_store_dwordx4 {v(T,4)}, v1, s[12:15], s43 offen offset:{1024+REC*(f-4)} sc1")
        T += 4
    b(f"s_waitcnt lgkmcnt(0)\nbuffer_store_dwordx4 {v(TMP+32,4)}, v{GT}, s[12:15], s43 offen offset:2048 sc1")
    for rt in range(2):
        b(f"ds_write_b128 v{AQ}, {v(TMP+4+4*rt,4)} offset:{9216+256*rt}")
        scale(0, rt, 12 + rt)
        scale(1, rt, 12 + rt)
        pack4(b, T, acc(0, rt), acc(1, rt))
        b(f"ds_write_b128 v{AQ}, {v(T,4)} offset:{256*rt}")
        T += 4
    stamp(b, 4)


def wo_loads(lo, hi):
    out = []
    for n in range(lo, hi):
        off = f" offset:{1024*((n-lo)%4)}" if (n - lo) % 4 else ""
        t = f"buffer_load_dwordx4 {a(4*n,4)}, v1, s[12:15], s38 offen{off} sc1"
        if (n - lo) % 4 == 3:
            t += "\ns_add_u32 s38, s38, 4096"
        out.append(t)
    return out


def wo_base(b, part, per):
    b(f"""
    s_and_b32 s38, s{SJ}, 3
    s_mul_i32 s38, s38, {WOS}
    s_mul_i32 s39, s{SW}, {1024*per}
    s_add_u32 s38, s38, s39
    s_add_u32 s38, s38, {WO + 1024*part}
    s_cmp_eq_u32 s{SW}, 3
    s_cselect_b32 s38, {OOB}, s38
    """)


def centre(b, fr, n, tmp, mean, after=None):
    for k in range(n):
        for j in range(4):
            for h in range(2):
                b(f"v_dot2_f32_bf16 v{tmp+2*j+h}, v{fr+4*k+j}, s{30+h}, v{mean}")
        for j in range(4):
            b(f"v_cvt_pk_bf16_f32 v{fr+4*k+j}, v{tmp+2*j}, v{tmp+2*j+1}")
        if after:
            b(after(k))


def row_tile(b, vd, sd):
    b(f"""
    v_and_b32 v{vd}, 31, v0
    v_mul_u32_u24 v{vd}, 1152, v{vd}
    v_bfe_u32 v{vd+1}, v0, 5, 1
    v_lshl_add_u32 v{vd}, v{vd+1}, 4, v{vd}
    s_and_b32 s{sd}, s{SJ}, 3
    s_mul_i32 s{sd}, s{sd}, 3
    s_add_u32 s{sd}, s{sd}, s{SW}
    s_mul_i32 s{sd}, s{sd}, 96
    s_mul_i32 s{sd+1}, s{STJ}, 36864
    s_add_u32 s{sd}, s{sd}, s{sd+1}
    """)


def layer0_jobs(b, ONE, SM, PF, PT, AF):
    srd(b, 20, 100, 0, SZX)
    row_tile(b, 8, 38)
    for i in range(4):
        b(f"v_mov_b32 v{ONE+i}, 0x3f803f80")
    for n in range(3):
        b(f"buffer_load_dwordx4 {v(RES+12+4*n,4)}, v8, s[20:23], s38 offen offset:{32*n}")
    sdiv(b, 41, STW, 9, 64)
    b(f"""
    s_mul_i32 s38, s41, 9
    s_sub_u32 s38, s{STW}, s38
    s_lshl_b32 s39, s41, 10
    v_add_u32 v8, s39, v1
    v_add_u32 v9, {9*7168}, v8
    s_mul_i32 s38, s38, 14336
    s_add_u32 s38, s38, s39
    v_add_u32 v12, s38, v1
    """)
    for ks in range(18):
        b(f"ds_read_b128 {a(AF+4*ks,4)}, v{8+ks//9} offset:{7168*(ks%9)}")
        if ks == 11:
            b("s_waitcnt lgkmcnt(6)")
    b(f"ds_read_b128 {v(PF,4)}, v12\nds_read_b128 {v(PF+4,4)}, v12 offset:7168")
    for ks in range(18):
        if ks >= 6:
            b(f"s_waitcnt lgkmcnt({19-ks})")
        b(mf16(v(SM, 4), v(ONE, 4), a(AF + 4 * ks, 4), "0" if ks == 0 else v(SM, 4)))
    b(f"""
    v_and_b32 v8, 12, v0
    v_cmp_eq_u32 vcc, 12, v8
    s_cmp_eq_u32 s41, 6
    s_cselect_b64 vcc, vcc, 0
    s_add_u32 s39, s38, 7168
    s_mul_i32 s41, s{SJ}, {WFS}
    s_add_u32 s41, s41, {WF+27*CH+CH//2}
    s_cmp_eq_u32 s{STW}, 63
    s_cselect_b32 s41, {OOB}, s41
    """)
    for r in (38, 39):
        b(f"s_cmp_ge_u32 s{r}, {3*CH}\ns_cselect_b32 s44, {WQH}, 0\ns_sub_u32 s{r}, s{r}, s44\ns_add_u32 s{r}, s{r}, s41")
    b(f"s_waitcnt lgkmcnt(0)\nv_mul_f32 v{SM}, {fbits(-1/576)}, v{SM}\nv_cndmask_b32 v{SM}, v{SM}, v2, vcc")
    centre(b, PF, 2, PT, SM, lambda k: f"buffer_store_dwordx4 {v(PF+4*k,4)}, v1, s[12:15], s{38+k} offen sc1")
    srd(b, 20, 54, 0, 576 * 4608 * 2)
    b("s_mov_b32 s32, 0\ns_mov_b32 s41, s52")


def raw_setup(b):
    b(f"""
    v_bfe_u32 v8, v0, 4, 2
    v_bfe_u32 v9, v0, 2, 2
    v_and_b32 v12, 3, v0
    v_lshlrev_b32 v12, 3, v12
    v_lshl_add_u32 v12, v9, 7, v12
    v_bfe_u32 v13, v0, 3, 2
    v_xor_b32 v13, s{SW}, v13
    s_cmp_ge_u32 s2, 144
    s_cbranch_scc1 a_raw2
    s_and_b32 s38, s2, 1
    s_lshl_b32 s39, s38, 3
    s_add_u32 s44, s0, s39
    s_addc_u32 s45, s1, 0
    s_load_dwordx2 s[54:55], s[44:45], {ARG['w1']}
    s_lshr_b32 s39, s2, 1
    s_lshl_b32 s56, s39, 7
    s_mov_b32 s41, 9216
    s_mov_b32 s8, {fbits(-1/576)}
    s_mov_b32 s59, 2048
    s_mov_b32 s9, 0
    s_lshl_b32 s39, s39, 2
    s_add_u32 s39, s39, s{SW}
    """)
    sdiv(b, 44, 39, 18, 288)
    b(f"""
    s_mul_i32 s44, s44, {WFS-18*CH}
    s_mul_i32 s39, s39, {CH}
    s_add_u32 s58, s39, s44
    s_lshl_b32 s38, s38, 10
    s_add_u32 s58, s58, s38
    s_add_u32 s58, s58, {WF}
    v_lshl_add_u32 v12, v8, 10, v12
    v_lshl_add_u32 v{TR}, v13, 5, v12
    v_xor_b32 v{TR+1}, {512+64}, v{TR}
    s_branch a_raw3
a_raw2:
    s_load_dwordx2 s[54:55], s[0:1], {ARG['w2']}
    s_sub_u32 s38, s2, 144
    """)
    sdiv(b, 39, 38, 9, 112)
    b(f"""
    s_mul_i32 s44, s39, 9
    s_sub_u32 s38, s38, s44
    s_mul_i32 s56, s39, {576*1152}
    s_lshl_b32 s44, s38, 7
    s_add_u32 s56, s56, s44
    s_mov_b32 s41, 1152
    s_mov_b32 s8, 0
    s_mov_b32 s59, {CH}
    s_lshl_b32 s38, s38, 2
    s_add_u32 s38, s38, s{SW}
    """)
    sdiv(b, 44, 38, 9, 36)
    b(f"""
    s_lshl_b32 s45, s39, 1
    s_sub_u32 s45, s45, s44
    s_and_b32 s45, s45, 3
    s_mov_b32 s9, {9216-9*CH}
    s_cmp_eq_u32 s45, 3
    s_cselect_b32 s9, {-3*9216-9*CH}, s9
    s_mul_i32 s45, s45, 9216
    s_mul_i32 s44, s44, {WFS-9216}
    s_lshl_b32 s38, s38, 10
    s_add_u32 s58, s38, s44
    s_add_u32 s58, s58, s45
    s_lshr_b32 s44, s39, 1
    s_mul_i32 s44, s44, {4*WFS}
    s_add_u32 s58, s58, s44
    s_add_u32 s58, s58, {WF+18*CH}
    s_cmp_ge_u32 s2, 216
    s_cselect_b32 s58, {OOB}, s58
    v_lshl_add_u32 v12, v8, 9, v12
    v_and_b32 v8, 2, v8
    v_xor_b32 v13, v13, v8
    v_lshl_add_u32 v{TR}, v13, 5, v12
    v_add_u32 v{TR+1}, 2048, v{TR}
a_raw3:
    v_bfe_u32 v8, v0, 3, 3
    v_mul_lo_u32 v12, v8, s41
    v_and_b32 v8, 6, v8
    v_and_b32 v9, 7, v0
    v_xor_b32 v9, v9, v8
    v_lshl_add_u32 v{VD}, v9, 4, v12
    v_xor_b32 v9, 4, v9
    v_lshl_add_u32 v{VD+1}, v9, 4, v12
    s_lshl_b32 s52, s41, 3
    s_sub_u32 s38, s52, 1024
    v_add_u32 v{VD+1}, s38, v{VD+1}
    s_lshl_b32 s38, s38, 1
    v_add_u32 v{VD+2}, s38, v{VD}
    v_add_u32 v{VD+3}, s38, v{VD+1}
    s_lshl_b32 s57, s52, 4
    s_waitcnt lgkmcnt(0)
    """)


def phase_a(b):
    QM, QT, KM, KT, VF, S, O, MX, IDX = 16, 32, 64, 40, 80, 96, 160, 224, 228
    MEAN, ONE, SM, PF, PT, AF = 78, 80, 84, 48, 88, 112
    AV, AT, AK = 229, 231, 79
    OM, OT, MW, MR = 6, 7, 10, 11
    qm = lambda t: v(QM + 4 * t, 4)
    qt = lambda t: v(QT + 2 * t, 2)
    km = lambda k: a(KM + 4 * (k % 4), 4)
    kt = lambda k: v(KT + 2 * (k % 4), 2)
    vf = lambda k, g: a(VF + 8 * (k % 4) + 4 * g, 4)
    sb = lambda n: S + 16 * (n % 4)
    ob = lambda t: O + 16 * t
    m8 = lambda d, k, t: f"v_mfma_f32_32x32x8_bf16 {v(d,16)}, {kt(k)}, {qt(t)}, 0"
    m16 = lambda d, k, t: f"v_mfma_f32_32x32x16_bf16 {v(d,16)}, {km(k)}, {qm(t)}, {v(d,16)}"
    smf = lambda t, k, g, p: f"v_smfmac_f32_32x32x32_bf16 {v(ob(t),16)}, {vf(k,g)}, {v(p+8*g,8)}, v{IDX}"

    def rec_loads(k):
        tg = f" ;#r{k%4}"
        return [f"buffer_load_dwordx4 {km(k)}, v{AK}, s[16:19], s46 offen sc1{tg} ;#k{k%4}",
                f"buffer_load_dword v{KT+2*(k%4)}, v{AT}, s[16:19], s46 offen offset:2176 sc1{tg} ;#k{k%4}",
                f"buffer_load_dwordx4 {vf(k,0)}, v{AV}, s[16:19], s46 offen sc1{tg}",
                f"buffer_load_dwordx4 {vf(k,1)}, v{AV+1}, s[16:19], s46 offen sc1{tg}"]

    def wo_mode(b, start):
        b(f"""
        s_and_b32 s38, s{SJ}, 3
        s_mul_i32 s38, s38, {WOS}
        s_add_u32 s38, s38, {WO + 36*1024}
        s_lshl_b32 s56, s{SW}, 12
        s_add_u32 s56, s56, {start-16384}
        s_mov_b32 m0, s56
        s_mov_b32 s57, 16384
        """)
        window(b, 20, 38, 128 * 1024)
        for k in range(4):
            b(f"v_mov_b32 v{VD+k}, v1")

    slots_off = f"s_mov_b32 s56, {OOB}\ns_mov_b32 s57, 0\ns_mov_b32 s40, 0\ns_mov_b32 m0, {LOFF}"
    b(f"""
    s_lshr_b32 s37, s{SW}, 1
    s_lshl_b32 s34, s{SJ}, 1
    s_add_u32 s34, s34, s37
    s_and_b32 s35, s{SW}, 1
    s_mul_i32 s38, s37, 4608
    s_add_u32 s38, s38, {QX}
    s_mul_i32 s39, s35, 2304
    s_add_u32 s40, s38, s39
    s_sub_u32 s41, s38, s39
    v_and_b32 v4, 31, v0
    v_bfe_u32 v5, v0, 5, 1
    v_lshlrev_b32 v6, 2, v4
    v_add_u32 v8, s40, v1
    v_add_u32 v9, s41, v1
    v_add_u32 v12, s40, v6
    v_add_u32 v13, s41, v6
    v_cmp_eq_u32 s[50:51], 0, v5
    s_mul_i32 s38, s35, 1536
    s_mul_i32 s39, s37, 384
    s_add_u32 s38, s38, s39
    s_add_u32 s38, s38, {TIM+128}
    v_add_u32 v15, s38, v6
    s_mul_i32 s39, s37, {REC}
    s_waitcnt lgkmcnt(0)
    s_barrier
    ds_read_b128 {km(0)}, v8 offset:9216
    ds_read_b32 v{KT}, v15
    """)
    for t in range(4):
        b(f"ds_read_b128 {qm(t)}, v{8 + t // 2} offset:{1152*t}")
        b(f"ds_read_b32 v{QT+2*t}, v{12 + t // 2} offset:{1152*t+1024}")
    b(f"""
    s_mul_i32 s38, s{SJ}, {KVJ}
    s_add_u32 s38, s38, s39
    s_mul_i32 s39, s35, {64*REC}
    s_add_u32 s38, s38, s39
    s_add_u32 s38, s38, s{SL}
    s_add_u32 s38, s38, {KV}
    s_mov_b32 s49, 0x07060302
    s_mov_b32 s47, 1
    s_mov_b32 s3, 0
    v_mov_b32 v{KT+1}, 0x3f803f80
    s_waitcnt vmcnt(5) lgkmcnt(0)
    """)
    window(b, 16, 38, 63 * REC)
    for t in range(4):
        b(f"v_cndmask_b32 v{QT+2*t}, 0, v{QT+2*t}, s[50:51]")
    b("a_max:")
    for t in range(4):
        b(f"v_mov_b32 v{QT+2*t+1}, 0\nv_mov_b32 v{MX+t}, 0xff800000")
    b("s_mov_b32 s46, 0\ns_cmp_eq_u32 s3, 0\ns_cbranch_scc1 a_maxbody\na_maxloop:")
    b("\n".join(rec_loads(0)[:2]))
    b(f"s_add_u32 s46, s46, {2*REC}\ns_waitcnt vmcnt(0)\na_maxbody:")
    for t in range(4):
        b(m8(sb(t), 0, t))
        b(m16(sb(t), 0, t))
    b("s_cmp_lg_u32 s3, 0\ns_nop 3\ns_cbranch_scc1 q_sig")
    stamp(b, 5)
    signal(b, "q", C_KV, SJ)
    stamp(b, 6)
    for t in range(4):
        for i in range(8):
            b(f"v_max3_f32 v{MX+t}, v{sb(t)+2*i}, v{sb(t)+2*i+1}, v{MX+t}")
    b("s_sub_u32 s47, s47, 1\ns_cmp_lg_u32 s47, 0\ns_cbranch_scc1 a_maxloop")
    for i in range(64):
        b(f"v_mov_b32 v{O+i}, 0")
    b("s_cmp_lg_u32 s3, 0\ns_cbranch_scc1 a_go")
    wo_base(b, 0, 12)
    pb = B()
    pb(f"""
    v_lshlrev_b32 v8, 8, v5
    v_lshl_add_u32 v8, v4, 4, v8
    v_add_u32 v8, 1024, v8
    v_lshlrev_b32 v9, 5, v5
    v_lshl_add_u32 v9, v4, 4, v9
    v_add_u32 v9, {2048-256}, v9
    v_mov_b32 v12, {OOB}
    v_mov_b32 v13, 2304
    v_and_b32 v14, 27, v4
    v_cmp_eq_u32 vcc, 18, v14
    v_cmp_gt_u32 s[60:61], 18, v4
    v_cmp_gt_u32 s[36:37], 16, v4
    v_cndmask_b32 v13, v12, v13, vcc
    v_cndmask_b32 v14, v13, v9, s[60:61]
    v_cndmask_b32 v{AV}, v14, v8, s[36:37]
    v_add_u32 v8, 512, v8
    v_add_u32 v9, 64, v9
    v_cndmask_b32 v14, v13, v9, s[60:61]
    v_cndmask_b32 v{AV+1}, v14, v8, s[36:37]
    v_mov_b32 v{IDX}, 0xdddddddd
    v_bfe_u32 v8, v4, 2, 1
    v_lshrrev_b32 v9, 3, v4
    v_lshlrev_b32 v9, 2, v9
    v_lshl_add_u32 v8, v8, 4, v9
    v_and_b32 v9, 3, v4
    v_add_u32 v8, v8, v9
    v_lshlrev_b32 v{AT}, 2, v8
    v_lshlrev_b32 v8, 4, v8
    v_lshl_add_u32 v{AK}, v5, 9, v8
    v_lshlrev_b32 v13, 2, v4
    v_lshrrev_b32 v{OM}, 4, v4
    v_lshlrev_b32 v{OM}, 14, v{OM}
    v_and_b32 v8, 15, v4
    v_lshl_add_u32 v{OM}, v8, 4, v{OM}
    v_and_b32 v8, 35, v0
    v_cmp_eq_u32 vcc, 0, v8
    v_lshl_add_u32 v{OM}, v5, 8, v{OM}
    s_lshl_b32 s42, s{SI}, 1
    v_cndmask_b32 v{OT}, v12, v13, vcc
    s_add_u32 s42, s42, 1
    s_sub_u32 s42, s42, s35
    s_mul_i32 s42, s42, 73728
    s_add_u32 s42, s42, s{SL}
    s_add_u32 s42, s42, {OB}
    s_lshl_b32 s43, s34, 9
    s_add_u32 s43, s43, s42
    s_lshl_b32 s44, s34, 7
    s_add_u32 s42, s42, s44
    s_add_u32 s42, s42, 32768
    s_mul_i32 s44, s{SW}, 6144
    s_xor_b32 s45, s{SW}, 1
    s_mul_i32 s45, s45, 6144
    s_add_u32 s44, s44, {QX}
    s_add_u32 s45, s45, {QX}
    v_add_u32 v{MW}, s44, v1
    v_add_u32 v{MR}, s45, v1
    """)
    for k in range(1, 4):
        pb(f"v_mov_b32 v{KT+2*k+1}, 0x3f803f80")
    for i in range(8):
        pb(f"v_accvgpr_write_b32 a{VF+24+i}, 0")
    lines, lds = [x.strip() for x in pb.lines], wo_loads(0, 12)
    for i, x in enumerate(lines):
        if i % 5 == 0 and lds:
            b(lds.pop(0))
        b(x)
    assert not lds
    b(f"s_mov_b32 s40, 16384\ns_cmp_eq_u32 s{SL}, 0\ns_cbranch_scc1 a_jobs\ns_mov_b32 s32, 4")
    wo_mode(b, 0)
    b("a_init:")
    side = B()
    side("a_jobs:")
    layer0_jobs(side, ONE, SM, PF, PT, AF)
    side("s_branch a_init")
    stamp(b, 7)
    poll(b, "a", C_KV, SJ, 16, True)
    stamp(b, 8)
    b("a_go:\ns_mov_b32 s46, 0")
    for k in range(3):
        b("\n".join(rec_loads(k)))
        if k < 2:
            b(f"s_add_u32 s46, s46, {2*REC}")
    slot = lambda k: f"buffer_load_dwordx4 v{VD+k}, s[20:23], s56 offen" + (f" offset:{1024*k}" if k else "") + " sc1 lds"
    b(f"""
    s_mov_b32 s47, 8
    s_cmp_lg_u32 s32, 0
    s_cbranch_scc1 a_nopre
    s_mov_b32 s47, 4
    s_lshl_b32 s38, s{SW}, 1
    s_add_u32 s38, s38, 64
    s_lshl_b32 m0, s38, 10
    s_mul_i32 s38, s38, s41
    s_add_u32 s38, s38, s56
    buffer_load_dwordx4 v{VD}, s[20:23], s38 offen lds
    buffer_load_dwordx4 v{VD+1}, s[20:23], s38 offen offset:1024 lds
    s_lshl_b32 s38, s{SW}, 2
    s_sub_u32 s38, s38, 16
    s_lshl_b32 m0, s38, 10
    s_mul_i32 s38, s38, s41
    s_add_u32 s56, s56, s38
a_nopre:
    """)
    x0 = sb(2)
    for t in range(4):
        b(f"""
        v_mov_b32 v{x0}, v{MX+t}
        v_mov_b32 v{sb(3)+4*t}, 0
        v_mov_b32 v{sb(3)+4*t+1}, 0
        v_permlane32_swap_b32 v{MX+t}, v{x0}
        v_mov_b32 v{sb(3)+4*t+2}, 0
        v_max_f32 v{MX+t}, v{MX+t}, v{x0}
        v_sub_f32 v{x0}, 0, v{MX+t}
        v_and_b32 v{x0+1}, 0xffff0000, v{x0}
        v_sub_f32 v{x0+2}, v{x0}, v{x0+1}
        v_and_b32 v{x0+3}, 0xffff0000, v{x0+2}
        v_sub_f32 v{x0+2}, v{x0+2}, v{x0+3}
        v_perm_b32 v{x0+1}, v{x0+3}, v{x0+1}, s49
        v_lshrrev_b32 v{x0+2}, 16, v{x0+2}
        v_cndmask_b32 v{QT+2*t+1}, v{x0+2}, v{x0+1}, s[50:51]
        v_mov_b32 v{sb(3)+4*t+3}, 0
        """)
    b("s_waitcnt vmcnt(@k0)")
    for t in range(2):
        b(m8(sb(t), 0, t))
        b(m16(sb(t), 0, t))
    b("s_nop 8")
    stamp(b, 9)
    b(".p2align 3\na_loop:")
    for n in range(16):
        k, t = divmod(n, 4)
        e = [f"v_exp_f32 v{sb(n)+i}, v{sb(n)+i}" for i in range(16)]
        qk, qtile = (n + 2) // 4, (n + 2) % 4
        pk, pt = (n - 1) // 4, (n - 1) % 4
        b(m8(sb(n + 2), qk, qtile))
        b("\n".join(e[0:4]))
        b(m16(sb(n + 2), qk, qtile))
        if t == 1:
            b(f"s_waitcnt vmcnt(@r{k})")
        if t == 0:
            b(f"s_add_u32 s46, s46, {2*REC}")
        if n == 14:
            b("s_sub_u32 s47, s47, 1")
        if n == 15:
            b("s_cmp_lg_u32 s47, 0")
        b("\n".join(e[4:8]))
        b(smf(pt, pk, 0, sb(n - 1)))
        b(rec_loads(k + 3)[t])
        b("\n".join(e[8:12]))
        b(smf(pt, pk, 1, sb(n - 1)))
        if t == 1:
            b(f"s_waitcnt vmcnt(@k{(k+1)%4})")
        if t == 3:
            b(slot(k))
        if n == 0:
            b("s_add_u32 s56, s56, s57\ns_add_u32 m0, m0, s40")
        b("\n".join(e[12:16]))
    b("s_cbranch_scc1 a_loop\ns_cmp_lt_u32 s32, 4\ns_cbranch_scc1 a_break")
    stamp(b, 10)
    c = side
    c("a_break:")
    bstamp(c, 0)
    c("s_cmp_lg_u32 s32, 0\ns_cbranch_scc1 a_brk1")
    wo_mode(c, 80 * 1024)
    c("s_branch a_resume\na_brk1:\ns_cmp_lg_u32 s32, 1\ns_cbranch_scc1 a_brk2\ns_waitcnt lgkmcnt(0)\ns_barrier")
    for i in range(25):
        if i < 18:
            for h in range(2):
                c(f"ds_read_b64_tr_b16 {a(AF+4*i+2*h,2)}, v{TR+h} offset:{4096*(i%9)}")
            if i in (8, 17):
                st = 36864 if i == 8 else -36864
                c(f"v_add_u32 v{TR}, {st}, v{TR}\nv_add_u32 v{TR+1}, {st}, v{TR+1}")
        if 6 <= i < 24:
            k = i - 6
            c(f"s_waitcnt lgkmcnt({2*min(6, 17-k)})")
            c(mf16(v(SM, 4), v(ONE, 4), a(AF + 4 * k, 4), "0" if k == 0 else v(SM, 4)))
    prd = lambda i: "\n".join(f"ds_read_b64_tr_b16 {v(PF+4*i+2*h,2)}, v{TR+h} offset:{4096*i}" for h in range(2))
    for i in range(6):
        c(prd(i))
    c(f"""
    v_mul_f32 v{MEAN}, s8, v{SM}
a_brk2:
    v_add_u32 v{TR}, 24576, v{TR}
    v_add_u32 v{TR+1}, 24576, v{TR+1}
    s_cmp_eq_u32 s32, 2
    s_cselect_b32 s38, s9, 0
    s_waitcnt lgkmcnt(0)
    """)
    centre(c, PF, 6, PT, MEAN, lambda k: f"buffer_store_dwordx4 {v(PF+4*k,4)}, v1, s[12:15], s58 offen sc1\ns_add_u32 s58, s58, s59"
           + ("\ns_add_u32 s58, s58, s38" if k == 2 else "") + ("\n" + prd(k - 1) if k else ""))
    c(prd(5))
    c(f"s_cmp_lg_u32 s32, 3\ns_cbranch_scc1 a_resume\n{slots_off}")
    c("a_resume:")
    bstamp(c, 1)
    c("s_add_u32 s32, s32, 1\ns_mov_b32 s47, 1\ns_branch a_loop")
    c(f"a_redo:\ns_mov_b32 s3, 1\ns_mov_b32 s47, 32\n{slots_off}\ns_waitcnt vmcnt(0)\ns_branch a_max")
    b(smf(3, 3, 0, sb(3)))
    b("s_waitcnt lgkmcnt(0)")
    b(f"v_mov_b32 v{ob(0)+11}, v{MX}\nv_mov_b32 v{ob(1)+11}, v{MX+1}")
    b(smf(3, 3, 1, sb(3)))
    for t in range(2):
        for i in range(3):
            b(f"ds_write_b128 v{MW}, {v(ob(t)+4*i,4)} offset:{3072*t+1024*i}")
    b(f"""
    v_max3_f32 v8, v{ob(0)+10}, v{ob(1)+10}, v{ob(2)+10}
    v_mov_b32 v9, 0x53800000
    v_cmp_u_f32 s[52:53], v{ob(0)+10}, v{ob(1)+10}
    s_and_b32 s38, s2, 7
    s_lshl_b32 s38, s38, 7
    s_add_u32 s38, s38, s{SC}
    v_max_f32 v8, v{ob(3)+10}, v8
    v_cmp_u_f32 s[54:55], v{ob(2)+10}, v{ob(3)+10}
    v_cmp_nlt_f32 vcc, v8, v9
    s_add_u32 s38, s38, {C_PREP}
    s_or_b64 s[52:53], s[52:53], s[54:55]
    s_or_b64 vcc, vcc, s[52:53]
    s_cmp_eq_u32 s3, 0
    s_cselect_b64 vcc, vcc, 0
    s_waitcnt lgkmcnt(0)
    s_cbranch_vccnz a_redo
    s_barrier
    """)
    for t in range(2):
        for i in (2, 0, 1):
            b(f"ds_read_b128 {v(sb(t)+4*i,4)}, v{MR} offset:{3072*t+1024*i}")
    for t in range(2):
        P, o0, pk = sb(t), ob(2 + t), QM + 8 * t
        b(f"""
        s_waitcnt lgkmcnt({5 - 3*t})
        v_max_f32 v8, v{MX+2+t}, v{P+11}
        v_sub_f32 v9, v{MX+2+t}, v8
        v_sub_f32 v8, v{P+11}, v8
        v_exp_f32 v9, v9
        v_exp_f32 v8, v8
        v_mul_f32 v12, v9, v{o0+10}
        v_fmac_f32 v12, v8, v{P+10}
        v_rcp_f32 v12, v12
        s_waitcnt lgkmcnt({3 - 3*t})
        v_pk_mul_f32 v[8:9], v[8:9], v[12:13] op_sel_hi:[1:0]
        """)
        for i in (8, 0, 2, 4, 6):
            b(f"v_pk_mul_f32 {v(o0+i,2)}, v[8:9], {v(o0+i,2)} op_sel:[1:0] op_sel_hi:[1:1]")
        for i in (8, 0, 2, 4, 6):
            b(f"v_pk_fma_f32 {v(o0+i,2)}, v[8:9], {v(P+i,2)}, {v(o0+i,2)} op_sel_hi:[0:1:1]")
        for i in (4, 0, 1, 2, 3):
            b(f"v_cvt_pk_bf16_f32 v{pk+i}, v{o0+2*i}, v{o0+2*i+1}")
        b(f"buffer_store_dwordx4 {v(pk,4)}, v{OM}, s[12:15], s43 offen sc1")
        for i in range(1, 4):
            b(f"v_mov_b32 v{pk+4+i}, v{pk+4} quad_perm:[{i}:{i}:{i}:{i}] row_mask:0xf bank_mask:0xf")
        b(f"buffer_store_dwordx4 {v(pk+4,4)}, v{OT}, s[12:15], s42 offen sc1")
        if t == 0:
            b("s_add_u32 s42, s42, 36864\ns_add_u32 s43, s43, 36864")
    stamp(b, 11)
    signal(b, "a", C_O, SI, extra=38)
    stamp(b, 12)
    return side.text()


def res_swap(b):
    for n in range(3):
        for k in range(4):
            b(f"v_permlane16_swap_b32 v{RES+8*n+k}, v{RES+8*n+4+k}")


def tile_base(b, dst, tmp):
    b(f"""
    s_and_b32 s{dst}, s{SJ}, 3
    s_mul_i32 s{dst}, s{dst}, 3
    s_add_u32 s{dst}, s{dst}, s{SW}
    s_mul_i32 s{dst}, s{dst}, 1536
    s_mul_i32 s{tmp}, s{STJ}, 36864
    s_add_u32 s{dst}, s{dst}, s{tmp}
    """)


def phase_o(b):
    PK, OF = 16, 56
    NB = int(OPT.get('nb', 108))
    b(f"""
    s_cmp_eq_u32 s{SW}, 3
    s_cbranch_scc1 o_nowo
    s_lshl_b32 s38, s{SW}, 14
    s_add_u32 s38, s38, {80*1024}
    v_add_u32 v6, s38, v1
    s_mul_i32 s38, s{SW}, {26*1024}
    v_add_u32 v7, s38, v1
    s_cmp_eq_u32 s{SL}, 0
    s_cbranch_scc1 o_first
    """)
    side = B()
    side("o_first:")
    wo_base(side, 36, 26)
    side("\n".join(wo_loads(12, 38)))
    for k in range(12):
        side(f"v_lshlrev_b32 v{RES+2*k}, 16, v{RES+12+k}\nv_and_b32 v{RES+2*k+1}, 0xffff0000, v{RES+12+k}")
    side("s_branch o_rest")
    for n in range(12, 38):
        b(f"ds_read_b128 {a(4*n,4)}, v7 offset:{1024*(n-12)}")
        if n % 8 == 7:
            b("s_waitcnt lgkmcnt(4)")
    b("s_waitcnt lgkmcnt(4)\no_rest:")
    for n in range(38, 54):
        b(f"ds_read_b128 {a(4*n,4)}, v6 offset:{1024*(n-38)}")
        if n == 45:
            b("s_waitcnt lgkmcnt(4)")
    b(f"o_nowo:\ns_mul_i32 s38, s{SJ}, {WFS}\ns_add_u32 s38, s38, {WF}")
    window(b, 16, 38, WFS)
    b(f"s_cmp_eq_u32 s{SL}, 0\ns_cselect_b32 s18, s18, {27*CH}")
    unit_offset(b, 5, 6, 7)
    stats_target(b)
    res_swap(b)
    tile_base(b, 34, 35)
    b(f"""
    s_lshl_b32 s38, s{SW}, 10
    s_add_u32 s37, s35, s38
    s_add_u32 s37, s37, s{SL}
    s_add_u32 s37, s37, {OB}
    s_add_u32 s38, s38, {3*CH}
    v_add_u32 v6, {3*CH}, v1
    s_add_u32 s36, s34, s{SL}
    s_add_u32 s36, s36, {X1}
    v_bfe_u32 v7, v0, 4, 2
    v_and_b32 v8, 15, v0
    v_lshlrev_b32 v7, 9, v7
    v_lshl_add_u32 v7, v8, 2, v7
    v_add_u32 v7, {3*CH+32768}, v7
    v_add_u32 v8, 2048, v7
    v_and_b32 v11, 7, v0
    v_lshlrev_b32 v11, 7, v11
    s_lshl_b32 s41, s{SL}, 2
    s_add_u32 s41, s41, s{SW}
    s_mov_b32 s40, {CNT+C_PREP}
    s_cmp_eq_u32 s41, 3
    s_cselect_b32 s40, s40, {OOB}
    s_cselect_b32 s41, 32, 0
    s_waitcnt lgkmcnt(0)
    """)
    if int(OPT.get("w3", 1)):
        walk(b, "wk3", "a_sig", "f_p1")
    stamp(b, 13)
    poll(b, "o", C_O, SI, 16, True)
    stamp(b, 14)
    b("buffer_load_dword v4, v11, s[12:15], s40 offen sc1")
    for i in range(9):
        off = 4096 * (i // 2) + 16384 * (i % 2) if i < 8 else 32768
        b(f"s_add_u32 m0, s38, {off}\ns_add_u32 s39, s37, {off}\nbuffer_load_dwordx4 v1, s[12:15], s39 offen sc1 lds")
    b(f"s_waitcnt vmcnt(5)\ns_barrier")
    stamp(b, 15)
    b(f"s_cmp_eq_u32 s{SW}, 3\ns_cbranch_scc1 o_ring")
    of = lambda ks, rt: OF + ks * 8 + rt * 4

    def rd(ks):
        if ks < 16:
            return [f"ds_read_b128 {v(of(ks,rt),4)}, v6 offset:{rt*16384+ks*1024}" for rt in range(2)]
        return [f"ds_read2_b32 {v(of(ks,rt)+2*k,2)}, v{7+ks-16} offset0:{16*rt+64*k} offset1:{16*rt+64*k+32}"
                for rt in range(2) for k in range(2)]

    mf = lambda n, ks, rt: mf16(v(RES + 8 * n + 4 * rt, 4), a((n * 18 + ks) * 4, 4), v(of(ks, rt), 4), v(RES + 8 * n + 4 * rt, 4))
    KS = 12
    mains = [mf(n, ks, rt) for ks in range(KS) for n in range(3) for rt in range(2)]
    mains += [mf(n, ks, rt) for n in range(3) for ks in range(KS, 18) for rt in range(2)]
    b("\n".join(rd(0) + rd(1)) + "\ns_waitcnt lgkmcnt(2)")
    pins, late = [], [x for ks in range(8, 18) for x in rd(ks)]
    for ks in range(KS):
        now = rd(ks + 2) if ks < 6 else late[4 * (ks - 6):4 * (ks - 5)]
        pins += [(6 * ks + k, x) for k, x in enumerate(now)]
        if ks == 5:
            pins += [(6 * ks + 4, "s_waitcnt vmcnt(0)"), (6 * ks + 4, "s_barrier")]
        pins.append((6 * ks + 5, f"s_waitcnt lgkmcnt({len(now)})"))
    pins.append((6 * KS + 5, "s_waitcnt lgkmcnt(0)"))

    def fin(n):
        r, p = RES + 8 * n, PK + 4 * n
        out = [f"v_permlane16_swap_b32 v{r+k}, v{r+4+k}" for k in range(4)]
        out += [f"v_cvt_pk_bf16_f32 v{p+k}, v{r+2*k}, v{r+2*k+1}" for k in range(4)]
        out += [f"buffer_store_dwordx4 {v(p,4)}, v5, s[12:15], s36 offen offset:{512*n} sc1"]
        return out

    def sums(n):
        r = RES + 8 * n
        return [x for k in range(8) for x in (f"v_add_f32 v9, v9, v{r+k}", f"v_fmac_f32 v10, v{r+k}, v{r+k}")]

    f0 = chain(fin(0), earliest=6 * KS + 12 + 7)
    f1 = chain(fin(1), earliest=6 * KS + 24 + 5, after=f0[-1])
    for o in f1:
        o.urgent = True
    txt, over, _ = sched2(mains, pins, f0 + f1 + chain(sums(0), after=f0[3]))
    b("v_mov_b32 v9, 0\nv_mov_b32 v10, 0\n" + txt)
    b("\n".join(sums(1)[:8] + fin(2) + sums(1)[8:] + sums(2)))
    b(f"""
    s_add_u32 s38, s59, s{SL}
    s_add_u32 s38, s38, {S1}
    v_permlane32_swap_b32 v9, v10
    s_nop 0
    v_add_f32 v9, v9, v10
    buffer_store_dword v9, v13, s[12:15], s38 offen sc1
    """)
    stamp(b, 16)
    signal(b, "o", C_X1, STJ, wave=0)
    stamp(b, 17)
    c = side
    ROT = int(OPT.get("rot", 1))

    def four():
        dma_run(c, 4, 16, 43, " sc1")
        c(f"s_add_u32 s43, s43, 4096\ns_cmp_eq_u32 s43, {NB*1024}\ns_cselect_b32 s43, 0, s43\ns_mov_b32 m0, s43\ns_sub_u32 s42, s42, 1")

    c(f"""
o_ring:
    s_and_b32 s43, s{SI}, 7
    s_mul_i32 s43, s43, {NB//4*ROT}
    s_lshr_b32 s43, s43, 3
    s_lshl_b32 s43, s43, 12
    s_mov_b32 m0, s43
    v_cmp_gt_u32 vcc, s41, v4
    s_mov_b32 s42, {NB//4}
    s_cbranch_vccnz o_late
    """)
    for _ in range(4):
        four()
    c(f"""
    s_waitcnt vmcnt(16)
    s_barrier
    s_branch o_fill
o_late:
    s_waitcnt vmcnt(0)
    s_barrier
    s_mov_b32 s61, 0x40000
o_prep:
    buffer_load_dword v4, v11, s[12:15], s40 offen sc1
    s_sub_u32 s61, s61, 1
    s_waitcnt vmcnt(0)
    v_cmp_gt_u32 vcc, s41, v4
    s_cbranch_scc1 o_fill
    s_cbranch_vccnz o_prep
o_fill:
    """)
    four()
    c(f"""
    s_cmp_lg_u32 s42, 0
    s_waitcnt vmcnt({int(OPT.get('th', 28))})
    s_cbranch_scc1 o_fill
    s_branch o_bar
    """)
    return c.text()


def phase_f(b):
    VS, NB = int(OPT.get("vs", 66)), int(OPT.get('nb', 108))
    LA, LB, DV, C1, C2, VP, VFL = 5, 6, 7, 10, 12, 14, 15
    ACC1, TMP, STG, FL, VH, ACC2, ST, ONE, UO, LO = 16, 48, 64, 72, 80, 84, 84, 100, 156, 157
    RING, NR, PD, HR = 144, 12, 8, 192
    xb = lambda ks, rt: a((ks * 2 + rt) * 4, 4)
    ring = lambda i: a(RING + 4 * (i % NR), 4)

    def hr(c, m, rt):
        u, o = c - 18, (m * 2 + rt) * 4
        if u in (2, 3):
            return v(160 + 32 * (u - 2) + o, 4)
        return a({0: HR, 1: HR + 32, 8: HR}.get(u, 32 * (u - 4)) + o, 4)

    P0 = int(OPT.get("p0", 11))
    SOFT, SG = int(OPT.get('sb', 1)), int(OPT.get('sg', 1))
    SFL, SFC, SFW, SFR, LC = 224, 228, 229, 230, 231
    b(f"""
    s_mul_i32 s43, s{SW}, {(144-NB)//4*1024}
    s_add_u32 s43, s43, {NB*1024}
    s_mov_b32 m0, s43
    s_mul_i32 s39, s{STW}, 36864
    """)
    pb = B()
    unit_offset(pb, UO, TMP, TMP + 1)
    pb(f"""
    s_mul_i32 s45, s{SW}, 9216
    s_mov_b32 s44, 0
    """)
    for k in range(3):
        pb(f"""
        s_mul_i32 s34, s{SI}, {int(OPT.get("rot2", 0))}
        s_add_u32 s34, s34, {k}
        s_mul_i32 s35, s34, 43
        s_lshr_b32 s35, s35, 7
        s_mul_i32 s35, s35, 3
        s_sub_u32 s34, s34, s35
        s_mul_i32 s34, s34, 3072
        s_add_u32 s{48+k}, s34, s45
        s_add_u32 s{51+k}, s{48+k}, {CH}
        v_add_u32 v{DV+k}, s{48+k}, v1
        """)
    pb(f"""
    s_mul_i32 s46, s{STW}, {16*18432}
    s_add_u32 s46, s46, s{SL}
    s_add_u32 s46, s46, {HB}
    s_and_b32 s35, s{SJ}, 12
    """)
    for m in range(4):
        pb(f"""
        s_add_u32 s34, s{SJ}, {m}
        s_and_b32 s34, s34, 3
        s_add_u32 s34, s34, s35
        s_mul_i32 s34, s34, 18432
        s_add_u32 s34, s34, s46
        v_add_u32 v{VH+m}, s34, v1
        """)
    pb(f"""
    s_mul_i32 s34, s{SJ}, 18432
    s_add_u32 s46, s46, s34
    s_lshl_b32 s41, s{STJ}, 9
    s_add_u32 s41, s41, s{SC}
    s_add_u32 s41, s41, {C_H}
    s_and_b32 s37, s{SJ}, 3
    s_lshl_b32 s34, s37, 7
    v_mov_b32 v{VFL}, s34
    v_mov_b32 v{VP}, {OOB}
    v_cmp_eq_u32 vcc, 0, v0
    s_mov_b32 s47, {(P0-5)//2}
    s_lshr_b32 s36, s{SJ}, 2
    v_cndmask_b32 v{VFL}, v{VP}, v{VFL}, vcc
    v_mov_b32 v{VP}, 2
    s_mul_i32 s34, s36, {SZX}
    s_mul_i32 s35, s{STW}, 36864
    s_add_u32 s34, s34, s35
    s_mul_i32 s35, s37, 4608
    s_add_u32 s34, s34, s35
    s_add_u32 s34, s34, s{SL}
    s_add_u32 s34, s34, {PART}
    s_lshl_b32 s35, s{STW}, 2
    s_add_u32 s37, s37, s35
    s_lshl_b32 s37, s37, 9
    s_add_u32 s37, s37, s{SC}
    s_add_u32 s37, s37, {C_P}
    s_cmp_eq_u32 s36, s{SW}
    s_cselect_b32 s34, {OOB}, s34
    s_cmp_eq_u32 s36, s{SW}
    s_cselect_b32 s37, {OOB}, s37
    s_add_u32 s35, s34, 4096
    v_add_u32 v{LO}, {4*CH}, v1
    v_mov_b32 v{SFC}, 0
    v_and_b32 v{FL+2}, 3, v0
    v_lshlrev_b32 v{FL+2}, 2, v{FL+2}
    v_add_u32 v{SFR}, {4*CH+12288}, v{FL+2}
    v_lshlrev_b32 v{FL+2}, 5, v{FL+2}
    s_lshl_b32 s38, s{SW}, 2
    s_add_u32 s38, s38, {4*CH+12288}
    v_mov_b32 v{SFW}, s38
    ds_write_b32 v{SFW}, v{SFC}
    s_mul_i32 s38, s{STW}, 3072
    s_add_u32 s38, s38, s{SL}
    s_add_u32 s38, s38, {S1}
    v_add_u32 v{LA}, {2*CH}, v1
    v_add_u32 v{LB}, {3*CH}, v1
    v_add_u32 v{LC}, {CH}, v1
    """)
    db = B()
    dma_run(db, (144 - NB) // 4, 16, 43, " sc1")
    dl, sl = [x.strip() for x in db.lines], [x.strip() for x in pb.lines]
    per = -(-len(sl) // ((144 - NB) // 4))
    for x in dl:
        b(x)
        if "buffer" in x:
            n = per + ("s_cmp" in "".join(sl[per-1:per]))
            b("\n".join(sl[:n]))
            sl = sl[n:]
    b("\n".join(sl + [f"s_mov_b32 s43, {4*CH}"]))
    b(f"s_add_u32 s39, s39, s{SL}\ns_add_u32 s39, s39, {X1}\ns_add_u32 s40, s39, 18432")
    rdf = lambda gi, i, base: f"ds_read_b128 {ring(gi)}, v{base} offset:{1024*i}"
    acc1 = lambda st, gu, rt: (ACC1 + 16 * st if st < 2 else 160 + 16 * st) + (gu * 2 + rt) * 4

    def rd01(j):
        if j >= 108:
            return rdf(j, j - 108, LB)
        return rdf(j, 2 * (j // 6) + j % 2, (1, LC, LA)[j % 6 // 2])

    stamp(b, 18)
    b(f"""
    s_lshl_b32 s60, s{STW}, 7
    s_add_u32 s60, s60, s{SC}
    s_add_u32 s60, s60, {C_X1}
    buffer_load_dword v4, v2, s[12:15], s60 offen sc1
    s_waitcnt vmcnt(1) lgkmcnt(0)
    s_barrier
    """)
    for j in range(6):
        b(rd01(j))
    if int(OPT.get("w2", 1)):
        walk(b, "wk2", "f_p1", "r_exit")
    b("s_waitcnt vmcnt(0)\nv_cmp_gt_u32 vcc, 4, v4\ns_nop 0\ns_cbranch_vccz f_ok")
    poll(b, "f", C_X1, STW, 4, False)
    stamp(b, 19)

    def xload(ks, rt):
        off = f" offset:{1024*(ks%4)}" if ks % 4 else ""
        t = f"buffer_load_dwordx4 {xb(ks,rt)}, v1, s[12:15], s{39+rt} offen{off} sc1 ;#x{ks}"
        if ks % 4 == 3:
            t += f"\ns_add_u32 s{39+rt}, s{39+rt}, 4096"
        return t

    XA = int(OPT.get("xa", 4))
    for ks in range(XA):
        for rt in range(2):
            b(xload(ks, rt))
    mains, pinned = [], []
    for ks in range(18):
        g0 = 12 * ks
        for st in range(3):
            for gu in range(2):
                for rt in range(2):
                    d = v(acc1(st, gu, rt), 4)
                    mains.append(mf16(d, ring(6 * ks + 2 * st + gu), xb(ks, rt), "0" if ks == 0 else d))
        pinned += [(g0 + 2 * k, rd01(6 * ks + 6 + k)) for k in range(6)]
        pinned.append((g0 + 5, "s_waitcnt lgkmcnt(3)"))
        pinned.append((g0 + 11, f"s_waitcnt vmcnt(@x{ks+1}) lgkmcnt(3)" if ks < 17 else "s_barrier"))
        if ks + XA < 18:
            for rt in range(2):
                for k, x in enumerate(xload(ks + XA, rt).split("\n")):
                    pinned.append((g0 + 1 + 6 * rt + k, x))
        if ks in (1, 3, 5):
            pinned.append((g0 + 3, stats_loads(ST, 38)[ks // 2]))
    pinned += [(12 * 17 + 7, rd01(114)), (12 * 17 + 9, rd01(115))]
    early4 = lambda i: [f"s_add_u32 m0, s45, {4096*i}", f"s_add_u32 s42, s45, {4*CH+4096*i}",
                        "buffer_load_dwordx4 v1, s[16:19], s42 offen sc1 lds ;#da"]
    pinned += [(12 * 13 + 9, f"s_lshl_b32 s45, s{SW}, 10"), (12 * 13 + 9, "s_barrier")]
    for i in range(6):
        gp = 12 * (14 + i // 2) + 1 + 6 * (i % 2)
        pinned += [(gp - 3, early4(i)[0]), (gp - 1, early4(i)[1]), (gp, early4(i)[2])]
    NL = fbits(-math.log2(math.e))
    ops = chain(stats_reduce(ST, ST, fbits(1e-5)) + [(f"v_rsq_f32 v{C1}, v{ST}", 1), f"v_rsq_f32 v{C1+1}, v{ST+1}", f"v_mov_b32 v{C2}, v{ST}", f"v_mov_b32 v{C2+1}, v{ST+1}",
                                    f"v_mul_f32 v{C1}, {NL}, v{C1}", f"v_mul_f32 v{C1+1}, {NL}, v{C1+1}"], earliest=12 * (6 + XA))
    b("s_waitcnt vmcnt(@x0) lgkmcnt(3)")
    b(sched2(mains, pinned, ops)[0])
    b("s_waitcnt lgkmcnt(0)")
    stamp(b, 20)

    def dma(par, others=(), gate=None, sin=False, step=CH, tag=None):
        out, others = [], list(others)
        if sin:
            for _ in range(min(2, len(others))):
                out += [(x, 0) for x in others.pop(0)]
        per = len(others) / 9
        for i in range(9):
            if i % 3 == 0:
                out.append((f"s_add_u32 m0, s44, s{48+i//3+(0 if par else 3)}", 0))
            ld = f"buffer_load_dwordx4 v{DV+i//3}, s[16:19], s43 offen" + (f" offset:{1024*(i%3)}" if i % 3 else "") + f"{OPT.get('wf', ' sc1')} lds ;#{tag or 'd%d' % par}"
            out.append((ld, 1 if i % 3 == 0 else 0))
            take = len(others) if i == 7 else min(len(others), int((i + 1) * per + 0.999) - int(i * per + 0.999))
            for _ in range(take if i < 8 else 0):
                out += [(x, 0) for x in others.pop(0)]
        out.append((f"s_add_u32 s43, s43, {step}", 0))
        if par == 0:
            out.append((f"s_xor_b32 s44, s44, {2*CH}", 0))
        ops = chain(out)
        if gate:
            for o in ops:
                if "s[12:15]" in o.text:
                    o.deps.append((gate, 0))
        return ops

    def swiglu(st, half, TMP=TMP):
        ops, last = [], []
        for k in range(8):
            rt, i = divmod(k, 4)
            g, u = acc1(st, 0, rt) + i, acc1(st, 1, rt) + i
            t, p = TMP + k, TMP + 8 + k
            c = chain([f"v_mul_f32 v{t}, v{C1+rt}, v{g}", f"v_exp_f32 v{t}, v{t}",
                       f"v_fma_f32 v{t}, v{t}, v{C2+rt}, v{C2+rt}", f"v_rcp_f32 v{t}, v{t}"], earliest=3, dist=1)
            m = Op(f"v_mul_f32 v{p}, v{g}, v{u}", earliest=4)
            f = Op(f"v_mul_f32 v{p}, v{p}, v{t}", [(c[-1], 1), (m, 0)])
            ops += c + [m, f]
            for o in c + [m, f]:
                o.bias = 3 * (1 - rt)
            last.append(f)
            if k % 2:
                cv = Op(f"v_cvt_pk_bf16_f32 v{STG+4*rt+2*half+i//2}, v{p-1}, v{p}", [(last[-2], 0), (f, 0)])
                ops.append(cv)
                if half and i == 3:
                    st_ = Op(f"buffer_store_dwordx4 {v(STG+4*rt,4)}, v1, s[12:15], s46 offen" + (" offset:1024" if rt else "") + " sc1",
                             [(cv, 0), (prevcv, 0)])
                    ops.append(st_)
                    if rt:
                        ops.append(Op("s_add_u32 s46, s46, 2048", [(st_, 0), (prevst, 0)]))
                    prevst = st_
                prevcv = cv
        return ops

    def progress(val):
        c = chain([f"v_add_u32 v{VP}, 1, v{VP}" if val is True else f"v_mov_b32 v{VP}, {val}",
                   f"buffer_store_dword v{VP}, v{VFL}, s[12:15], s41 offen sc1"])
        c[0].urgent = True
        return c

    slow = []
    flag_ld = f"buffer_load_dword v{FL}, v{FL+2}, s[12:15], s41 offen sc1"

    def guard(tag, load, wait, cmp, earliest):
        slow.append(f"""
{tag}_spin:
        s_mov_b32 s61, 0x80000
{tag}_again:
        {load}
        s_sub_u32 s61, s61, 1
        s_waitcnt {wait}(0)
        {cmp}
        s_cbranch_scc1 {tag}_back
        s_cbranch_vccnz {tag}_again
        s_branch {tag}_back
        """)
        c = chain([cmp, (f"s_cbranch_vccnz {tag}_spin\n{tag}_back:", 2)], earliest=earliest)
        for o in c:
            o.urgent = True
        return c

    check = lambda tag, need: guard(tag, flag_ld, "vmcnt", f"v_cmp_gt_u32 vcc, {need}, v{FL}", 0)
    flag_pin = [(int(OPT.get("fg", 21)), flag_ld + " ;#fl")]
    soft_read = f"ds_read_b32 v{SFL}, v{SFR}"
    soft_check = lambda: guard(f"fs{len(slow)}", soft_read, "lgkmcnt", f"v_cmp_gt_u32 vcc, v{SFC}, v{SFL}", SG + 6)

    def chunk(mains, par, extra, pins=(), order=None, nxt_order=None, last=False, endtag='', loads=(), gate=None, prog=False, sin=False, sout=False, step=CH, double=None):
        cur, nxt = (LA, LB) if par == 0 else (LB, LA)
        order = order or list(range(36))
        nxt_order = nxt_order or list(range(36))
        pinned = list(pins)
        for i in range(36):
            j = i + PD
            if j < 36 or not last:
                pinned.append((2 * i, rdf(j, order[j] if j < 36 else nxt_order[j - 36], cur if j < 36 else nxt)))
            if i % 4 == 3 and not (last and i == 35):
                n = PD - 4 if not last else max(0, min(PD - 4, 36 - (i + 5)))
                vm = ""
                if sin and 2 * i + 1 == SG + 6:
                    n = 3
                if sout:
                    if i == 31:
                        vm = f"vmcnt(@d{1-par}) "
                    if i == 35:
                        n, vm = n + 1, (f"vmcnt(@{endtag[1:]}) " if endtag else "")
                elif i == 35:
                    vm = f"vmcnt(@d{1-par}{endtag}) " if not (double and par) else ""
                pinned.append((2 * i + 1, f"s_waitcnt {vm}lgkmcnt({n})"))
        if not last:
            pinned.append((40, f"v_xor_b32 v{nxt}, {2*CH}, v{nxt}"))
        st = [o for o in extra[1] if 'store' in o.text]
        rest = [o for o in extra[1] if 'store' not in o.text]
        dm, pr, sc = dma(par, loads, gate, sin, step), (progress(prog) if prog else []), []
        if double:
            dm, second = dma(1, tag=double[0]), dma(0, tag=double[1])
            if par:
                dm = chain([(x, int("buffer" in x)) for i in range(6, 9) for x in early4(i)] + [f"s_add_u32 s43, s43, {CH}"])
            second[0].deps.append((dm[-1], 0))
            dm += second
        if sin:
            sc = soft_check()
            if gate:
                sc[0].deps.append((gate, 0))
            pinned.append((SG, soft_read))
            for o in dm + pr:
                if " lds" in o.text or "store" in o.text:
                    o.deps.append((sc[-1], 0))
        if sout:
            pinned += [(62, f"v_add_u32 v{SFC}, 1, v{SFC}"), (65, f"ds_write_b32 v{SFW}, v{SFC}")]
        txt, over, lastgap = sched2(mains, pinned, extra[0] + sc + pr + st + dm + rest, vspan=VS, vstart=1)
        ab = OPT.get("ab", "")
        if ab:
            keep, nd = [], 0
            for ln in txt.splitlines():
                if ln.startswith("ds_read_b128"):
                    nd += 1
                    if "r" in ab and (nd // 2) % 2:
                        ln = "ds_read_b32 v4, v2"
                if "d" in ab and " lds" in ln or "h" in ab and ";#h" in ln:
                    continue
                if "v" in ab and ln.startswith(("v_exp", "v_rcp", "v_fma")):
                    continue
                keep.append(ln)
            txt = "\n".join(keep)
        b(txt)
        if not last and not sout:
            b("s_barrier")
        return over, lastgap

    def p1_mains(st):
        return [mf16(v(acc1(st, gu, rt), 4), ring(2 * ks + gu), xb(ks, rt), "0" if ks == 0 else v(acc1(st, gu, rt), 4))
                for ks in range(18) for gu in range(2) for rt in range(2)]

    acc2 = lambda tl, rt: ACC2 + (tl * 2 + rt) * 4

    def p2_mains(c, first=False):
        return [mf16(v(acc2(tl, rt), 4), ring(9 * m + tl), hr(c, m, rt), "0" if first and m == 0 else v(acc2(tl, rt), 4))
                for m in range(4) for tl in range(9) for rt in range(2)]

    plan = {c: [] for c in range(P0, 27)}
    early = [(u, m, rt) for u in range(4) for m in range(4) for rt in range(2)]
    quota = {c: 0 for c in range(P0 + 1, 18)}
    for _ in early:
        c = min(quota, key=lambda c: (quota[c] + (0 if c % 2 else 1), c))
        quota[c] += 1
    for c in quota:
        plan[c], early = early[:quota[c]], early[quota[c]:]
    late = [(u, m, rt) for u in range(4, 8) for m in range(4) for rt in range(2)]
    L0, L1 = int(OPT.get("l0", 18)), int(OPT.get("l1", 24))
    for k, x in enumerate(late):
        plan[L0 + k * (L1 - L0) // len(late)].append(x)
    plan[24] += [(8, m, rt) for m in range(4) for rt in range(2)]
    need = {c: max([u for u, _, _ in plan[c]], default=-3) + 3 for c in plan}
    checks, seen = {P0 + 1: (P0 - 1) // 2}, (P0 - 1) // 2
    assert need[P0 + 1] <= seen and XA >= 4
    for c in range(P0 + 2, 26, 2):
        want = max(need[c], need[c + 1])
        if want > seen:
            assert want <= (c - 1) // 2 and c > P0 + 2
            checks[c] = seen = max(x for x in need.values() if x <= (c - 1) // 2)
    if OPT.get("nock"):
        checks = {c: 0 for c in checks}
    print("h plan", {c: len(x) for c, x in plan.items()}, "checks", checks, file=sys.stderr)

    def hstream(c):
        ld, cur = [], None
        for u, m, rt in plan[c]:
            off = 2048 * (u % 2) + 1024 * rt
            x = [f"buffer_load_dwordx4 {hr(18+u,m,rt)}, v{VH+m}, s[12:15], s47 offen" + (f" offset:{off}" if off else "") + f"{OPT.get('hf', ' sc1')} ;#h{u}"]
            if u // 2 != cur:
                cur = u // 2
                x.insert(0, f"s_mov_b32 s47, {4096*(cur % int(OPT.get('hmod', 9)))}")
            ld.append(x)
        return ld

    over = []
    for c in (3, 4):
        lo, hi = swiglu(2 * (c - 3), 0), swiglu(2 * (c - 3) + 1, 1, 160)
        for o in lo:
            o.bias = getattr(o, "bias", 0) + 2
        for o in hi:
            if "store" in o.text:
                o.deps += [(x, 0) for x in lo if "cvt" in x.text]
        over.append(chunk(p1_mains(3 if c == 3 else 0), c % 2, ([], lo + hi), double=("da", "db") if c == 3 else ("d1", "d0"),
                          pins=[(55, f"s_waitcnt vmcnt(@{'da' if c == 3 else 'db'})"), (55, "s_barrier")]))
    b(".p2align 3\nf_p1:")
    over.append(chunk(p1_mains(1), 1, ([], swiglu(0, 0)), prog=not OPT.get('nolp'), sin=SOFT, sout=SOFT))
    b("f_p1b:")
    over.append(chunk(p1_mains(0), 0, ([], swiglu(1, 1) + [Op("s_sub_u32 s47, s47, 1")]), sin=SOFT, sout=SOFT))
    b("s_cmp_lg_u32 s47, 0\ns_cbranch_scc1 f_p1")
    stamp(b, 21)
    tmaj = [9 * m + tl for tl in range(9) for m in range(4)]
    H0, H1 = int(OPT.get("h0", 12)), int(OPT.get("h1", 20))
    soft_edge = lambda c: SOFT and (c == P0 or not H0 <= c < H1)
    for c in range(P0, 26):
        ck = check(f"f{c}", checks[c]) if c in checks else []
        gate = ck[-1] if ck else None
        front = ck
        loads = hstream(c)
        act = swiglu(1 - c % 2, 1 - c % 2) if c <= 18 else []
        over.append(chunk(p1_mains(c % 2) if c < 18 else p2_mains(c, c == 18), c % 2, (front, act),
                          endtag=(f",h{c-17}" if c >= 17 else "") + (",fl" if c + 1 in checks else ""), pins=flag_pin if c + 1 in checks else [], nxt_order=tmaj if c == 25 else None, loads=loads, gate=gate, prog=(c + 1) // 2 if c % 2 and (c + 1) // 2 in checks.values() else False, sin=soft_edge(c), sout=soft_edge(c + 1), step=CH // 2 if c == 24 else CH))
        stamp(b, 100 + c)
        if c in (17, 18, 24):
            stamp(b, {17: 22, 18: 23, 24: 24}[c])
    mains = [mf16(v(acc2(tl, rt), 4), ring(4 * tl + m), hr(26, m, rt), v(acc2(tl, rt), 4)) for tl in range(9) for m in range(4) for rt in range(2)]

    def out_tile(tl):
        r, p, q = ACC1 + 4 * tl, acc2(tl, 0), acc2(tl, 1)
        return [f"v_cvt_pk_bf16_f32 v{r}, v{p}, v{p+1}", f"v_cvt_pk_bf16_f32 v{r+1}, v{p+2}, v{p+3}",
                f"v_cvt_pk_bf16_f32 v{r+2}, v{q}, v{q+1}", f"v_cvt_pk_bf16_f32 v{r+3}, v{q+2}, v{q+3}",
                (f"v_permlane16_swap_b32 v{r}, v{r+2}", 1), (f"v_permlane16_swap_b32 v{r+1}, v{r+3}", 0),
                f"buffer_store_dwordx4 {v(r,4)}, v{UO}, s[12:15], s{34+tl//8} offen offset:{512*(tl%8)} sc1 ;#o{tl//3}",
                f"ds_write_b128 v{LO}, {v(r,4)} offset:{1024*tl}"]

    outs, prev = [], None
    for tl in range(7):
        c = chain(out_tile(tl)[:7], earliest=8 * tl + 12, after=prev)
        outs += c
        prev = c[-1]
    over.append(chunk(mains, 0, (outs, []), order=tmaj, last=True, sin=soft_edge(26)))
    for tl in (7, 8):
        for t in out_tile(tl)[:7]:
            if isinstance(t, tuple):
                b(("s_nop 0\n" if t[1] else "") + t[0])
            else:
                b(t)
    b(f"s_cmp_lg_u32 s36, s{SW}\ns_cbranch_scc1 f_nokeep")
    for tl in range(9):
        b(out_tile(tl)[7])
    b("f_nokeep:")
    stamp(b, 25)
    print("ffn (overflow, last gap):", over, file=sys.stderr)
    return "\n".join(slow)


def phase_r(b, name):
    D0, PK, UO = 96, 80, 156
    side = B()
    d = lambda src, n: D0 + (src * 3 + n) * 4

    def add(src, n):
        for j in range(4):
            for h in range(2):
                r = RES + 8 * n + 2 * j + h
                b(f"v_dot2_f32_bf16 v{r}, v{d(src,n)+j}, s{30+h}, v{r}")

    def announce(n):
        b(f"s_waitcnt vmcnt(@o{n})\ns_mov_b64 exec, 1\nbuffer_atomic_add v3, v2, s[12:15], s37 offen offset:{128*n} sc1\ns_mov_b64 exec, -1")

    b(f"""
    s_mul_i32 s35, s{SW}, 3072
    s_add_u32 s35, s35, {4*CH}
    v_add_u32 v6, s35, v1
    """)
    announce(0)
    b("s_waitcnt lgkmcnt(0)\ns_barrier")
    for n in range(3):
        b(f"ds_read_b128 {v(d(0,n),4)}, v6 offset:{1024*n}")
    stats_target(b)
    tile_base(b, 34, 35)
    b(f"s_add_u32 s35, s34, s{SL}\ns_add_u32 s35, s35, {PART}")
    for k in range(1, 4):
        b(f"s_add_u32 s38, s36, {k}\ns_and_b32 s38, s38, 3\ns_mul_i32 s38, s38, {SZX}\ns_add_u32 s{39+k}, s38, s35")
    announce(1)
    b(f"""
    s_mov_b32 s20, s12
    s_mov_b32 s21, s13
    s_mov_b32 s22, {SZX}
    s_mov_b32 s23, 0x20000
    v_mov_b32 v10, v{UO}
    s_cmp_eq_u32 s{SL}, 0
    s_cbranch_scc1 r_mid
    """)
    row_tile(b, 10, 34)
    b(f"""
    s_mov_b32 s20, s6
    s_mov_b32 s21, s7
r_mid:
    s_lshl_b32 s39, s{SI}, 4
    s_add_u32 s39, s39, s{SJ}
    s_lshl_b32 s39, s39, 2
    s_add_u32 s39, s39, s{SW}
    s_waitcnt lgkmcnt(0)
    """)
    for n in range(3):
        add(0, n)
    b(f"""
    s_lshl_b32 s60, s39, 7
    s_add_u32 s60, s60, s{SC}
    s_add_u32 s60, s60, {C_P}
    s_cmp_eq_u32 s{SW}, 0
    s_cselect_b32 s60, s60, {OOB}
    buffer_load_dword v4, v2, s[12:15], s60 offen sc1
    """)
    announce(2)
    stamp(b, 26)
    b(f"s_cmp_eq_u32 s{SW}, 3\ns_cbranch_scc1 r_wq\ns_waitcnt vmcnt(1)\nv_cmp_gt_u32 vcc, 3, v4\ns_nop 0\ns_cbranch_vccz r_ok")
    poll(b, "r", C_P, 39, 3, False)
    stamp(b, 27)
    side(f"r_wq:\ns_cmp_lg_u32 s{SL}, 0\ns_cbranch_scc1 r_exit\ns_mov_b32 m0, {2*CH}\ns_nop 0")
    dma_run(side, 36, 16, 43, " sc1")
    side("s_waitcnt vmcnt(36)\ns_branch r_bar")
    for n in range(3):
        for src in range(1, 4):
            b(f"buffer_load_dwordx4 {v(d(src,n),4)}, v{UO}, s[12:15], s{39+src} offen offset:{512*n} sc1 ;#p{src}{n}")
    b(f"s_cmp_lg_u32 s{SL}, 0")
    for n in range(3):
        for src in range(1, 4):
            b(f"s_waitcnt vmcnt(@p{src}{n})")
            add(src, n)
        pack4(b, PK + 4 * n, RES + 8 * n, RES + 8 * n + 4)
        b(f"""
        s_cbranch_scc1 r_out{n}
        buffer_store_dwordx4 {v(PK+4*n,4)}, v10, s[20:23], s34 offen offset:{512*n} sc1
r_back{n}:
        """)
        side(f"r_out{n}:\nbuffer_store_dwordx4 {v(PK+4*n,4)}, v10, s[20:23], s34 offen offset:{32*n}\ns_branch r_back{n}")
    b("s_cbranch_scc1 r_exit")
    stats_publish(b, S2)
    stamp(b, 28)
    signal(b, "r", C_X2, STJ, wave=2)
    if DIAG:
        stamp(b, 29)
        stamp_real(b, 31)
        stamp_flush(b, "2")
        stamp_real(b, 30)
        stamp(b, 0)
    b(f"""
    s_mov_b32 s{SL}, {LST}
    s_add_u32 s{SC}, s{SC}, {CL}
    s_branch layer
r_exit:
    """)
    return side.text()


def walk(b, tag, lo, hi):
    if int(OPT.get("pad", 0)):
        b(f"s_nop 0 ;@walk {tag} {lo} {hi}")


def add_pads(txt):
    import subprocess
    sys.path.insert(0, "cdna_kernels")
    from cdna_launch import with_harness_metadata
    lines = txt.replace(".text\n", ".text\n.p2align 12\n", 1).splitlines()
    is_ins = lambda x: (lambda t: t and not t.startswith(".") and not t.endswith(":"))(x.split(";")[0].strip())

    def expand(pads, mark):
        out = []
        for i, x in enumerate(lines):
            if i in pads:
                out += [f"pad{pads.index(i)}:", "  s_cbranch_execz pad_end"]
            if ";@walk" in x:
                tag, lo, hi = x.split()[-3:]
                mine = [k for k, p in enumerate(pads) for a_, b_ in zip(lo.split(","), hi.split(",")) if lines.index(a_ + ":") <= p < lines.index(b_ + ":")]
                assert len(mine) <= 8
                out.append("  s_mov_b64 exec, 0")
                for w in range(4):
                    out += [f"  s_cmp_lg_u32 s{SW}, {w}", f"  s_cbranch_scc1 {tag}_w{w}"]
                    out += [f"  s_call_b64 s[60:61], pad{mine[k]}" if k < len(mine) else "  s_nop 0" for k in (w, w + 4)]
                    out.append(f"{tag}_w{w}:")
                out.append("  s_mov_b64 exec, -1")
            elif x.startswith("layer:"):
                out += ["  s_branch layer", "pad_end:", "  s_setpc_b64 s[60:61]", x]
            else:
                out.append(x + (f"\nmark{i}:" if mark and start < i < stop - 1 and is_ins(x) else ""))
        return "\n".join(out) + "\n"

    start, stop = lines.index("main_kernel:"), lines.index("main_code_end:")
    pads = []
    while True:
        open("pads.s", "w").write(with_harness_metadata(expand(pads, True), None, 10, launch_lists=True))
        subprocess.run(["clang", "-x", "assembler", "-target", "amdgcn-amd-amdhsa", "-mcpu=gfx950", "-c", "pads.s", "-o", "pads.o"], check=True)
        sym = subprocess.run(["llvm-objdump", "-t", "pads.o"], capture_output=True, text=True).stdout
        adr = {m.group(2): int(m.group(1), 16) for m in re.finditer(r"^([0-9a-f]+) .* (\w+)$", sym, re.M)}
        want = (adr["main_kernel"] // 4096 + len(pads) + 1) * 4096
        cand = [i for i in range(start, stop) if adr.get(f"mark{i}", -1) >= want and is_ins(lines[i + 1])
                and "exec" not in lines[i] and "exec" not in lines[i-1] and not lines[i].strip().startswith(("s_branch", "s_endpgm", "ds_write", "buffer_atomic"))]
        if not cand:
            break
        pads.append(cand[0] + 1)
    print("pads:", len(pads), file=sys.stderr)
    return expand(pads, False)


def gen_main(name):
    b = B()
    JB = int(OPT.get("jb", 2))
    head(b, name, 256, [(4, "ws"), (6, "out"), (100, "x")])
    b(f"""
    v_lshrrev_b32 v5, 6, v0
    v_and_b32 v1, 63, v0
    v_lshlrev_b32 v1, 4, v1
    v_readfirstlane_b32 s{SW}, v5
    v_mov_b32 v2, 0
    v_mov_b32 v3, 1
    """)
    b(f"""
    s_bfe_u32 s34, s2, {(4-JB) << 16}
    s_lshl_b32 s34, s34, {JB}
    s_bfe_u32 s35, s2, {(JB << 16) + 3}
    s_add_u32 s{SJ}, s34, s35
    s_bfe_u32 s34, s2, {((JB-1) << 16) + 4 - JB}
    s_lshl_b32 s34, s34, {5-JB}
    s_lshr_b32 s35, s2, {3+JB}
    s_add_u32 s{SI}, s34, s35
    s_lshl_b32 s34, s{SI}, 2
    s_add_u32 s{STW}, s34, s{SW}
    s_lshr_b32 s35, s{SJ}, 2
    s_add_u32 s{STJ}, s34, s35
    s_mov_b32 s{SL}, 0
    s_mov_b32 s{SC}, {CNT}
    s_mov_b32 s30, 0x3f80
    s_mov_b32 s31, 0x3f800000
    s_lshl_b32 s10, s{SW}, 10
    s_mul_i32 s11, s{SJ}, {WQH}
    s_add_u32 s11, s11, s10
    s_add_u32 s11, s11, {WQ}
    """)
    phase_p(b)
    stamp(b, 207)
    raw_setup(b)
    if int(OPT.get("w1", 1)):
        walk(b, "wk1", "layer,r_exit", "a_sig,main_code_end")
    b("layer:")
    phase_q(b)
    slow = phase_a(b)
    slow += phase_o(b)
    slow += phase_f(b)
    slow += "\n" + phase_r(b, name)
    finish(b, name, "3")
    b(slow)
    b("main_code_end:")
    return dict(name=name, text=resolve_waits(b.text()), grid=256, block=256, lds=163840)


def build_all():
    import gen
    gen.OPT.clear()
    gen.OPT.update(ab=OPT.get('ab', ''))
    NAME = "interleave_layers__mha_block__glu_gated_swiglu__prompt_kernel"
    ks = [gen_main(NAME)]
    txt = gen.assemble(ks, [k["name"] for k in ks])
    txt = re.sub(r"(quad_perm|op_sel|op_sel_hi|neg_lo|neg_hi):\[([\d:]+)\]", lambda m: f"{m.group(1)}:[{m.group(2).replace(':', ',')}]", txt)
    return txt if OPT.get("list") else txt.replace(f"kernel={NAME} ", "")


if __name__ == "__main__":
    for x in [x for x in sys.argv if "=" in x]:
        k, val = x.split("=")
        OPT[k] = val.replace("_", " ")
        sys.argv.remove(x)
    if "--diag" in sys.argv:
        DIAG = True
        sys.argv.remove("--diag")
    open(sys.argv[1], "w").write(build_all())
```

```python
import math, re, struct, sys
from asmlib import B, Prog, v, a, s, weave, Op, chain, sched, sched2, resolve_waits
from gen import fbits, sdiv, srd, mf16, transpose8, ARG, HEADER

SZX = 2048 * 576 * 2
REC = 2432
KVJ = 128 * REC
X2, OB, X1, PART, HB, KV = 0, SZX, 2 * SZX, 3 * SZX, 7 * SZX, 15 * SZX
S1 = KV + 16 * KVJ
S2 = S1 + 64 * 3072
LST = S2 + 64 * 3072
WQ = 2 * LST
WQH = 126 * 1024
WO = WQ + 16 * WQH
WOS = 164 * 1024
WF = WO + 4 * WOS
CH = 36864
WFS = 31 * CH
CNT = WF + 16 * WFS
BAR = CNT + 393216
WS_END = BAR + 4096
CL = 196608
C_PREP = 32 * 128
C_ROLE = CL + 128 * 128
LOFF = 0x30000
C_KV, C_O, C_X1, C_X2, C_H, C_P = 0, 16 * 128, 64 * 128, 128 * 128, 256 * 128, 512 * 128
RES = 232
OOB = 0x40000000
QX = 131072
STAMPS = 200 << 20
OPT = {}
DIAG = False
SI, SJ, SL, SC, STW, STJ, SW = 24, 25, 26, 27, 28, 29, 33


def bstamp(b, k):
    if DIAG and OPT.get("brk"):
        b("s_memtime s[62:63]\ns_waitcnt lgkmcnt(0)")
        for st in range(4):
            b(f"s_cmp_eq_u32 s32, {st}\ns_cselect_b32 s{74+2*st+k}, s62, s{74+2*st+k}")


def stamp(b, i):
    if OPT.get("pst0"):
        i = i - 200 if i >= 200 else {0: 0, 1: 10, 2: 11, 3: 12, 29: 29}.get(i)
    elif i >= 200:
        return
    if OPT.get("fch") and 0 < i < 29:
        i = {21: 10, 25: 26, 26: 27, 27: 28}.get(i)
    if OPT.get("fch") and i is not None and i >= 100:
        i -= 100
    if i is not None and i >= 100:
        return
    if OPT.get("brk") and 10 <= i < 29:
        i = {10: 18}.get(i)
    if DIAG and i is not None:
        b(f"{'s_memrealtime' if OPT.get('rt') else 's_memtime'} s[62:63]\ns_waitcnt lgkmcnt(0)\ns_mov_b32 s{64+i}, s62")


def stamp_real(b, i):
    if DIAG:
        b(f"s_memrealtime s[62:63]\ns_waitcnt lgkmcnt(0)\ns_mov_b32 s{64+i}, s62")


def stamp_flush(b, slot):
    if not DIAG:
        return
    b(f"""
    s_lshl_b32 s62, {slot}, 8
    s_add_u32 s62, s62, s2
    s_lshl_b32 s62, s62, 4
    s_add_u32 s62, s62, s{SW}
    s_lshl_b32 s62, s62, 7
    s_add_u32 s96, s4, {STAMPS}
    s_addc_u32 s97, s5, 0
    s_mov_b32 s98, {32 << 20}
    s_mov_b32 s99, 0x20000
    v_mov_b32 v8, 0
    """)
    for q in range(8):
        for j in range(4):
            b(f"v_mov_b32 v{4+j}, s{64+4*q+j}")
        b(f"buffer_store_dwordx4 v[4:7], v8, s[96:99], s62 offen offset:{16*q}\ns_nop 1")


def head(b, name, nwg, loads):
    b(f"s_cmp_ge_u32 s2, {nwg}\ns_cbranch_scc1 {name}_end")
    if DIAG:
        for i in range(32):
            b(f"s_mov_b32 s{64+i}, 0")
        stamp_real(b, 30)
        stamp(b, 0)
    for reg, arg in loads:
        b(f"s_load_dwordx2 s[{reg}:{reg+1}], s[0:1], {ARG[arg]}")


def finish(b, name, slot):
    if DIAG:
        b("s_waitcnt vmcnt(0)")
        stamp(b, 29)
        stamp_real(b, 31)
        stamp_flush(b, slot)
    b(f"{name}_end:\ns_endpgm")


def window(b, d, off, size):
    b(f"s_add_u32 s{d}, s4, s{off}\ns_addc_u32 s{d+1}, s5, 0\ns_mov_b32 s{d+2}, {size}\ns_mov_b32 s{d+3}, 0x20000")


def ln_tail(b, A0, n, mean, rstd, dst):
    for j in range(n):
        b(f"v_sub_f32 v{A0+j}, v{A0+j}, v{mean}")
    for j in range(n):
        b(f"v_mul_f32 v{A0+j}, v{A0+j}, v{rstd}")
    for j in range(n // 2):
        b(f"v_cvt_pk_bf16_f32 v{dst+j}, v{A0+2*j}, v{A0+2*j+1}")


def ln_stats(b, sm, sq):
    b(f"""
    v_mul_f32 v{sm}, {fbits(1/576)}, v{sm}
    v_mul_f32 v{sq}, {fbits(1/576)}, v{sq}
    v_fma_f32 v{sq}, -v{sm}, v{sm}, v{sq}
    v_max_f32 v{sq}, 0, v{sq}
    v_add_f32 v{sq}, {fbits(1e-5)}, v{sq}
    """)


def row_reduce(b, sm, sq):
    b(f"""
    s_nop 1
    v_permlane32_swap_b32 v{sm}, v{sq}
    s_nop 0
    v_add_f32 v{sm}, v{sm}, v{sq}
    v_mov_b32 v{sq}, v{sm}
    s_nop 1
    v_permlane16_swap_b32 v{sm}, v{sq}
    s_nop 0
    v_add_f32 v{sm}, v{sm}, v{sq}
    s_nop 1
    v_add_f32 v{sm}, v{sm}, v{sm} row_ror:8 row_mask:0xf bank_mask:0xf
    """)


def phase_p(b, ids):
    XD, A0, WQD, WTD, WOD, PKD = 16, 32, 64, 80, 88, 96
    b(f"""
    s_load_dwordx4 s[40:43], s[0:1], {ARG['wqkv']}
    s_load_dwordx2 s[44:45], s[0:1], {ARG['dbg']}
    """)
    if int(OPT.get("pf0", 0)):
        n = int(OPT.get("pf0n", 0))
        b(f"""
        s_getpc_b64 s[46:47]
        s_and_b32 s48, s2, 0xf8
        s_lshl_b32 s48, s48, {4+n}
        s_add_u32 s46, s46, s48
        s_addc_u32 s47, s47, 0
        v_and_b32 v4, {128*n}, v0
        v_mov_b32 v5, s47
        v_add_co_u32 v4, vcc, s46, v4
        s_nop 1
        v_addc_co_u32 v5, vcc, 0, v5, vcc
        global_load_dword v122, v[4:5], off
        """)
    b(f"""
    v_lshrrev_b32 v5, 6, v0
    v_and_b32 v4, 63, v0
    s_lshl_b32 s35, s2, 2
    v_readfirstlane_b32 s{SW}, v5
    v_and_b32 v5, 7, v0
    v_lshrrev_b32 v6, 3, v0
    s_add_u32 s35, s35, s{SW}
    s_and_b32 s37, s35, 7
    s_lshr_b32 s38, s35, 3
    s_mul_i32 s36, s38, 171
    s_lshr_b32 s36, s36, 9
    s_mul_i32 s39, s36, 3
    s_sub_u32 s38, s38, s39
    s_mul_i32 s46, s36, {16*3456}
    s_mul_i32 s39, s38, 1152
    s_add_u32 s46, s46, s39
    s_mul_i32 s39, s37, 144
    s_add_u32 s46, s46, s39
    v_and_b32 v56, 15, v0
    v_lshrrev_b32 v57, 5, v4
    v_bfe_u32 v58, v0, 4, 1
    v_bfe_u32 v59, v0, 3, 1
    v_bfe_u32 v60, v0, 2, 1
    s_cmp_eq_u32 s38, 2
    s_cselect_b32 s48, 36, 8
    s_cselect_b32 s49, 16, 36
    s_cselect_b32 s50, 8, 16
    v_mul_u32_u24 v10, 72, v57
    v_mad_u32_u24 v10, v58, s48, v10
    v_mad_u32_u24 v10, v59, s49, v10
    v_mad_u32_u24 v10, v60, s50, v10
    v_and_b32 v61, 3, v0
    v_lshl_add_u32 v10, v61, 1, v10
    v_mul_u32_u24 v7, 1152, v5
    v_lshl_add_u32 v7, v6, 4, v7
    v_mov_b32 v9, {OOB}
    v_cmp_gt_u32 vcc, 64, v0
    s_mul_i32 s34, s2, 9216
    s_mov_b32 s22, {576*1728*2}
    v_cndmask_b32 v8, v9, v7, vcc
    s_mov_b32 s23, 0x20000
    s_mov_b32 s18, {SZX}
    s_mov_b32 s19, 0x20000
    s_mov_b32 s39, s46
    s_waitcnt lgkmcnt(0)
    s_mov_b32 s16, s100
    s_mov_b32 s17, s101
    s_mov_b32 s20, s40
    s_mov_b32 s21, s41
    s_cmp_eq_u32 s35, 3
    s_cbranch_scc1 p_clear
p_x:
    buffer_load_dwordx4 {v(XD,4)}, v7, s[16:19], s34 offen ;#x
    buffer_load_dwordx4 {v(XD+4,4)}, v7, s[16:19], s34 offen offset:512 ;#x
    buffer_load_dwordx4 {v(XD+8,4)}, v8, s[16:19], s34 offen offset:1024 ;#x
    """)
    assert all((t * 171) >> 9 == t // 3 for t in range(128))
    for j in range(16):
        b(f"buffer_load_ushort v{WQD+j}, v10, s[20:23], s39 offen" + (" offset:3456" if j % 2 else "") + " ;#q")
        if j % 2 and j < 15:
            b("s_add_u32 s39, s39, 6912")
    stamp(b, 201)
    b(f"""
    v_bfe_u32 v10, v0, 1, 2
    v_mul_u32_u24 v10, 36, v10
    v_and_b32 v11, 1, v0
    v_lshl_add_u32 v10, v11, 1, v10
    v_mul_u32_u24 v11, {8*3456}, v59
    v_add3_u32 v10, v10, v11, 32
    v_cmp_gt_u32 vcc, 16, v4
    v_lshlrev_b32 v1, 4, v4
    v_mov_b32 v2, 0
    v_cndmask_b32 v10, v9, v10, vcc
    v_mov_b32 v3, 1
    """)
    for j in range(8):
        b(f"buffer_load_ushort v{WTD+j}, v10, s[20:23], s46 offen" + (" offset:3456" if j % 2 else "") + " ;#t")
        if j % 2 and j < 7:
            b("s_add_u32 s46, s46, 6912")
    srd(b, 12, 4, 0, WS_END)
    for i in range(4):
        b(f"v_mov_b32 v{12+i}, 0")
    b("s_cmp_lg_u32 s35, 3\ns_cbranch_scc1 p_noboot")
    srd(b, 20, 44, 0, 256)
    b("s_waitcnt vmcnt(27)\ns_mov_b64 exec, 1\nbuffer_store_dword v3, v2, s[20:23], 0 offen sc1\ns_mov_b64 exec, -1\ns_branch p_noboot\np_clear:")
    srd(b, 12, 4, BAR, 4096)
    b("v_lshlrev_b32 v1, 4, v4")
    for i in range(4):
        b(f"v_mov_b32 v{12+i}, 0")
    for i in range(4):
        b(f"buffer_store_dwordx4 v[12:15], v1, s[12:15], 0 offen offset:{1024*i} sc1")
    b("s_branch p_x\np_noboot:")
    b(f"""
    s_lshr_b32 s47, s36, 1
    s_mul_i32 s47, s47, 7168
    s_and_b32 s39, s36, 1
    s_lshl_b32 s39, s39, 9
    s_add_u32 s47, s47, s39
    s_mul_i32 s39, s37, {2*WQH}
    s_add_u32 s47, s47, s39
    s_add_u32 s47, s47, {WQ}
    s_cmp_ge_u32 s36, 36
    s_cselect_b32 s47, {OOB}, s47
    s_lshl_b32 s39, s38, 6
    s_add_u32 s48, s47, s39
    s_add_u32 s48, s48, 6144
    s_lshl_b32 s39, s38, 11
    s_add_u32 s47, s47, s39
    v_mul_u32_u24 v11, {WQH}, v57
    v_lshl_add_u32 v11, v58, 10, v11
    v_lshl_add_u32 v11, v56, 4, v11
    v_mul_u32_u24 v62, {WQH}, v60
    v_lshl_add_u32 v62, v59, 8, v62
    v_lshl_add_u32 v62, v61, 4, v62
    v_mul_u32_u24 v63, 192, v58
    s_cmp_eq_u32 s38, 0
    s_cselect_b32 s39, 32, 16
    v_cmp_gt_u32 vcc, s39, v4
    v_add_u32 v62, v62, v63
    s_nop 0
    v_cndmask_b32 v120, v9, v62, vcc
    """)
    b("s_sub_u32 s35, 1023, s35")
    sdiv(b, 36, 35, 9, 1024)
    b(f"""
    s_mul_i32 s37, s36, 9
    s_sub_u32 s37, s35, s37
    s_lshr_b32 s46, s36, 1
    s_mul_i32 s46, s46, {18*1152}
    s_and_b32 s39, s36, 1
    s_mul_i32 s39, s39, {4*1152}
    s_add_u32 s46, s46, s39
    s_mov_b32 s50, {8*1152}
    s_mov_b32 s51, {2*1152}
    s_cmp_lt_u32 s36, 64
    s_cbranch_scc1 p_wo2
    s_sub_u32 s46, s36, 64
    s_mul_i32 s46, s46, {72*1152}
    s_add_u32 s46, s46, {16*1152}
    s_mov_b32 s50, {36*1152}
    s_mov_b32 s51, {18*1152}
p_wo2:
    s_lshl_b32 s39, s37, 7
    s_add_u32 s46, s46, s39
    s_and_b32 s49, s36, 3
    s_lshl_b32 s49, s49, 8
    s_add_u32 s49, s49, {WO}
    s_cmp_lt_u32 s35, 648
    s_cselect_b32 s46, s46, {OOB}
    s_cmp_lt_u32 s35, 648
    s_cselect_b32 s49, s49, {OOB}
    v_lshlrev_b32 v59, 1, v4
    """)
    srd(b, 20, 42, 0, 576 * 576 * 2)
    for j in range(8):
        if j % 2 == 0:
            b("s_mov_b32 s39, s46" + ("\ns_add_u32 s39, s39, s50" if j & 4 else "") + ("\ns_add_u32 s39, s39, s51" if j & 2 else ""))
        b(f"buffer_load_ushort v{WOD+j}, v59, s[20:23], s39 offen" + (" offset:1152" if j % 2 else "") + " ;#o")
    if int(OPT.get("pf", 1)):
        b(f"""
        s_getpc_b64 s[40:41]
p_pc:
        s_bfe_u32 s39, s2, 0x50003
        s_lshl_b32 s39, s39, 2
        s_add_u32 s39, s39, s{SW}
        s_lshl_b32 s39, s39, 9
        v_and_b32 v60, 3, v0
        v_lshl_add_u32 v60, v60, 7, s39
        v_min_u32 v60, main_code_end-p_pc-4, v60
        v_mov_b32 v61, s41
        v_add_co_u32 v60, vcc, s40, v60
        s_nop 1
        v_addc_co_u32 v61, vcc, 0, v61, vcc
        global_load_dword v121, v[60:61], off
        """)
    b(f"""
    s_lshr_b32 s36, s36, 2
    s_lshl_b32 s37, s37, 2
    v_lshrrev_b32 v57, 4, v4
    v_add_u32 v57, s37, v57
    v_mul_u32_u24 v58, 43, v57
    v_lshrrev_b32 v58, 7, v58
    v_mul_u32_u24 v59, 3, v58
    v_sub_u32 v59, v57, v59
    v_mad_u32_u24 v59, v59, 18, s36
    v_mul_u32_u24 v57, 43, v58
    v_lshrrev_b32 v57, 7, v57
    v_mul_u32_u24 v60, 3, v57
    v_sub_u32 v58, v58, v60
    v_mad_u32_u24 v60, v58, 12, v59
    v_mad_u32_u24 v61, v58, 26, v59
    v_add_u32 v61, 24, v61
    v_lshl_add_u32 v63, v58, 4, v59
    v_add_u32 v63, 78, v63
    v_cmp_gt_u32 vcc, 12, v59
    v_cmp_gt_u32 s[40:41], 38, v59
    v_mul_u32_u24 v57, {WOS}, v57
    v_lshl_add_u32 v57, v56, 4, v57
    v_cndmask_b32 v61, v63, v61, s[40:41]
    v_cndmask_b32 v60, v61, v60, vcc
    v_lshl_add_u32 v57, v60, 10, v57
    v_lshlrev_b32 v58, 4, v0
    v_cmp_gt_u32 vcc, 96, v0
    s_mul_i32 s36, s2, 1536
    s_add_u32 s36, s36, {CNT}
    v_cndmask_b32 v58, v9, v58, vcc
    v_cmp_gt_u32 vcc, 64, v0
    buffer_store_dwordx4 v[12:15], v58, s[12:15], s36 offen sc1
    v_lshlrev_b32 v7, 8, v6
    v_lshl_add_u32 v7, v5, 4, v7
    v_cndmask_b32 v8, v9, v7, vcc
    s_lshr_b32 s34, s2, 1
    s_mul_i32 s34, s34, 18432
    s_and_b32 s36, s2, 1
    s_lshl_b32 s36, s36, 7
    s_add_u32 s34, s34, s36
    s_add_u32 s34, s34, {LST+X2}
    v_lshlrev_b32 v5, 3, v5
    v_add_u32 v5, {4*CH}, v5
    v_bfe_u32 v6, v0, 5, 1
    v_lshl_add_u32 v6, v6, 2, v5
    v_and_b32 v58, 0xc0, v0
    v_add_u32 v6, v6, v58
    """)
    b(ids)
    stamp(b, 202)
    b("s_waitcnt vmcnt(@x)")
    stamp(b, 203)
    for j in range(12):
        b(f"v_lshlrev_b32 v{A0+2*j}, 16, v{XD+j}\nv_and_b32 v{A0+2*j+1}, 0xffff0000, v{XD+j}")
    b(f"v_pk_add_f32 v[28:29], {v(A0,2)}, {v(A0+2,2)}\nv_pk_mul_f32 v[30:31], {v(A0,2)}, {v(A0,2)}")
    for k in range(2, 24, 2):
        if k > 2:
            b(f"v_pk_add_f32 v[28:29], v[28:29], {v(A0+k,2)}")
        b(f"v_pk_fma_f32 v[30:31], {v(A0+k,2)}, {v(A0+k,2)}, v[30:31]")
    b("v_add_f32 v28, v28, v29\nv_add_f32 v29, v30, v31")
    row_reduce(b, 28, 29)
    b("ds_write_b32 v6, v28\ns_waitcnt lgkmcnt(0)\ns_barrier")
    for w in range(4):
        b(f"ds_read_b64 {v(XD+2*w,2)}, v5 offset:{64*w}")
    b("s_waitcnt lgkmcnt(0)")
    for w in range(1, 4):
        b(f"v_pk_add_f32 {v(XD,2)}, {v(XD,2)}, {v(XD+2*w,2)}")
    ln_stats(b, XD, XD + 1)
    b(f"v_rsq_f32 v{XD+1}, v{XD+1}\ns_add_u32 s36, s34, 8192\nv_mul_f32 v{XD}, v{XD}, v{XD+1}\ns_add_u32 s37, s34, 16384")
    for n in range(3):
        for k in range(0, 8, 2):
            r = v(A0 + 8 * n + k, 2)
            b(f"v_pk_fma_f32 {r}, {r}, {v(XD,2)}, {v(XD,2)} op_sel:[0:1:0] op_sel_hi:[1:1:0] neg_lo:[0:0:1] neg_hi:[0:0:1]")
        pack4(b, PKD + 4 * n, A0 + 8 * n, A0 + 8 * n + 4)
        b(f"buffer_store_dwordx4 {v(PKD+4*n,4)}, v{7 if n < 2 else 8}, s[12:15], s{(34, 36, 37)[n]} offen sc1")
    stamp(b, 204)
    b("s_waitcnt vmcnt(@q)")
    stamp(b, 205)
    for k in range(2):
        for j in range(4):
            b(f"v_lshl_or_b32 v{PKD+12+4*k+j}, v{WQD+8*k+2*j+1}, 16, v{WQD+8*k+2*j}")
        b(f"buffer_store_dwordx4 {v(PKD+12+4*k,4)}, v11, s[12:15], s47 offen offset:{256*k} sc1")
    b("s_waitcnt vmcnt(@t)")
    for j in range(4):
        b(f"v_lshl_or_b32 v{WQD+j}, v{WTD+2*j+1}, 16, v{WTD+2*j}")
    b(f"buffer_store_dwordx4 {v(WQD,4)}, v120, s[12:15], s48 offen sc1\ns_waitcnt vmcnt(@o)")
    for j in range(4):
        b(f"v_lshl_or_b32 v{PKD+20+j}, v{WOD+2*j+1}, 16, v{WOD+2*j}")
    b(f"buffer_store_dwordx4 {v(PKD+20,4)}, v57, s[12:15], s49 offen sc1")
    stamp(b, 206)
    srd(b, 20, 44, 0, 256)
    b(f"""
    s_mov_b32 s61, 0x40000
    s_cmp_lg_u32 s{SW}, 3
    s_cbranch_scc1 p_boot
p_wait:
    buffer_load_dword v4, v2, s[20:23], 0 offen sc1
    s_sub_u32 s61, s61, 1
    s_waitcnt vmcnt(0)
    v_cmp_eq_u32 vcc, 0, v4
    s_cbranch_scc1 p_boot
    s_cbranch_vccz p_boot
    s_sleep 4
    s_branch p_wait
p_boot:
    s_lshr_b32 s34, s2, 3
    """)
    signal(b, "p", BAR - CNT, 34)


def grid_wait(b):
    stamp(b, 208)
    b(f"""
    s_cmp_lg_u32 s{SW}, 3
    s_cbranch_scc1 g_ok
    v_and_b32 v8, 31, v0
    v_lshlrev_b32 v8, 7, v8
    s_mov_b32 s60, {BAR}
    s_mov_b32 s61, 0x40000
g_poll:
    buffer_load_dword v4, v8, s[12:15], s60 offen sc1
    s_sub_u32 s61, s61, 1
    s_waitcnt vmcnt(0)
    v_cmp_gt_u32 vcc, 8, v4
    s_cbranch_scc1 g_ok
    s_cbranch_vccz g_ok
    s_sleep {int(OPT.get("gs", 1))}
    s_branch g_poll
g_ok:
    s_barrier
    """)
    stamp(b, 209)
    for i in range(11):
        b("s_mov_b32 m0, s10\ns_add_u32 s10, s10, 4096\nbuffer_load_dwordx4 v1, s[12:15], s11 offen sc1 lds\ns_add_u32 s11, s11, 4096")


def signal(b, tag, base, idx, wave=3, extra=None):
    b(f"""
    s_lshl_b32 s60, s{idx}, 7
    s_add_u32 s60, s60, s{SC}
    s_add_u32 s60, s60, {base}
    s_waitcnt vmcnt(0) lgkmcnt(0)
{tag}_bar:
    s_barrier
    s_cmp_lg_u32 s{SW}, {wave}
    s_cbranch_scc1 {tag}_sig
    s_mov_b64 exec, 1
    buffer_atomic_add v3, v2, s[12:15], s60 offen sc1
    """)
    if extra:
        b(f"buffer_atomic_add v3, v2, s[12:15], s{extra} offen sc1")
    b(f"s_mov_b64 exec, -1\n{tag}_sig:")


def poll(b, tag, base, idx, target, one_wave):
    b(f"""
    s_lshl_b32 s60, s{idx}, 7
    s_add_u32 s60, s60, s{SC}
    s_add_u32 s60, s60, {base}
    s_mov_b32 s61, 0x40000
    """)
    if one_wave:
        b(f"s_cmp_lg_u32 s{SW}, 3\ns_cbranch_scc1 {tag}_ok")
    b(f"""
{tag}_poll:
    buffer_load_dword v4, v2, s[12:15], s60 offen sc1
    s_sub_u32 s61, s61, 1
    s_waitcnt vmcnt(0)
    v_cmp_gt_u32 vcc, {target}, v4
    s_cbranch_scc1 {tag}_ok
    s_cbranch_vccnz {tag}_poll
{tag}_ok:
    """)
    if one_wave:
        b("s_barrier")


def dma_run(b, n, srdn, soff, flags=""):
    for i in range(n):
        off = f" offset:{1024*(i%4)}" if i % 4 else ""
        b(f"buffer_load_dwordx4 v1, s[{srdn}:{srdn+3}], s{soff} offen{off}{flags} lds")
        if i % 4 == 3 and i < n - 1:
            b(f"s_add_u32 m0, m0, 4096\ns_add_u32 s{soff}, s{soff}, 4096")


def pack4(b, dst, p, q):
    b(f"""
    v_cvt_pk_bf16_f32 v{dst}, v{p}, v{p+1}
    v_cvt_pk_bf16_f32 v{dst+1}, v{p+2}, v{p+3}
    v_cvt_pk_bf16_f32 v{dst+2}, v{q}, v{q+1}
    v_cvt_pk_bf16_f32 v{dst+3}, v{q+2}, v{q+3}
    """)


def unit_offset(b, dst, t0, t1):
    b(f"""
    v_bfe_u32 v{t0}, v0, 4, 1
    v_bfe_u32 v{t1}, v0, 5, 1
    v_mul_u32_u24 v{dst}, 18432, v{t0}
    v_lshl_add_u32 v{dst}, v{t1}, 8, v{dst}
    v_and_b32 v{t0}, 15, v0
    v_lshl_add_u32 v{dst}, v{t0}, 4, v{dst}
    """)


TIM = QX + 18432
VD, TR = 72, 76
QSCALE = fbits(math.log2(math.e) / math.sqrt(18))


def stats_publish(b, base):
    b(f"""
    v_pk_add_f32 v[8:9], {v(RES,2)}, {v(RES+2,2)}
    v_pk_mul_f32 v[10:11], {v(RES,2)}, {v(RES,2)}
    """)
    for k in range(2, 24, 2):
        if k > 2:
            b(f"v_pk_add_f32 v[8:9], v[8:9], {v(RES+k,2)}")
        b(f"v_pk_fma_f32 v[10:11], {v(RES+k,2)}, {v(RES+k,2)}, v[10:11]")
    b(f"""
    v_add_f32 v8, v8, v9
    v_add_f32 v9, v10, v11
    s_add_u32 s38, s62, s{SL}
    s_add_u32 s38, s38, {base}
    v_permlane32_swap_b32 v8, v9
    s_nop 0
    v_add_f32 v8, v8, v9
    buffer_store_dword v8, v13, s[12:15], s38 offen sc1
    """.replace("s62", "s59"))


def stats_target(b):
    b(f"""
    v_and_b32 v13, 15, v0
    v_lshlrev_b32 v13, 4, v13
    v_bfe_u32 v14, v0, 4, 1
    v_lshl_add_u32 v13, v14, 3, v13
    v_bfe_u32 v14, v0, 5, 1
    v_lshl_add_u32 v13, v14, 2, v13
    s_and_b32 s59, s{SJ}, 3
    s_mul_i32 s59, s59, 3
    s_add_u32 s59, s59, s{SW}
    s_lshl_b32 s59, s59, 8
    s_mul_i32 s38, s{STJ}, 3072
    s_add_u32 s59, s59, s38
    """)


def stats_loads(t, so):
    return [f"buffer_load_dwordx4 {v(t+4*n,4)}, v1, s[12:15], s{so} offen offset:{1024*n} sc1 ;#st" for n in range(3)]


def stats_reduce(src, t, eps):
    out = [f"v_add_f32 v{t+k}, v{src+k}, v{src+4+k}" for k in range(4)] + [f"v_add_f32 v{t+k}, v{t+k}, v{src+8+k}" for k in range(4)]
    out += [(f"v_permlane32_swap_b32 v{t}, v{t+1}", 2), f"v_permlane32_swap_b32 v{t+2}, v{t+3}",
            (f"v_add_f32 v{t}, v{t}, v{t+1}", 1), f"v_add_f32 v{t+2}, v{t+2}, v{t+3}",
            (f"v_permlane16_swap_b32 v{t}, v{t+2}", 2), (f"v_add_f32 v{t}, v{t}, v{t+2}", 1), f"v_mul_f32 v{t}, {fbits(1/576)}, v{t}",
            f"v_mov_b32 v{t+1}, v{t}", (f"v_permlane32_swap_b32 v{t}, v{t+1}", 2),
            (f"v_fma_f32 v{t}, -v{t}, v{t}, v{t+1}", 1), f"v_max_f32 v{t}, 0, v{t}", f"v_add_f32 v{t}, {eps}, v{t}",
            f"v_mov_b32 v{t+1}, v{t}", (f"v_permlane16_swap_b32 v{t}, v{t+1}", 2)]
    return out


def emit_chain(b, items):
    for x in items:
        if isinstance(x, tuple):
            b(f"s_nop {x[1]-1}\n{x[0]}")
        else:
            b(x)


def phase_q(b):
    ACC, XQ, TMP, STT, RV, AD = 16, 80, 128, 164, 184, 208
    AQ, GK, GV, AVT, TA, AON, RD, GT = AD, AD + 1, AD + 2, AD + 3, AD + 4, AD + 8, AD + 9, AD + 10
    b(f"""
    s_mul_i32 s34, s{STW}, 36864
    s_add_u32 s34, s34, {LST+X2}
    s_sub_u32 s34, s34, s{SL}
    s_add_u32 s16, s4, s34
    s_addc_u32 s17, s5, 0
    s_mov_b32 s18, 18432
    s_mov_b32 s19, 0x20000
    s_add_u32 s20, s16, 18432
    s_addc_u32 s21, s17, 0
    s_mov_b32 s22, 18432
    s_mov_b32 s23, 0x20000
    v_and_b32 v12, 15, v0
    v_bfe_u32 v4, v0, 4, 2
    v_lshrrev_b32 v13, 1, v4
    v_and_b32 v14, 1, v4
    s_mul_i32 s38, s{SW}, 1152
    s_add_u32 s38, s38, {QX}
    s_mul_i32 s39, s{SW}, 768
    s_add_u32 s39, s39, {TIM}
    v_lshlrev_b32 v15, 4, v12
    v_lshl_add_u32 v15, v14, 9, v15
    v_mul_u32_u24 v{AQ}, 4608, v13
    v_add3_u32 v{AQ}, v{AQ}, v15, s38
    v_mul_u32_u24 v{GK}, {REC}, v13
    v_add_u32 v{GK}, v{GK}, v15
    v_cmp_eq_u32 s[48:49], 0, v4
    v_lshlrev_b32 v6, 4, v4
    v_lshrrev_b32 v13, 2, v12
    v_and_b32 v15, 3, v12
    v_lshlrev_b32 v{AVT}, 5, v13
    v_lshl_add_u32 v{AVT}, v15, 1, v{AVT}
    v_add_u32 v{AVT}, s39, v{AVT}
    s_add_u32 s40, s38, 1024
    s_add_u32 s41, s39, 128
    v_lshl_add_u32 v{TA}, v12, 2, s40
    v_lshl_add_u32 v15, v12, 2, s41
    v_cndmask_b32 v{TA}, v15, v{TA}, s[48:49]
    v_mov_b32 v13, 384
    v_mov_b32 v14, 4608
    v_cndmask_b32 v13, v13, v14, s[48:49]
    v_add_u32 v{TA+1}, v{TA}, v13
    v_and_b32 v14, 3, v0
    v_bfe_u32 v13, v0, 2, 1
    v_mul_u32_u24 v13, 384, v13
    v_lshl_add_u32 v13, v14, 2, v13
    v_add_u32 v{AON}, s39, v13
    v_add_u32 v{RD}, s39, v1
    v_add_u32 v13, {REC-384}, v1
    v_cmp_gt_u32 vcc, 384, v1
    v_mov_b32 v14, {OOB}
    s_mul_i32 s43, s{SJ}, {KVJ}
    v_cndmask_b32 v13, v13, v1, vcc
    v_cmp_gt_u32 vcc, 768, v1
    s_mul_i32 s44, s{STW}, {2*REC}
    s_add_u32 s43, s43, s44
    v_cndmask_b32 v{GT}, v14, v13, vcc
    s_add_u32 s43, s43, s{SL}
    s_add_u32 s43, s43, {KV}
    s_mul_i32 s42, s{STW}, 3072
    s_add_u32 s42, s42, {S2}
    s_mov_b32 s45, {fbits(1e-5)}
    v_mov_b32 v7, 0x3f803f80
    v_mov_b32 v5, v1
    s_mov_b32 s37, 3
    """)
    for i in range(16, 72):
        b(f"v_mov_b32 v{i}, 0")
    b(f"s_cmp_eq_u32 s{SL}, 0\ns_cselect_b32 s42, {OOB}, s42\ns_cselect_b32 s45, 1.0, s45\ns_cbranch_scc0 q_next")
    grid_wait(b)
    b("s_branch q_ok\nq_next:")
    poll(b, "q", C_X2 - CL, STW, 4, False)
    stamp(b, 1)
    xq = lambda p, rt: XQ + ((p % 6) * 2 + rt) * 4
    xload = lambda p, rt: f"buffer_load_dwordx4 {v(xq(p, rt),4)}, v1, s[{16+4*rt}:{19+4*rt}], s36 offen sc1 ;#x{p%6}"
    acc = lambda f, rt: ACC + (f * 2 + rt) * 4
    ring = lambda ks, f: a((ks % 2) * 28 + f * 4, 4)
    reads = lambda p: [f"ds_read_b128 {ring(p, f)}, v5 offset:{(p*7+f)*1024}" for f in range(7)]
    b("s_mov_b32 s36, 0\ns_mov_b32 m0, s10")
    for p in range(5):
        b(xload(p, 0) + "\n" + xload(p, 1) + "\ns_add_u32 s36, s36, 1024")
        if p == 1:
            b("s_waitcnt vmcnt(4)\ns_barrier")
            b("\n".join(reads(0) + stats_loads(STT, 42)))
    stamp(b, 2)
    b(f"s_cmp_lg_u32 s{SL}, 0\ns_waitcnt vmcnt(@x0) lgkmcnt(0)\ns_cbranch_scc1 q_loop1")
    for fill in (1, 0):
        mains, pinned = [], []
        for p in range(6):
            for f in (6, 2, 3, 4, 5, 0, 1):
                for rt in range(2):
                    w, x, d = ring(p, f), v(xq(p, rt), 4), v(acc(f, rt), 4)
                    mains.append(mf16(d, x, w, d) if f in (4, 5) else mf16(d, w, x, d))
            rd = reads(p + 1)
            dm = "buffer_load_dwordx4 v1, s[12:15], s11 offen sc1 lds ;#wq"
            pin = [(0, xload(p + 5, 0))]
            if p == 5 and fill:
                pin += [(1, "s_waitcnt vmcnt(@wq)"), (1, "s_barrier")]
            pin += [(1, rd[0]), (2, rd[1]), (4, rd[2]), (5, rd[3]), (6, rd[4]), (7, xload(p + 5, 1)), (8, rd[5]), (8, "s_add_u32 s36, s36, 1024"),
                    (9, rd[6])]
            for gq in (3, 10, 11, 12)[:(4, 4, 3, 0, 0, 0)[p] * fill]:
                pin += [(gq, dm), (gq, "s_add_u32 m0, m0, 4096"), (gq, "s_add_u32 s11, s11, 4096")]
            pin += [(13, f"s_waitcnt vmcnt(@x{(p+1)%6}) lgkmcnt(0)")]
            if p == 0:
                pin += [(6, "s_sub_u32 s37, s37, 1")]
            if p == 5:
                pin += [(11, "v_add_u32 v5, 43008, v5"), (13, f"s_cmp_lg_u32 s37, {fill}")]
            pinned += [(14 * p + gp, t) for gp, t in pin]
        ops = [] if fill else chain(stats_reduce(STT, STT + 12, "s45") + [
            (f"v_rsq_f32 v8, v{STT+12}", 1), f"v_rsq_f32 v9, v{STT+13}", (f"v_mul_f32 v12, {QSCALE}, v8", 1), f"v_mul_f32 v13, {QSCALE}, v9",
            "v_cndmask_b32 v14, v8, v12, s[48:49]", "v_cndmask_b32 v15, v9, v13, s[48:49]"], earliest=27)
        txt, over, lastgap = sched2(mains, pinned, ops)
        print("q loop (overflow, last gap):", over, lastgap, file=sys.stderr)
        b(f".p2align 3\nq_loop{1-fill}:\n{txt}\ns_cbranch_scc1 q_loop{1-fill}")
    stamp(b, 3)
    for rt in range(2):
        for i in range(4):
            b(f"ds_bpermute_b32 v{RV+4*rt+i}, v6, v{8+rt} offset:{4*i}")

    def scale(f, rt, by):
        for i in (0, 2):
            d = v(acc(f, rt) + i, 2)
            if isinstance(by, int):
                sel = "op_sel:[1:0] op_sel_hi:[1:1]" if by & 1 else "op_sel_hi:[0:1]"
                b(f"v_pk_mul_f32 {d}, {v(by & ~1, 2)}, {d} {sel}")
            else:
                b(f"v_pk_mul_f32 {d}, {v(by[0]+i,2)}, {d}")

    T = TMP
    for rt in range(2):
        scale(6, rt, 14 + rt)
    pack4(b, T, acc(6, 0), acc(6, 1))
    b(f"ds_write_b32 v{AON}, v7 offset:256\ns_mov_b64 exec, 0xffffffff")
    for k in range(4):
        b(f"ds_write_b32 v{TA+k%2}, v{T+k} offset:{64*(k//2)}")
    b("s_mov_b32 exec_lo, 0\ns_mov_b32 exec_hi, 0xffff\ns_waitcnt lgkmcnt(5)")
    for k in range(4):
        off = 384 * (k % 2) + 8 * (k // 2)
        b(f"ds_write_b16 v{AVT}, v{T+k} offset:{off}\nds_write_b16_d16_hi v{AVT}, v{T+k} offset:{off+16}")
    b(f"s_mov_b64 exec, -1\nds_read_b128 {v(TMP+32,4)}, v{RD}")
    T += 4
    for rt in range(2):
        scale(2, rt, 8 + rt)
        scale(3, rt, 8 + rt)
        pack4(b, T, acc(2, rt), acc(3, rt))
        b(f"buffer_store_dwordx4 {v(T,4)}, v{GK}, s[12:15], s43 offen offset:{256*rt} sc1")
        T += 4
    for f in (4, 5):
        for rt in range(2):
            scale(f, rt, [RV + 4 * rt])
        pack4(b, T, acc(f, 0), acc(f, 1))
        b(f"buffer_store_dwordx4 {v(T,4)}, v1, s[12:15], s43 offen offset:{1024+REC*(f-4)} sc1")
        T += 4
    b(f"s_waitcnt lgkmcnt(0)\nbuffer_store_dwordx4 {v(TMP+32,4)}, v{GT}, s[12:15], s43 offen offset:2048 sc1")
    for rt in range(2):
        b(f"ds_write_b128 v{AQ}, {v(TMP+4+4*rt,4)} offset:{9216+256*rt}")
        scale(0, rt, 12 + rt)
        scale(1, rt, 12 + rt)
        pack4(b, T, acc(0, rt), acc(1, rt))
        b(f"ds_write_b128 v{AQ}, {v(T,4)} offset:{256*rt}")
        T += 4
    stamp(b, 4)


def wo_loads(lo, hi):
    out = []
    for n in range(lo, hi):
        off = f" offset:{1024*((n-lo)%4)}" if (n - lo) % 4 else ""
        t = f"buffer_load_dwordx4 {a(4*n,4)}, v1, s[12:15], s38 offen{off} sc1"
        if (n - lo) % 4 == 3:
            t += "\ns_add_u32 s38, s38, 4096"
        out.append(t)
    return out


def wo_base(b, part, per):
    b(f"""
    s_and_b32 s38, s{SJ}, 3
    s_mul_i32 s38, s38, {WOS}
    s_mul_i32 s39, s{SW}, {1024*per}
    s_add_u32 s38, s38, s39
    s_add_u32 s38, s38, {WO + 1024*part}
    s_cmp_eq_u32 s{SW}, 3
    s_cselect_b32 s38, {OOB}, s38
    """)


def centre(b, fr, n, tmp, mean, after=None):
    for k in range(n):
        for j in range(4):
            for h in range(2):
                b(f"v_dot2_f32_bf16 v{tmp+2*j+h}, v{fr+4*k+j}, s{30+h}, v{mean}")
        for j in range(4):
            b(f"v_cvt_pk_bf16_f32 v{fr+4*k+j}, v{tmp+2*j}, v{tmp+2*j+1}")
        if after:
            b(after(k))


def row_tile(b, vd, sd):
    b(f"""
    v_and_b32 v{vd}, 31, v0
    v_mul_u32_u24 v{vd}, 1152, v{vd}
    v_bfe_u32 v{vd+1}, v0, 5, 1
    v_lshl_add_u32 v{vd}, v{vd+1}, 4, v{vd}
    s_and_b32 s{sd}, s{SJ}, 3
    s_mul_i32 s{sd}, s{sd}, 3
    s_add_u32 s{sd}, s{sd}, s{SW}
    s_mul_i32 s{sd}, s{sd}, 96
    s_mul_i32 s{sd+1}, s{STJ}, 36864
    s_add_u32 s{sd}, s{sd}, s{sd+1}
    """)


def layer0_jobs(b, ONE, SM, PF, PT, AF):
    srd(b, 20, 100, 0, SZX)
    row_tile(b, 8, 38)
    for i in range(4):
        b(f"v_mov_b32 v{ONE+i}, 0x3f803f80")
    for n in range(3):
        b(f"buffer_load_dwordx4 {v(RES+12+4*n,4)}, v8, s[20:23], s38 offen offset:{32*n}")
    sdiv(b, 41, STW, 9, 64)
    b(f"""
    s_mul_i32 s38, s41, 9
    s_sub_u32 s38, s{STW}, s38
    s_lshl_b32 s39, s41, 10
    v_add_u32 v8, s39, v1
    v_add_u32 v9, {9*7168}, v8
    s_mul_i32 s38, s38, 14336
    s_add_u32 s38, s38, s39
    v_add_u32 v12, s38, v1
    """)
    for ks in range(18):
        b(f"ds_read_b128 {a(AF+4*ks,4)}, v{8+ks//9} offset:{7168*(ks%9)}")
        if ks == 11:
            b("s_waitcnt lgkmcnt(6)")
    b(f"ds_read_b128 {v(PF,4)}, v12\nds_read_b128 {v(PF+4,4)}, v12 offset:7168")
    for ks in range(18):
        if ks >= 6:
            b(f"s_waitcnt lgkmcnt({19-ks})")
        b(mf16(v(SM, 4), v(ONE, 4), a(AF + 4 * ks, 4), "0" if ks == 0 else v(SM, 4)))
    b(f"""
    v_and_b32 v8, 12, v0
    v_cmp_eq_u32 vcc, 12, v8
    s_cmp_eq_u32 s41, 6
    s_cselect_b64 vcc, vcc, 0
    s_add_u32 s39, s38, 7168
    s_mul_i32 s41, s{SJ}, {WFS}
    s_add_u32 s41, s41, {WF+27*CH+CH//2}
    s_cmp_eq_u32 s{STW}, 63
    s_cselect_b32 s41, {OOB}, s41
    """)
    for r in (38, 39):
        b(f"s_cmp_ge_u32 s{r}, {3*CH}\ns_cselect_b32 s44, {WQH}, 0\ns_sub_u32 s{r}, s{r}, s44\ns_add_u32 s{r}, s{r}, s41")
    b(f"s_waitcnt lgkmcnt(0)\nv_mul_f32 v{SM}, {fbits(-1/576)}, v{SM}\nv_cndmask_b32 v{SM}, v{SM}, v2, vcc")
    centre(b, PF, 2, PT, SM, lambda k: f"buffer_store_dwordx4 {v(PF+4*k,4)}, v1, s[12:15], s{38+k} offen sc1")
    srd(b, 20, 54, 0, 576 * 4608 * 2)
    b("s_mov_b32 s32, 0\ns_mov_b32 s41, s52")


def raw_setup(b):
    b(f"""
    v_bfe_u32 v8, v0, 4, 2
    v_bfe_u32 v9, v0, 2, 2
    v_and_b32 v12, 3, v0
    v_lshlrev_b32 v12, 3, v12
    v_lshl_add_u32 v12, v9, 7, v12
    v_bfe_u32 v13, v0, 3, 2
    v_xor_b32 v13, s{SW}, v13
    s_cmp_ge_u32 s2, 144
    s_cbranch_scc1 a_raw2
    s_and_b32 s38, s2, 1
    s_lshl_b32 s39, s38, 3
    s_add_u32 s44, s0, s39
    s_addc_u32 s45, s1, 0
    s_load_dwordx2 s[54:55], s[44:45], {ARG['w1']}
    s_lshr_b32 s39, s2, 1
    s_lshl_b32 s56, s39, 7
    s_mov_b32 s41, 9216
    s_mov_b32 s8, {fbits(-1/576)}
    s_mov_b32 s59, 2048
    s_mov_b32 s9, 0
    s_lshl_b32 s39, s39, 2
    s_add_u32 s39, s39, s{SW}
    """)
    sdiv(b, 44, 39, 18, 288)
    b(f"""
    s_mul_i32 s44, s44, {WFS-18*CH}
    s_mul_i32 s39, s39, {CH}
    s_add_u32 s58, s39, s44
    s_lshl_b32 s38, s38, 10
    s_add_u32 s58, s58, s38
    s_add_u32 s58, s58, {WF}
    v_lshl_add_u32 v12, v8, 10, v12
    v_lshl_add_u32 v{TR}, v13, 5, v12
    v_xor_b32 v{TR+1}, {512+64}, v{TR}
    s_branch a_raw3
a_raw2:
    s_load_dwordx2 s[54:55], s[0:1], {ARG['w2']}
    s_sub_u32 s38, s2, 144
    """)
    sdiv(b, 39, 38, 9, 112)
    b(f"""
    s_mul_i32 s44, s39, 9
    s_sub_u32 s38, s38, s44
    s_mul_i32 s56, s39, {576*1152}
    s_lshl_b32 s44, s38, 7
    s_add_u32 s56, s56, s44
    s_mov_b32 s41, 1152
    s_mov_b32 s8, 0
    s_mov_b32 s59, {CH}
    s_lshl_b32 s38, s38, 2
    s_add_u32 s38, s38, s{SW}
    """)
    sdiv(b, 44, 38, 9, 36)
    b(f"""
    s_lshl_b32 s45, s39, 1
    s_sub_u32 s45, s45, s44
    s_and_b32 s45, s45, 3
    s_mov_b32 s9, {9216-9*CH}
    s_cmp_eq_u32 s45, 3
    s_cselect_b32 s9, {-3*9216-9*CH}, s9
    s_mul_i32 s45, s45, 9216
    s_mul_i32 s44, s44, {WFS-9216}
    s_lshl_b32 s38, s38, 10
    s_add_u32 s58, s38, s44
    s_add_u32 s58, s58, s45
    s_lshr_b32 s44, s39, 1
    s_mul_i32 s44, s44, {4*WFS}
    s_add_u32 s58, s58, s44
    s_add_u32 s58, s58, {WF+18*CH}
    s_cmp_ge_u32 s2, 216
    s_cselect_b32 s58, {OOB}, s58
    v_lshl_add_u32 v12, v8, 9, v12
    v_and_b32 v8, 2, v8
    v_xor_b32 v13, v13, v8
    v_lshl_add_u32 v{TR}, v13, 5, v12
    v_add_u32 v{TR+1}, 2048, v{TR}
a_raw3:
    v_bfe_u32 v8, v0, 3, 3
    v_mul_lo_u32 v12, v8, s41
    v_and_b32 v8, 6, v8
    v_and_b32 v9, 7, v0
    v_xor_b32 v9, v9, v8
    v_lshl_add_u32 v{VD}, v9, 4, v12
    v_xor_b32 v9, 4, v9
    v_lshl_add_u32 v{VD+1}, v9, 4, v12
    s_lshl_b32 s52, s41, 3
    s_sub_u32 s38, s52, 1024
    v_add_u32 v{VD+1}, s38, v{VD+1}
    s_lshl_b32 s38, s38, 1
    v_add_u32 v{VD+2}, s38, v{VD}
    v_add_u32 v{VD+3}, s38, v{VD+1}
    s_lshl_b32 s57, s52, 4
    s_waitcnt lgkmcnt(0)
    """)


def phase_a(b):
    QM, QT, KM, KT, VF, S, O, MX, IDX = 16, 32, 64, 40, 80, 96, 160, 224, 228
    MEAN, ONE, SM, PF, PT, AF = 78, 80, 84, 48, 88, 112
    AV, AT, AK = 229, 231, 79
    OM, OT, MW, MR = 6, 7, 10, 11
    qm = lambda t: v(QM + 4 * t, 4)
    qt = lambda t: v(QT + 2 * t, 2)
    km = lambda k: a(KM + 4 * (k % 4), 4)
    kt = lambda k: v(KT + 2 * (k % 4), 2)
    vf = lambda k, g: a(VF + 8 * (k % 4) + 4 * g, 4)
    sb = lambda n: S + 16 * (n % 4)
    ob = lambda t: O + 16 * t
    m8 = lambda d, k, t: f"v_mfma_f32_32x32x8_bf16 {v(d,16)}, {kt(k)}, {qt(t)}, 0"
    m16 = lambda d, k, t: f"v_mfma_f32_32x32x16_bf16 {v(d,16)}, {km(k)}, {qm(t)}, {v(d,16)}"
    smf = lambda t, k, g, p: f"v_smfmac_f32_32x32x32_bf16 {v(ob(t),16)}, {vf(k,g)}, {v(p+8*g,8)}, v{IDX}"

    def rec_loads(k):
        tg = f" ;#r{k%4}"
        return [f"buffer_load_dwordx4 {km(k)}, v{AK}, s[16:19], s46 offen sc1{tg} ;#k{k%4}",
                f"buffer_load_dword v{KT+2*(k%4)}, v{AT}, s[16:19], s46 offen offset:2176 sc1{tg} ;#k{k%4}",
                f"buffer_load_dwordx4 {vf(k,0)}, v{AV}, s[16:19], s46 offen sc1{tg}",
                f"buffer_load_dwordx4 {vf(k,1)}, v{AV+1}, s[16:19], s46 offen sc1{tg}"]

    def wo_mode(b, start):
        b(f"""
        s_and_b32 s38, s{SJ}, 3
        s_mul_i32 s38, s38, {WOS}
        s_add_u32 s38, s38, {WO + 36*1024}
        s_lshl_b32 s56, s{SW}, 12
        s_add_u32 s56, s56, {start-16384}
        s_mov_b32 m0, s56
        s_mov_b32 s57, 16384
        """)
        window(b, 20, 38, 128 * 1024)
        for k in range(4):
            b(f"v_mov_b32 v{VD+k}, v1")

    slots_off = f"s_mov_b32 s56, {OOB}\ns_mov_b32 s57, 0\ns_mov_b32 s40, 0\ns_mov_b32 m0, {LOFF}"
    b(f"""
    s_lshr_b32 s37, s{SW}, 1
    s_lshl_b32 s34, s{SJ}, 1
    s_add_u32 s34, s34, s37
    s_and_b32 s35, s{SW}, 1
    s_mul_i32 s38, s37, 4608
    s_add_u32 s38, s38, {QX}
    s_mul_i32 s39, s35, 2304
    s_add_u32 s40, s38, s39
    s_sub_u32 s41, s38, s39
    v_and_b32 v4, 31, v0
    v_bfe_u32 v5, v0, 5, 1
    v_lshlrev_b32 v6, 2, v4
    v_add_u32 v8, s40, v1
    v_add_u32 v9, s41, v1
    v_add_u32 v12, s40, v6
    v_add_u32 v13, s41, v6
    v_cmp_eq_u32 s[50:51], 0, v5
    s_mul_i32 s38, s35, 1536
    s_mul_i32 s39, s37, 384
    s_add_u32 s38, s38, s39
    s_add_u32 s38, s38, {TIM+128}
    v_add_u32 v15, s38, v6
    s_mul_i32 s39, s37, {REC}
    s_waitcnt lgkmcnt(0)
    s_barrier
    ds_read_b128 {km(0)}, v8 offset:9216
    ds_read_b32 v{KT}, v15
    """)
    for t in range(4):
        b(f"ds_read_b128 {qm(t)}, v{8 + t // 2} offset:{1152*t}")
        b(f"ds_read_b32 v{QT+2*t}, v{12 + t // 2} offset:{1152*t+1024}")
    b(f"""
    s_mul_i32 s38, s{SJ}, {KVJ}
    s_add_u32 s38, s38, s39
    s_mul_i32 s39, s35, {64*REC}
    s_add_u32 s38, s38, s39
    s_add_u32 s38, s38, s{SL}
    s_add_u32 s38, s38, {KV}
    s_mov_b32 s49, 0x07060302
    s_mov_b32 s47, 1
    s_mov_b32 s3, 0
    v_mov_b32 v{KT+1}, 0x3f803f80
    s_waitcnt vmcnt(5) lgkmcnt(0)
    """)
    window(b, 16, 38, 63 * REC)
    for t in range(4):
        b(f"v_cndmask_b32 v{QT+2*t}, 0, v{QT+2*t}, s[50:51]")
    b("a_max:")
    for t in range(4):
        b(f"v_mov_b32 v{QT+2*t+1}, 0\nv_mov_b32 v{MX+t}, 0xff800000")
    b("s_mov_b32 s46, 0\ns_cmp_eq_u32 s3, 0\ns_cbranch_scc1 a_maxbody\na_maxloop:")
    b("\n".join(rec_loads(0)[:2]))
    b(f"s_add_u32 s46, s46, {2*REC}\ns_waitcnt vmcnt(0)\na_maxbody:")
    for t in range(4):
        b(m8(sb(t), 0, t))
        b(m16(sb(t), 0, t))
    b("s_cmp_lg_u32 s3, 0\ns_nop 3\ns_cbranch_scc1 q_sig")
    stamp(b, 5)
    signal(b, "q", C_KV, SJ)
    stamp(b, 6)
    for t in range(4):
        for i in range(8):
            b(f"v_max3_f32 v{MX+t}, v{sb(t)+2*i}, v{sb(t)+2*i+1}, v{MX+t}")
    b("s_sub_u32 s47, s47, 1\ns_cmp_lg_u32 s47, 0\ns_cbranch_scc1 a_maxloop")
    for i in range(64):
        b(f"v_mov_b32 v{O+i}, 0")
    b("s_cmp_lg_u32 s3, 0\ns_cbranch_scc1 a_go")
    wo_base(b, 0, 12)
    pb = B()
    pb(f"""
    v_lshlrev_b32 v8, 8, v5
    v_lshl_add_u32 v8, v4, 4, v8
    v_add_u32 v8, 1024, v8
    v_lshlrev_b32 v9, 5, v5
    v_lshl_add_u32 v9, v4, 4, v9
    v_add_u32 v9, {2048-256}, v9
    v_mov_b32 v12, {OOB}
    v_mov_b32 v13, 2304
    v_and_b32 v14, 27, v4
    v_cmp_eq_u32 vcc, 18, v14
    v_cmp_gt_u32 s[60:61], 18, v4
    v_cmp_gt_u32 s[36:37], 16, v4
    v_cndmask_b32 v13, v12, v13, vcc
    v_cndmask_b32 v14, v13, v9, s[60:61]
    v_cndmask_b32 v{AV}, v14, v8, s[36:37]
    v_add_u32 v8, 512, v8
    v_add_u32 v9, 64, v9
    v_cndmask_b32 v14, v13, v9, s[60:61]
    v_cndmask_b32 v{AV+1}, v14, v8, s[36:37]
    v_mov_b32 v{IDX}, 0xdddddddd
    v_bfe_u32 v8, v4, 2, 1
    v_lshrrev_b32 v9, 3, v4
    v_lshlrev_b32 v9, 2, v9
    v_lshl_add_u32 v8, v8, 4, v9
    v_and_b32 v9, 3, v4
    v_add_u32 v8, v8, v9
    v_lshlrev_b32 v{AT}, 2, v8
    v_lshlrev_b32 v8, 4, v8
    v_lshl_add_u32 v{AK}, v5, 9, v8
    v_lshlrev_b32 v13, 2, v4
    v_lshrrev_b32 v{OM}, 4, v4
    v_lshlrev_b32 v{OM}, 14, v{OM}
    v_and_b32 v8, 15, v4
    v_lshl_add_u32 v{OM}, v8, 4, v{OM}
    v_and_b32 v8, 35, v0
    v_cmp_eq_u32 vcc, 0, v8
    v_lshl_add_u32 v{OM}, v5, 8, v{OM}
    s_lshl_b32 s42, s{SI}, 1
    v_cndmask_b32 v{OT}, v12, v13, vcc
    s_add_u32 s42, s42, 1
    s_sub_u32 s42, s42, s35
    s_mul_i32 s42, s42, 73728
    s_add_u32 s42, s42, s{SL}
    s_add_u32 s42, s42, {OB}
    s_lshl_b32 s43, s34, 9
    s_add_u32 s43, s43, s42
    s_lshl_b32 s44, s34, 7
    s_add_u32 s42, s42, s44
    s_add_u32 s42, s42, 32768
    s_mul_i32 s44, s{SW}, 6144
    s_xor_b32 s45, s{SW}, 1
    s_mul_i32 s45, s45, 6144
    s_add_u32 s44, s44, {QX}
    s_add_u32 s45, s45, {QX}
    v_add_u32 v{MW}, s44, v1
    v_add_u32 v{MR}, s45, v1
    """)
    for k in range(1, 4):
        pb(f"v_mov_b32 v{KT+2*k+1}, 0x3f803f80")
    for i in range(8):
        pb(f"v_accvgpr_write_b32 a{VF+24+i}, 0")
    lines, lds = [x.strip() for x in pb.lines], wo_loads(0, 12)
    for i, x in enumerate(lines):
        if i % 5 == 0 and lds:
            b(lds.pop(0))
        b(x)
    assert not lds
    b(f"s_mov_b32 s40, 16384\ns_cmp_eq_u32 s{SL}, 0\ns_cbranch_scc1 a_jobs\ns_mov_b32 s32, 4")
    wo_mode(b, 0)
    b("a_init:")
    side = B()
    side("a_jobs:")
    layer0_jobs(side, ONE, SM, PF, PT, AF)
    side("s_branch a_init")
    stamp(b, 7)
    poll(b, "a", C_KV, SJ, 16, True)
    stamp(b, 8)
    b("a_go:\ns_mov_b32 s46, 0")
    for k in range(3):
        b("\n".join(rec_loads(k)))
        if k < 2:
            b(f"s_add_u32 s46, s46, {2*REC}")
    slot = lambda k: f"buffer_load_dwordx4 v{VD+k}, s[20:23], s56 offen" + (f" offset:{1024*k}" if k else "") + " sc1 lds"
    b(f"""
    s_mov_b32 s47, 8
    s_cmp_lg_u32 s32, 0
    s_cbranch_scc1 a_nopre
    s_mov_b32 s47, 4
    s_lshl_b32 s38, s{SW}, 1
    s_add_u32 s38, s38, 64
    s_lshl_b32 m0, s38, 10
    s_mul_i32 s38, s38, s41
    s_add_u32 s38, s38, s56
    buffer_load_dwordx4 v{VD}, s[20:23], s38 offen lds
    buffer_load_dwordx4 v{VD+1}, s[20:23], s38 offen offset:1024 lds
    s_lshl_b32 s38, s{SW}, 2
    s_sub_u32 s38, s38, 16
    s_lshl_b32 m0, s38, 10
    s_mul_i32 s38, s38, s41
    s_add_u32 s56, s56, s38
a_nopre:
    """)
    x0 = sb(2)
    for t in range(4):
        b(f"""
        v_mov_b32 v{x0}, v{MX+t}
        v_mov_b32 v{sb(3)+4*t}, 0
        v_mov_b32 v{sb(3)+4*t+1}, 0
        v_permlane32_swap_b32 v{MX+t}, v{x0}
        v_mov_b32 v{sb(3)+4*t+2}, 0
        v_max_f32 v{MX+t}, v{MX+t}, v{x0}
        v_sub_f32 v{x0}, 0, v{MX+t}
        v_and_b32 v{x0+1}, 0xffff0000, v{x0}
        v_sub_f32 v{x0+2}, v{x0}, v{x0+1}
        v_and_b32 v{x0+3}, 0xffff0000, v{x0+2}
        v_sub_f32 v{x0+2}, v{x0+2}, v{x0+3}
        v_perm_b32 v{x0+1}, v{x0+3}, v{x0+1}, s49
        v_lshrrev_b32 v{x0+2}, 16, v{x0+2}
        v_cndmask_b32 v{QT+2*t+1}, v{x0+2}, v{x0+1}, s[50:51]
        v_mov_b32 v{sb(3)+4*t+3}, 0
        """)
    b("s_waitcnt vmcnt(@k0)")
    for t in range(2):
        b(m8(sb(t), 0, t))
        b(m16(sb(t), 0, t))
    b("s_nop 8")
    stamp(b, 9)
    b(".p2align 3\na_loop:")
    for n in range(16):
        k, t = divmod(n, 4)
        e = [f"v_exp_f32 v{sb(n)+i}, v{sb(n)+i}" for i in range(16)]
        qk, qtile = (n + 2) // 4, (n + 2) % 4
        pk, pt = (n - 1) // 4, (n - 1) % 4
        b(m8(sb(n + 2), qk, qtile))
        b("\n".join(e[0:4]))
        b(m16(sb(n + 2), qk, qtile))
        if t == 1:
            b(f"s_waitcnt vmcnt(@r{k})")
        if t == 0:
            b(f"s_add_u32 s46, s46, {2*REC}")
        if n == 14:
            b("s_sub_u32 s47, s47, 1")
        if n == 15:
            b("s_cmp_lg_u32 s47, 0")
        b("\n".join(e[4:8]))
        b(smf(pt, pk, 0, sb(n - 1)))
        b(rec_loads(k + 3)[t])
        b("\n".join(e[8:12]))
        b(smf(pt, pk, 1, sb(n - 1)))
        if t == 1:
            b(f"s_waitcnt vmcnt(@k{(k+1)%4})")
        if t == 3:
            b(slot(k))
        if n == 0:
            b("s_add_u32 s56, s56, s57\ns_add_u32 m0, m0, s40")
        b("\n".join(e[12:16]))
    b("s_cbranch_scc1 a_loop\ns_cmp_lt_u32 s32, 4\ns_cbranch_scc1 a_break")
    stamp(b, 10)
    c = side
    c("a_break:")
    bstamp(c, 0)
    c("s_cmp_lg_u32 s32, 0\ns_cbranch_scc1 a_brk1")
    wo_mode(c, 80 * 1024)
    c("s_branch a_resume\na_brk1:\ns_cmp_lg_u32 s32, 1\ns_cbranch_scc1 a_brk2\ns_waitcnt lgkmcnt(0)\ns_barrier")
    for i in range(25):
        if i < 18:
            for h in range(2):
                c(f"ds_read_b64_tr_b16 {a(AF+4*i+2*h,2)}, v{TR+h} offset:{4096*(i%9)}")
            if i in (8, 17):
                st = 36864 if i == 8 else -36864
                c(f"v_add_u32 v{TR}, {st}, v{TR}\nv_add_u32 v{TR+1}, {st}, v{TR+1}")
        if 6 <= i < 24:
            k = i - 6
            c(f"s_waitcnt lgkmcnt({2*min(6, 17-k)})")
            c(mf16(v(SM, 4), v(ONE, 4), a(AF + 4 * k, 4), "0" if k == 0 else v(SM, 4)))
    prd = lambda i: "\n".join(f"ds_read_b64_tr_b16 {v(PF+4*i+2*h,2)}, v{TR+h} offset:{4096*i}" for h in range(2))
    for i in range(6):
        c(prd(i))
    c(f"""
    v_mul_f32 v{MEAN}, s8, v{SM}
a_brk2:
    v_add_u32 v{TR}, 24576, v{TR}
    v_add_u32 v{TR+1}, 24576, v{TR+1}
    s_cmp_eq_u32 s32, 2
    s_cselect_b32 s38, s9, 0
    s_waitcnt lgkmcnt(0)
    """)
    centre(c, PF, 6, PT, MEAN, lambda k: f"buffer_store_dwordx4 {v(PF+4*k,4)}, v1, s[12:15], s58 offen sc1\ns_add_u32 s58, s58, s59"
           + ("\ns_add_u32 s58, s58, s38" if k == 2 else "") + ("\n" + prd(k - 1) if k else ""))
    c(prd(5))
    c(f"s_cmp_lg_u32 s32, 3\ns_cbranch_scc1 a_resume\n{slots_off}")
    c("a_resume:")
    bstamp(c, 1)
    c("s_add_u32 s32, s32, 1\ns_mov_b32 s47, 1\ns_branch a_loop")
    c(f"a_redo:\ns_mov_b32 s3, 1\ns_mov_b32 s47, 32\n{slots_off}\ns_waitcnt vmcnt(0)\ns_branch a_max")
    b(smf(3, 3, 0, sb(3)))
    b("s_waitcnt lgkmcnt(0)")
    b(f"v_mov_b32 v{ob(0)+11}, v{MX}\nv_mov_b32 v{ob(1)+11}, v{MX+1}")
    b(smf(3, 3, 1, sb(3)))
    for t in range(2):
        for i in range(3):
            b(f"ds_write_b128 v{MW}, {v(ob(t)+4*i,4)} offset:{3072*t+1024*i}")
    b(f"""
    v_max3_f32 v8, v{ob(0)+10}, v{ob(1)+10}, v{ob(2)+10}
    v_mov_b32 v9, 0x53800000
    v_cmp_u_f32 s[52:53], v{ob(0)+10}, v{ob(1)+10}
    s_and_b32 s38, s2, 7
    s_lshl_b32 s38, s38, 7
    s_add_u32 s38, s38, s{SC}
    v_max_f32 v8, v{ob(3)+10}, v8
    v_cmp_u_f32 s[54:55], v{ob(2)+10}, v{ob(3)+10}
    v_cmp_nlt_f32 vcc, v8, v9
    s_add_u32 s38, s38, {C_PREP}
    s_or_b64 s[52:53], s[52:53], s[54:55]
    s_or_b64 vcc, vcc, s[52:53]
    s_cmp_eq_u32 s3, 0
    s_cselect_b64 vcc, vcc, 0
    s_waitcnt lgkmcnt(0)
    s_cbranch_vccnz a_redo
    s_barrier
    """)
    for t in range(2):
        for i in (2, 0, 1):
            b(f"ds_read_b128 {v(sb(t)+4*i,4)}, v{MR} offset:{3072*t+1024*i}")
    for t in range(2):
        P, o0, pk = sb(t), ob(2 + t), QM + 8 * t
        b(f"""
        s_waitcnt lgkmcnt({5 - 3*t})
        v_max_f32 v8, v{MX+2+t}, v{P+11}
        v_sub_f32 v9, v{MX+2+t}, v8
        v_sub_f32 v8, v{P+11}, v8
        v_exp_f32 v9, v9
        v_exp_f32 v8, v8
        v_mul_f32 v12, v9, v{o0+10}
        v_fmac_f32 v12, v8, v{P+10}
        v_rcp_f32 v12, v12
        s_waitcnt lgkmcnt({3 - 3*t})
        v_pk_mul_f32 v[8:9], v[8:9], v[12:13] op_sel_hi:[1:0]
        """)
        for i in (8, 0, 2, 4, 6):
            b(f"v_pk_mul_f32 {v(o0+i,2)}, v[8:9], {v(o0+i,2)} op_sel:[1:0] op_sel_hi:[1:1]")
        for i in (8, 0, 2, 4, 6):
            b(f"v_pk_fma_f32 {v(o0+i,2)}, v[8:9], {v(P+i,2)}, {v(o0+i,2)} op_sel_hi:[0:1:1]")
        for i in (4, 0, 1, 2, 3):
            b(f"v_cvt_pk_bf16_f32 v{pk+i}, v{o0+2*i}, v{o0+2*i+1}")
        b(f"buffer_store_dwordx4 {v(pk,4)}, v{OM}, s[12:15], s43 offen sc1")
        for i in range(1, 4):
            b(f"v_mov_b32 v{pk+4+i}, v{pk+4} quad_perm:[{i}:{i}:{i}:{i}] row_mask:0xf bank_mask:0xf")
        b(f"buffer_store_dwordx4 {v(pk+4,4)}, v{OT}, s[12:15], s42 offen sc1")
        if t == 0:
            b("s_add_u32 s42, s42, 36864\ns_add_u32 s43, s43, 36864")
    stamp(b, 11)
    signal(b, "a", C_O, SI, extra=38)
    stamp(b, 12)
    return side.text()


def res_swap(b):
    for n in range(3):
        for k in range(4):
            b(f"v_permlane16_swap_b32 v{RES+8*n+k}, v{RES+8*n+4+k}")


def tile_base(b, dst, tmp):
    b(f"""
    s_and_b32 s{dst}, s{SJ}, 3
    s_mul_i32 s{dst}, s{dst}, 3
    s_add_u32 s{dst}, s{dst}, s{SW}
    s_mul_i32 s{dst}, s{dst}, 1536
    s_mul_i32 s{tmp}, s{STJ}, 36864
    s_add_u32 s{dst}, s{dst}, s{tmp}
    """)


def phase_o(b):
    PK, OF = 16, 56
    NB = int(OPT.get('nb', 108))
    b(f"""
    s_cmp_eq_u32 s{SW}, 3
    s_cbranch_scc1 o_nowo
    s_lshl_b32 s38, s{SW}, 14
    s_add_u32 s38, s38, {80*1024}
    v_add_u32 v6, s38, v1
    s_mul_i32 s38, s{SW}, {26*1024}
    v_add_u32 v7, s38, v1
    s_cmp_eq_u32 s{SL}, 0
    s_cbranch_scc1 o_first
    """)
    side = B()
    side("o_first:")
    wo_base(side, 36, 26)
    side("\n".join(wo_loads(12, 38)))
    for k in range(12):
        side(f"v_lshlrev_b32 v{RES+2*k}, 16, v{RES+12+k}\nv_and_b32 v{RES+2*k+1}, 0xffff0000, v{RES+12+k}")
    side("s_branch o_rest")
    for n in range(12, 38):
        b(f"ds_read_b128 {a(4*n,4)}, v7 offset:{1024*(n-12)}")
        if n % 8 == 7:
            b("s_waitcnt lgkmcnt(4)")
    b("s_waitcnt lgkmcnt(4)\no_rest:")
    for n in range(38, 54):
        b(f"ds_read_b128 {a(4*n,4)}, v6 offset:{1024*(n-38)}")
        if n == 45:
            b("s_waitcnt lgkmcnt(4)")
    b(f"o_nowo:\ns_mul_i32 s38, s{SJ}, {WFS}\ns_add_u32 s38, s38, {WF}")
    window(b, 16, 38, WFS)
    b(f"s_cmp_eq_u32 s{SL}, 0\ns_cselect_b32 s18, s18, {27*CH}")
    unit_offset(b, 5, 6, 7)
    stats_target(b)
    res_swap(b)
    tile_base(b, 34, 35)
    b(f"""
    s_lshl_b32 s38, s{SW}, 10
    s_add_u32 s37, s35, s38
    s_add_u32 s37, s37, s{SL}
    s_add_u32 s37, s37, {OB}
    s_add_u32 s38, s38, {3*CH}
    v_add_u32 v6, {3*CH}, v1
    s_add_u32 s36, s34, s{SL}
    s_add_u32 s36, s36, {X1}
    v_bfe_u32 v7, v0, 4, 2
    v_and_b32 v8, 15, v0
    v_lshlrev_b32 v7, 9, v7
    v_lshl_add_u32 v7, v8, 2, v7
    v_add_u32 v7, {3*CH+32768}, v7
    v_add_u32 v8, 2048, v7
    v_and_b32 v11, 7, v0
    v_lshlrev_b32 v11, 7, v11
    s_lshl_b32 s41, s{SL}, 2
    s_add_u32 s41, s41, s{SW}
    s_mov_b32 s40, {CNT+C_PREP}
    s_cmp_eq_u32 s41, 3
    s_cselect_b32 s40, s40, {OOB}
    s_cselect_b32 s41, 32, 0
    s_waitcnt lgkmcnt(0)
    """)
    if int(OPT.get("w3", 1)):
        walk(b, "wk3", "a_sig", "f_p1")
    stamp(b, 13)
    poll(b, "o", C_O, SI, 16, True)
    stamp(b, 14)
    b("buffer_load_dword v4, v11, s[12:15], s40 offen sc1")
    for i in range(9):
        off = 4096 * (i // 2) + 16384 * (i % 2) if i < 8 else 32768
        b(f"s_add_u32 m0, s38, {off}\ns_add_u32 s39, s37, {off}\nbuffer_load_dwordx4 v1, s[12:15], s39 offen sc1 lds")
    b(f"s_waitcnt vmcnt(5)\ns_barrier")
    stamp(b, 15)
    b(f"s_cmp_eq_u32 s{SW}, 3\ns_cbranch_scc1 o_ring")
    of = lambda ks, rt: OF + ks * 8 + rt * 4

    def rd(ks):
        if ks < 16:
            return [f"ds_read_b128 {v(of(ks,rt),4)}, v6 offset:{rt*16384+ks*1024}" for rt in range(2)]
        return [f"ds_read2_b32 {v(of(ks,rt)+2*k,2)}, v{7+ks-16} offset0:{16*rt+64*k} offset1:{16*rt+64*k+32}"
                for rt in range(2) for k in range(2)]

    mf = lambda n, ks, rt: mf16(v(RES + 8 * n + 4 * rt, 4), a((n * 18 + ks) * 4, 4), v(of(ks, rt), 4), v(RES + 8 * n + 4 * rt, 4))
    KS = 12
    mains = [mf(n, ks, rt) for ks in range(KS) for n in range(3) for rt in range(2)]
    mains += [mf(n, ks, rt) for n in range(3) for ks in range(KS, 18) for rt in range(2)]
    b("\n".join(rd(0) + rd(1)) + "\ns_waitcnt lgkmcnt(2)")
    pins, late = [], [x for ks in range(8, 18) for x in rd(ks)]
    for ks in range(KS):
        now = rd(ks + 2) if ks < 6 else late[4 * (ks - 6):4 * (ks - 5)]
        pins += [(6 * ks + k, x) for k, x in enumerate(now)]
        if ks == 5:
            pins += [(6 * ks + 4, "s_waitcnt vmcnt(0)"), (6 * ks + 4, "s_barrier")]
        pins.append((6 * ks + 5, f"s_waitcnt lgkmcnt({len(now)})"))
    pins.append((6 * KS + 5, "s_waitcnt lgkmcnt(0)"))

    def fin(n):
        r, p = RES + 8 * n, PK + 4 * n
        out = [f"v_permlane16_swap_b32 v{r+k}, v{r+4+k}" for k in range(4)]
        out += [f"v_cvt_pk_bf16_f32 v{p+k}, v{r+2*k}, v{r+2*k+1}" for k in range(4)]
        out += [f"buffer_store_dwordx4 {v(p,4)}, v5, s[12:15], s36 offen offset:{512*n} sc1"]
        return out

    def sums(n):
        r = RES + 8 * n
        return [x for k in range(8) for x in (f"v_add_f32 v9, v9, v{r+k}", f"v_fmac_f32 v10, v{r+k}, v{r+k}")]

    f0 = chain(fin(0), earliest=6 * KS + 12 + 7)
    f1 = chain(fin(1), earliest=6 * KS + 24 + 5, after=f0[-1])
    for o in f1:
        o.urgent = True
    txt, over, _ = sched2(mains, pins, f0 + f1 + chain(sums(0), after=f0[3]))
    b("v_mov_b32 v9, 0\nv_mov_b32 v10, 0\n" + txt)
    b("\n".join(sums(1)[:8] + fin(2) + sums(1)[8:] + sums(2)))
    b(f"""
    s_add_u32 s38, s59, s{SL}
    s_add_u32 s38, s38, {S1}
    v_permlane32_swap_b32 v9, v10
    s_nop 0
    v_add_f32 v9, v9, v10
    buffer_store_dword v9, v13, s[12:15], s38 offen sc1
    """)
    stamp(b, 16)
    signal(b, "o", C_X1, STJ, wave=0)
    stamp(b, 17)
    c = side
    ROT = int(OPT.get("rot", 1))

    def four():
        dma_run(c, 4, 16, 43, " sc1")
        c(f"s_add_u32 s43, s43, 4096\ns_cmp_eq_u32 s43, {NB*1024}\ns_cselect_b32 s43, 0, s43\ns_mov_b32 m0, s43\ns_sub_u32 s42, s42, 1")

    c(f"""
o_ring:
    s_and_b32 s43, s{SI}, 7
    s_mul_i32 s43, s43, {NB//4*ROT}
    s_lshr_b32 s43, s43, 3
    s_lshl_b32 s43, s43, 12
    s_mov_b32 m0, s43
    v_cmp_gt_u32 vcc, s41, v4
    s_mov_b32 s42, {NB//4}
    s_cbranch_vccnz o_late
    """)
    for _ in range(4):
        four()
    c(f"""
    s_waitcnt vmcnt(16)
    s_barrier
    s_branch o_fill
o_late:
    s_waitcnt vmcnt(0)
    s_barrier
    s_mov_b32 s61, 0x40000
o_prep:
    buffer_load_dword v4, v11, s[12:15], s40 offen sc1
    s_sub_u32 s61, s61, 1
    s_waitcnt vmcnt(0)
    v_cmp_gt_u32 vcc, s41, v4
    s_cbranch_scc1 o_fill
    s_cbranch_vccnz o_prep
o_fill:
    """)
    four()
    c(f"""
    s_cmp_lg_u32 s42, 0
    s_waitcnt vmcnt({int(OPT.get('th', 28))})
    s_cbranch_scc1 o_fill
    s_branch o_bar
    """)
    return c.text()


def phase_f(b):
    VS, NB = int(OPT.get("vs", 66)), int(OPT.get('nb', 108))
    LA, LB, DV, C1, C2, VP, VFL = 5, 6, 7, 10, 12, 14, 15
    ACC1, TMP, STG, FL, VH, ACC2, ST, ONE, UO, LO = 16, 48, 64, 72, 80, 84, 84, 100, 156, 157
    RING, NR, PD, HR = 144, 12, 8, 192
    xb = lambda ks, rt: a((ks * 2 + rt) * 4, 4)
    ring = lambda i: a(RING + 4 * (i % NR), 4)

    def hr(c, m, rt):
        u, o = c - 18, (m * 2 + rt) * 4
        if u in (2, 3):
            return v(160 + 32 * (u - 2) + o, 4)
        return a({0: HR, 1: HR + 32, 8: HR}.get(u, 32 * (u - 4)) + o, 4)

    P0 = int(OPT.get("p0", 11))
    SOFT, SG = int(OPT.get('sb', 1)), int(OPT.get('sg', 1))
    SFL, SFC, SFW, SFR, LC = 224, 228, 229, 230, 231
    b(f"""
    s_mul_i32 s43, s{SW}, {(144-NB)//4*1024}
    s_add_u32 s43, s43, {NB*1024}
    s_mov_b32 m0, s43
    s_mul_i32 s39, s{STW}, 36864
    """)
    pb = B()
    unit_offset(pb, UO, TMP, TMP + 1)
    pb(f"""
    s_mul_i32 s45, s{SW}, 9216
    s_mov_b32 s44, 0
    """)
    for k in range(3):
        pb(f"""
        s_mul_i32 s34, s{SI}, {int(OPT.get("rot2", 0))}
        s_add_u32 s34, s34, {k}
        s_mul_i32 s35, s34, 43
        s_lshr_b32 s35, s35, 7
        s_mul_i32 s35, s35, 3
        s_sub_u32 s34, s34, s35
        s_mul_i32 s34, s34, 3072
        s_add_u32 s{48+k}, s34, s45
        s_add_u32 s{51+k}, s{48+k}, {CH}
        v_add_u32 v{DV+k}, s{48+k}, v1
        """)
    pb(f"""
    s_mul_i32 s46, s{STW}, {16*18432}
    s_add_u32 s46, s46, s{SL}
    s_add_u32 s46, s46, {HB}
    s_and_b32 s35, s{SJ}, 12
    """)
    for m in range(4):
        pb(f"""
        s_add_u32 s34, s{SJ}, {m}
        s_and_b32 s34, s34, 3
        s_add_u32 s34, s34, s35
        s_mul_i32 s34, s34, 18432
        s_add_u32 s34, s34, s46
        v_add_u32 v{VH+m}, s34, v1
        """)
    pb(f"""
    s_mul_i32 s34, s{SJ}, 18432
    s_add_u32 s46, s46, s34
    s_lshl_b32 s41, s{STJ}, 9
    s_add_u32 s41, s41, s{SC}
    s_add_u32 s41, s41, {C_H}
    s_and_b32 s37, s{SJ}, 3
    s_lshl_b32 s34, s37, 7
    v_mov_b32 v{VFL}, s34
    v_mov_b32 v{VP}, {OOB}
    v_cmp_eq_u32 vcc, 0, v0
    s_mov_b32 s47, {(P0-5)//2}
    s_lshr_b32 s36, s{SJ}, 2
    v_cndmask_b32 v{VFL}, v{VP}, v{VFL}, vcc
    v_mov_b32 v{VP}, 2
    s_mul_i32 s34, s36, {SZX}
    s_mul_i32 s35, s{STW}, 36864
    s_add_u32 s34, s34, s35
    s_mul_i32 s35, s37, 4608
    s_add_u32 s34, s34, s35
    s_add_u32 s34, s34, s{SL}
    s_add_u32 s34, s34, {PART}
    s_lshl_b32 s35, s{STW}, 2
    s_add_u32 s37, s37, s35
    s_lshl_b32 s37, s37, 9
    s_add_u32 s37, s37, s{SC}
    s_add_u32 s37, s37, {C_P}
    s_cmp_eq_u32 s36, s{SW}
    s_cselect_b32 s34, {OOB}, s34
    s_cmp_eq_u32 s36, s{SW}
    s_cselect_b32 s37, {OOB}, s37
    s_add_u32 s35, s34, 4096
    v_add_u32 v{LO}, {4*CH}, v1
    v_mov_b32 v{SFC}, 0
    v_and_b32 v{FL+2}, 3, v0
    v_lshlrev_b32 v{FL+2}, 2, v{FL+2}
    v_add_u32 v{SFR}, {4*CH+12288}, v{FL+2}
    v_lshlrev_b32 v{FL+2}, 5, v{FL+2}
    s_lshl_b32 s38, s{SW}, 2
    s_add_u32 s38, s38, {4*CH+12288}
    v_mov_b32 v{SFW}, s38
    ds_write_b32 v{SFW}, v{SFC}
    s_mul_i32 s38, s{STW}, 3072
    s_add_u32 s38, s38, s{SL}
    s_add_u32 s38, s38, {S1}
    v_add_u32 v{LA}, {2*CH}, v1
    v_add_u32 v{LB}, {3*CH}, v1
    v_add_u32 v{LC}, {CH}, v1
    """)
    db = B()
    dma_run(db, (144 - NB) // 4, 16, 43, " sc1")
    dl, sl = [x.strip() for x in db.lines], [x.strip() for x in pb.lines]
    per = -(-len(sl) // ((144 - NB) // 4))
    for x in dl:
        b(x)
        if "buffer" in x:
            n = per + ("s_cmp" in "".join(sl[per-1:per]))
            b("\n".join(sl[:n]))
            sl = sl[n:]
    b("\n".join(sl + [f"s_mov_b32 s43, {4*CH}"]))
    b(f"s_add_u32 s39, s39, s{SL}\ns_add_u32 s39, s39, {X1}\ns_add_u32 s40, s39, 18432")
    rdf = lambda gi, i, base: f"ds_read_b128 {ring(gi)}, v{base} offset:{1024*i}"
    acc1 = lambda st, gu, rt: (ACC1 + 16 * st if st < 2 else 160 + 16 * st) + (gu * 2 + rt) * 4

    def rd01(j):
        if j >= 108:
            return rdf(j, j - 108, LB)
        return rdf(j, 2 * (j // 6) + j % 2, (1, LC, LA)[j % 6 // 2])

    stamp(b, 18)
    b(f"""
    s_lshl_b32 s60, s{STW}, 7
    s_add_u32 s60, s60, s{SC}
    s_add_u32 s60, s60, {C_X1}
    buffer_load_dword v4, v2, s[12:15], s60 offen sc1
    s_waitcnt vmcnt(1) lgkmcnt(0)
    s_barrier
    """)
    for j in range(6):
        b(rd01(j))
    if int(OPT.get("w2", 1)):
        walk(b, "wk2", "f_p1", "r_exit")
    b("s_waitcnt vmcnt(0)\nv_cmp_gt_u32 vcc, 4, v4\ns_nop 0\ns_cbranch_vccz f_ok")
    poll(b, "f", C_X1, STW, 4, False)
    stamp(b, 19)

    def xload(ks, rt):
        off = f" offset:{1024*(ks%4)}" if ks % 4 else ""
        t = f"buffer_load_dwordx4 {xb(ks,rt)}, v1, s[12:15], s{39+rt} offen{off} sc1 ;#x{ks}"
        if ks % 4 == 3:
            t += f"\ns_add_u32 s{39+rt}, s{39+rt}, 4096"
        return t

    XA = int(OPT.get("xa", 4))
    for ks in range(XA):
        for rt in range(2):
            b(xload(ks, rt))
    mains, pinned = [], []
    for ks in range(18):
        g0 = 12 * ks
        for st in range(3):
            for gu in range(2):
                for rt in range(2):
                    d = v(acc1(st, gu, rt), 4)
                    mains.append(mf16(d, ring(6 * ks + 2 * st + gu), xb(ks, rt), "0" if ks == 0 else d))
        pinned += [(g0 + 2 * k, rd01(6 * ks + 6 + k)) for k in range(6)]
        pinned.append((g0 + 5, "s_waitcnt lgkmcnt(3)"))
        pinned.append((g0 + 11, f"s_waitcnt vmcnt(@x{ks+1}) lgkmcnt(3)" if ks < 17 else "s_barrier"))
        if ks + XA < 18:
            for rt in range(2):
                for k, x in enumerate(xload(ks + XA, rt).split("\n")):
                    pinned.append((g0 + 1 + 6 * rt + k, x))
        if ks in (1, 3, 5):
            pinned.append((g0 + 3, stats_loads(ST, 38)[ks // 2]))
    pinned += [(12 * 17 + 7, rd01(114)), (12 * 17 + 9, rd01(115))]
    early4 = lambda i: [f"s_add_u32 m0, s45, {4096*i}", f"s_add_u32 s42, s45, {4*CH+4096*i}",
                        "buffer_load_dwordx4 v1, s[16:19], s42 offen sc1 lds ;#da"]
    pinned += [(12 * 13 + 9, f"s_lshl_b32 s45, s{SW}, 10"), (12 * 13 + 9, "s_barrier")]
    for i in range(6):
        gp = 12 * (14 + i // 2) + 1 + 6 * (i % 2)
        pinned += [(gp - 3, early4(i)[0]), (gp - 1, early4(i)[1]), (gp, early4(i)[2])]
    NL = fbits(-math.log2(math.e))
    ops = chain(stats_reduce(ST, ST, fbits(1e-5)) + [(f"v_rsq_f32 v{C1}, v{ST}", 1), f"v_rsq_f32 v{C1+1}, v{ST+1}", f"v_mov_b32 v{C2}, v{ST}", f"v_mov_b32 v{C2+1}, v{ST+1}",
                                    f"v_mul_f32 v{C1}, {NL}, v{C1}", f"v_mul_f32 v{C1+1}, {NL}, v{C1+1}"], earliest=12 * (6 + XA))
    b("s_waitcnt vmcnt(@x0) lgkmcnt(3)")
    b(sched2(mains, pinned, ops)[0])
    b("s_waitcnt lgkmcnt(0)")
    stamp(b, 20)

    def dma(par, others=(), gate=None, sin=False, step=CH, tag=None):
        out, others = [], list(others)
        if sin:
            for _ in range(min(2, len(others))):
                out += [(x, 0) for x in others.pop(0)]
        per = len(others) / 9
        for i in range(9):
            if i % 3 == 0:
                out.append((f"s_add_u32 m0, s44, s{48+i//3+(0 if par else 3)}", 0))
            ld = f"buffer_load_dwordx4 v{DV+i//3}, s[16:19], s43 offen" + (f" offset:{1024*(i%3)}" if i % 3 else "") + f"{OPT.get('wf', ' sc1')} lds ;#{tag or 'd%d' % par}"
            out.append((ld, 1 if i % 3 == 0 else 0))
            take = len(others) if i == 7 else min(len(others), int((i + 1) * per + 0.999) - int(i * per + 0.999))
            for _ in range(take if i < 8 else 0):
                out += [(x, 0) for x in others.pop(0)]
        out.append((f"s_add_u32 s43, s43, {step}", 0))
        if par == 0:
            out.append((f"s_xor_b32 s44, s44, {2*CH}", 0))
        ops = chain(out)
        if gate:
            for o in ops:
                if "s[12:15]" in o.text:
                    o.deps.append((gate, 0))
        return ops

    def swiglu(st, half, TMP=TMP):
        ops, last = [], []
        for k in range(8):
            rt, i = divmod(k, 4)
            g, u = acc1(st, 0, rt) + i, acc1(st, 1, rt) + i
            t, p = TMP + k, TMP + 8 + k
            c = chain([f"v_mul_f32 v{t}, v{C1+rt}, v{g}", f"v_exp_f32 v{t}, v{t}",
                       f"v_fma_f32 v{t}, v{t}, v{C2+rt}, v{C2+rt}", f"v_rcp_f32 v{t}, v{t}"], earliest=3, dist=1)
            m = Op(f"v_mul_f32 v{p}, v{g}, v{u}", earliest=4)
            f = Op(f"v_mul_f32 v{p}, v{p}, v{t}", [(c[-1], 1), (m, 0)])
            ops += c + [m, f]
            for o in c + [m, f]:
                o.bias = 3 * (1 - rt)
            last.append(f)
            if k % 2:
                cv = Op(f"v_cvt_pk_bf16_f32 v{STG+4*rt+2*half+i//2}, v{p-1}, v{p}", [(last[-2], 0), (f, 0)])
                ops.append(cv)
                if half and i == 3:
                    st_ = Op(f"buffer_store_dwordx4 {v(STG+4*rt,4)}, v1, s[12:15], s46 offen" + (" offset:1024" if rt else "") + " sc1",
                             [(cv, 0), (prevcv, 0)])
                    ops.append(st_)
                    if rt:
                        ops.append(Op("s_add_u32 s46, s46, 2048", [(st_, 0), (prevst, 0)]))
                    prevst = st_
                prevcv = cv
        return ops

    def progress(val):
        c = chain([f"v_add_u32 v{VP}, 1, v{VP}" if val is True else f"v_mov_b32 v{VP}, {val}",
                   f"buffer_store_dword v{VP}, v{VFL}, s[12:15], s41 offen sc1"])
        c[0].urgent = True
        return c

    slow = []
    flag_ld = f"buffer_load_dword v{FL}, v{FL+2}, s[12:15], s41 offen sc1"

    def guard(tag, load, wait, cmp, earliest):
        slow.append(f"""
{tag}_spin:
        s_mov_b32 s61, 0x80000
{tag}_again:
        {load}
        s_sub_u32 s61, s61, 1
        s_waitcnt {wait}(0)
        {cmp}
        s_cbranch_scc1 {tag}_back
        s_cbranch_vccnz {tag}_again
        s_branch {tag}_back
        """)
        c = chain([cmp, (f"s_cbranch_vccnz {tag}_spin\n{tag}_back:", 2)], earliest=earliest)
        for o in c:
            o.urgent = True
        return c

    check = lambda tag, need: guard(tag, flag_ld, "vmcnt", f"v_cmp_gt_u32 vcc, {need}, v{FL}", 0)
    flag_pin = [(int(OPT.get("fg", 21)), flag_ld + " ;#fl")]
    soft_read = f"ds_read_b32 v{SFL}, v{SFR}"
    soft_check = lambda: guard(f"fs{len(slow)}", soft_read, "lgkmcnt", f"v_cmp_gt_u32 vcc, v{SFC}, v{SFL}", SG + 6)

    def chunk(mains, par, extra, pins=(), order=None, nxt_order=None, last=False, endtag='', loads=(), gate=None, prog=False, sin=False, sout=False, step=CH, double=None):
        cur, nxt = (LA, LB) if par == 0 else (LB, LA)
        order = order or list(range(36))
        nxt_order = nxt_order or list(range(36))
        pinned = list(pins)
        for i in range(36):
            j = i + PD
            if j < 36 or not last:
                pinned.append((2 * i, rdf(j, order[j] if j < 36 else nxt_order[j - 36], cur if j < 36 else nxt)))
            if i % 4 == 3 and not (last and i == 35):
                n = PD - 4 if not last else max(0, min(PD - 4, 36 - (i + 5)))
                vm = ""
                if sin and 2 * i + 1 == SG + 6:
                    n = 3
                if sout:
                    if i == 31:
                        vm = f"vmcnt(@d{1-par}) "
                    if i == 35:
                        n, vm = n + 1, (f"vmcnt(@{endtag[1:]}) " if endtag else "")
                elif i == 35:
                    vm = f"vmcnt(@d{1-par}{endtag}) " if not (double and par) else ""
                pinned.append((2 * i + 1, f"s_waitcnt {vm}lgkmcnt({n})"))
        if not last:
            pinned.append((40, f"v_xor_b32 v{nxt}, {2*CH}, v{nxt}"))
        st = [o for o in extra[1] if 'store' in o.text]
        rest = [o for o in extra[1] if 'store' not in o.text]
        dm, pr, sc = dma(par, loads, gate, sin, step), (progress(prog) if prog else []), []
        if double:
            dm, second = dma(1, tag=double[0]), dma(0, tag=double[1])
            if par:
                dm = chain([(x, int("buffer" in x)) for i in range(6, 9) for x in early4(i)] + [f"s_add_u32 s43, s43, {CH}"])
            second[0].deps.append((dm[-1], 0))
            dm += second
        if sin:
            sc = soft_check()
            if gate:
                sc[0].deps.append((gate, 0))
            pinned.append((SG, soft_read))
            for o in dm + pr:
                if " lds" in o.text or "store" in o.text:
                    o.deps.append((sc[-1], 0))
        if sout:
            pinned += [(62, f"v_add_u32 v{SFC}, 1, v{SFC}"), (65, f"ds_write_b32 v{SFW}, v{SFC}")]
        txt, over, lastgap = sched2(mains, pinned, extra[0] + sc + pr + st + dm + rest, vspan=VS, vstart=1)
        ab = OPT.get("ab", "")
        if ab:
            keep, nd = [], 0
            for ln in txt.splitlines():
                if ln.startswith("ds_read_b128"):
                    nd += 1
                    if "r" in ab and (nd // 2) % 2:
                        ln = "ds_read_b32 v4, v2"
                if "d" in ab and " lds" in ln or "h" in ab and ";#h" in ln:
                    continue
                if "v" in ab and ln.startswith(("v_exp", "v_rcp", "v_fma")):
                    continue
                keep.append(ln)
            txt = "\n".join(keep)
        b(txt)
        if not last and not sout:
            b("s_barrier")
        return over, lastgap

    def p1_mains(st):
        return [mf16(v(acc1(st, gu, rt), 4), ring(2 * ks + gu), xb(ks, rt), "0" if ks == 0 else v(acc1(st, gu, rt), 4))
                for ks in range(18) for gu in range(2) for rt in range(2)]

    acc2 = lambda tl, rt: ACC2 + (tl * 2 + rt) * 4

    def p2_mains(c, first=False):
        return [mf16(v(acc2(tl, rt), 4), ring(9 * m + tl), hr(c, m, rt), "0" if first and m == 0 else v(acc2(tl, rt), 4))
                for m in range(4) for tl in range(9) for rt in range(2)]

    plan = {c: [] for c in range(P0, 27)}
    early = [(u, m, rt) for u in range(4) for m in range(4) for rt in range(2)]
    quota = {c: 0 for c in range(P0 + 1, 18)}
    for _ in early:
        c = min(quota, key=lambda c: (quota[c] + (0 if c % 2 else 1), c))
        quota[c] += 1
    for c in quota:
        plan[c], early = early[:quota[c]], early[quota[c]:]
    late = [(u, m, rt) for u in range(4, 8) for m in range(4) for rt in range(2)]
    L0, L1 = int(OPT.get("l0", 18)), int(OPT.get("l1", 24))
    for k, x in enumerate(late):
        plan[L0 + k * (L1 - L0) // len(late)].append(x)
    plan[24] += [(8, m, rt) for m in range(4) for rt in range(2)]
    need = {c: max([u for u, _, _ in plan[c]], default=-3) + 3 for c in plan}
    checks, seen = {P0 + 1: (P0 - 1) // 2}, (P0 - 1) // 2
    assert need[P0 + 1] <= seen and XA >= 4
    for c in range(P0 + 2, 26, 2):
        want = max(need[c], need[c + 1])
        if want > seen:
            assert want <= (c - 1) // 2 and c > P0 + 2
            checks[c] = seen = max(x for x in need.values() if x <= (c - 1) // 2)
    if OPT.get("nock"):
        checks = {c: 0 for c in checks}
    print("h plan", {c: len(x) for c, x in plan.items()}, "checks", checks, file=sys.stderr)

    def hstream(c):
        ld, cur = [], None
        for u, m, rt in plan[c]:
            off = 2048 * (u % 2) + 1024 * rt
            x = [f"buffer_load_dwordx4 {hr(18+u,m,rt)}, v{VH+m}, s[12:15], s47 offen" + (f" offset:{off}" if off else "") + f"{OPT.get('hf', ' sc1')} ;#h{u}"]
            if u // 2 != cur:
                cur = u // 2
                x.insert(0, f"s_mov_b32 s47, {4096*(cur % int(OPT.get('hmod', 9)))}")
            ld.append(x)
        return ld

    over = []
    for c in (3, 4):
        lo, hi = swiglu(2 * (c - 3), 0), swiglu(2 * (c - 3) + 1, 1, 160)
        for o in lo:
            o.bias = getattr(o, "bias", 0) + 2
        for o in hi:
            if "store" in o.text:
                o.deps += [(x, 0) for x in lo if "cvt" in x.text]
        over.append(chunk(p1_mains(3 if c == 3 else 0), c % 2, ([], lo + hi), double=("da", "db") if c == 3 else ("d1", "d0"),
                          pins=[(55, f"s_waitcnt vmcnt(@{'da' if c == 3 else 'db'})"), (55, "s_barrier")]))
    b(".p2align 3\nf_p1:")
    over.append(chunk(p1_mains(1), 1, ([], swiglu(0, 0)), prog=not OPT.get('nolp'), sin=SOFT, sout=SOFT))
    b("f_p1b:")
    over.append(chunk(p1_mains(0), 0, ([], swiglu(1, 1) + [Op("s_sub_u32 s47, s47, 1")]), sin=SOFT, sout=SOFT))
    b("s_cmp_lg_u32 s47, 0\ns_cbranch_scc1 f_p1")
    stamp(b, 21)
    tmaj = [9 * m + tl for tl in range(9) for m in range(4)]
    H0, H1 = int(OPT.get("h0", 12)), int(OPT.get("h1", 20))
    soft_edge = lambda c: SOFT and (c == P0 or not H0 <= c < H1)
    for c in range(P0, 26):
        ck = check(f"f{c}", checks[c]) if c in checks else []
        gate = ck[-1] if ck else None
        front = ck
        loads = hstream(c)
        act = swiglu(1 - c % 2, 1 - c % 2) if c <= 18 else []
        over.append(chunk(p1_mains(c % 2) if c < 18 else p2_mains(c, c == 18), c % 2, (front, act),
                          endtag=(f",h{c-17}" if c >= 17 else "") + (",fl" if c + 1 in checks else ""), pins=flag_pin if c + 1 in checks else [], nxt_order=tmaj if c == 25 else None, loads=loads, gate=gate, prog=(c + 1) // 2 if c % 2 and (c + 1) // 2 in checks.values() else False, sin=soft_edge(c), sout=soft_edge(c + 1), step=CH // 2 if c == 24 else CH))
        stamp(b, 100 + c)
        if c in (17, 18, 24):
            stamp(b, {17: 22, 18: 23, 24: 24}[c])
    mains = [mf16(v(acc2(tl, rt), 4), ring(4 * tl + m), hr(26, m, rt), v(acc2(tl, rt), 4)) for tl in range(9) for m in range(4) for rt in range(2)]

    def out_tile(tl):
        r, p, q = ACC1 + 4 * tl, acc2(tl, 0), acc2(tl, 1)
        return [f"v_cvt_pk_bf16_f32 v{r}, v{p}, v{p+1}", f"v_cvt_pk_bf16_f32 v{r+1}, v{p+2}, v{p+3}",
                f"v_cvt_pk_bf16_f32 v{r+2}, v{q}, v{q+1}", f"v_cvt_pk_bf16_f32 v{r+3}, v{q+2}, v{q+3}",
                (f"v_permlane16_swap_b32 v{r}, v{r+2}", 1), (f"v_permlane16_swap_b32 v{r+1}, v{r+3}", 0),
                f"buffer_store_dwordx4 {v(r,4)}, v{UO}, s[12:15], s{34+tl//8} offen offset:{512*(tl%8)} sc1 ;#o{tl//3}",
                f"ds_write_b128 v{LO}, {v(r,4)} offset:{1024*tl}"]

    outs, prev = [], None
    for tl in range(7):
        c = chain(out_tile(tl)[:7], earliest=8 * tl + 12, after=prev)
        outs += c
        prev = c[-1]
    over.append(chunk(mains, 0, (outs, []), order=tmaj, last=True, sin=soft_edge(26)))
    for tl in (7, 8):
        for t in out_tile(tl)[:7]:
            if isinstance(t, tuple):
                b(("s_nop 0\n" if t[1] else "") + t[0])
            else:
                b(t)
    b(f"s_cmp_lg_u32 s36, s{SW}\ns_cbranch_scc1 f_nokeep")
    for tl in range(9):
        b(out_tile(tl)[7])
    b("f_nokeep:")
    stamp(b, 25)
    print("ffn (overflow, last gap):", over, file=sys.stderr)
    return "\n".join(slow)


def phase_r(b, name):
    D0, PK, UO = 96, 80, 156
    side = B()
    d = lambda src, n: D0 + (src * 3 + n) * 4

    def add(src, n):
        for j in range(4):
            for h in range(2):
                r = RES + 8 * n + 2 * j + h
                b(f"v_dot2_f32_bf16 v{r}, v{d(src,n)+j}, s{30+h}, v{r}")

    def announce(n):
        b(f"s_waitcnt vmcnt(@o{n})\ns_mov_b64 exec, 1\nbuffer_atomic_add v3, v2, s[12:15], s37 offen offset:{128*n} sc1\ns_mov_b64 exec, -1")

    b(f"""
    s_mul_i32 s35, s{SW}, 3072
    s_add_u32 s35, s35, {4*CH}
    v_add_u32 v6, s35, v1
    """)
    announce(0)
    b("s_waitcnt lgkmcnt(0)\ns_barrier")
    for n in range(3):
        b(f"ds_read_b128 {v(d(0,n),4)}, v6 offset:{1024*n}")
    stats_target(b)
    tile_base(b, 34, 35)
    b(f"s_add_u32 s35, s34, s{SL}\ns_add_u32 s35, s35, {PART}")
    for k in range(1, 4):
        b(f"s_add_u32 s38, s36, {k}\ns_and_b32 s38, s38, 3\ns_mul_i32 s38, s38, {SZX}\ns_add_u32 s{39+k}, s38, s35")
    announce(1)
    b(f"""
    s_mov_b32 s20, s12
    s_mov_b32 s21, s13
    s_mov_b32 s22, {SZX}
    s_mov_b32 s23, 0x20000
    v_mov_b32 v10, v{UO}
    s_cmp_eq_u32 s{SL}, 0
    s_cbranch_scc1 r_mid
    """)
    row_tile(b, 10, 34)
    b(f"""
    s_mov_b32 s20, s6
    s_mov_b32 s21, s7
r_mid:
    s_lshl_b32 s39, s{SI}, 4
    s_add_u32 s39, s39, s{SJ}
    s_lshl_b32 s39, s39, 2
    s_add_u32 s39, s39, s{SW}
    s_waitcnt lgkmcnt(0)
    """)
    for n in range(3):
        add(0, n)
    b(f"""
    s_lshl_b32 s60, s39, 7
    s_add_u32 s60, s60, s{SC}
    s_add_u32 s60, s60, {C_P}
    s_cmp_eq_u32 s{SW}, 0
    s_cselect_b32 s60, s60, {OOB}
    buffer_load_dword v4, v2, s[12:15], s60 offen sc1
    """)
    announce(2)
    stamp(b, 26)
    b(f"s_cmp_eq_u32 s{SW}, 3\ns_cbranch_scc1 r_wq\ns_waitcnt vmcnt(1)\nv_cmp_gt_u32 vcc, 3, v4\ns_nop 0\ns_cbranch_vccz r_ok")
    poll(b, "r", C_P, 39, 3, False)
    stamp(b, 27)
    side(f"r_wq:\ns_cmp_lg_u32 s{SL}, 0\ns_cbranch_scc1 r_exit\ns_mov_b32 m0, {2*CH}\ns_nop 0")
    dma_run(side, 36, 16, 43, " sc1")
    side("s_waitcnt vmcnt(36)\ns_branch r_bar")
    for n in range(3):
        for src in range(1, 4):
            b(f"buffer_load_dwordx4 {v(d(src,n),4)}, v{UO}, s[12:15], s{39+src} offen offset:{512*n} sc1 ;#p{src}{n}")
    b(f"s_cmp_lg_u32 s{SL}, 0")
    for n in range(3):
        for src in range(1, 4):
            b(f"s_waitcnt vmcnt(@p{src}{n})")
            add(src, n)
        pack4(b, PK + 4 * n, RES + 8 * n, RES + 8 * n + 4)
        b(f"""
        s_cbranch_scc1 r_out{n}
        buffer_store_dwordx4 {v(PK+4*n,4)}, v10, s[20:23], s34 offen offset:{512*n} sc1
r_back{n}:
        """)
        side(f"r_out{n}:\nbuffer_store_dwordx4 {v(PK+4*n,4)}, v10, s[20:23], s34 offen offset:{32*n}\ns_branch r_back{n}")
    b("s_cbranch_scc1 r_exit")
    stats_publish(b, S2)
    stamp(b, 28)
    signal(b, "r", C_X2, STJ, wave=2)
    if DIAG:
        stamp(b, 29)
        stamp_real(b, 31)
        stamp_flush(b, "2")
        stamp_real(b, 30)
        stamp(b, 0)
    b(f"""
    s_mov_b32 s{SL}, {LST}
    s_add_u32 s{SC}, s{SC}, {CL}
    s_branch layer
r_exit:
    """)
    return side.text()


def walk(b, tag, lo, hi):
    if int(OPT.get("pad", 0)):
        b(f"s_nop 0 ;@walk {tag} {lo} {hi}")


def add_pads(txt):
    import subprocess
    sys.path.insert(0, "cdna_kernels")
    from cdna_launch import with_harness_metadata
    lines = txt.replace(".text\n", ".text\n.p2align 12\n", 1).splitlines()
    is_ins = lambda x: (lambda t: t and not t.startswith(".") and not t.endswith(":"))(x.split(";")[0].strip())

    def expand(pads, mark):
        out = []
        for i, x in enumerate(lines):
            if i in pads:
                out += [f"pad{pads.index(i)}:", "  s_cbranch_execz pad_end"]
            if ";@walk" in x:
                tag, lo, hi = x.split()[-3:]
                mine = [k for k, p in enumerate(pads) for a_, b_ in zip(lo.split(","), hi.split(",")) if lines.index(a_ + ":") <= p < lines.index(b_ + ":")]
                assert len(mine) <= 8
                out.append("  s_mov_b64 exec, 0")
                for w in range(4):
                    out += [f"  s_cmp_lg_u32 s{SW}, {w}", f"  s_cbranch_scc1 {tag}_w{w}"]
                    out += [f"  s_call_b64 s[60:61], pad{mine[k]}" if k < len(mine) else "  s_nop 0" for k in (w, w + 4)]
                    out.append(f"{tag}_w{w}:")
                out.append("  s_mov_b64 exec, -1")
            elif x.startswith("layer:"):
                out += ["  s_branch layer", "pad_end:", "  s_setpc_b64 s[60:61]", x]
            else:
                out.append(x + (f"\nmark{i}:" if mark and start < i < stop - 1 and is_ins(x) else ""))
        return "\n".join(out) + "\n"

    start, stop = lines.index("main_kernel:"), lines.index("main_code_end:")
    pads = []
    while True:
        open("pads.s", "w").write(with_harness_metadata(expand(pads, True), None, 10, launch_lists=True))
        subprocess.run(["clang", "-x", "assembler", "-target", "amdgcn-amd-amdhsa", "-mcpu=gfx950", "-c", "pads.s", "-o", "pads.o"], check=True)
        sym = subprocess.run(["llvm-objdump", "-t", "pads.o"], capture_output=True, text=True).stdout
        adr = {m.group(2): int(m.group(1), 16) for m in re.finditer(r"^([0-9a-f]+) .* (\w+)$", sym, re.M)}
        want = (adr["main_kernel"] // 4096 + len(pads) + 1) * 4096
        cand = [i for i in range(start, stop) if adr.get(f"mark{i}", -1) >= want and is_ins(lines[i + 1])
                and "exec" not in lines[i] and "exec" not in lines[i-1] and not lines[i].strip().startswith(("s_branch", "s_endpgm", "ds_write", "buffer_atomic"))]
        if not cand:
            break
        pads.append(cand[0] + 1)
    print("pads:", len(pads), file=sys.stderr)
    return expand(pads, False)


def gen_main(name):
    b = B()
    JB = int(OPT.get("jb", 2))
    head(b, name, 256, [(4, "ws"), (6, "out"), (100, "x")])
    ids = (f"""
    s_bfe_u32 s34, s2, {(4-JB) << 16}
    s_lshl_b32 s34, s34, {JB}
    s_bfe_u32 s35, s2, {(JB << 16) + 3}
    s_add_u32 s{SJ}, s34, s35
    s_bfe_u32 s34, s2, {((JB-1) << 16) + 4 - JB}
    s_lshl_b32 s34, s34, {5-JB}
    s_lshr_b32 s35, s2, {3+JB}
    s_add_u32 s{SI}, s34, s35
    s_lshl_b32 s34, s{SI}, 2
    s_add_u32 s{STW}, s34, s{SW}
    s_lshr_b32 s35, s{SJ}, 2
    s_add_u32 s{STJ}, s34, s35
    s_mov_b32 s{SL}, 0
    s_mov_b32 s{SC}, {CNT}
    s_mov_b32 s30, 0x3f80
    s_mov_b32 s31, 0x3f800000
    s_lshl_b32 s10, s{SW}, 10
    s_mul_i32 s11, s{SJ}, {WQH}
    s_add_u32 s11, s11, s10
    s_add_u32 s11, s11, {WQ}
    """).replace("s34", "s52").replace("s35", "s53")
    phase_p(b, ids)
    stamp(b, 207)
    raw_setup(b)
    if int(OPT.get("w1", 1)):
        walk(b, "wk1", "layer,r_exit", "a_sig,main_code_end")
    b("layer:")
    phase_q(b)
    slow = phase_a(b)
    slow += phase_o(b)
    slow += phase_f(b)
    slow += "\n" + phase_r(b, name)
    finish(b, name, "3")
    b(slow)
    b("main_code_end:")
    return dict(name=name, text=resolve_waits(b.text()), grid=256, block=256, lds=163840)


def build_all():
    import gen
    gen.OPT.clear()
    gen.OPT.update(ab=OPT.get('ab', ''))
    NAME = "interleave_layers__mha_block__glu_gated_swiglu__prompt_kernel"
    ks = [gen_main(NAME)]
    txt = gen.assemble(ks, [k["name"] for k in ks])
    txt = re.sub(r"(quad_perm|op_sel|op_sel_hi|neg_lo|neg_hi):\[([\d:]+)\]", lambda m: f"{m.group(1)}:[{m.group(2).replace(':', ',')}]", txt)
    return txt if OPT.get("list") else txt.replace(f"kernel={NAME} ", "")


if __name__ == "__main__":
    for x in [x for x in sys.argv if "=" in x]:
        k, val = x.split("=")
        OPT[k] = val.replace("_", " ")
        sys.argv.remove(x)
    if "--diag" in sys.argv:
        DIAG = True
        sys.argv.remove("--diag")
    open(sys.argv[1], "w").write(build_all())
```
